```python
import torch

def _softmax(x, axis=-1):
    return torch.softmax(x, dim=axis)

def _gelu(x):
    return torch.nn.functional.gelu(x, approximate='tanh')

def _silu(x):
    return torch.nn.functional.silu(x)

def _sigmoid(x):
    return torch.sigmoid(x)

def _layernorm(x, axis=-1, eps=1e-05):
    m = x.mean(dim=axis, keepdim=True)
    v = x.var(dim=axis, keepdim=True, unbiased=False)
    return (x - m) / torch.sqrt(v + eps)

def _scatter_add(tgt, idx, src, axis=0):
    return tgt.clone().index_add_(axis, idx, src)

def _segment_sum(src, seg, n):
    out = torch.zeros((n,) + src.shape[1:], dtype=src.dtype)
    return out.index_add_(0, seg, src)

def _pad(x, pw):
    flat = tuple((v for pair in reversed(pw) for v in pair))
    return torch.nn.functional.pad(x, flat)
kernel_name = 'gated_mix__memory_aug_recurrent_mem_tr__glu_gated_bilinear__prompt'

def setup_inputs():

    _w = lambda a: (lambda t: t.to(torch.bfloat16) if t.is_floating_point() else t)(torch.as_tensor(a))

    def _A_setup():
        B, S, Dm = (1, 2048, 640)
        H, Dh = (32, 128)
        M, seg = (8, 32)
        seg = min(seg, S)
        S = S // seg * seg
        return {'x': _w((lambda *s: torch.randn(*s, dtype=torch.bfloat16) * 0.05)(B, S, Dm)), 'mem0': _w((lambda *s: torch.randn(*s, dtype=torch.bfloat16) * 0.4)(B, M, Dm)), 'Wq': _w((lambda *s: torch.randn(*s, dtype=torch.bfloat16) * 6.4)(Dm, H, Dh) * Dm ** (-0.5)), 'Wk': _w((lambda *s: torch.randn(*s, dtype=torch.bfloat16) * 6.4)(Dm, H, Dh) * Dm ** (-0.5)), 'Wv': _w((lambda *s: torch.randn(*s, dtype=torch.bfloat16) * 0.4)(Dm, H, Dh) * Dm ** (-0.5)), 'Wo': _w((lambda *s: torch.randn(*s, dtype=torch.bfloat16) * 0.4)(H, Dh, Dm) * (H * Dh) ** (-0.5)), 'seg_len': seg}
    _A_in = _A_setup()

    def _B_setup():
        B, S, D, F = (1, 2048, 640, 1728)
        return {'x': _w((lambda *s: torch.randn(*s, dtype=torch.bfloat16) * 0.05)(B, S, D)), 'w_gate': _w((lambda *s: torch.randn(*s, dtype=torch.bfloat16) * 1.6)(D, F) * D ** (-0.5)), 'w_up': _w((lambda *s: torch.randn(*s, dtype=torch.bfloat16) * 1.6)(D, F) * D ** (-0.5)), 'w_down': _w((lambda *s: torch.randn(*s, dtype=torch.bfloat16) * 1.6)(F, D) * F ** (-0.5))}
    _B_in = _B_setup()
    return {'A_x': _A_in['x'], 'A_mem0': _A_in['mem0'], 'A_Wq': _A_in['Wq'], 'A_Wk': _A_in['Wk'], 'A_Wv': _A_in['Wv'], 'A_Wo': _A_in['Wo'], 'A_seg_len': _A_in['seg_len'], 'B_x': _B_in['x'], 'B_w_gate': _B_in['w_gate'], 'B_w_up': _B_in['w_up'], 'B_w_down': _B_in['w_down'], 'gate_w': _w((lambda *s: torch.randn(*s, dtype=torch.bfloat16) * 0.05)(640) * 16.0)}

def reference(A_x, A_mem0, A_Wq, A_Wk, A_Wv, A_Wo, A_seg_len, B_x, B_w_gate, B_w_up, B_w_down, gate_w):

    def _A_ref(x, mem0, Wq, Wk, Wv, Wo, seg_len):
        B, S, Dm = x.shape
        H, Dh = (Wq.shape[1], Wq.shape[2])
        M = mem0.shape[1]
        scale = Dh ** (-0.5)
        n_seg = S // seg_len
        L = M + seg_len
        idx = torch.arange(L)
        mask = (idx[:, None] < M) | (idx[:, None] >= idx[None, :])
        mem = mem0
        outs = []
        for s in range(n_seg):
            xs = x[:, s * seg_len:(s + 1) * seg_len, :].clone()
            h = torch.concatenate([mem, xs], axis=1)
            q = torch.einsum('btd,dhe->bhte', h, Wq)
            k = torch.einsum('btd,dhe->bhte', h, Wk)
            v = torch.einsum('btd,dhe->bhte', h, Wv)
            scores = torch.einsum('bhqe,bhke->bhqk', q, k) * scale
            scores = torch.where(mask[None, None], scores, -1000000000.0)
            p = _softmax(scores, axis=-1)
            o = torch.einsum('bhqk,bhke->bhqe', p, v)
            o = torch.einsum('bhte,hed->btd', o, Wo)
            mem = o[:, :M, :].clone()
            outs.append(o[:, M:, :])
        return torch.concatenate(outs, axis=1)

    def _B_ref(x, w_gate, w_up, w_down):
        g = torch.einsum('bsd,df->bsf', x, w_gate)
        u = torch.einsum('bsd,df->bsf', x, w_up)
        h = g * u
        return torch.einsum('bsf,fd->bsd', h, w_down)
    x = A_x
    g = _sigmoid((x * gate_w).sum(-1, keepdims=True))
    a = _A_ref(x, A_mem0, A_Wq, A_Wk, A_Wv, A_Wo, A_seg_len)
    b = _B_ref(x, B_w_gate, B_w_up, B_w_down)
    return g * a + (1 - g) * b
```

```python
import re

def regs_of(tok):
    tok = tok.strip()
    neg = tok.lstrip('-')
    m = re.fullmatch(r'abs\((.*)\)', neg) or re.fullmatch(r'\|(.*)\|', neg)
    if m: neg = m.group(1)
    m = re.fullmatch(r'([vas])(\d+)', neg)
    if m: return [(m.group(1), int(m.group(2)))]
    m = re.fullmatch(r'([vas])\[(\d+):(\d+)\]', neg)
    if m: return [(m.group(1), i) for i in range(int(m.group(2)), int(m.group(3)) + 1)]
    if neg == 'vcc': return [('s', 106), ('s', 107)]
    if neg == 'vcc_lo': return [('s', 106)]
    if neg == 'vcc_hi': return [('s', 107)]
    if neg == 'exec': return [('s', 126), ('s', 127)]
    if neg == 'm0': return [('s', 124)]
    return []

TRANS = ('v_exp_f32', 'v_log_f32', 'v_rcp_f32', 'v_rsq_f32', 'v_sqrt_f32', 'v_sin_f32', 'v_cos_f32')

class Ins:
    __slots__ = ('text', 'op', 'kind', 'wr', 'rd', 'srcC', 'srcAB', 'passes', 'ws', 'dpp', 'stdata', 'lds_dma', 'label')
    def __init__(self, text):
        self.text = text
        self.label = False
        t = text.split(';')[0].strip()
        self.wr = set(); self.rd = set(); self.srcC = set(); self.srcAB = set(); self.stdata = set()
        self.passes = 0; self.ws = 1; self.dpp = False; self.lds_dma = False
        if t.endswith(':') or t.startswith('.') or t == '':
            self.op = ''; self.kind = 'label' if t.endswith(':') else 'none'; self.ws = 0
            return
        parts = t.split(None, 1)
        op = parts[0]; self.op = op
        rest = parts[1] if len(parts) > 1 else ''
        ops = [o.strip() for o in rest.split(',')] if rest else []
        mods = ''
        if ops:
            last = ops[-1].split(None, 1)
            ops[-1] = last[0] if last else ''
            mods = last[1] if len(last) > 1 else ''
        if 'quad_perm' in rest:
            head = rest[:rest.index('quad_perm')]
            ops = [o.strip() for o in head.strip().split(',')]
            mods = rest[rest.index('quad_perm'):]
        R = lambda i: set(regs_of(ops[i])) if i < len(ops) else set()
        if op.startswith('v_mfma') or op.startswith('v_smfmac'):
            self.kind = 'mfma'
            self.wr = R(0); self.srcAB = R(1) | R(2)
            if op.startswith('v_smfmac'):
                self.srcC = R(0); self.srcAB |= R(3)
            else:
                self.srcC = R(3)
            self.rd = self.srcAB | self.srcC
            self.passes = 8 if '32x32' in op else 4
        elif op.startswith('v_'):
            self.kind = 'valu'
            base = op.replace('_e32', '').replace('_e64', '').replace('_dpp', '')
            self.dpp = ('quad_perm' in mods or 'row_' in mods or op.endswith('_dpp'))
            if base.startswith('v_cmp'):
                self.wr = R(0); self.rd = R(1) | R(2)
                if base.startswith('v_cmpx'): self.wr |= set(regs_of('exec'))
            elif base.startswith('v_permlane') and 'swap' in base:
                self.wr = R(0) | R(1); self.rd = R(0) | R(1); self.kind = 'permlane'
            elif base in ('v_readfirstlane_b32', 'v_readlane_b32'):
                self.wr = R(0); self.rd = R(1) | R(2); self.kind = 'readlane'
            elif base in ('v_add_co_u32', 'v_sub_co_u32', 'v_addc_co_u32', 'v_subb_co_u32'):
                self.wr = R(0) | R(1); self.rd = set().union(*[R(i) for i in range(2, len(ops))])
            else:
                self.wr = R(0); self.rd = set().union(*[R(i) for i in range(1, len(ops))]) if len(ops) > 1 else set()
                if base.startswith('v_fmac') or base.startswith('v_pk_fmac') or self.dpp or base == 'v_writelane_b32': self.rd |= R(0)
                if base in TRANS: self.kind = 'trans'
            if op == 'v_nop': self.wr = set(); self.rd = set()
        elif op.startswith('ds_'):
            self.kind = 'ds'
            if op.startswith('ds_read') or op.startswith('ds_bpermute') or op.startswith('ds_swizzle') or op.startswith('ds_permute'):
                self.wr = R(0); self.rd = set().union(*[R(i) for i in range(1, len(ops))])
            else:
                self.rd = set().union(*[R(i) for i in range(len(ops))])
        elif op.startswith('buffer_') or op.startswith('global_'):
            self.kind = 'vmem'
            islds = (' lds' in (' ' + mods)) or '_lds_' in op
            if op.startswith('buffer_wbl2') or op.startswith('buffer_inv'):
                pass
            elif 'load' in op and not islds:
                self.wr = R(0); self.rd = set().union(*[R(i) for i in range(1, len(ops))])
            elif 'load' in op:
                self.lds_dma = True
                self.rd = set().union(*[R(i) for i in range(len(ops))]) | {('s', 124)}
            else:
                self.rd = set().union(*[R(i) for i in range(len(ops))])
                if 'atomic' in op and ('sc0' in mods):
                    self.wr = R(0)
                if op.endswith('x3') or op.endswith('x4'):
                    self.stdata = R(0) if op.startswith('buffer_') else R(1)
        elif op.startswith('s_'):
            self.kind = 'salu'
            if op == 's_nop':
                self.ws = int(ops[0], 0) + 1
            elif op.startswith('s_cmp') or op.startswith('s_cbranch') or op.startswith('s_branch') or op in ('s_barrier', 's_waitcnt', 's_endpgm', 's_sleep', 's_setprio', 's_bitcmp0_b32', 's_bitcmp1_b32'):
                self.rd = set().union(*[R(i) for i in range(len(ops))]) if ops else set()
            else:
                self.wr = R(0); self.rd = set().union(*[R(i) for i in range(1, len(ops))]) if len(ops) > 1 else set()
                if 'saveexec' in op: self.wr |= set(regs_of('exec'))
        else:
            raise ValueError('unknown instruction: ' + text)

VALU_KINDS = ('valu', 'trans', 'permlane', 'readlane')

def need(p, c):
    n = 0
    pv = p.kind in VALU_KINDS
    cv = c.kind in VALU_KINDS
    vw = {r for r in p.wr if r[0] in 'va'}
    sw = {r for r in p.wr if r[0] == 's'}
    if pv:
        if c.kind == 'mfma' and (vw & c.rd): n = max(n, 2)
        if c.kind == 'mfma' and (('s', 126) in sw): n = max(n, 4)
        if c.kind == 'permlane' and (vw & c.rd): n = max(n, 2)
        if c.kind == 'readlane' and (vw & c.rd): n = max(n, 1)
        if cv and c.dpp and (vw & c.rd): n = max(n, 2)
        if cv and c.dpp and (('s', 126) in sw): n = max(n, 5)
        if p.kind == 'trans' and cv and c.kind != 'trans' and (vw & c.rd): n = max(n, 1)
        if p.kind == 'trans' and c.kind == 'trans' and (vw & c.rd): n = max(n, 1)
        if sw:
            if c.kind == 'vmem' and (sw & c.rd): n = max(n, 5)
            if cv and (sw & c.rd): n = max(n, 4 if c.kind == 'readlane' else 2)
            if c.kind == 'salu' and (sw & c.rd): n = max(n, 1)
            if ('s', 126) in sw and c.kind in ('readlane', 'permlane'): n = max(n, 4)
    if p.kind == 'mfma':
        big = 12 if p.passes == 8 else 8
        ovl = 10 if p.passes == 8 else 6
        if c.kind == 'mfma':
            if p.wr & c.srcAB: n = max(n, big)
            if p.wr & (c.srcC | c.wr):
                same = (p.wr == c.srcC and p.passes == c.passes and c.wr == p.wr)
                if not same: n = max(n, ovl)
        elif cv or c.kind in ('ds', 'vmem'):
            if p.wr & (c.rd | c.wr): n = max(n, big)
            if cv and (p.srcC & c.wr): n = max(n, 7 if p.passes == 8 else 3)
    if p.kind == 'vmem' and p.stdata:
        if (p.stdata & c.wr): n = max(n, 2 if cv else 1)
    if p.kind == 'salu' and ('s', 124) in p.wr and c.kind == 'vmem' and c.lds_dma: n = max(n, 1)
    return n

class Asm:
    def __init__(self):
        self.ins = []
        self.uid = 0
    def __call__(self, text):
        for line in text.split('\n'):
            line = line.strip()
            if line == '' : continue
            if line.startswith(';'):
                self.ins.append(Ins(line.replace(';', ';', 1))); continue
            self.ins.append(Ins(line))
    def label(self, name): self.ins.append(Ins(name + ':'))
    def newlabel(self, p='L'):
        self.uid += 1
        return f'{p}_{self.uid}'
    def pad(self, conservative_labels=True):
        ins = self.ins
        labels = {}
        out = []
        changed = True
        it = 0
        while changed:
            it += 1
            changed = False
            labels = {x.text.split(';')[0].strip()[:-1]: i for i, x in enumerate(ins) if x.kind == 'label'}
            jumps = {}
            for i, x in enumerate(ins):
                if x.kind == 'salu' and (x.op.startswith('s_cbranch') or x.op == 's_branch'):
                    tgt = x.text.split(';')[0].split()[1]
                    jumps.setdefault(labels[tgt], []).append(i)
            def back(i, dist, c, depth):
                miss = 0
                j = i - 1
                while j >= 0 and dist < 20:
                    x = ins[j]
                    if x.kind == 'label':
                        if depth < 3:
                            for src in jumps.get(j, []):
                                miss = max(miss, back(src + 1, dist, c, depth + 1))
                    elif x.kind != 'none':
                        if j != i - 1 or True:
                            if x.op in ('s_branch', 's_endpgm') and not (depth > 0 and j == i - 1):
                                break
                        nn = need(x, c)
                        if nn > dist: miss = max(miss, nn - dist)
                        dist += x.ws
                    j -= 1
                return miss
            out = []
            i = 0
            new = []
            for i, c in enumerate(ins):
                if c.kind not in ('label', 'none'):
                    m = back(i, 0, c, 0)
                    if m > 0:
                        new.append((i, m))
            if new:
                changed = True
                res = []
                last = -100
                todo = dict()
                for i, m in new:
                    if i - last > 24:
                        todo[i] = m; last = i
                for i, c in enumerate(ins):
                    if i in todo:
                        m = todo[i]
                        while m > 0:
                            k = min(m, 16); res.append(Ins(f's_nop {k-1}')); m -= k
                    res.append(c)
                ins = res
            if it > 400: raise RuntimeError('pad did not converge')
        self.ins = ins
    def text(self):
        o = []
        for x in self.ins:
            o.append(x.text if x.kind == 'label' else '    ' + x.text)
        return '\n'.join(o) + '\n'

def v(a, n=1): return f'v{a}' if n == 1 else f'v[{a}:{a+n-1}]'
def a_(a, n=1): return f'a{a}' if n == 1 else f'a[{a}:{a+n-1}]'
def s(a, n=1): return f's{a}' if n == 1 else f's[{a}:{a+n-1}]'
def u(r, n=1):
    assert (r < 256) == (r + n - 1 < 256)
    return v(r, n) if r < 256 else a_(r - 256, n)
```

```python
from asmlib import *
from gen import *

L_KX = 0
L_ML = 16384
L_MR = 24576
L_X  = 32768
L_O  = 36864
L_M4 = 38912
L_RES = 40960
RES_STRIDE = 30720

class VM:
    def __init__(self, A): self.A = A; self.q = []
    def issue(self, text, tag): self.A(text); self.q.append(tag)
    def wait(self, tag, extra=""):
        last = max(i for i, t in enumerate(self.q) if t == tag)
        n = len(self.q) - 1 - last
        assert n <= 63
        self.A(f"s_waitcnt vmcnt({n})" + extra)
        self.q = self.q[last + 1:]
    def drain(self, extra=""):
        self.A("s_waitcnt vmcnt(0)" + extra); self.q = []

def gen_chain(A, opt):
    W = f"s[{S_WS}:{S_WS+3}]"
    D = f"s[{S_DBG}:{S_DBG+3}]"
    SW = 16
    s_step, s_t0, s_t1, s_t2, s_spin = 20, 21, 22, 23, 24
    s_xb = 25
    s_mlb, s_mrw, s_mrr = 26, 27, 28
    s_vxw, s_vxr = 29, 30
    s_pb = 31
    s_pw = 32
    s_isred = 33
    s_susp, s_sent, s_kv = 34, 35, 40
    P0 = 36
    s_al, s_ar, s_pcur, s_poth, s_vw, s_vr, s_vpo, s_mlo, s_mro, s_mlp, s_mrp = range(41, 52)
    s_res, s_kxm, s_csc, s_km, s_prog, s_hbit, s_mode = range(52, 59)
    s_valid = 60
    s_c0 = 62
    n = [1]
    def al(k=1, align=1):
        while n[0] % align: n[0] += 1
        r = n[0]; n[0] += k; return r
    vL = 0; vA16 = al()
    vVM0 = al(1, 2); vIDX = al(); vVM1 = al(1, 2); vA4 = al()
    vPM = al(2, 2)
    vSEL = al(4, 2); vONE = al(4, 2); vSENT = al(4, 2)
    vA8 = al()
    aWV = [al(), al()]; aWO0 = al(); aWOB = al()
    aXW = al(); aXP = al(); aKX = al(); aOW = al(); aOR = al(); aMW = al(); aM4 = al()
    gRED = al(); gMO = al(); gKX = al(); gVX = al(); gKM = al(); gVM = al(); gL0 = vL
    vM = al(); vM2 = al()
    base = al(0, 4)
    AL = [base + 4 * i for i in range(5)]; AR = [base + 20 + 4 * i for i in range(5)]
    ACC = base + 40
    LAND = base + 64
    assert LAND + 48 <= 152, LAND
    aV = [ACC, ACC + 4]; aQ = [ACC + 8, ACC + 12]; aK = [ACC + 16, ACC + 20]
    wl = [256 + 8 * i for i in range(32)] + [152 + 8 * i for i in range(13)]
    WQ = lambda T, t: wl[(T * 2 + t) * 2]
    WK = lambda T, t: wl[(T * 2 + t) * 2 + 1]
    WO1 = lambda t: wl[40 + t]
    T0, T1, T2, T3 = LAND, LAND + 1, LAND + 2, LAND + 3

    def bf(dst, src, off, wd): A(f"v_bfe_u32 v{dst}, v{src}, {off}, {wd}")
    def lin(dst, terms, const=None):
        first = True
        for (off, wd, sh) in terms:
            if first:
                bf(dst, vL, off, wd)
                if sh: A(f"v_lshlrev_b32 v{dst}, {sh}, v{dst}")
                first = False
            else:
                bf(T3, vL, off, wd)
                A(f"v_lshl_add_u32 v{dst}, v{T3}, {sh}, v{dst}")
        if const is not None: A(f"v_add_u32 v{dst}, {const}, v{dst}")

    stamp(A, opt, 0, vt=(T0, T1, T2))
    A(f"v_and_b32 v{vL}, 63, v0")
    A(f"v_lshlrev_b32 v{vA16}, 4, v{vL}")
    A(f"v_lshlrev_b32 v{vA8}, 3, v{vL}")
    A(f"v_lshlrev_b32 v{vA4}, 2, v{vL}")
    A(f"s_mul_i32 s{s_res}, s5, {RES_STRIDE}")
    A(f"s_add_u32 s{s_res}, s{s_res}, {L_RES}")
    vm = VM(A)
    dQ = [AL[0], AL[0] + 1]
    dOA, dOB = AL[0] + 2, AL[0] + 3
    aQK = [AL[1], AL[1] + 1, AL[1] + 2, AL[1] + 3]
    def colchunk(dst):
        A(f"v_bfe_u32 v{T0}, v{vL}, 4, 1")
        A(f"v_lshlrev_b32 v{T0}, 1, v{T0}")
        A(f"v_and_b32 v{T1}, 3, v{vL}")
        A(f"v_xor_b32 v{T0}, v{T0}, v{T1}")
        A(f"v_lshl_add_u32 v{dst}, v{T0}, 4, v{dst}")
    lin(dQ[0], [(2, 1, 17), (5, 1, 15), (3, 1, 14), (4, 1, 13)]); colchunk(dQ[0])
    lin(dQ[1], [(5, 1, 17), (3, 1, 16), (4, 1, 15), (2, 1, 13)]); colchunk(dQ[1])
    mpart = [lambda m: 32 * (m & 1) + 8 * (m >> 1), lambda m: 32 * (m >> 1) + 2 * (m & 1)]
    lin(T2, [(4, 1, 5), (5, 1, 4), (3, 1, 0)])
    A(f"v_mul_u32_u24 v{dOA}, 1280, v{T2}")
    A(f"v_bfe_u32 v{T0}, v{vL}, 4, 2")
    A(f"v_lshlrev_b32 v{T0}, 1, v{T0}")
    A(f"v_and_b32 v{T1}, 7, v{vL}")
    A(f"v_xor_b32 v{T0}, v{T0}, v{T1}")
    A(f"v_lshl_add_u32 v{dOA}, v{T0}, 4, v{dOA}")
    lin(T2, [(2, 1, 5), (3, 1, 4), (4, 1, 2), (1, 1, 0), (5, 1, 1)])
    A(f"v_mul_u32_u24 v{dOB}, 1280, v{T2}")
    A(f"v_and_b32 v{T0}, 1, v{vL}")
    A(f"v_lshl_add_u32 v{dOB}, v{T0}, 4, v{dOB}")
    lin(aWV[0], [(2, 4, 6), (4, 1, 5), (0, 2, 3)], f"s{s_res}")
    A(f"v_xor_b32 v{aWV[1]}, 32, v{aWV[0]}")
    lin(aQK[0], [(2, 4, 6), (4, 1, 5), (0, 1, 4), (1, 1, 3)])
    A(f"s_lshl_b32 s{s_t0}, s5, 13")
    A(f"v_add_u32 v{aQK[2]}, s{s_t0}, v{aQK[0]}")
    A(f"v_add_u32 v{aQK[0]}, s{s_res}, v{aQK[0]}")
    A(f"v_xor_b32 v{aQK[1]}, 32, v{aQK[0]}")
    A(f"v_xor_b32 v{aQK[3]}, 32, v{aQK[2]}")
    lin(aWO0, [(2, 4, 7), (3, 2, 5), (0, 2, 3)], f"s{s_res}")
    A(f"v_add_u32 v{aWOB}, s{s_res}, v{vA8}")

    def load_ptr(ka, nbytes):
        A(f"s_load_dwordx2 s[{P0}:{P0+1}], s[0:1], {ka}")
        A("s_waitcnt lgkmcnt(0)")
    SQ, SK, SV, SO = 64, 68, 72, 76
    A(f"s_load_dwordx4 s[80:83], s[0:1], {KA_WQ}")
    A(f"s_load_dwordx4 s[84:87], s[0:1], {KA_WV}")
    A("s_waitcnt lgkmcnt(0)")
    srd(A, SQ, 80, 81, 640 * 8192); srd(A, SK, 82, 83, 640 * 8192); srd(A, SV, 84, 85, 640 * 8192); srd(A, SO, 86, 87, 4096 * 1280)
    s_cq, s_loc, s_rem, s_oa = 88, 89, 90, 91
    A(f"s_lshl_b32 s{s_cq}, s4, 8")
    A(f"s_lshl_b32 s{s_t0}, s5, 6")
    A(f"s_add_u32 s{s_cq}, s{s_cq}, s{s_t0}")
    A(f"s_mul_i32 s{s_loc}, s3, {320*8192}")
    A(f"s_sub_u32 s{s_rem}, {320*8192}, s{s_loc}")
    A(f"s_add_u32 s{s_loc}, s{s_loc}, s{s_cq}")
    A(f"s_add_u32 s{s_rem}, s{s_rem}, s{s_cq}")
    A(f"s_mul_i32 s{s_oa}, s4, {128*1280}")
    A(f"s_mul_i32 s{s_t0}, s3, 640")
    A(f"s_add_u32 s{s_oa}, s{s_oa}, s{s_t0}")
    def slot_m0(slot, extra):
        if slot < 5: A(f"s_add_u32 m0, s{s_res}, {slot*4096 + extra}")
        else:
            A(f"s_lshl_b32 m0, s5, 13")
            A(f"s_add_u32 m0, m0, {(slot-5)*4096 + extra}")
    def dma_panel(srdn, T, slot, tag):
        t = T % 5; k = 1 if t == 4 else 0
        if t < 4:
            A(f"s_add_u32 s{s_t1}, s5, {t}")
            A(f"s_and_b32 s{s_t1}, s{s_t1}, 3")
            A(f"s_lshl_b32 s{s_t1}, s{s_t1}, 19")
        else:
            A(f"s_mov_b32 s{s_t1}, {256*8192}")
        A(f"s_add_u32 s{s_t1}, s{s_t1}, s{s_loc if T < 5 else s_rem}")
        for m in range(4):
            slot_m0(slot, m * 1024)
            A(f"s_add_u32 s{s_t0}, s{s_t1}, {mpart[k](m)*8192}")
            vm.issue(f"buffer_load_dwordx4 v{dQ[k]}, s[{srdn}:{srdn+3}], s{s_t0} offen lds", tag)
    def dma_wo(kap, tag):
        A(f"s_lshl_b32 s{s_t1}, s5, 7")
        A(f"s_add_u32 s{s_t1}, s{s_t1}, s{s_oa}")
        for i in range(8):
            m = i >> 1
            A(f"s_add_u32 m0, s{s_res}, {20480 + i*1024}")
            A(f"s_add_u32 s{s_t0}, s{s_t1}, {(64*kap + 4*(i&1) + 8*(m>>1) + 2*(m&1))*1280}")
            vm.issue(f"buffer_load_dwordx4 v{dOA}, s[{SO}:{SO+3}], s{s_t0} offen lds", tag)
        A(f"s_lshl_b32 s{s_t1}, s5, 5")
        A(f"s_add_u32 s{s_t1}, s{s_t1}, s{s_oa}")
        for i in range(2):
            A(f"s_add_u32 m0, s{s_res}, {20480 + 8192 + i*1024}")
            A(f"s_add_u32 s{s_t0}, s{s_t1}, {(64*kap + 8*i)*1280 + 512}")
            vm.issue(f"buffer_load_dwordx4 v{dOB}, s[{SO}:{SO+3}], s{s_t0} offen lds", tag)
    def wo_reads(dst):
        aWO = [aWO0, AR[4], AR[4] + 1, AR[4] + 2]
        L = [f"v_xor_b32 v{aWO[t]}, {32*t}, v{aWO0}" for t in range(1, 4)]
        for t in range(5):
            for m in range(4):
                if t < 4: L.append(f"ds_read_b64_tr_b16 {u(dst(t)+2*m,2)}, v{aWO[t]} offset:{20480 + m*2048}")
                else:     L.append(f"ds_read_b64_tr_b16 {u(dst(t)+2*m,2)}, v{aWOB} offset:{20480 + 8192 + m*512}")
        return L
    panels = []
    for T in range(10): panels += [(SQ, T, WQ), (SK, T, WK)]
    dma_wo(1, 'wo1')
    for p in range(7): dma_panel(panels[p][0], panels[p][1], p, f'p{p}')

    A(f"s_mov_b32 s{s_susp}, {SUSP:#x}")
    A(f"s_mov_b32 s{s_sent}, {SENT:#x}")
    A(f"s_mov_b32 s{s_csc}, {fbits(CSCALE):#x}")
    A(f"s_mov_b32 s{s_valid}, 0x33333333")
    A(f"s_mov_b32 s{s_valid+1}, 0x33333333")
    for i in range(4):
        A(f"v_mov_b32 v{vONE+i}, 0x3f803f80")
        A(f"v_mov_b32 v{vSENT+i}, s{s_sent}")
    A(f"v_mov_b32 v{vPM+1}, 0")
    A(f"v_mov_b32 v{vIDX}, 0x4444")
    A(f"v_mov_b32 v{T0}, 0xeeee")
    A(f"v_and_b32 v{T1}, 2, v{vL}")
    A(f"v_cmp_ne_u32 vcc, 0, v{T1}")
    A(f"v_cndmask_b32 v{vIDX}, v{vIDX}, v{T0}, vcc")
    A(f"v_and_b32 v{T1}, 15, v{vL}")
    for t in range(4):
        A(f"v_mov_b32 v{vSEL+t}, 0")
        A(f"v_mov_b32 v{T0}, 0x3f80")
        A(f"v_cmp_eq_u32 vcc, {t}, v{T1}")
        A(f"v_cndmask_b32 v{vSEL+t}, v{vSEL+t}, v{T0}, vcc")
        A(f"v_mov_b32 v{T0}, 0x3f800000")
        A(f"v_cmp_eq_u32 vcc, {4+t}, v{T1}")
        A(f"v_cndmask_b32 v{vSEL+t}, v{vSEL+t}, v{T0}, vcc")
    A(f"s_lshl_b32 s{s_t0}, s5, 10")
    A(f"s_add_u32 s{s_t0}, s{s_t0}, {L_X}")
    lin(aXW, [(2, 1, 9), (3, 1, 7), (0, 2, 5), (4, 2, 3)], f"s{s_t0}")
    A(f"v_add_u32 v{aXP}, s{s_t0}, v{vA8}")
    A(f"v_mov_b32 v{aKX}, v{vA16}")
    A(f"s_lshr_b32 s{s_t0}, s5, 1")
    A(f"s_lshl_b32 s{s_t0}, s{s_t0}, 10")
    A(f"s_and_b32 s{s_t1}, s5, 1")
    A(f"s_lshl_b32 s{s_t1}, s{s_t1}, 7")
    A(f"s_add_u32 s{s_t0}, s{s_t0}, s{s_t1}")
    A(f"s_add_u32 s{s_t0}, s{s_t0}, {L_O}")
    lin(aOW, [(4, 2, 8), (2, 2, 5), (0, 1, 4), (1, 1, 11)], f"s{s_t0}")
    lin(aOR, [(4, 2, 8), (2, 2, 5), (0, 1, 4), (1, 1, 7)], L_O)
    A(f"s_lshl_b32 s{s_t0}, s5, 11")
    lin(gKX, [(4, 2, 9), (3, 1, 8), (0, 3, 4)], f"s{s_t0}")
    lin(gVX, [(4, 2, 9), (0, 4, 4)], f"s{s_t0}")
    A(f"s_lshl_b32 s{s_t0}, s5, 9")
    lin(gKM, [(4, 2, 7), (2, 2, 5), (0, 1, 4)], f"s{s_t0}")
    A(f"v_mov_b32 v{T0}, {OOB:#x}")
    A(f"v_and_b32 v{T1}, 2, v{vL}")
    A(f"v_cmp_ne_u32 vcc, 0, v{T1}")
    A(f"v_cndmask_b32 v{gKM}, v{T0}, v{gKM}, vcc")
    lin(gVM, [(0, 4, 4), (4, 2, 2)], f"s{s_t0}")
    A("s_cmp_eq_u32 s3, 0")
    A("s_cbranch_scc1 C_G0")
    A(f"v_mov_b32 v{gKM}, v{T0}")
    A(f"v_mov_b32 v{gVM}, v{T0}")
    A.label("C_G0")
    s_src, s_dst, s_col, s_cst, s_csc2, s_row = 92, 93, 94, 95, 96, 97
    A(f"s_mov_b32 s{s_isred}, 1")
    A("s_cmp_ge_u32 s5, 2")
    A("s_cbranch_scc1 C_RED_B")
    A(f"s_lshl_b32 s{s_t0}, s4, 1")
    A(f"s_add_u32 s{s_t0}, s{s_t0}, s5")
    A(f"s_lshr_b32 s{s_t1}, s{s_t0}, 4")
    A(f"s_and_b32 s{s_t0}, s{s_t0}, 15")
    A(f"s_mul_i32 s{s_src}, s{s_t1}, 1280")
    A(f"s_lshl_b32 s{s_t2}, s{s_t0}, 6")
    A(f"s_add_u32 s{s_src}, s{s_src}, s{s_t2}")
    A(f"s_lshr_b32 s{s_row}, s{s_t0}, 2")
    A(f"s_and_b32 s{s_t0}, s{s_t0}, 3")
    A(f"s_lshl_b32 s{s_dst}, s{s_t1}, 10")
    A(f"s_lshl_b32 s{s_t2}, s{s_t0}, 8")
    A(f"s_add_u32 s{s_dst}, s{s_dst}, s{s_t2}")
    A(f"s_lshl_b32 s{s_col}, s{s_t1}, 6")
    A(f"s_lshl_b32 s{s_t2}, s{s_t0}, 2")
    A(f"s_add_u32 s{s_col}, s{s_col}, s{s_t2}")
    A(f"s_mov_b32 s{s_cst}, 16")
    A(f"s_mov_b32 s{s_csc2}, 1")
    A("s_branch C_RED_J")
    A.label("C_RED_B")
    A("s_cmp_eq_u32 s5, 2")
    A(f"s_cselect_b32 s{s_isred}, 1, 0")
    A("s_cmp_lt_u32 s4, 16")
    A(f"s_cselect_b32 s{s_isred}, s{s_isred}, 0")
    A(f"s_bfe_u32 s{s_t1}, s4, 0x20002")
    A(f"s_and_b32 s{s_row}, s4, 3")
    A(f"s_mul_i32 s{s_src}, s{s_t1}, 1280")
    A(f"s_lshl_b32 s{s_t2}, s{s_row}, 6")
    A(f"s_add_u32 s{s_src}, s{s_src}, s{s_t2}")
    A(f"s_add_u32 s{s_src}, s{s_src}, 1024")
    A(f"s_lshl_b32 s{s_dst}, s{s_t1}, 8")
    A(f"s_add_u32 s{s_dst}, s{s_dst}, 4096")
    A(f"s_lshl_b32 s{s_col}, s{s_t1}, 4")
    A(f"s_add_u32 s{s_col}, s{s_col}, 256")
    A(f"s_mov_b32 s{s_cst}, 1")
    A(f"s_mov_b32 s{s_csc2}, 4")
    A.label("C_RED_J")
    A(f"s_lshl_b32 s{s_t2}, s{s_row}, 6")
    A(f"s_add_u32 s{s_dst}, s{s_dst}, s{s_t2}")
    A(f"v_lshrrev_b32 v{T0}, 2, v{vL}")
    A(f"v_mul_u32_u24 v{T0}, 5120, v{T0}")
    lin(gRED, [(0, 2, 4)], f"s{s_src}")
    A(f"v_add_u32 v{gRED}, v{gRED}, v{T0}")
    lin(gMO, [(5, 1, 5), (2, 1, 4), (4, 1, 3), (1, 1, 2)], f"s{s_dst}")
    A(f"v_mov_b32 v{T0}, {OOB:#x}")
    A(f"v_and_b32 v{T1}, 9, v{vL}")
    A(f"v_cmp_eq_u32 vcc, 0, v{T1}")
    A(f"v_cndmask_b32 v{gMO}, v{T0}, v{gMO}, vcc")
    A(f"s_cmp_eq_u32 s{s_isred}, 0")
    A("s_cbranch_scc0 C_RED_K")
    A(f"v_mov_b32 v{gMO}, {OOB:#x}")
    A.label("C_RED_K")
    A(f"v_and_b32 v{T0}, 3, v{vL}")
    A(f"v_mul_lo_u32 v{T0}, v{T0}, s{s_cst}")
    A(f"v_lshrrev_b32 v{T1}, 4, v{vL}")
    A(f"v_mul_lo_u32 v{T1}, v{T1}, s{s_csc2}")
    A(f"v_add3_u32 v{T0}, v{T0}, v{T1}, s{s_col}")
    A(f"v_bfe_u32 v{T1}, v{vL}, 2, 1")
    A(f"s_lshl_b32 s{s_t0}, s{s_row}, 1")
    A(f"v_add_u32 v{T1}, s{s_t0}, v{T1}")
    A(f"v_mul_u32_u24 v{T1}, 640, v{T1}")
    A(f"s_mul_i32 s{s_t0}, s3, 320")
    A(f"v_add3_u32 v{T0}, v{T0}, v{T1}, s{s_t0}")
    A(f"v_lshlrev_b32 v{vM2}, 1, v{T0}")
    A(f"s_load_dwordx2 s[{P0}:{P0+1}], s[0:1], {KA_MEM0}")
    A("s_waitcnt lgkmcnt(0)")
    srd(A, SW, P0, P0 + 1, 8 * 1280)
    vm.issue(f"buffer_load_ushort v{vM2}, v{vM2}, s[{SW}:{SW+3}], 0 offen", 'mem0')
    A(f"s_lshl_b32 s{s_t0}, s5, 10")
    A(f"v_add_u32 v{aMW}, s{s_t0}, v{vA16}")
    A(f"s_lshl_b32 s{s_t0}, s5, 8")
    A(f"v_add_u32 v{aM4}, s{s_t0}, v{vA4}")
    A(f"v_mov_b32 v{T0}, {OOB:#x}")
    A(f"s_or_b32 s{s_t0}, s3, s5")
    A(f"v_or_b32 v{T1}, s{s_t0}, v{vL}")
    A(f"v_cmp_eq_u32 vcc, 0, v{T1}")
    A(f"v_cndmask_b32 v{gL0}, v{T0}, v{vL}, vcc")
    A(f"s_add_u32 s{s_xb}, s{S_WS}, {WS_X + 2*MB - 1:#x}")
    A(f"s_and_b32 s{s_xb}, s{s_xb}, 0xffe00000")
    A(f"s_sub_u32 s{s_xb}, s{s_xb}, s{S_WS}")
    A(f"s_lshl_b32 s{s_t0}, s3, 15")
    A(f"s_add_u32 s{s_mlb}, s{s_t0}, {WS_ML:#x}")
    A(f"s_lshl_b32 s{s_t0}, s3, 16")
    A(f"s_add_u32 s{s_mrw}, s{s_t0}, {64*16384}")
    A(f"s_xor_b32 s{s_mrr}, s{s_mrw}, 0x10000")
    A(f"s_lshl_b32 s{s_vxw}, s4, 14")
    A(f"s_lshl_b32 s{s_t0}, s3, 12")
    A(f"s_add_u32 s{s_vxw}, s{s_vxw}, s{s_t0}")
    A(f"s_lshl_b32 s{s_t0}, s5, 10")
    A(f"s_add_u32 s{s_vxw}, s{s_vxw}, s{s_t0}")
    A(f"s_xor_b32 s{s_vxr}, s{s_vxw}, 0x1000")
    for r in (s_mrw, s_mrr, s_vxw, s_vxr): A(f"s_add_u32 s{r}, s{r}, s{s_xb}")
    A(f"s_mul_i32 s{s_pb}, s3, {2*32*5120}")
    A(f"s_add_u32 s{s_pb}, s{s_pb}, {WS_P:#x}")
    A(f"s_mul_i32 s{s_pw}, s4, 5120")
    A(f"s_mul_i32 s{s_t0}, s5, 1280")
    A(f"s_add_u32 s{s_pw}, s{s_pw}, s{s_t0}")
    A(f"s_lshl_b32 s{s_kv}, s4, 13")
    A(f"s_lshl_b32 s{s_km}, s4, 11")
    A(f"s_add_u32 s{s_km}, s{s_km}, {WS_KM:#x}")
    A(f"s_lshl_b32 s{s_prog}, s4, 7")
    A(f"s_add_u32 s{s_prog}, s{s_prog}, {WS_PROG:#x}")
    A(f"s_lshl_b32 s{s_hbit}, 1, s4")
    for sl in range(2):
        A(f"s_add_u32 s{s_t0}, s{s_pb}, s{s_pw}")
        if sl: A(f"s_add_u32 s{s_t0}, s{s_t0}, {32*5120}")
        vm.issue(f"buffer_store_dwordx4 {v(vSENT,4)}, v{vA16}, {W}, s{s_t0} offen sc1", 'poi')
        vm.issue(f"buffer_store_dword v{vSENT}, v{vA4}, {W}, s{s_t0} offen offset:1024 sc1", 'poi')
        for pol in range(2):
            A(f"s_add_u32 s{s_t0}, s{s_vxw}, {sl*32*16384 + pol*8192}")
            vm.issue(f"buffer_store_dwordx4 {v(vSENT,4)}, v{vA16}, {W}, s{s_t0} offen sc1", 'poi')
    for sl in range(4):
        A(f"s_add_u32 s{s_t0}, s{s_mlb}, {sl*8192}")
        vm.issue(f"buffer_store_dword v{vSENT}, v{gMO}, {W}, s{s_t0} offen sc1", 'poi')
        for pol in range(2):
            A(f"s_add_u32 s{s_t0}, s{s_mrw}, {sl*16384 + pol*8192}")
            vm.issue(f"buffer_store_dword v{vSENT}, v{gMO}, {W}, s{s_t0} offen sc1", 'poi')
    A(f"v_mov_b32 v{T0}, 0")
    vm.issue(f"buffer_store_dword v{T0}, v{gL0}, {W}, s{s_prog} offen sc1", 'poi')
    A(f"s_getreg_b32 s{s_t0}, hwreg(HW_REG_XCC_ID, 0, 4)")
    A(f"s_lshl_b32 s{s_t0}, 1, s{s_t0}")
    A(f"v_mov_b32 v{T1}, s{s_t0}")
    A(f"s_lshl_b32 s{s_t1}, s3, 2")
    A("s_mov_b64 exec, 1")
    vm.issue(f"buffer_atomic_or v{T1}, off, {D}, s{s_t1} offset:{DBG_XCC0*4} sc1", 'poi')
    A("s_mov_b64 exec, -1")

    vm.wait('wo1')
    for t in wo_reads(WO1): A(t)
    A("s_waitcnt lgkmcnt(0)")
    dma_wo(0, 'wo0')
    for p in range(20):
        sl = p % 7
        vm.wait(f'p{p}')
        srdn, T, dst = panels[p]
        for tau in range(2):
            for m in range(4):
                ar = aQK[tau] if sl < 5 else aQK[2 + tau]
                off = (sl if sl < 5 else sl - 5) * 4096 + m * 1024
                A(f"ds_read_b64_tr_b16 {u(dst(T,tau)+2*m,2)}, v{ar} offset:{off}")
        A("s_waitcnt lgkmcnt(0)")
        if p + 7 < 20: dma_panel(panels[p + 7][0], panels[p + 7][1], sl, f'p{p+7}')
        elif 14 <= p < 19: dma_panel(SV, p - 14, sl, 'wv')
        if p == 7:
            A("s_barrier")
            A("s_cmp_eq_u32 s5, 0")
            A(f"s_cselect_b32 s{s_t0}, 1, 0")
            A(f"v_mov_b32 v{T0}, s{s_t0}")
            A("s_mov_b64 exec, 1")
            vm.issue(f"buffer_atomic_add v{T0}, off, {D}, 0 offset:{DBG_CHAIN_CNT*4} sc1", 'arr')
            A("s_mov_b64 exec, -1")
    vm.drain()
    stamp(A, opt, 1, vt=(T0, T1, T2))
    A("s_barrier")

    def spin_fail(lbl):
        A(f"s_sub_u32 s{s_spin}, s{s_spin}, 1")
        A(f"s_cbranch_scc0 {lbl}")
        A("s_branch C_FAIL")
    A(f"s_mov_b32 s{s_spin}, {opt.spin}")
    A.label("C_TEAM")
    A(f"buffer_load_dwordx4 {v(T0,4)}, off, {D}, 0 sc1")
    A(f"buffer_load_dword v{T0+4}, off, {D}, 0 offset:{DBG_KV*4} sc1")
    A("s_waitcnt vmcnt(0)")
    A(f"v_readfirstlane_b32 s{s_t0}, v{T0}")
    A(f"v_readfirstlane_b32 s{s_t1}, v{T0+4}")
    A(f"s_and_b32 s{s_t1}, s{s_t1}, s{s_hbit}")
    A(f"s_cmp_lg_u32 s{s_t1}, 0")
    A(f"s_cselect_b32 s{s_t0}, s{s_t0}, 0")
    A(f"s_cmp_ge_u32 s{s_t0}, 64")
    A("s_cbranch_scc1 C_TEAM_OK")
    A("s_sleep 2")
    spin_fail("C_TEAM")
    A.label("C_TEAM_OK")
    A(f"v_readfirstlane_b32 s{s_t0}, v{T0+1}")
    A(f"v_readfirstlane_b32 s{s_t1}, v{T0+2}")
    A(f"v_readfirstlane_b32 s{s_t2}, v{T0+3}")
    A("s_cmp_eq_u32 s3, 0")
    A(f"s_cselect_b32 s{s_t0}, s{s_t0}, s{s_t1}")
    A(f"s_bcnt1_i32_b32 s{s_mode}, s{s_t0}")
    if opt.pol >= 0: A(f"s_mov_b32 s{s_t2}, {opt.pol}")
    A(f"s_and_b32 s{s_t2}, s{s_t2}, 1")
    A(f"s_lshl_b32 s{s_t2}, s{s_t2}, 13")
    for r in (s_mrw, s_mrr, s_vxw, s_vxr): A(f"s_add_u32 s{r}, s{r}, s{s_t2}")
    def kx_dma(vmx, s_src_, buf_sgpr=None, buf_const=None):
        for m in range(2):
            if buf_sgpr is None:
                A(f"s_lshl_b32 m0, s5, 11")
                A(f"s_add_u32 m0, m0, {buf_const*8192 + m*1024 - m*128}")
            else:
                A(f"s_add_u32 m0, s{buf_sgpr}, {m*1024 - m*128}")
            vmx.issue(f"buffer_load_dwordx4 v{gKX}, {W}, s{s_src_} offen offset:{m*128} sc1 lds", 'kx')
    kx_dma(vm, s_kv, buf_const=0)
    vm.drain()
    A("s_barrier")
    stamp(A, opt, 2, vt=(T0, T1, T2))
    A(f"s_mov_b32 s{s_step}, -1")
    A(f"v_lshlrev_b32 v{vM}, 16, v{vM2}")
    if opt.force_slow: A(f"s_mov_b32 s{s_mode}, 2")
    A(f"s_cmp_eq_u32 s{s_mode}, 1")
    A("s_cbranch_scc0 CS_ENTRY")

    def smf(acc, a, b): A(f"v_smfmac_f32_16x16x64_bf16 {v(acc,4)}, {v(a,4)}, {u(b,8)}, v{vIDX}")

    def loop(P, sc):
        retries = []
        PSL = 32 * 5120
        def wv_reads(t, dst):
            L = []
            for tau in range(2):
                for m in range(4):
                    L.append(f"ds_read_b64_tr_b16 {v(dst+8*tau+2*m,2)}, v{aWV[tau]} offset:{t*4096 + m*1024}")
            return L
        def check(regs, lbl):
            r = list(regs)
            A(f"v_max3_i32 v{vM2}, v{r[0]}, v{r[1]}, v{r[2]}"); r = r[3:]
            while len(r) >= 2:
                A(f"v_max3_i32 v{vM2}, v{vM2}, v{r[0]}, v{r[1]}"); r = r[2:]
            if r: A(f"v_max_i32 v{vM2}, v{vM2}, v{r[0]}")
            A(f"v_cmp_le_i32 vcc, s{s_susp}, v{vM2}")
            A(f"s_cbranch_vccnz {lbl}")
        def guarded(name, loads):
            regs = [r + i for r, t in loads for i in range(4 if 'x4' in t else 1)]
            check(regs, f"{P}_R{name}")
            A.label(f"{P}_B{name}")
            retries.append((name, loads, regs))
        ld = lambda reg, va, so, off=0: f"buffer_load_dwordx4 {v(reg,4)}, v{va}, {W}, s{so} offen offset:{off} sc1"

        A.label(f"{P}_ENTRY")
        A(f"s_branch {P}_PUB")
        A.label(f"{P}_TOP")
        vm = VM(A)
        A(f"s_add_u32 s{s_step}, s{s_step}, 1")
        A(f"s_and_b32 s{s_t0}, s{s_step}, 3")
        A(f"s_lshl_b32 s{s_t1}, s{s_t0}, 13")
        A(f"s_add_u32 s{s_al}, s{s_mlb}, s{s_t1}")
        A(f"s_lshl_b32 s{s_t1}, s{s_t0}, 14")
        A(f"s_add_u32 s{s_ar}, s{s_mrr}, s{s_t1}")
        A(f"s_add_u32 s{s_t2}, s{s_al}, 4096")
        A(f"s_add_u32 s{s_c0}, s{s_ar}, 4096")
        ld1 = lambda reg, va, so: f"buffer_load_dword v{reg}, v{va}, {W}, s{so} offen sc1"
        lL = [(AL[0], ld(AL[0], aMW, s_al, 0)), (AL[4], ld1(AL[4], aM4, s_t2))]
        lR = [(AR[0], ld(AR[0], aMW, s_ar, 0)), (AR[4], ld1(AR[4], aM4, s_c0))]
        for _, t in lL: A(t)
        A(f"s_add_u32 s{s_t0}, s{s_step}, 3")
        A(f"s_and_b32 s{s_t0}, s{s_t0}, 3")
        A(f"s_lshl_b32 s{s_t1}, s{s_t0}, 13")
        A(f"s_add_u32 s{s_mlp}, s{s_mlb}, s{s_t1}")
        A(f"s_lshl_b32 s{s_t1}, s{s_t0}, 14")
        A(f"s_add_u32 s{s_mrp}, s{s_mrw}, s{s_t1}")
        A(f"s_and_b32 s{s_t0}, s{s_step}, 1")
        A(f"s_mul_i32 s{s_t1}, s{s_t0}, {PSL}")
        A(f"s_add_u32 s{s_pcur}, s{s_pb}, s{s_t1}")
        A(f"s_sub_u32 s{s_poth}, {PSL}, s{s_t1}")
        A(f"s_add_u32 s{s_poth}, s{s_poth}, s{s_pb}")
        A(f"s_add_u32 s{s_poth}, s{s_poth}, s{s_pw}")
        A(f"s_lshl_b32 s{s_t1}, s{s_t0}, 19")
        A(f"s_add_u32 s{s_vw}, s{s_vxw}, s{s_t1}")
        A(f"s_add_u32 s{s_vr}, s{s_vxr}, s{s_t1}")
        A(f"s_xor_b32 s{s_t1}, s{s_t1}, 0x80000")
        A(f"s_add_u32 s{s_vpo}, s{s_vxw}, s{s_t1}")
        for i in range(24): A(f"v_mov_b32 v{ACC+i}, 0")
        for t in range(3):
            for x in wv_reads(t, LAND + 16 * t): A(x)
        A("s_waitcnt vmcnt(0)")
        guarded("L", lL)
        if opt.stamps: stampc(0)
        for _, t in lR: vm.issue(t, 'ar')
        def bcast_w(R, base):
            A(f"ds_write_b128 v{aMW}, {v(R[0],4)} offset:{base}")
            A(f"ds_write_b128 v{aMW}, {v(R[0],4)} offset:{base+4096}")
            A(f"ds_write_b32 v{aM4}, v{R[4]} offset:{L_M4 + (0 if base == L_ML else 1024)}")
        def bcast_r(R, base):
            for j in (1, 2, 3): A(f"ds_read_b128 {v(R[j],4)}, v{aMW} offset:{base + j*1024}")
            A(f"ds_read_b128 {v(R[4],4)}, v{vA16} offset:{L_M4 + (0 if base == L_ML else 1024)}")
        def kv(t):
            lz = LAND + 16 * (t % 3)
            smf(aV[0], AL[t], lz); smf(aV[1], AL[t], lz + 8)
        def kqk(R, t, T):
            for tau in range(2): smf(aQ[tau], R[t], WQ(T, tau))
            for tau in range(2): smf(aK[tau], R[t], WK(T, tau))
        A("s_waitcnt lgkmcnt(0)")
        bcast_w(AL, L_ML)
        kv(0)
        smf(aQ[0], AL[0], WQ(0, 0))
        A("s_waitcnt lgkmcnt(0)")
        A("s_barrier")
        bcast_r(AL, L_ML)
        for x in wv_reads(3, LAND): A(x)
        smf(aQ[1], AL[0], WQ(0, 1))
        for tau in range(2): smf(aK[tau], AL[0], WK(0, tau))
        A("s_waitcnt lgkmcnt(11)")
        kv(1)
        for x in wv_reads(4, LAND + 16): A(x)
        A("s_waitcnt lgkmcnt(15)")
        kv(2)
        A("s_waitcnt lgkmcnt(8)")
        kv(3)
        kqk(AL, 1, 1)
        A("s_waitcnt lgkmcnt(0)")
        kv(4)
        kqk(AL, 2, 2)
        VP = AL[0]; VX = AL[1]; VR = AL[3]
        for tau in range(2):
            A(f"v_add_f32 v{VP+2*tau}, v{aV[tau]}, v{aV[tau]+2}")
            A(f"v_add_f32 v{VP+2*tau+1}, v{aV[tau]+1}, v{aV[tau]+3}")
        vm.issue(f"buffer_store_dwordx4 {v(VP,4)}, v{vA16}, {W}, s{s_vw} offen sc1", 'vxs')
        KX = LAND
        for uu in range(4):
            for m in range(2):
                A(f"ds_read_b128 {v(KX+8*uu+4*m,4)}, v{aKX} offset:{uu*2048+m*1024}")
        kqk(AL, 3, 3)
        if opt.stamps: stampc(1)
        vm.wait('ar')
        guarded("R", lR)
        if opt.stamps: stampc(6)
        bcast_w(AR, L_MR)
        vm.issue(f"buffer_store_dwordx4 {v(vSENT,4)}, v{vA16}, {W}, s{s_poth} offen{sc}", 'poi')
        vm.issue(f"buffer_store_dword v{vSENT}, v{vA4}, {W}, s{s_poth} offen offset:1024{sc}", 'poi')
        A(f"s_add_u32 s{s_t0}, s{s_kv}, {WS_V:#x}")
        for tau in range(2):
            vm.issue(f"buffer_load_dwordx4 {v(VX+4*tau,4)}, v{gVX}, {W}, s{s_t0} offen offset:{tau*256} sc1", 'vx')
        for tau in range(2): smf(aQ[tau], AL[4], WQ(4, tau))
        A("s_waitcnt lgkmcnt(0)")
        A("s_barrier")
        bcast_r(AR, L_MR)
        for tau in range(2): smf(aK[tau], AL[4], WK(4, tau))
        kqk(AR, 0, 5)
        for t in range(1, 5):
            A(f"s_waitcnt lgkmcnt({4-t})")
            kqk(AR, t, 5 + t)
        lV = (VR, ld(VR, vA16, s_vr, 0))
        vm.issue(lV[1], 'vr')
        vm.issue(f"buffer_store_dwordx4 {v(vSENT,4)}, v{vA16}, {W}, s{s_vpo} offen sc1", 'poi')
        vm.issue(f"buffer_store_dword v{vSENT}, v{gMO}, {W}, s{s_mlp} offen{sc}", 'poi')
        vm.issue(f"buffer_store_dword v{vSENT}, v{gMO}, {W}, s{s_mrp} offen sc1", 'poi')
        A(f"s_add_u32 s{s_t0}, s{s_step}, 1")
        A(f"s_and_b32 s{s_t1}, s{s_t0}, 7")
        A(f"s_cmp_eq_u32 s{s_t1}, 0")
        A(f"s_cbranch_scc1 {P}_KVW")
        A.label(f"{P}_KVB")
        A(f"s_and_b32 s{s_kxm}, s{s_t0}, 1")
        A(f"s_lshl_b32 s{s_kxm}, s{s_kxm}, 13")
        A(f"s_lshl_b32 s{s_t1}, s5, 11")
        A(f"s_add_u32 s{s_kxm}, s{s_kxm}, s{s_t1}")
        A(f"s_add_u32 s{s_t1}, s{s_kv}, {32*8192}")
        A(f"s_cmp_lt_u32 s{s_t0}, 64")
        A(f"s_cselect_b32 s{s_t1}, s{s_t1}, s{s_kv}")
        kx_dma(vm, s_t1, buf_sgpr=s_kxm)
        XW = AR[0]
        for tau in range(2):
            A(f"v_add_f32 v{aQ[tau]}, v{aQ[tau]}, v{aQ[tau]+2}")
            A(f"v_add_f32 v{aQ[tau]+1}, v{aQ[tau]+1}, v{aQ[tau]+3}")
            A(f"v_mul_f32 v{aQ[tau]}, s{s_csc}, v{aQ[tau]}")
            A(f"v_mul_f32 v{aQ[tau]+1}, s{s_csc}, v{aQ[tau]+1}")
        for tau in range(2):
            A(f"v_add_f32 v{aK[tau]}, v{aK[tau]}, v{aK[tau]+2}")
            A(f"v_add_f32 v{aK[tau]+1}, v{aK[tau]+1}, v{aK[tau]+3}")
        for tau in range(2):
            A(f"v_cvt_pk_bf16_f32 v{XW+2*tau}, v{aQ[tau]}, v{aQ[tau]+1}")
            A(f"v_cvt_pk_bf16_f32 v{XW+2*tau+1}, v{aK[tau]}, v{aK[tau]+1}")
            A(f"ds_write_b64 v{aXW}, {v(XW+2*tau,2)} offset:{tau*256}")
        A("s_waitcnt lgkmcnt(0)")
        A("s_barrier")
        if opt.stamps: stampc(2)
        XO = LAND + 32
        for uu in range(4):
            for m in range(2):
                A(f"ds_read_b64_tr_b16 {v(XO+4*uu+2*m,2)}, v{vA8} offset:{L_X + uu*1024 + m*512}")
        XP = AR[1]
        for m in range(2):
            A(f"ds_read_b64_tr_b16 {v(XP+2*m,2)}, v{aXP} offset:{m*512}")
        A(f"v_mov_b32 v{XW}, s{s_step}")
        vm.issue(f"buffer_store_dword v{XW}, v{gL0}, {W}, s{s_prog} offen sc1", 'prog')
        S0, S1, SM = ACC + 8, ACC + 12, ACC + 16
        for uu in range(4):
            A(f"s_waitcnt lgkmcnt({2*(3-uu)+2})")
            c = lambda r: "0" if uu == 0 else v(r, 4)
            A(f"v_mfma_f32_16x16x32_bf16 {v(S0,4)}, {v(KX+8*uu,4)}, {v(XO+4*uu,4)}, {c(S0)}")
            A(f"v_mfma_f32_16x16x32_bf16 {v(S1,4)}, {v(KX+8*uu+4,4)}, {v(XO+4*uu,4)}, {c(S1)}")
            A(f"v_mfma_f32_16x16x32_bf16 {v(SM,4)}, {v(XO+4*uu,4)}, {v(XO+4*uu,4)}, {c(SM)}")
        vm.wait('vr', " lgkmcnt(0)")
        guarded("V", [lV])
        if opt.stamps: stampc(7)
        for i in range(4): A(f"v_add_f32 v{VP+i}, v{VP+i}, v{VR+i}")
        A(f"v_cvt_pk_bf16_f32 v{vVM0}, v{VP}, v{VP+1}")
        A(f"v_cvt_pk_bf16_f32 v{vVM1}, v{VP+2}, v{VP+3}")
        A(f"s_add_u32 s{s_t1}, s{s_km}, {WS_VM - WS_KM:#x}")
        vm.issue(f"buffer_store_dwordx4 {v(XP,4)}, v{gKM}, {W}, s{s_km} offen sc1", 'pub')
        vm.issue(f"buffer_store_dword v{vVM0}, v{gVM}, {W}, s{s_t1} offen sc1", 'pub')
        vm.issue(f"buffer_store_dword v{vVM1}, v{gVM}, {W}, s{s_t1} offen offset:256 sc1", 'pub')
        A(f"s_cmp_eq_u32 s{s_step}, 63")
        A(f"s_cbranch_scc1 C_LAST")
        WO0 = lambda t: LAND + 8 * t
        sc10 = [S0, S0 + 1, S0 + 2, S0 + 3, S1, S1 + 1, S1 + 2, S1 + 3, SM + 2, SM + 3]
        A(f"v_max3_f32 v{vM}, v{sc10[0]}, v{sc10[1]}, v{sc10[2]}")
        for x in wo_reads(WO0): A(x)
        A(f"v_max3_f32 v{vM2}, v{sc10[3]}, v{sc10[4]}, v{sc10[5]}")
        A(f"v_max3_f32 v{vM}, v{vM}, v{sc10[6]}, v{sc10[7]}")
        A(f"v_max3_f32 v{vM2}, v{vM2}, v{sc10[8]}, v{sc10[9]}")
        A(f"v_max_f32 v{vM}, v{vM}, v{vM2}")
        A(f"v_mov_b32 v{vM2}, v{vM}")
        A(f"v_permlane32_swap_b32 v{vM}, v{vM2}")
        A(f"v_max_f32 v{vM}, v{vM}, v{vM2}")
        A(f"v_mov_b32 v{vM2}, v{vM}")
        A(f"v_permlane16_swap_b32 v{vM}, v{vM2}")
        A(f"v_max_f32 v{vM}, v{vM}, v{vM2}")
        for r in sc10: A(f"v_sub_f32 v{r}, v{r}, v{vM}")
        for r in sc10: A(f"v_exp_f32 v{r}, v{r}")
        PX = AR[2]
        for i in range(4): A(f"v_cvt_pk_bf16_f32 v{PX+i}, v{sc10[2*i]}, v{sc10[2*i+1]}")
        A(f"v_cvt_pk_bf16_f32 v{vPM}, v{SM+2}, v{SM+3}")
        O0, O1, LL = ACC, ACC + 4, ACC + 20
        A(f"v_mfma_f32_16x16x32_bf16 {v(LL,4)}, {v(vONE,4)}, {v(PX,4)}, 0")
        A(f"v_mfma_f32_16x16x32_bf16 {v(O0,4)}, {v(VX,4)}, {v(PX,4)}, 0")
        A(f"v_mfma_f32_16x16x32_bf16 {v(O1,4)}, {v(VX+4,4)}, {v(PX,4)}, 0")
        A(f"v_mfma_f32_16x16x16_bf16 {v(LL,4)}, {v(vONE,2)}, {v(vPM,2)}, {v(LL,4)}")
        A(f"v_mfma_f32_16x16x16_bf16 {v(O0,4)}, {v(vVM0,2)}, {v(vPM,2)}, {v(O0,4)}")
        A(f"v_mfma_f32_16x16x16_bf16 {v(O1,4)}, {v(vVM1,2)}, {v(vPM,2)}, {v(O1,4)}")
        CA = AL[0]
        A(f"v_rcp_f32 v{vM}, v{LL}")
        for i in range(8): A(f"v_mul_f32 v{O0+i}, v{O0+i}, v{vM}")
        OW = AR[3]
        for i in range(4): A(f"v_cvt_pk_bf16_f32 v{OW+i}, v{O0+2*i}, v{O0+2*i+1}")
        A(f"ds_write_b128 v{aOW}, {v(OW,4)}")
        for i in range(20): A(f"v_mov_b32 v{CA+i}, 0")
        A("s_waitcnt lgkmcnt(0)")
        A("s_barrier")
        if opt.stamps: stampc(3)
        OA = ACC + 8
        A(f"ds_read_b128 {v(OA+4,4)}, v{aOR} offset:1024")
        A(f"ds_read_b128 {v(OA,4)}, v{aOR}")
        A(f"s_add_u32 s{s_t0}, s{s_pcur}, s{s_pw}")
        A("s_waitcnt lgkmcnt(1)")
        for t in range(5): smf(CA + 4 * t, OA + 4, WO1(t))
        A("s_waitcnt lgkmcnt(0)")
        for t in range(5): smf(CA + 4 * t, OA, WO0(t))
        PO = AR[0]
        vm.wait('pub')
        for t in range(5):
            A(f"v_add_f32 v{CA+4*t}, v{CA+4*t}, v{CA+4*t+2}")
            A(f"v_add_f32 v{CA+4*t+1}, v{CA+4*t+1}, v{CA+4*t+3}")
            A(f"v_cvt_pk_bf16_f32 v{PO+t}, v{CA+4*t}, v{CA+4*t+1}")
            if t == 3: A(f"buffer_store_dwordx4 {v(PO,4)}, v{vA16}, {W}, s{s_t0} offen{sc}")
        A(f"buffer_store_dword v{PO+4}, v{vA4}, {W}, s{s_t0} offen offset:1024{sc}")
        if opt.stamps: stampc(4)
        A(f"s_add_u32 s{s_kv}, s{s_kv}, {32*8192}")
        A(f"s_add_u32 s{s_km}, s{s_km}, {32*2048}")
        A(f"v_xor_b32 v{aKX}, 8192, v{aKX}")
        A(f"s_cmp_eq_u32 s{s_isred}, 0")
        A(f"s_cbranch_scc1 {P}_TOP")
        R0, R1, RD = AR[2], AR[3], ACC
        A(f"s_add_u32 s{s_t2}, s{s_pcur}, {16*5120}")
        lE = [(R0, ld(R0, gRED, s_pcur, 0)), (R1, ld(R1, gRED, s_t2, 0))]
        for _, t in lE: A(t)
        A("s_waitcnt vmcnt(0)")
        guarded("E", lE)
        A(f"v_mfma_f32_16x16x32_bf16 {v(RD,4)}, {v(R0,4)}, {v(vSEL,4)}, 0")
        A(f"v_mfma_f32_16x16x32_bf16 {v(RD,4)}, {v(R1,4)}, {v(vSEL,4)}, {v(RD,4)}")
        A(f"v_permlane32_swap_b32 v{RD}, v{RD+2}")
        A(f"v_permlane32_swap_b32 v{RD+1}, v{RD+3}")
        A(f"v_add_f32 v{RD}, v{RD}, v{RD+2}")
        A(f"v_add_f32 v{RD+1}, v{RD+1}, v{RD+3}")
        A(f"v_permlane16_swap_b32 v{RD}, v{RD+1}")
        A(f"v_add_f32 v{vM}, v{RD}, v{RD+1}")
        A.label(f"{P}_PUB")
        A(f"s_add_u32 s{s_t0}, s{s_step}, 1")
        A(f"s_and_b32 s{s_t0}, s{s_t0}, 3")
        A(f"s_lshl_b32 s{s_t1}, s{s_t0}, 13")
        A(f"s_add_u32 s{s_mlo}, s{s_mlb}, s{s_t1}")
        A(f"s_lshl_b32 s{s_t1}, s{s_t0}, 14")
        A(f"s_add_u32 s{s_mro}, s{s_mrw}, s{s_t1}")
        A(f"v_mov_b32_dpp v{vM2}, v{vM} quad_perm:[1,1,3,3] row_mask:0xf bank_mask:0xf")
        A(f"v_cvt_pk_bf16_f32 v{vM}, v{vM}, v{vM2}")
        A(f"buffer_store_dword v{vM}, v{gMO}, {W}, s{s_mro} offen sc1")
        A(f"buffer_store_dword v{vM}, v{gMO}, {W}, s{s_mlo} offen{sc}")
        if opt.stamps: stampc(5)
        A(f"s_branch {P}_TOP")
        A.label(f"{P}_KVW")
        A(f"s_cmp_ge_u32 s{s_t0}, 64")
        A(f"s_cbranch_scc1 {P}_KVB")
        A(f"s_lshr_b32 s{s_t1}, s{s_t0}, 1")
        A.label(f"{P}_KVL")
        A(f"buffer_load_dword v{vM2}, off, {D}, s{s_t1} offset:{DBG_KV*4} sc1")
        A("s_waitcnt vmcnt(0)")
        A(f"v_readfirstlane_b32 s{s_t2}, v{vM2}")
        A(f"s_and_b32 s{s_t2}, s{s_t2}, s{s_hbit}")
        A(f"s_cbranch_scc1 {P}_KVB")
        spin_fail(f"{P}_KVL")
        for name, loads, regs in retries:
            A.label(f"{P}_R{name}")
            A(f"v_cmp_eq_u32 vcc, s{s_sent}, v{regs[0]}")
            for r in regs[1:]:
                A(f"v_cmp_eq_u32 s[98:99], s{s_sent}, v{r}")
                A(f"s_or_b64 vcc, vcc, s[98:99]")
            A(f"s_cbranch_vccz {P}_B{name}")
            for _, t in loads: A(t)
            A("s_waitcnt vmcnt(0)")
            spin_fail(f"{P}_R{name}")

    def stampc(i):
        A(f"s_memtime s[{64+2*i}:{65+2*i}]")
        if i == 4:
            A("s_waitcnt lgkmcnt(0)")
            for k in range(8): A(f"v_mov_b32 v{LAND+k}, s{64+2*k}")
            A(f"s_lshl_b32 s80, s2, 2")
            A(f"s_add_u32 s80, s80, s5")
            A(f"s_lshl_b32 s80, s80, 6")
            A(f"s_add_u32 s80, s80, s{s_step}")
            A(f"s_lshl_b32 s80, s80, 5")
            A(f"s_add_u32 s80, s80, {WS_TS + MB:#x}")
            A("s_mov_b64 exec, 1")
            A(f"buffer_store_dwordx4 {v(LAND,4)}, off, {W}, s80")
            A(f"buffer_store_dwordx4 {v(LAND+4,4)}, off, {W}, s80 offset:16")
            A("s_mov_b64 exec, -1")
        else:
            A("s_waitcnt lgkmcnt(0)")

    loop("CF", "")
    loop("CS", " sc1")
    A.label("C_LAST")
    A("s_waitcnt vmcnt(0)")
    A("s_barrier")
    A(f"v_mov_b32 v{vM}, 64")
    A(f"buffer_store_dword v{vM}, v{gL0}, {W}, s{s_prog} offen sc1")
    stamp(A, opt, 3, vt=(T0, T1, T2))
    A("s_waitcnt vmcnt(0)")
    A("s_endpgm")
    A.label("C_FAIL")
    A(f"v_mov_b32 v{vM}, s{s_step}")
    A(f"v_add_u32 v{vM}, 0x1000, v{vM}")
    A("s_mov_b64 exec, 1")
    A(f"buffer_store_dword v{vM}, off, {D}, 0 offset:{DBG_ERR*4} sc1")
    A("s_waitcnt vmcnt(0)")
    A("s_endpgm")
```

```python
from asmlib import *
from gen import *
from gen_chain import VM

def gen_follow(A, opt):
    W = f"s[{S_WS}:{S_WS+3}]"
    D = f"s[{S_DBG}:{S_DBG+3}]"
    s_t0, s_t1, s_t2, s_spin, s_seg, s_flag = 24, 25, 26, 27, 28, 29
    vL, vA16, vT0, vT1, vT2 = 1, 2, 3, 4, 5
    def spin_fail(lbl, sleep=1):
        A(f"s_sleep {sleep}")
        A(f"s_sub_u32 s{s_spin}, s{s_spin}, 1")
        A(f"s_cbranch_scc0 {lbl}")
        A("s_branch F_FAIL")
    A(f"s_mov_b32 s{s_spin}, {opt.spin}")
    A(f"v_and_b32 v{vL}, 63, v0")
    A(f"v_lshlrev_b32 v{vA16}, 4, v{vL}")
    A(f"s_lshl_b32 s{s_flag}, s3, 10")
    A(f"s_add_u32 s{s_flag}, s{s_flag}, {WS_OFLAG:#x}")
    A("s_cmp_lt_u32 s4, 20")
    A("s_cbranch_scc1 F_ARRIVE")
    A("s_cmp_ge_u32 s4, 28")
    A("s_cbranch_scc1 F_ARRIVE")
    A(f"s_sub_u32 s{s_t0}, s4, 20")
    A(f"s_lshl_b32 s{s_t0}, s{s_t0}, 7")
    A(f"s_add_u32 s{s_flag}, s{s_flag}, s{s_t0}")
    A(f"v_mov_b32 v{vT0}, 0")
    A("s_mov_b64 exec, 1")
    A(f"buffer_store_dword v{vT0}, off, {W}, s{s_flag} sc1")
    A("s_mov_b64 exec, -1")
    A.label("F_ARRIVE")
    A("s_waitcnt vmcnt(0)")
    A("s_barrier")
    A("s_cmp_eq_u32 s5, 0")
    A("s_cbranch_scc0 F_ARRIVED")
    A(f"v_mov_b32 v{vT0}, 1")
    A("s_mov_b64 exec, 1")
    A(f"buffer_atomic_add v{vT0}, off, {D}, 0 offset:{DBG_WBAR*4} sc1")
    A("s_mov_b64 exec, -1")
    A.label("F_ARRIVED")
    stamp(A, opt, 12)
    A("s_cmp_ge_u32 s4, 28")
    A("s_cbranch_scc1 F_END")
    A("s_cmp_ge_u32 s4, 20")
    A("s_cbranch_scc1 F_AT")

    def wait_bar(name):
        A.label(name)
        A(f"buffer_load_dword v{vT0}, off, {D}, 0 offset:{DBG_CHAIN_CNT*4} sc1")
        A(f"buffer_load_dword v{vT1}, off, {D}, 0 offset:{DBG_WBAR*4} sc1")
        A("s_waitcnt vmcnt(0)")
        A(f"v_readfirstlane_b32 s{s_t0}, v{vT0}")
        A(f"v_readfirstlane_b32 s{s_t1}, v{vT1}")
        A(f"s_cmp_ge_u32 s{s_t0}, 64")
        A(f"s_cselect_b32 s{s_t1}, s{s_t1}, 0")
        A(f"s_cmp_ge_u32 s{s_t1}, 192")
        A(f"s_cbranch_scc1 {name}_OK")
        spin_fail(name, 8)
        A.label(name + "_OK")

    SO, SD, SOUT = 32, 36, 40
    A(f"s_load_dwordx2 s[44:45], s[0:1], {KA_WO}")
    A(f"s_load_dwordx2 s[46:47], s[0:1], {KA_WD}")
    A(f"s_load_dwordx2 s[48:49], s[0:1], {KA_OUT}")
    A("s_waitcnt lgkmcnt(0)")
    srd(A, SO, 44, 45, 4096 * 1280); srd(A, SD, 46, 47, 1728 * 1280); srd(A, SOUT, 48, 49, 2048 * 1280)
    vD, aT, gOUT, gG, aRW, aRR, vG, vG1 = 6, 7, 8, 9, 10, 11, 12, 13
    ACA, ACB, RING = 16, 32, 48
    NR = 25
    WR = lambda k: 256 + 4 * k if k < 64 else 148 + 4 * (k - 64)
    s_lds, s_o, s_d, s_par = 50, 51, 52, 53
    A(f"v_lshrrev_b32 v{vT0}, 2, v{vL}")
    A(f"v_mul_u32_u24 v{vT0}, 1280, v{vT0}")
    A(f"v_and_b32 v{vT1}, 3, v{vL}")
    A(f"v_lshl_add_u32 v{vD}, v{vT1}, 4, v{vT0}")
    A(f"s_mul_i32 s{s_lds}, s5, 40960")
    A(f"v_lshrrev_b32 v{vT0}, 5, v{vL}")
    A(f"v_bfe_u32 v{vT1}, v{vL}, 2, 2")
    A(f"v_lshl_add_u32 v{vT0}, v{vT0}, 2, v{vT1}")
    A(f"v_lshlrev_b32 v{vT0}, 6, v{vT0}")
    A(f"v_bfe_u32 v{vT1}, v{vL}, 4, 1")
    A(f"v_lshl_add_u32 v{vT0}, v{vT1}, 5, v{vT0}")
    A(f"v_and_b32 v{vT1}, 3, v{vL}")
    A(f"v_lshl_add_u32 v{vT0}, v{vT1}, 3, v{vT0}")
    A(f"v_add_u32 v{aT}, s{s_lds}, v{vT0}")
    A(f"s_lshl_b32 s{s_t0}, s4, 6")
    A(f"s_mul_i32 s{s_o}, s5, {1024*1280}")
    A(f"s_add_u32 s{s_o}, s{s_o}, s{s_t0}")
    A(f"s_mul_i32 s{s_d}, s5, {432*1280}")
    A(f"s_add_u32 s{s_d}, s{s_d}, s{s_t0}")
    vm = VM(A)
    def dma(k):
        A(f"s_add_u32 m0, s{s_lds}, {(k % 40)*1024}")
        if k < 64:
            vm.issue(f"buffer_load_dwordx4 v{vD}, s[{SO}:{SO+3}], s{s_o} offen lds", k)
            A(f"s_add_u32 s{s_o}, s{s_o}, {16*1280}")
        else:
            vm.issue(f"buffer_load_dwordx4 v{vD}, s[{SD}:{SD+3}], s{s_d} offen lds", k)
            A(f"s_add_u32 s{s_d}, s{s_d}, {16*1280}")
    for k in range(40): dma(k)
    for k0 in range(0, 91, 4):
        ks = [k for k in range(k0, min(k0 + 4, 91))]
        vm.wait(ks[-1])
        for k in ks:
            for m in range(2):
                A(f"ds_read_b64_tr_b16 {u(WR(k)+2*m,2)}, v{aT} offset:{(k%40)*1024 + m*512}")
        A("s_waitcnt lgkmcnt(0)")
        for k in ks:
            if k + 40 < 91: dma(k + 40)
    A(f"v_and_b32 v{vT0}, 31, v{vL}")
    A(f"v_lshlrev_b32 v{gG}, 2, v{vT0}")
    A(f"v_mul_u32_u24 v{vT0}, 1280, v{vT0}")
    A(f"v_lshrrev_b32 v{vT1}, 5, v{vL}")
    A(f"v_lshl_add_u32 v{vT0}, v{vT1}, 3, v{vT0}")
    A(f"s_lshl_b32 s{s_t0}, s4, 6")
    A(f"s_lshl_b32 s{s_t1}, s5, 4")
    A(f"s_add_u32 s{s_t0}, s{s_t0}, s{s_t1}")
    A(f"v_add_u32 v{gOUT}, s{s_t0}, v{vT0}")
    A(f"s_lshl_b32 s{s_t0}, s5, 12")
    A(f"v_add_u32 v{aRW}, s{s_t0}, v{vA16}")
    A(f"s_lshl_b32 s{s_t0}, s5, 10")
    A(f"v_add_u32 v{aRR}, s{s_t0}, v{vA16}")
    A(f"s_lshl_b32 s{s_t0}, s5, 8")
    A(f"s_add_u32 s{s_flag}, s{s_flag}, s{s_t0}")
    A("s_barrier")
    stamp(A, opt, 13, vt=(16, 17, 18))
    wait_bar("F_OPW")
    stamp(A, opt, 14, vt=(16, 17, 18))
    A(f"s_mov_b32 s{s_seg}, s3")
    A.label("F_OP_LOOP")
    vm = VM(A)
    A(f"s_mul_i32 s{s_d}, s{s_seg}, {54*2048}")
    A(f"s_mul_i32 s{s_t0}, s5, {27*1024}")
    A(f"s_add_u32 s{s_d}, s{s_d}, s{s_t0}")
    A(f"s_add_u32 s{s_d}, s{s_d}, {WS_H:#x}")
    A(f"s_lshl_b32 s{s_o}, s{s_seg}, 18")
    A(f"s_lshl_b32 s{s_t0}, s5, 16")
    A(f"s_add_u32 s{s_o}, s{s_o}, s{s_t0}")
    A(f"s_add_u32 s{s_o}, s{s_o}, {WS_O:#x}")
    A(f"s_lshl_b32 s{s_t0}, s{s_seg}, 7")
    A(f"s_add_u32 s{s_t0}, s{s_t0}, {WS_G:#x}")
    vm.issue(f"buffer_load_dword v{vG}, v{gG}, {W}, s{s_t0} offen sc1", 'g')
    def stream(n, sreg, acc, w0):
        def ldk(k):
            vm.issue(f"buffer_load_dwordx4 {v(RING+4*(k%NR),4)}, v{vA16}, {W}, s{sreg} offen offset:{(k%4)*1024} sc1", k)
            if k % 4 == 3: A(f"s_add_u32 s{sreg}, s{sreg}, 4096")
        for k in range(min(NR - 1, n)): ldk(k)
        for k in range(n):
            vm.wait(k)
            c = "0" if k == 0 else v(acc, 16)
            A(f"v_mfma_f32_32x32x16_bf16 {v(acc,16)}, {u(WR(w0+k),4)}, {v(RING+4*(k%NR),4)}, {c}")
            if k + NR - 1 < n: ldk(k + NR - 1)
    stream(27, s_d, ACB, 64)
    A.label("F_OP_POLL")
    A(f"buffer_load_dword v{vT0}, off, {W}, s{s_flag} sc1")
    A(f"buffer_load_dword v{vT1}, off, {W}, s{s_flag} offset:128 sc1")
    A("s_waitcnt vmcnt(0)")
    A(f"v_min_u32 v{vT0}, v{vT0}, v{vT1}")
    A(f"v_readfirstlane_b32 s{s_t0}, v{vT0}")
    A(f"s_cmp_gt_u32 s{s_t0}, s{s_seg}")
    A("s_cbranch_scc1 F_OP_GO")
    spin_fail("F_OP_POLL", 2)
    A.label("F_OP_GO")
    vm = VM(A)
    stream(64, s_o, ACA, 0)
    A(f"v_sub_f32 v{vG1}, 1.0, v{vG}")
    for i in range(16): A(f"v_mul_f32 v{ACB+i}, v{ACB+i}, v{vG1}")
    for i in range(16): A(f"v_fmac_f32 v{ACB+i}, v{ACA+i}, v{vG}")
    for q in range(4): A(f"ds_write_b128 v{aRW}, {v(ACB+4*q,4)} offset:{q*1024}")
    A("s_waitcnt lgkmcnt(0)")
    A("s_barrier")
    for q in range(4): A(f"ds_read_b128 {v(ACA+4*q,4)}, v{aRR} offset:{q*4096}")
    A(f"v_xor_b32 v{aRW}, 0x4000, v{aRW}")
    A(f"v_xor_b32 v{aRR}, 0x4000, v{aRR}")
    A(f"s_mul_i32 s{s_t0}, s{s_seg}, {32*1280}")
    A("s_waitcnt lgkmcnt(0)")
    for i in range(4):
        A(f"v_add_f32 v{ACA+i}, v{ACA+i}, v{ACA+4+i}")
        A(f"v_add_f32 v{ACA+8+i}, v{ACA+8+i}, v{ACA+12+i}")
    for i in range(4): A(f"v_add_f32 v{ACA+i}, v{ACA+i}, v{ACA+8+i}")
    A(f"v_cvt_pk_bf16_f32 v14, v{ACA}, v{ACA+1}")
    A(f"v_cvt_pk_bf16_f32 v15, v{ACA+2}, v{ACA+3}")
    A(f"buffer_store_dwordx2 v[14:15], v{gOUT}, s[{SOUT}:{SOUT+3}], s{s_t0} offen")
    A(f"s_add_u32 s{s_seg}, s{s_seg}, 6")
    A(f"s_cmp_lt_u32 s{s_seg}, 64")
    A("s_cbranch_scc1 F_OP_LOOP")
    stamp(A, opt, 15, vt=(16, 17, 18))
    A("s_branch F_END")

    A.label("F_AT")
    QF, KF, VF, KM, VMm, MSK, SX, SM, OO, PX, PM = 16, 48, 80, 112, 144, 152, 168, 184, 200, 6, 14
    gKM, gVM, vMX, vMY = 250, 251, 252, 253
    s_h, s_qkv, s_m, s_prog = 30, 31, 32, 33
    A(f"s_sub_u32 s{s_h}, s4, 20")
    A(f"s_lshl_b32 s{s_h}, s{s_h}, 2")
    A(f"s_add_u32 s{s_h}, s{s_h}, s5")
    A(f"s_lshl_b32 s{s_prog}, s{s_h}, 7")
    A(f"s_add_u32 s{s_prog}, s{s_prog}, {WS_PROG:#x}")
    A(f"v_and_b32 v{vT0}, 31, v{vL}")
    A(f"v_lshrrev_b32 v{vT1}, 5, v{vL}")
    A(f"v_lshlrev_b32 v{vT2}, 4, v{vT0}")
    A(f"v_lshl_add_u32 v{gVM}, v{vT1}, 3, v{vT2}")
    A(f"v_lshl_add_u32 v{gKM}, v{vT1}, 7, v{vT2}")
    A(f"v_mov_b32 v{vT2}, {OOB:#x}")
    A(f"v_cmp_gt_u32 vcc, 8, v{vT0}")
    A(f"v_cndmask_b32 v{gKM}, v{vT2}, v{gKM}, vcc")
    A(f"v_lshlrev_b32 v{vT1}, 2, v{vT1}")
    A(f"v_sub_u32 v{vT0}, v{vT0}, v{vT1}")
    A(f"v_mov_b32 v{vT1}, {fbits(-1e30):#x}")
    A(f"v_mov_b32 v{vT2}, 0")
    for R in range(16):
        A(f"v_cmp_gt_i32 vcc, {8*(R>>2)+(R&3)}, v{vT0}")
        A(f"v_cndmask_b32 v{MSK+R}, v{vT2}, v{vT1}, vcc")
    wait_bar("F_ATW")
    A(f"s_mov_b32 s{s_seg}, s3")
    A.label("F_AT_LOOP")
    A(f"s_lshl_b32 s{s_t0}, s{s_seg}, 5")
    A(f"s_add_u32 s{s_t0}, s{s_t0}, s{s_h}")
    A(f"s_lshl_b32 s{s_qkv}, s{s_t0}, 13")
    A(f"s_lshl_b32 s{s_m}, s{s_t0}, 11")
    A(f"s_add_u32 s{s_m}, s{s_m}, {WS_KM:#x}")
    vm = VM(A)
    for reg, base, tag in ((KF, WS_K, 'k'), (QF, WS_Q, 'q'), (VF, WS_V, 'v')):
        for hf in range(2):
            A(f"s_add_u32 s{s_t0}, s{s_qkv}, {base + hf*4096:#x}")
            for k in range(4):
                vm.issue(f"buffer_load_dwordx4 {v(reg+16*hf+4*k,4)}, v{vA16}, {W}, s{s_t0} offen offset:{k*1024} sc1", tag)
    vm.wait('q')
    for k in range(8):
        c = v(MSK, 16) if k == 0 else v(SX, 16)
        A(f"v_mfma_f32_32x32x16_bf16 {v(SX,16)}, {v(KF+4*k,4)}, {v(QF+4*k,4)}, {c}")
    A.label("F_AT_POLL")
    A(f"buffer_load_dword v{vT0}, off, {W}, s{s_prog} sc1")
    A("s_waitcnt vmcnt(0)")
    A(f"v_readfirstlane_b32 s{s_t0}, v{vT0}")
    A(f"s_cmp_gt_u32 s{s_t0}, s{s_seg}")
    A("s_cbranch_scc1 F_AT_GO")
    spin_fail("F_AT_POLL", 2)
    A.label("F_AT_GO")
    vm = VM(A)
    for k in range(8):
        vm.issue(f"buffer_load_dwordx4 {v(KM+4*k,4)}, v{gKM}, {W}, s{s_m} offen offset:{k*256} sc1", k)
    A(f"s_add_u32 s{s_t0}, s{s_m}, {WS_VM - WS_KM:#x}")
    for et in range(4):
        vm.issue(f"buffer_load_dwordx2 {v(VMm+2*et,2)}, v{gVM}, {W}, s{s_t0} offen offset:{et*512} sc1", 'vm')
    A(f"v_max3_f32 v{vMX}, v{SX}, v{SX+1}, v{SX+2}")
    for i in range(3, 15, 2): A(f"v_max3_f32 v{vMX}, v{vMX}, v{SX+i}, v{SX+i+1}")
    A(f"v_max_f32 v{vMX}, v{vMX}, v{SX+15}")
    for k in range(8):
        vm.wait(k)
        c = "0" if k == 0 else v(SM, 16)
        A(f"v_mfma_f32_32x32x16_bf16 {v(SM,16)}, {v(KM+4*k,4)}, {v(QF+4*k,4)}, {c}")
    A(f"v_max3_f32 v{vMX}, v{vMX}, v{SM}, v{SM+1}")
    A(f"v_max3_f32 v{vMX}, v{vMX}, v{SM+2}, v{SM+3}")
    A(f"v_mov_b32 v{vMY}, v{vMX}")
    A(f"v_permlane32_swap_b32 v{vMX}, v{vMY}")
    A(f"v_max_f32 v{vMX}, v{vMX}, v{vMY}")
    sc = [SX + i for i in range(16)] + [SM + i for i in range(4)]
    for r in sc: A(f"v_sub_f32 v{r}, v{r}, v{vMX}")
    for r in sc: A(f"v_exp_f32 v{r}, v{r}")
    for i in range(8): A(f"v_cvt_pk_bf16_f32 v{PX+i}, v{SX+2*i}, v{SX+2*i+1}")
    for i in range(2): A(f"v_cvt_pk_bf16_f32 v{PM+i}, v{SM+2*i}, v{SM+2*i+1}")
    vm.wait('vm')
    OT = lambda et: QF + 16 * et
    for et in range(4):
        A(f"v_mfma_f32_32x32x16_bf16 {v(OT(et),16)}, {v(VF+8*et,4)}, {v(PX,4)}, 0")
    A(f"v_add_f32 v{vMX}, v{sc[0]}, v{sc[1]}")
    for et in range(4):
        A(f"v_mfma_f32_32x32x16_bf16 {v(OT(et),16)}, {v(VF+8*et+4,4)}, {v(PX+4,4)}, {v(OT(et),16)}")
        for r in sc[2+4*et:6+4*et]: A(f"v_add_f32 v{vMX}, v{vMX}, v{r}")
    for et in range(4):
        A(f"v_mfma_f32_32x32x8_bf16 {v(OT(et),16)}, {v(VMm+2*et,2)}, {v(PM,2)}, {v(OT(et),16)}")
        if et == 0:
            for r in sc[18:20]: A(f"v_add_f32 v{vMX}, v{vMX}, v{r}")
            A(f"v_mov_b32 v{vMY}, v{vMX}")
        if et == 1:
            A(f"v_permlane32_swap_b32 v{vMX}, v{vMY}")
            A(f"v_add_f32 v{vMX}, v{vMX}, v{vMY}")
            A(f"v_rcp_f32 v{vMX}, v{vMX}")
    A(f"s_add_u32 s{s_t0}, s{s_qkv}, {WS_O:#x}")
    for et in range(4):
        for i in range(16): A(f"v_mul_f32 v{OT(et)+i}, v{OT(et)+i}, v{vMX}")
        for i in range(8): A(f"v_cvt_pk_bf16_f32 v{KM+8*et+i}, v{OT(et)+2*i}, v{OT(et)+2*i+1}")
        if et == 2: A(f"s_add_u32 s{s_t0}, s{s_t0}, 4096")
        for ab in range(2):
            A(f"buffer_store_dwordx4 {v(KM+8*et+4*ab,4)}, v{vA16}, {W}, s{s_t0} offen offset:{(et&1)*2048+ab*1024} sc1")
    A("s_waitcnt vmcnt(0)")
    A("s_barrier")
    A("s_cmp_eq_u32 s5, 0")
    A("s_cbranch_scc0 F_AT_NF")
    A(f"s_add_u32 s{s_t0}, s{s_seg}, 1")
    A(f"v_mov_b32 v{vT0}, s{s_t0}")
    A("s_mov_b64 exec, 1")
    A(f"buffer_store_dword v{vT0}, off, {W}, s{s_flag} sc1")
    A("s_mov_b64 exec, -1")
    A.label("F_AT_NF")
    A(f"s_add_u32 s{s_seg}, s{s_seg}, 6")
    A(f"s_cmp_lt_u32 s{s_seg}, 64")
    A("s_cbranch_scc1 F_AT_LOOP")
    stamp(A, opt, 15, vt=(16, 17, 18))
    A("s_branch F_END")
    A.label("F_FAIL")
    A(f"v_mov_b32 v{vT0}, 0x2000")
    A("s_mov_b64 exec, 1")
    A(f"buffer_store_dword v{vT0}, off, {D}, 0 offset:{(DBG_ERR+1)*4} sc1")
    A.label("F_END")
```

```python
import sys, math, struct
from asmlib import *

KNAME = "gated_mix__memory_aug_recurrent_mem_tr__glu_gated_bilinear__prompt_kernel"
MB = 1 << 20
WS_K, WS_V, WS_Q, WS_O = 0, 16 * MB, 32 * MB, 48 * MB
WS_H = 64 * MB
WS_KM, WS_VM = 72 * MB, 76 * MB
WS_G = 80 * MB
WS_PROG = 80 * MB + 0x10000
WS_OFLAG = 80 * MB + 0x20000
WS_P = 81 * MB
WS_ML = 82 * MB
WS_X = 84 * MB
WS_SIZE = 256 * MB
OOB = 0x80000000
SENT = 0x7F817F81
SUSP = 0x7F810000
CSCALE = math.log2(math.e) / math.sqrt(128.0)
def fbits(x): return struct.unpack('<I', struct.pack('<f', x))[0]
KA_X, KA_MEM0, KA_WQ, KA_WK, KA_WV, KA_WO, KA_WG, KA_WU, KA_WD, KA_GW, KA_OUT, KA_DBG, KA_WS = 0, 8, 16, 24, 32, 40, 64, 72, 80, 88, 96, 104, 112
DBG_CHAIN_CNT, DBG_XCC0, DBG_POL, DBG_WBAR, DBG_ERR, DBG_KV = 0, 1, 3, 4, 5, 8

S_WS, S_DBG = 8, 12
LDS_BYTES = 163840

def srd(A, d, lo, hi, nbytes):
    A(f"s_mov_b32 s{d}, s{lo}")
    A(f"s_and_b32 s{d+1}, s{hi}, 0xffff")
    A(f"s_mov_b32 s{d+2}, {nbytes:#x}")
    A(f"s_mov_b32 s{d+3}, 0x20000")

WS_TS = 90 * MB
def stamp(A, opt, idx, sidx=None, vt=(250, 251, 252), st=(96, 97, 98)):
    if not opt.stamps: return
    L = A.newlabel("ST")
    A("s_cmp_eq_u32 s5, 0")
    A(f"s_cbranch_scc0 {L}")
    A(f"s_memrealtime s[{st[0]}:{st[1]}]")
    A(f"s_memtime s[100:101]")
    A(f"s_lshl_b32 s{st[2]}, s2, 10")
    A(f"s_add_u32 s{st[2]}, s{st[2]}, {WS_TS + idx*8:#x}")
    if sidx is not None:
        A(f"s_lshl_b32 s99, s{sidx[0]}, {sidx[1]}")
        A(f"s_add_u32 s{st[2]}, s{st[2]}, s99")
    A("s_waitcnt lgkmcnt(0)")
    A(f"v_mov_b32 v{vt[0]}, s{st[0]}")
    A(f"v_mov_b32 v{vt[1]}, s100")
    A(f"v_mov_b32 v{vt[2]}, 0")
    A(f"buffer_store_dwordx2 v[{vt[0]}:{vt[1]}], v{vt[2]}, s[{S_WS}:{S_WS+3}], s{st[2]} offen")
    A("s_waitcnt vmcnt(0)")
    A.label(L)

class Opt:
    stamps = 0
    workers = True; chain = True; followers = True; gemm = True
    spin = 200000
    pol = 0
    force_slow = 0

def gen_gemm(A, opt):
    SX, SW = 16, 20
    s_rb, s_type, s_stride, s_h, s_out, s_sx, s_sw, s_wstep = 24, 25, 26, 27, 28, 29, 30, 31
    s_it, s_t0, s_t1 = 32, 33, 34
    P0, P1 = 36, 38
    s_m0x, s_m0w = 40, 41
    s_wsz = 42
    vXA = [1, 2, 3, 4]
    vWA = [5, 6, 7, 8]
    vDX = [9, 10, 11, 12]
    vDW = [13, 14, 15, 16]
    vL, vT0, vT1, vT2, vOUT = 17, 18, 19, 20, 21
    XF = lambda sg, j: 64 + 32 * sg + 4 * j
    WF = lambda sg, i: 80 + 32 * sg + 4 * i
    ACC = lambda i, j: 16 * (4 * i + j)

    A("s_load_dwordx2 s[36:37], s[0:1], %d" % KA_X)
    A("s_waitcnt lgkmcnt(0)")
    srd(A, SX, 36, 37, 2048 * 1280)
    A(f"v_and_b32 v{vL}, 63, v0")
    A(f"v_and_b32 v{vT0}, 31, v{vL}")
    A(f"v_lshrrev_b32 v{vT1}, 5, v{vL}")
    A(f"v_bfe_u32 v{vT2}, v{vL}, 2, 2")
    A(f"v_xor_b32 v{vT1}, v{vT1}, v{vT2}")
    A(f"v_lshlrev_b32 v{vT1}, 4, v{vT1}")
    A(f"v_lshl_add_u32 v{vT1}, v{vT0}, 6, v{vT1}")
    A(f"s_and_b32 s{s_t0}, s5, 1")
    A(f"s_lshl_b32 s{s_t0}, s{s_t0}, 13")
    A(f"v_add_u32 v{vXA[0]}, s{s_t0}, v{vT1}")
    A(f"v_xor_b32 v{vXA[1]}, 32, v{vXA[0]}")
    A(f"v_add_u32 v{vXA[2]}, 0x10000, v{vXA[0]}")
    A(f"v_add_u32 v{vXA[3]}, 0x10000, v{vXA[1]}")
    A(f"v_lshrrev_b32 v{vT0}, 5, v{vL}")
    A(f"v_bfe_u32 v{vT1}, v{vL}, 2, 2")
    A(f"v_lshl_add_u32 v{vT0}, v{vT0}, 3, v{vT1}")
    A(f"v_lshlrev_b32 v{vT0}, 7, v{vT0}")
    A(f"v_bfe_u32 v{vT1}, v{vL}, 3, 1")
    A(f"v_lshl_add_u32 v{vT0}, v{vT1}, 6, v{vT0}")
    A(f"v_bfe_u32 v{vT1}, v{vL}, 4, 1")
    A(f"v_lshl_add_u32 v{vT0}, v{vT1}, 5, v{vT0}")
    A(f"v_and_b32 v{vT1}, 3, v{vL}")
    A(f"v_lshl_add_u32 v{vT0}, v{vT1}, 3, v{vT0}")
    A(f"s_lshr_b32 s{s_t0}, s5, 1")
    A(f"s_lshl_b32 s{s_t0}, s{s_t0}, 13")
    A(f"v_add_u32 v{vWA[0]}, s{s_t0}, v{vT0}")
    A(f"v_xor_b32 v{vWA[1]}, 64, v{vWA[0]}")
    A(f"v_add_u32 v{vWA[2]}, 0x10000, v{vWA[0]}")
    A(f"v_add_u32 v{vWA[3]}, 0x10000, v{vWA[1]}")
    A(f"v_lshrrev_b32 v{vT0}, 2, v{vL}")
    A(f"s_lshl_b32 s{s_t0}, s5, 6")
    A(f"v_add_u32 v{vT0}, s{s_t0}, v{vT0}")
    A(f"v_mul_u32_u24 v{vT0}, 1280, v{vT0}")
    A(f"v_and_b32 v{vT1}, 3, v{vL}")
    A(f"v_lshrrev_b32 v{vT2}, 4, v{vL}")
    A(f"v_xor_b32 v{vT1}, v{vT1}, v{vT2}")
    A(f"v_lshl_add_u32 v{vDX[0]}, v{vT1}, 4, v{vT0}")
    for n in range(1, 4):
        A(f"v_add_u32 v{vDX[n]}, {n*(16*1280-1024)}, v{vDX[0]}")
    A(f"s_lshl_b32 s{s_m0x}, s5, 12")
    A(f"s_add_u32 s{s_m0w}, s{s_m0x}, 16384")
    A(f"v_lshlrev_b32 v{vOUT}, 4, v{vL}")
    A("s_lshl_b32 s7, s3, 5")
    A("s_add_u32 s7, s7, s4")
    A("s_mov_b32 s6, 0")

    A.label("G_ROUND")
    A("s_cmp_eq_u32 s6, 2")
    A("s_cbranch_scc1 G_DEC_FFN")
    A("s_cmp_eq_u32 s6, 1")
    A("s_cbranch_scc1 G_DEC_R1")
    A(f"s_mul_i32 s{s_h}, s7, 43691")
    A(f"s_lshr_b32 s{s_h}, s{s_h}, 18")
    A(f"s_mul_i32 s{s_t0}, s{s_h}, 6")
    A(f"s_sub_u32 s{s_rb}, s7, s{s_t0}")
    A("s_branch G_DEC_KV")
    A.label("G_DEC_R1")
    A("s_cmp_ge_u32 s7, 64")
    A("s_cbranch_scc1 G_DEC_Q")
    A(f"s_lshr_b32 s{s_h}, s7, 1")
    A(f"s_and_b32 s{s_rb}, s7, 1")
    A(f"s_add_u32 s{s_rb}, s{s_rb}, 6")
    A.label("G_DEC_KV")
    A(f"s_load_dwordx2 s[{P0}:{P0+1}], s[0:1], {KA_WK}")
    A(f"s_load_dwordx2 s[{P1}:{P1+1}], s[0:1], {KA_WV}")
    A("s_waitcnt lgkmcnt(0)")
    A("s_cmp_ge_u32 s5, 2")
    A(f"s_cselect_b32 s{P0}, s{P1}, s{P0}")
    A(f"s_cselect_b32 s{P0+1}, s{P1+1}, s{P0+1}")
    A(f"s_cselect_b32 s{s_type}, 1, 0")
    A(f"s_cselect_b32 s{s_out}, {WS_V:#x}, {WS_K:#x}")
    A(f"s_lshl_b32 s{s_sw}, s{s_h}, 8")
    A(f"s_and_b32 s{s_t0}, s5, 1")
    A(f"s_lshl_b32 s{s_t0}, s{s_t0}, 7")
    A(f"s_add_u32 s{s_sw}, s{s_sw}, s{s_t0}")
    A(f"s_lshl_b32 s{s_t0}, s{s_h}, 13")
    A(f"s_add_u32 s{s_out}, s{s_out}, s{s_t0}")
    A(f"s_mov_b32 s{s_stride}, 8192")
    A(f"s_mov_b32 s{s_wsz}, {640*8192}")
    A("s_branch G_DEC_QKV")
    A.label("G_DEC_Q")
    A(f"s_sub_u32 s{s_t0}, s7, 64")
    A(f"s_and_b32 s{s_rb}, s{s_t0}, 7")
    A(f"s_lshr_b32 s{s_h}, s{s_t0}, 3")
    A(f"s_load_dwordx2 s[{P0}:{P0+1}], s[0:1], {KA_WQ}")
    A("s_waitcnt lgkmcnt(0)")
    A(f"s_mov_b32 s{s_type}, 2")
    A(f"s_lshl_b32 s{s_sw}, s{s_h}, 9")
    A(f"s_lshl_b32 s{s_t0}, s5, 7")
    A(f"s_add_u32 s{s_sw}, s{s_sw}, s{s_t0}")
    A(f"s_lshl_b32 s{s_t0}, s{s_h}, 1")
    A(f"s_lshr_b32 s{s_t1}, s5, 1")
    A(f"s_add_u32 s{s_t0}, s{s_t0}, s{s_t1}")
    A(f"s_lshl_b32 s{s_t0}, s{s_t0}, 13")
    A(f"s_add_u32 s{s_out}, s{s_t0}, {WS_Q:#x}")
    A(f"s_mov_b32 s{s_stride}, 8192")
    A(f"s_mov_b32 s{s_wsz}, {640*8192}")
    A.label("G_DEC_QKV")
    A(f"s_lshl_b32 s{s_t0}, s{s_rb}, 1")
    A(f"s_and_b32 s{s_t1}, s5, 1")
    A(f"s_add_u32 s{s_t0}, s{s_t0}, s{s_t1}")
    A(f"s_lshl_b32 s{s_t0}, s{s_t0}, 20")
    A(f"s_add_u32 s{s_out}, s{s_out}, s{s_t0}")
    A("s_branch G_DEC_DONE")
    A.label("G_DEC_FFN")
    A(f"s_sub_u32 s{s_t0}, 31, s4")
    A(f"s_cmp_ge_u32 s{s_t0}, 19")
    A("s_cbranch_scc1 G_END")
    A(f"s_mul_i32 s{s_t1}, s3, 19")
    A(f"s_add_u32 s{s_t0}, s{s_t0}, s{s_t1}")
    A(f"s_cmp_ge_u32 s{s_t0}, 112")
    A("s_cbranch_scc1 G_END")
    A(f"s_and_b32 s{s_rb}, s{s_t0}, 7")
    A(f"s_lshr_b32 s{s_h}, s{s_t0}, 3")
    A(f"s_load_dwordx2 s[{P0}:{P0+1}], s[0:1], {KA_WG}")
    A(f"s_load_dwordx2 s[{P1}:{P1+1}], s[0:1], {KA_WU}")
    A("s_waitcnt lgkmcnt(0)")
    A(f"s_bitcmp1_b32 s5, 0")
    A(f"s_cselect_b32 s{P0}, s{P1}, s{P0}")
    A(f"s_cselect_b32 s{P0+1}, s{P1+1}, s{P0+1}")
    A(f"s_mov_b32 s{s_type}, 3")
    A(f"s_lshl_b32 s{s_sw}, s{s_h}, 8")
    A(f"s_lshr_b32 s{s_t0}, s5, 1")
    A(f"s_lshl_b32 s{s_t1}, s{s_t0}, 7")
    A(f"s_add_u32 s{s_sw}, s{s_sw}, s{s_t1}")
    A(f"s_lshl_b32 s{s_t0}, s{s_t0}, 1")
    A(f"s_lshl_b32 s{s_t1}, s{s_h}, 2")
    A(f"s_add_u32 s{s_h}, s{s_t0}, s{s_t1}")
    A(f"s_lshl_b32 s{s_t0}, s{s_rb}, 1")
    A(f"s_and_b32 s{s_t1}, s5, 1")
    A(f"s_add_u32 s{s_t0}, s{s_t0}, s{s_t1}")
    A(f"s_mul_i32 s{s_t0}, s{s_t0}, {4*54}")
    A(f"s_add_u32 s{s_t0}, s{s_t0}, s{s_h}")
    A(f"s_lshl_b32 s{s_t0}, s{s_t0}, 11")
    A(f"s_add_u32 s{s_out}, s{s_t0}, {WS_H:#x}")
    A(f"s_mov_b32 s{s_stride}, 3456")
    A(f"s_mov_b32 s{s_wsz}, {640*3456}")
    A.label("G_DEC_DONE")
    A(f"s_mov_b32 s{SW}, s{P0}")
    A(f"s_and_b32 s{SW+1}, s{P0+1}, 0xffff")
    A(f"s_mov_b32 s{SW+2}, s{s_wsz}")
    A(f"s_mov_b32 s{SW+3}, 0x20000")
    A(f"s_mul_i32 s{s_sx}, s{s_rb}, {256*1280}")
    A(f"s_lshl_b32 s{s_wstep}, s{s_stride}, 5")
    A(f"v_lshrrev_b32 v{vT0}, 3, v{vL}")
    A(f"v_mul_lo_u32 v{vT0}, v{vT0}, s{s_stride}")
    A(f"v_bfe_u32 v{vT1}, v{vL}, 4, 1")
    A(f"v_lshlrev_b32 v{vT1}, 2, v{vT1}")
    A(f"v_and_b32 v{vT2}, 7, v{vL}")
    A(f"v_xor_b32 v{vT1}, v{vT1}, v{vT2}")
    A(f"v_lshl_add_u32 v{vDW[0]}, v{vT1}, 4, v{vT0}")
    A(f"s_lshl_b32 s{s_t0}, s{s_stride}, 3")
    A(f"s_sub_u32 s{s_t0}, s{s_t0}, 1024")
    for n in range(1, 4):
        A(f"v_add_u32 v{vDW[n]}, s{s_t0}, v{vDW[n-1]}")

    def dma_list(slot):
        L = []
        L.append([f"s_add_u32 m0, s{s_m0x}, {slot*32768}"])
        for n in range(4):
            L.append([f"buffer_load_dwordx4 v{vDX[n]}, s[{SX}:{SX+3}], s{s_sx} offen offset:{n*1024} lds"])
        L.append([f"s_add_u32 m0, s{s_m0w}, {slot*32768}", f"s_add_u32 s{s_sx}, s{s_sx}, 64"])
        for n in range(4):
            L.append([f"buffer_load_dwordx4 v{vDW[n]}, s[{SW}:{SW+3}], s{s_sw} offen offset:{n*1024} lds"])
        L.append([f"s_add_u32 s{s_sw}, s{s_sw}, s{s_wstep}"])
        return L
    def read_list(slot, ks, sg):
        hi = slot >> 1; base = (slot & 1) * 32768
        L = []
        order = [('x', 0), ('w', 0), ('x', 1), ('x', 2), ('x', 3), ('w', 1), ('w', 2), ('w', 3)]
        for t, i in order:
            if t == 'x':
                L.append([f"ds_read_b128 {v(XF(sg,i),4)}, v{vXA[2*hi+ks]} offset:{base + i*2048}"])
            else:
                for m in range(2):
                    L.append([f"ds_read_b64_tr_b16 {v(WF(sg,i)+2*m,2)}, v{vWA[2*hi+(i&1)]} offset:{base + 16384 + (i>>1)*4096 + ks*2048 + m*512}"])
        return L
    def mfmas(sg, vtype, first):
        L = []
        for i in range(4):
            for j in range(4):
                d = a_(ACC(i, j), 16)
                c = "0" if first else d
                if vtype: L.append(f"v_mfma_f32_32x32x16_bf16 {d}, {v(XF(sg,j),4)}, {v(WF(sg,i),4)}, {c}")
                else:     L.append(f"v_mfma_f32_32x32x16_bf16 {d}, {v(WF(sg,i),4)}, {v(XF(sg,j),4)}, {c}")
        return L
    def interleave(ms, fill, per=1):
        fi = 0
        for k, m in enumerate(ms):
            A(m)
            for _ in range(per):
                if fi < len(fill):
                    for t in fill[fi]: A(t)
                    fi += 1
        while fi < len(fill):
            for t in fill[fi]: A(t)
            fi += 1

    stamp(A, opt, 0, (6, 5))
    for st in range(4):
        for g in dma_list(st):
            for t in g: A(t)
    A("s_waitcnt vmcnt(24)")
    A("s_barrier")
    for g in read_list(0, 0, 0):
        for t in g: A(t)
    A(f"s_cmp_eq_u32 s{s_type}, 1")
    A("s_cbranch_scc1 G_LOOP_V")

    def body(st_slot, vtype, first, dma, vm, last):
        A("s_waitcnt lgkmcnt(0)")
        interleave(mfmas(0, vtype, first), read_list(st_slot, 1, 1))
        if last:
            A("s_waitcnt lgkmcnt(0)")
            A("s_barrier")
            interleave(mfmas(1, vtype, False), [])
            return
        A(f"s_waitcnt vmcnt({vm}) lgkmcnt(0)")
        A("s_barrier")
        rl = read_list((st_slot + 1) & 3, 0, 0)
        dl = dma_list(st_slot) if dma else []
        fill = []
        for k in range(0, len(rl), 2):
            fill.append(rl[k] + (rl[k+1] if k + 1 < len(rl) else []))
        if dl:
            fill.append(dl[0] + dl[1]); fill += dl[2:5]; fill.append(dl[5] + dl[6]); fill += dl[7:9]; fill.append(dl[9] + dl[10])
        interleave(mfmas(1, vtype, False), fill)

    for vtype in (0, 1):
        nm = "V" if vtype else "K"
        A.label(f"G_LOOP_{nm}")
        body(0, vtype, True, True, 16, False)
        A(f"s_mov_b32 s{s_it}, 0")
        A(f"s_branch G_LOOP_{nm}_1")
        A.label(f"G_LOOP_{nm}_0")
        body(0, vtype, False, True, 16, False)
        A.label(f"G_LOOP_{nm}_1")
        for sl in (1, 2, 3): body(sl, vtype, False, True, 16, False)
        A(f"s_add_u32 s{s_it}, s{s_it}, 1")
        A(f"s_cmp_lt_u32 s{s_it}, 4")
        A(f"s_cbranch_scc1 G_LOOP_{nm}_0")
        body(0, vtype, False, False, 16, False)
        body(1, vtype, False, False, 8, False)
        body(2, vtype, False, False, 0, False)
        body(3, vtype, False, False, 0, True)
        if vtype == 0: A("s_branch G_EPI")
    A.label("G_EPI")
    stamp(A, opt, 2, (6, 5))
    A(f"s_cmp_eq_u32 s{s_type}, 3")
    A("s_cbranch_scc1 G_EPI_FFN")
    A(f"s_cmp_eq_u32 s{s_type}, 2")
    A("s_cbranch_scc1 G_EPI_Q")
    def epi_qkv(scale):
        if scale: A(f"s_mov_b32 s{s_t1}, {fbits(CSCALE):#x}")
        k = 0
        for j in range(4):
            for i in range(4):
                for ab in range(2):
                    t = 64 + 12 * (k % 8); k += 1
                    for r in range(8): A(f"v_accvgpr_read_b32 v{t+r}, a{ACC(i,j)+8*ab+r}")
                    if scale:
                        for r in range(8): A(f"v_mul_f32 v{t+r}, s{s_t1}, v{t+r}")
                    for r in range(4): A(f"v_cvt_pk_bf16_f32 v{t+8+r}, v{t+2*r}, v{t+2*r+1}")
                    if i == 2 and ab == 0: A(f"s_add_u32 s{s_out}, s{s_out}, 4096")
                    A(f"buffer_store_dwordx4 {v(t+8,4)}, v{vOUT}, s[{S_WS}:{S_WS+3}], s{s_out} offen offset:{(i&1)*2048+ab*1024} sc1")
            A(f"s_add_u32 s{s_out}, s{s_out}, {32*8192-4096}")
    epi_qkv(False)
    A("s_waitcnt vmcnt(0)")
    A("s_barrier")
    A("s_cmp_eq_u32 s5, 0")
    A("s_cbranch_scc0 G_NEXT")
    A(f"s_lshl_b32 s{s_t0}, 1, s{s_h}")
    A(f"s_lshl_b32 s{s_t1}, s{s_rb}, 2")
    A(f"v_mov_b32 v{vT0}, s{s_t0}")
    A(f"v_mov_b32 v{vT1}, {OOB:#x}")
    A(f"v_cmp_eq_u32 vcc, 0, v{vL}")
    A(f"v_cndmask_b32 v{vT1}, v{vT1}, v{vL}, vcc")
    A(f"buffer_atomic_or v{vT0}, v{vT1}, s[{S_DBG}:{S_DBG+3}], s{s_t1} offen offset:{DBG_KV*4} sc1")
    A("s_branch G_NEXT")
    A.label("G_EPI_Q")
    epi_qkv(True)
    A("s_branch G_NEXT")
    A.label("G_EPI_FFN")
    A(f"s_cmp_ge_u32 s{s_h}, 54")
    A("s_cbranch_scc1 G_NEXT")
    k = 0
    for j in range(4):
        for i in range(2):
            for ab in range(2):
                t = 64 + 20 * (k % 8); k += 1
                for r in range(8): A(f"v_accvgpr_read_b32 v{t+r}, a{ACC(i,j)+8*ab+r}")
                for r in range(8): A(f"v_accvgpr_read_b32 v{t+8+r}, a{ACC(i+2,j)+8*ab+r}")
                for r in range(8): A(f"v_mul_f32 v{t+r}, v{t+r}, v{t+8+r}")
                for r in range(4): A(f"v_cvt_pk_bf16_f32 v{t+16+r}, v{t+2*r}, v{t+2*r+1}")
                A(f"buffer_store_dwordx4 {v(t+16,4)}, v{vOUT}, s[{S_WS}:{S_WS+3}], s{s_out} offen offset:{i*2048+ab*1024} sc1")
        A(f"s_add_u32 s{s_out}, s{s_out}, {54*2048}")
    A.label("G_NEXT")
    A("s_waitcnt vmcnt(0)")
    stamp(A, opt, 3, (6, 5))
    A("s_add_u32 s6, s6, 1")
    A("s_cmp_lt_u32 s6, 3")
    A("s_cbranch_scc1 G_ROUND")
    A.label("G_END")
    A("s_cmp_ge_u32 s7, 128")
    A("s_cbranch_scc1 G_GATE_END")
    A(f"s_load_dwordx2 s[{P0}:{P0+1}], s[0:1], {KA_GW}")
    A("s_waitcnt lgkmcnt(0)")
    srd(A, SW, P0, P0 + 1, 1280)
    A(f"v_lshrrev_b32 v{vT0}, 4, v0")
    A(f"s_lshl_b32 s{s_t0}, s7, 4")
    A(f"v_add_u32 v{vT0}, s{s_t0}, v{vT0}")
    A(f"v_and_b32 v{vT1}, 15, v0")
    A(f"v_lshlrev_b32 v{vT1}, 4, v{vT1}")
    A(f"v_mul_u32_u24 v{vT2}, 1280, v{vT0}")
    A(f"v_add_u32 v{vT2}, v{vT2}, v{vT1}")
    for c in range(5):
        A(f"buffer_load_dwordx4 {v(64+4*c,4)}, v{vT2}, s[{SX}:{SX+3}], 0 offen offset:{c*256}")
        A(f"buffer_load_dwordx4 {v(96+4*c,4)}, v{vT1}, s[{SW}:{SW+3}], 0 offen offset:{c*256}")
    A("v_mov_b32 v60, 0")
    A("v_mov_b32 v61, 0")
    A("s_waitcnt vmcnt(0)")
    for c in range(20):
        A(f"v_lshlrev_b32 v56, 16, v{64+c}")
        A(f"v_lshlrev_b32 v57, 16, v{96+c}")
        A(f"v_and_b32 v58, 0xffff0000, v{64+c}")
        A(f"v_and_b32 v59, 0xffff0000, v{96+c}")
        A(f"v_fmac_f32 v60, v56, v57")
        A(f"v_fmac_f32 v61, v58, v59")
    A("v_add_f32 v60, v60, v61")
    for ror in (8, 4, 2, 1):
        A(f"v_mov_b32_dpp v61, v60 row_ror:{ror} row_mask:0xf bank_mask:0xf")
        A("v_add_f32 v60, v60, v61")
    A(f"v_mul_f32 v60, {fbits(-math.log2(math.e)):#x}, v60")
    A("v_exp_f32 v60, v60")
    A("v_add_f32 v60, 1.0, v60")
    A("v_rcp_f32 v60, v60")
    A(f"v_lshlrev_b32 v{vT0}, 2, v{vT0}")
    A(f"v_mov_b32 v{vT2}, {OOB:#x}")
    A(f"v_cmp_eq_u32 vcc, 0, v{vT1}")
    A(f"v_cndmask_b32 v{vT0}, v{vT2}, v{vT0}, vcc")
    A(f"s_mov_b32 s{s_t0}, {WS_G:#x}")
    A(f"buffer_store_dword v60, v{vT0}, s[{S_WS}:{S_WS+3}], s{s_t0} offen sc1")
    A.label("G_GATE_END")

def generate(opt):
    A = Asm()
    A("s_cmp_ge_u32 s2, 256")
    A("s_cbranch_scc1 K_EXIT")
    A(f"s_load_dwordx2 s[36:37], s[0:1], {KA_WS}")
    A(f"s_load_dwordx2 s[38:39], s[0:1], {KA_DBG}")
    A("v_lshrrev_b32 v1, 6, v0")
    A("v_readfirstlane_b32 s5, v1")
    A("s_and_b32 s3, s2, 7")
    A("s_lshr_b32 s4, s2, 3")
    A("s_waitcnt lgkmcnt(0)")
    srd(A, S_WS, 36, 37, WS_SIZE)
    srd(A, S_DBG, 38, 39, 256)
    A("s_cmp_lt_u32 s3, 2")
    A("s_cbranch_scc1 K_CHAIN")
    A("s_sub_u32 s3, s3, 2")
    if opt.gemm: gen_gemm(A, opt)
    if opt.followers:
        from gen_follow import gen_follow
        gen_follow(A, opt)
    A("s_waitcnt vmcnt(0)")
    A("s_endpgm")
    A.label("K_CHAIN")
    if opt.chain:
        from gen_chain import gen_chain
        gen_chain(A, opt)
    A.label("K_EXIT")
    A("s_endpgm")
    A.pad()
    hdr = open('gated_mix__memory_aug_recurrent_mem_tr__glu_gated_bilinear__prompt.s.ref').read().split('\n')
    head = [l for l in hdr if l.startswith(';') and '@launch' not in l]
    out = '\n'.join(head) + f"\n; @launch grid=(256,1,1) block=(256,1,1) lds={LDS_BYTES}\n"
    out += f""".amdgcn_target "amdgcn-amd-amdhsa--gfx950"
.text
.globl {KNAME}
.p2align 8
.type {KNAME},@function
{KNAME}:
""" + A.text() + f""".section .rodata,"a"
.p2align 6
.amdhsa_kernel {KNAME}
  .amdhsa_next_free_vgpr 512
  .amdhsa_next_free_sgpr 102
  .amdhsa_accum_offset 256
  .amdhsa_group_segment_fixed_size 0
  .amdhsa_kernarg_size 120
  .amdhsa_user_sgpr_count 2
  .amdhsa_user_sgpr_kernarg_segment_ptr 1
  .amdhsa_system_sgpr_workgroup_id_x 1
.end_amdhsa_kernel
"""
    return out

if __name__ == "__main__":
    opt = Opt()
    outp = sys.argv[1]
    for a in sys.argv[2:]:
        k, val = a.split('=')
        setattr(opt, k, int(val))
    open(outp, 'w').write(generate(opt))
```

```python
import re

def regs_of(tok):
    tok = tok.strip()
    neg = tok.lstrip('-')
    m = re.fullmatch(r'abs\((.*)\)', neg) or re.fullmatch(r'\|(.*)\|', neg)
    if m: neg = m.group(1)
    m = re.fullmatch(r'([vas])(\d+)', neg)
    if m: return [(m.group(1), int(m.group(2)))]
    m = re.fullmatch(r'([vas])\[(\d+):(\d+)\]', neg)
    if m: return [(m.group(1), i) for i in range(int(m.group(2)), int(m.group(3)) + 1)]
    if neg == 'vcc': return [('s', 106), ('s', 107)]
    if neg == 'vcc_lo': return [('s', 106)]
    if neg == 'vcc_hi': return [('s', 107)]
    if neg == 'exec': return [('s', 126), ('s', 127)]
    if neg == 'm0': return [('s', 124)]
    return []

TRANS = ('v_exp_f32', 'v_log_f32', 'v_rcp_f32', 'v_rsq_f32', 'v_sqrt_f32', 'v_sin_f32', 'v_cos_f32')

class Ins:
    __slots__ = ('text', 'op', 'kind', 'wr', 'rd', 'srcC', 'srcAB', 'passes', 'ws', 'dpp', 'stdata', 'lds_dma', 'label')
    def __init__(self, text):
        self.text = text
        self.label = False
        t = text.split(';')[0].strip()
        self.wr = set(); self.rd = set(); self.srcC = set(); self.srcAB = set(); self.stdata = set()
        self.passes = 0; self.ws = 1; self.dpp = False; self.lds_dma = False
        if t.endswith(':') or t.startswith('.') or t == '':
            self.op = ''; self.kind = 'label' if t.endswith(':') else 'none'; self.ws = 0
            return
        parts = t.split(None, 1)
        op = parts[0]; self.op = op
        rest = parts[1] if len(parts) > 1 else ''
        ops = [o.strip() for o in rest.split(',')] if rest else []
        mods = ''
        if ops:
            last = ops[-1].split(None, 1)
            ops[-1] = last[0] if last else ''
            mods = last[1] if len(last) > 1 else ''
        if 'quad_perm' in rest:
            head = rest[:rest.index('quad_perm')]
            ops = [o.strip() for o in head.strip().split(',')]
            mods = rest[rest.index('quad_perm'):]
        R = lambda i: set(regs_of(ops[i])) if i < len(ops) else set()
        if op.startswith('v_mfma') or op.startswith('v_smfmac'):
            self.kind = 'mfma'
            self.wr = R(0); self.srcAB = R(1) | R(2)
            if op.startswith('v_smfmac'):
                self.srcC = R(0); self.srcAB |= R(3)
            else:
                self.srcC = R(3)
            self.rd = self.srcAB | self.srcC
            self.passes = 8 if '32x32' in op else 4
        elif op.startswith('v_'):
            self.kind = 'valu'
            base = op.replace('_e32', '').replace('_e64', '').replace('_dpp', '')
            self.dpp = ('quad_perm' in mods or 'row_' in mods or op.endswith('_dpp'))
            if base.startswith('v_cmp'):
                self.wr = R(0); self.rd = R(1) | R(2)
                if base.startswith('v_cmpx'): self.wr |= set(regs_of('exec'))
            elif base.startswith('v_permlane') and 'swap' in base:
                self.wr = R(0) | R(1); self.rd = R(0) | R(1); self.kind = 'permlane'
            elif base in ('v_readfirstlane_b32', 'v_readlane_b32'):
                self.wr = R(0); self.rd = R(1) | R(2); self.kind = 'readlane'
            elif base in ('v_add_co_u32', 'v_sub_co_u32', 'v_addc_co_u32', 'v_subb_co_u32'):
                self.wr = R(0) | R(1); self.rd = set().union(*[R(i) for i in range(2, len(ops))])
            else:
                self.wr = R(0); self.rd = set().union(*[R(i) for i in range(1, len(ops))]) if len(ops) > 1 else set()
                if base.startswith('v_fmac') or base.startswith('v_pk_fmac') or self.dpp or base == 'v_writelane_b32': self.rd |= R(0)
                if base in TRANS: self.kind = 'trans'
            if op == 'v_nop': self.wr = set(); self.rd = set()
        elif op.startswith('ds_'):
            self.kind = 'ds'
            if op.startswith('ds_read') or op.startswith('ds_bpermute') or op.startswith('ds_swizzle') or op.startswith('ds_permute'):
                self.wr = R(0); self.rd = set().union(*[R(i) for i in range(1, len(ops))])
            else:
                self.rd = set().union(*[R(i) for i in range(len(ops))])
        elif op.startswith('buffer_') or op.startswith('global_'):
            self.kind = 'vmem'
            islds = (' lds' in (' ' + mods)) or '_lds_' in op
            if op.startswith('buffer_wbl2') or op.startswith('buffer_inv'):
                pass
            elif 'load' in op and not islds:
                self.wr = R(0); self.rd = set().union(*[R(i) for i in range(1, len(ops))])
            elif 'load' in op:
                self.lds_dma = True
                self.rd = set().union(*[R(i) for i in range(len(ops))]) | {('s', 124)}
            else:
                self.rd = set().union(*[R(i) for i in range(len(ops))])
                if 'atomic' in op and ('sc0' in mods):
                    self.wr = R(0)
                if op.endswith('x3') or op.endswith('x4'):
                    self.stdata = R(0) if op.startswith('buffer_') else R(1)
        elif op.startswith('s_'):
            self.kind = 'salu'
            if op == 's_nop':
                self.ws = int(ops[0], 0) + 1
            elif op.startswith('s_cmp') or op.startswith('s_cbranch') or op.startswith('s_branch') or op in ('s_barrier', 's_waitcnt', 's_endpgm', 's_sleep', 's_setprio', 's_bitcmp0_b32', 's_bitcmp1_b32'):
                self.rd = set().union(*[R(i) for i in range(len(ops))]) if ops else set()
            else:
                self.wr = R(0); self.rd = set().union(*[R(i) for i in range(1, len(ops))]) if len(ops) > 1 else set()
                if 'saveexec' in op: self.wr |= set(regs_of('exec'))
        else:
            raise ValueError('unknown instruction: ' + text)

VALU_KINDS = ('valu', 'trans', 'permlane', 'readlane')

def need(p, c):
    n = 0
    pv = p.kind in VALU_KINDS
    cv = c.kind in VALU_KINDS
    vw = {r for r in p.wr if r[0] in 'va'}
    sw = {r for r in p.wr if r[0] == 's'}
    if pv:
        if c.kind == 'mfma' and (vw & c.rd): n = max(n, 2)
        if c.kind == 'mfma' and (('s', 126) in sw): n = max(n, 4)
        if c.kind == 'permlane' and (vw & c.rd): n = max(n, 2)
        if c.kind == 'readlane' and (vw & c.rd): n = max(n, 1)
        if cv and c.dpp and (vw & c.rd): n = max(n, 2)
        if cv and c.dpp and (('s', 126) in sw): n = max(n, 5)
        if p.kind == 'trans' and cv and c.kind != 'trans' and (vw & c.rd): n = max(n, 1)
        if p.kind == 'trans' and c.kind == 'trans' and (vw & c.rd): n = max(n, 1)
        if sw:
            if c.kind == 'vmem' and (sw & c.rd): n = max(n, 5)
            if cv and (sw & c.rd): n = max(n, 4 if c.kind == 'readlane' else 2)
            if c.kind == 'salu' and (sw & c.rd): n = max(n, 1)
            if ('s', 126) in sw and c.kind in ('readlane', 'permlane'): n = max(n, 4)
    if p.kind == 'mfma':
        big = 12 if p.passes == 8 else 8
        ovl = 10 if p.passes == 8 else 6
        if c.kind == 'mfma':
            if p.wr & c.srcAB: n = max(n, big)
            if p.wr & (c.srcC | c.wr):
                same = (p.wr == c.srcC and p.op == c.op and c.wr == p.wr)
                if not same: n = max(n, ovl)
        elif cv or c.kind in ('ds', 'vmem'):
            if p.wr & (c.rd | c.wr): n = max(n, big)
            if cv and (p.srcC & c.wr): n = max(n, 7 if p.passes == 8 else 3)
    if p.kind == 'vmem' and p.stdata:
        if (p.stdata & c.wr): n = max(n, 2 if cv else 1)
    if p.kind == 'salu' and ('s', 124) in p.wr and c.kind == 'vmem' and c.lds_dma: n = max(n, 1)
    return n

class Asm:
    def __init__(self):
        self.ins = []
        self.uid = 0
    def __call__(self, text):
        for line in text.split('\n'):
            line = line.strip()
            if line == '' : continue
            if line.startswith(';'):
                self.ins.append(Ins(line.replace(';', ';', 1))); continue
            self.ins.append(Ins(line))
    def label(self, name): self.ins.append(Ins(name + ':'))
    def newlabel(self, p='L'):
        self.uid += 1
        return f'{p}_{self.uid}'
    def pad(self, conservative_labels=True):
        ins = self.ins
        labels = {}
        out = []
        changed = True
        it = 0
        while changed:
            it += 1
            changed = False
            labels = {x.text.split(';')[0].strip()[:-1]: i for i, x in enumerate(ins) if x.kind == 'label'}
            jumps = {}
            for i, x in enumerate(ins):
                if x.kind == 'salu' and (x.op.startswith('s_cbranch') or x.op == 's_branch'):
                    tgt = x.text.split(';')[0].split()[1]
                    jumps.setdefault(labels[tgt], []).append(i)
            def back(i, dist, c, depth):
                miss = 0
                j = i - 1
                while j >= 0 and dist < 20:
                    x = ins[j]
                    if x.kind == 'label':
                        if depth < 3:
                            for src in jumps.get(j, []):
                                miss = max(miss, back(src + 1, dist, c, depth + 1))
                    elif x.kind != 'none':
                        if j != i - 1 or True:
                            if x.op in ('s_branch', 's_endpgm') and not (depth > 0 and j == i - 1):
                                break
                        nn = need(x, c)
                        if nn > dist: miss = max(miss, nn - dist)
                        dist += x.ws
                    j -= 1
                return miss
            out = []
            i = 0
            new = []
            for i, c in enumerate(ins):
                if c.kind not in ('label', 'none'):
                    m = back(i, 0, c, 0)
                    if m > 0:
                        new.append((i, m))
            if new:
                changed = True
                res = []
                last = -100
                todo = dict()
                for i, m in new:
                    if i - last > 24:
                        todo[i] = m; last = i
                for i, c in enumerate(ins):
                    if i in todo:
                        m = todo[i]
                        while m > 0:
                            k = min(m, 16); res.append(Ins(f's_nop {k-1}')); m -= k
                    res.append(c)
                ins = res
            if it > 400: raise RuntimeError('pad did not converge')
        self.ins = ins
    def text(self):
        o = []
        for x in self.ins:
            o.append(x.text if x.kind == 'label' else '    ' + x.text)
        return '\n'.join(o) + '\n'

def v(a, n=1): return f'v{a}' if n == 1 else f'v[{a}:{a+n-1}]'
def a_(a, n=1): return f'a{a}' if n == 1 else f'a[{a}:{a+n-1}]'
def s(a, n=1): return f's{a}' if n == 1 else f's[{a}:{a+n-1}]'
def u(r, n=1):
    assert (r < 256) == (r + n - 1 < 256)
    return v(r, n) if r < 256 else a_(r - 256, n)

def resolve_waits(ins):
    out = []
    lds = []
    vm = []
    def wait_lds(k):
        nonlocal lds
        n = len(lds) - 1 - k
        out.append(Ins(f's_waitcnt lgkmcnt({min(n,15)})'))
        lds = lds[k + 1:] if n <= 15 else lds[len(lds) - 15:]
    for x in ins:
        t = x.text
        if t.startswith('; @WAITVM'):
            tag = t.split()[2]
            idx = [i for i, g in enumerate(vm) if g == tag]
            if idx:
                n = len(vm) - 1 - idx[-1]
                out.append(Ins(f's_waitcnt vmcnt({n})')); vm = vm[idx[-1] + 1:]
            continue
        if t.startswith('; @WAITLDS'):
            idx = [i for i, (d, w) in enumerate(lds) if w]
            if idx: wait_lds(idx[-1])
            continue
        if t.startswith('; @DRAINLDS'):
            out.append(Ins('s_waitcnt lgkmcnt(0)')); lds = []
            continue
        if x.kind not in ('label', 'none'):
            touched = x.rd | x.wr
            idx = [i for i, (d, w) in enumerate(lds) if d & touched]
            if idx: wait_lds(idx[-1])
            if x.op == 's_waitcnt':
                m = re.search(r'lgkmcnt\((\d+)\)', t)
                if m:
                    n = int(m.group(1)); lds = lds[len(lds) - n:] if n < len(lds) else lds
                    if n == 0: lds = []
                m = re.search(r'vmcnt\((\d+)\)', t)
                if m:
                    n = int(m.group(1)); vm = vm[len(vm) - n:] if 0 < n < len(vm) else ([] if n == 0 else vm)
            if x.kind == 'ds': lds.append((set(x.wr), not x.wr))
            if x.kind == 'vmem':
                m = re.search(r'@vm:(\w+)', t)
                vm.append(m.group(1) if m else '-')
        out.append(x)
    return out
```

```python
from asmlib import *
from gen import *

L_KX = 0
L_ML = 16384
L_MR = 16384 + 8192
L_X  = 32768
L_O  = 36864
L_RES = 40960
RES_STRIDE = 30720

class VM:
    def __init__(self, A): self.A = A; self.q = []
    def issue(self, text, tag): self.A(text); self.q.append(tag)
    def wait(self, tag, extra=""):
        last = max(i for i, t in enumerate(self.q) if t == tag)
        n = len(self.q) - 1 - last
        assert n <= 63
        self.A(f"s_waitcnt vmcnt({n})" + extra)
        self.q = self.q[last + 1:]
    def drain(self, extra=""):
        self.A("s_waitcnt vmcnt(0)" + extra); self.q = []

def gen_chain(A, opt):
    W = f"s[{S_WS}:{S_WS+3}]"
    D = f"s[{S_DBG}:{S_DBG+3}]"
    SW = 16
    s_step, s_t0, s_t1, s_t2, s_spin = 20, 21, 22, 23, 24
    s_xb = 25
    s_mlb, s_mrw, s_mrr = 26, 27, 28
    s_vxw, s_vxr = 29, 30
    s_pb = 31
    s_pw = 32
    s_isred = 33
    s_susp, s_sent, s_kv = 34, 35, 40
    P0 = 36
    s_al, s_ar, s_pcur, s_poth, s_vw, s_vr, s_vpo, s_mlo, s_mro, s_mlp, s_mrp = range(41, 52)
    s_res, s_kxm, s_csc, s_km, s_prog, s_hbit, s_mode = range(52, 59)
    s_valid = 60
    s_c0 = 62
    n = [1]
    def al(k=1, align=1):
        while n[0] % align: n[0] += 1
        r = n[0]; n[0] += k; return r
    vL = 0; vA16 = al()
    vH = al(2, 2)
    vPM = al(2, 2)
    vSEL = al(4, 2); vONE = al(4, 2); TG = al(4, 2); vSENT = TG
    vA8 = al()
    aRES = al(); aXW = al(); aXP = al(); aKX = al(); aOW = al(); aOR = al(); aMW = al(); aM4 = al()
    gRED = al(); gMO = al(); gKX = al(); gVX = al(); gKM = al(); gPR = vL
    vM = al(); vM2 = al(); vIDX = al(); vA4 = al()
    base = al(0, 4)
    AL = [base + 4 * i for i in range(5)]; AR = [base + 20 + 4 * i for i in range(5)]
    ACC = base + 40
    LAND = base + 64
    SP = LAND + 48
    assert SP + 4 <= 152, LAND
    aV = [ACC, ACC + 4]; aQ = [ACC + 8, ACC + 12]; aK = [ACC + 16, ACC + 20]
    wl = [256 + 8 * i for i in range(32)] + [152 + 8 * i for i in range(13)]
    WQ = lambda T, t: wl[(T * 2 + t) * 2]
    WK = lambda T, t: wl[(T * 2 + t) * 2 + 1]
    WO1 = lambda t: wl[40 + t]
    T0, T1, T2, T3 = LAND, LAND + 1, LAND + 2, LAND + 3

    def bf(dst, src, off, wd): A(f"v_bfe_u32 v{dst}, v{src}, {off}, {wd}")
    def lin(dst, terms, const=None):
        first = True
        for (off, wd, sh) in terms:
            if first:
                bf(dst, vL, off, wd)
                if sh: A(f"v_lshlrev_b32 v{dst}, {sh}, v{dst}")
                first = False
            else:
                bf(T3, vL, off, wd)
                A(f"v_lshl_add_u32 v{dst}, v{T3}, {sh}, v{dst}")
        if const is not None: A(f"v_add_u32 v{dst}, {const}, v{dst}")

    stamp(A, opt, 0, vt=(T0, T1, T2))
    A(f"v_and_b32 v{vL}, 63, v0")
    A(f"v_lshlrev_b32 v{vA16}, 4, v{vL}")
    A(f"v_lshlrev_b32 v{vA8}, 3, v{vL}")
    A(f"v_lshlrev_b32 v{vA4}, 2, v{vL}")
    A(f"s_mul_i32 s{s_res}, s5, {RES_STRIDE}")
    A(f"s_add_u32 s{s_res}, s{s_res}, {L_RES}")
    A(f"s_add_u32 s{s_xb}, s{S_WS}, {WS_X + 2*MB - 1:#x}")
    A(f"s_and_b32 s{s_xb}, s{s_xb}, 0xffe00000")
    A(f"s_sub_u32 s{s_xb}, s{s_xb}, s{S_WS}")
    if opt.pol < 0:
        A("s_or_b32 s6, s3, s4")
        A("s_cmp_eq_u32 s6, 0")
        A("s_cbranch_scc0 C_NOPROBE")
        A("s_cmp_eq_u32 s5, 0")
        A("s_cbranch_scc0 C_PROBED")
        A("s_mov_b32 s64, -1")
        A("s_mov_b32 s65, -1")
        A(f"s_add_u32 s66, s{s_xb}, {127*16384}")
        A(f"s_add_u32 s67, s66, 8192")
        A("s_mov_b64 exec, 1")
        for it in range(3):
            for pl in range(2):
                A("s_memtime s[68:69]")
                A("s_waitcnt lgkmcnt(0)")
                A(f"buffer_store_dword v{vA4}, off, {W}, s{66+pl} sc1")
                A("s_waitcnt vmcnt(0)")
                A("s_memtime s[70:71]")
                A("s_waitcnt lgkmcnt(0)")
                A("s_sub_u32 s72, s70, s68")
                A(f"s_min_u32 s{64+pl}, s{64+pl}, s72")
        A("s_cmp_lt_u32 s65, s64")
        A("s_cselect_b32 s72, 1, 0")
        A(f"v_mov_b32 v{T0}, s72")
        A(f"buffer_store_dword v{T0}, off, {D}, 0 offset:{DBG_POL*4} sc1")
        A("s_waitcnt vmcnt(0)")
        A("s_mov_b64 exec, -1")
        A.label("C_PROBED")
        A("s_barrier")
        A.label("C_NOPROBE")
    vm = VM(A)
    dQ = [AL[0], AL[0] + 1]
    dOA, dOB = AL[0] + 2, AL[0] + 3
    aQK = [AL[1], AL[1] + 1, AL[1] + 2, AL[1] + 3]
    aWV = [AL[2], AL[2] + 1]; aWO0 = AL[2] + 2; aWOB = AL[2] + 3
    def colchunk(dst):
        A(f"v_bfe_u32 v{T0}, v{vL}, 4, 1")
        A(f"v_lshlrev_b32 v{T0}, 1, v{T0}")
        A(f"v_and_b32 v{T1}, 3, v{vL}")
        A(f"v_xor_b32 v{T0}, v{T0}, v{T1}")
        A(f"v_lshl_add_u32 v{dst}, v{T0}, 4, v{dst}")
    lin(dQ[0], [(2, 1, 17), (5, 1, 15), (3, 1, 14), (4, 1, 13)]); colchunk(dQ[0])
    lin(dQ[1], [(5, 1, 17), (3, 1, 16), (4, 1, 15), (2, 1, 13)]); colchunk(dQ[1])
    mpart = [lambda m: 32 * (m & 1) + 8 * (m >> 1), lambda m: 32 * (m >> 1) + 2 * (m & 1)]
    lin(T2, [(4, 1, 5), (5, 1, 4), (3, 1, 0)])
    A(f"v_mul_u32_u24 v{dOA}, 1280, v{T2}")
    A(f"v_bfe_u32 v{T0}, v{vL}, 4, 2")
    A(f"v_lshlrev_b32 v{T0}, 1, v{T0}")
    A(f"v_and_b32 v{T1}, 7, v{vL}")
    A(f"v_xor_b32 v{T0}, v{T0}, v{T1}")
    A(f"v_lshl_add_u32 v{dOA}, v{T0}, 4, v{dOA}")
    lin(T2, [(2, 1, 5), (3, 1, 4), (4, 1, 2), (1, 1, 0), (5, 1, 1)])
    A(f"v_mul_u32_u24 v{dOB}, 1280, v{T2}")
    A(f"v_and_b32 v{T0}, 1, v{vL}")
    A(f"v_lshl_add_u32 v{dOB}, v{T0}, 4, v{dOB}")
    lin(aWV[0], [(2, 4, 6), (4, 1, 5), (0, 2, 3)], f"s{s_res}")
    A(f"v_xor_b32 v{aWV[1]}, 32, v{aWV[0]}")
    lin(aQK[0], [(2, 4, 6), (4, 1, 5), (0, 1, 4), (1, 1, 3)])
    A(f"s_lshl_b32 s{s_t0}, s5, 13")
    A(f"v_add_u32 v{aQK[2]}, s{s_t0}, v{aQK[0]}")
    A(f"v_add_u32 v{aQK[0]}, s{s_res}, v{aQK[0]}")
    A(f"v_xor_b32 v{aQK[1]}, 32, v{aQK[0]}")
    A(f"v_xor_b32 v{aQK[3]}, 32, v{aQK[2]}")
    lin(aWO0, [(2, 4, 7), (3, 2, 5), (0, 2, 3)], f"s{s_res}")
    A(f"v_add_u32 v{aWOB}, s{s_res}, v{vA8}")

    def load_ptr(ka, nbytes):
        A(f"s_load_dwordx2 s[{P0}:{P0+1}], s[0:1], {ka}")
        A("s_waitcnt lgkmcnt(0)")
    SQ, SK, SV, SO = 64, 68, 72, 76
    A(f"s_load_dwordx4 s[80:83], s[0:1], {KA_WQ}")
    A(f"s_load_dwordx4 s[84:87], s[0:1], {KA_WV}")
    A("s_waitcnt lgkmcnt(0)")
    srd(A, SQ, 80, 81, 640 * 8192); srd(A, SK, 82, 83, 640 * 8192); srd(A, SV, 84, 85, 640 * 8192); srd(A, SO, 86, 87, 4096 * 1280)
    s_cq, s_loc, s_rem, s_oa = 88, 89, 90, 91
    A(f"s_lshl_b32 s{s_cq}, s4, 8")
    A(f"s_lshl_b32 s{s_t0}, s5, 6")
    A(f"s_add_u32 s{s_cq}, s{s_cq}, s{s_t0}")
    A(f"s_mul_i32 s{s_loc}, s3, {320*8192}")
    A(f"s_sub_u32 s{s_rem}, {320*8192}, s{s_loc}")
    A(f"s_add_u32 s{s_loc}, s{s_loc}, s{s_cq}")
    A(f"s_add_u32 s{s_rem}, s{s_rem}, s{s_cq}")
    A(f"s_mul_i32 s{s_oa}, s4, {128*1280}")
    A(f"s_mul_i32 s{s_t0}, s3, 640")
    A(f"s_add_u32 s{s_oa}, s{s_oa}, s{s_t0}")
    def slot_m0(slot, extra):
        if slot < 5: A(f"s_add_u32 m0, s{s_res}, {slot*4096 + extra}")
        else:
            A(f"s_lshl_b32 m0, s5, 13")
            A(f"s_add_u32 m0, m0, {(slot-5)*4096 + extra}")
    def dma_panel(srdn, T, slot, tag):
        t = T % 5; k = 1
        if T < 4:
            A(f"s_xor_b32 s{s_t1}, s5, {t}")
            A(f"s_lshl_b32 s{s_t1}, s{s_t1}, 19")
            A(f"s_add_u32 s{s_t1}, s{s_t1}, s{s_loc}")
        else:
            A(f"s_add_u32 s{s_t1}, s{s_loc if T < 5 else s_rem}, {64*t*8192}")
        for m in range(4):
            slot_m0(slot, m * 1024)
            A(f"s_add_u32 s{s_t0}, s{s_t1}, {mpart[k](m)*8192}")
            vm.issue(f"buffer_load_dwordx4 v{dQ[k]}, s[{srdn}:{srdn+3}], s{s_t0} offen lds", tag)
    def dma_wo(kap, tag):
        A(f"s_mul_i32 s{s_t1}, s5, 160")
        A(f"s_add_u32 s{s_t1}, s{s_t1}, s{s_oa}")
        for i in range(8):
            m = i >> 1
            A(f"s_add_u32 m0, s{s_res}, {20480 + i*1024}")
            A(f"s_add_u32 s{s_t0}, s{s_t1}, {(64*kap + 4*(i&1) + 8*(m>>1) + 2*(m&1))*1280}")
            vm.issue(f"buffer_load_dwordx4 v{dOA}, s[{SO}:{SO+3}], s{s_t0} offen lds", tag)
        for i in range(2):
            A(f"s_add_u32 m0, s{s_res}, {20480 + 8192 + i*1024}")
            A(f"s_add_u32 s{s_t0}, s{s_t1}, {(64*kap + 8*i)*1280 + 128}")
            vm.issue(f"buffer_load_dwordx4 v{dOB}, s[{SO}:{SO+3}], s{s_t0} offen lds", tag)
    def wo_reads(dst):
        aWO = [aWO0, AR[4], AR[4] + 1, AR[4] + 2]
        L = [f"v_xor_b32 v{aWO[t]}, {32*t}, v{aWO0}" for t in range(1, 4)]
        for t in range(5):
            for m in range(4):
                if t < 4: L.append(f"ds_read_b64_tr_b16 {u(dst(t)+2*m,2)}, v{aWO[t]} offset:{20480 + m*2048}")
                else:     L.append(f"ds_read_b64_tr_b16 {u(dst(t)+2*m,2)}, v{aWOB} offset:{20480 + 8192 + m*512}")
        return L
    panels = []
    for T in range(10): panels += [(SQ, T, WQ), (SK, T, WK)]
    dma_wo(1, 'wo1')
    for p in range(7): dma_panel(panels[p][0], panels[p][1], p, f'p{p}')

    A(f"s_mov_b32 s{s_susp}, {SUSP:#x}")
    A(f"s_mov_b32 s{s_sent}, {SENT:#x}")
    A(f"s_mov_b32 s{s_csc}, {fbits(CSCALE):#x}")
    A(f"s_mov_b32 s{s_valid}, 0x33333333")
    A(f"s_mov_b32 s{s_valid+1}, 0x33333333")
    for i in range(4):
        A(f"v_mov_b32 v{vONE+i}, 0x3f803f80")
        A(f"v_mov_b32 v{vSENT+i}, s{s_sent}")
    A(f"v_mov_b32 v{vH}, 0x3f803f80")
    A(f"v_mov_b32 v{vH+1}, 0")
    A(f"v_mov_b32 v{vIDX}, 0x4444")
    A(f"v_mov_b32 v{T0}, 0xeeee")
    A(f"v_and_b32 v{T1}, 2, v{vL}")
    A(f"v_cmp_ne_u32 vcc, 0, v{T1}")
    A(f"v_cndmask_b32 v{vIDX}, v{vIDX}, v{T0}, vcc")
    A(f"v_and_b32 v{T1}, 15, v{vL}")
    for t in range(4):
        A(f"v_mov_b32 v{vSEL+t}, 0")
        A(f"v_mov_b32 v{T0}, 0x3f80")
        A(f"v_cmp_eq_u32 vcc, {t}, v{T1}")
        A(f"v_cndmask_b32 v{vSEL+t}, v{vSEL+t}, v{T0}, vcc")
        A(f"v_mov_b32 v{T0}, 0x3f800000")
        A(f"v_cmp_eq_u32 vcc, {4+t}, v{T1}")
        A(f"v_cndmask_b32 v{vSEL+t}, v{vSEL+t}, v{T0}, vcc")
    A(f"s_lshl_b32 s{s_t0}, s5, 10")
    A(f"s_add_u32 s{s_t0}, s{s_t0}, {L_X}")
    lin(aXW, [(2, 1, 9), (3, 1, 7), (0, 2, 5), (4, 2, 3)], f"s{s_t0}")
    A(f"v_add_u32 v{aXP}, s{s_t0}, v{vA8}")
    A(f"v_add_u32 v{aRES}, s{s_res}, v{vA16}")
    A(f"v_mov_b32 v{aKX}, v{vA16}")
    A(f"s_lshr_b32 s{s_t0}, s5, 1")
    A(f"s_lshl_b32 s{s_t0}, s{s_t0}, 10")
    A(f"s_and_b32 s{s_t1}, s5, 1")
    A(f"s_lshl_b32 s{s_t1}, s{s_t1}, 7")
    A(f"s_add_u32 s{s_t0}, s{s_t0}, s{s_t1}")
    A(f"s_add_u32 s{s_t0}, s{s_t0}, {L_O}")
    lin(aOW, [(4, 2, 8), (2, 2, 5), (0, 1, 4), (1, 1, 11)], f"s{s_t0}")
    lin(aOR, [(4, 2, 8), (2, 2, 5), (0, 1, 4), (1, 1, 7)], L_O)
    A(f"s_lshl_b32 s{s_t0}, s5, 11")
    lin(gKX, [(4, 2, 9), (3, 1, 8), (0, 3, 4)], f"s{s_t0}")
    lin(gVX, [(4, 2, 9), (0, 4, 4)], f"s{s_t0}")
    A(f"s_lshl_b32 s{s_t0}, s5, 9")
    lin(gKM, [(4, 2, 7), (2, 2, 5), (0, 1, 4)], f"s{s_t0}")
    A(f"v_mov_b32 v{T0}, {OOB:#x}")
    A(f"v_and_b32 v{T1}, 2, v{vL}")
    A(f"v_cmp_ne_u32 vcc, 0, v{T1}")
    A(f"v_cndmask_b32 v{gKM}, v{T0}, v{gKM}, vcc")
    A(f"s_lshl_b32 s{s_t0}, s5, 10")
    A(f"v_add_u32 v{aMW}, s{s_t0}, v{vA16}")
    A(f"s_lshl_b32 s{s_t0}, s5, 8")
    A(f"s_add_u32 s{s_t0}, s{s_t0}, 4096")
    A(f"v_add_u32 v{aM4}, s{s_t0}, v{vA4}")
    s_src, s_dst, s_col, s_cst, s_csc2, s_row = 92, 93, 94, 95, 96, 97
    A(f"s_lshl_b32 s{s_t0}, s4, 1")
    A(f"s_add_u32 s{s_t0}, s{s_t0}, s5")
    A(f"s_add_u32 s{s_t1}, s4, 64")
    A("s_cmp_ge_u32 s5, 2")
    A(f"s_cselect_b32 s{s_t0}, s{s_t1}, s{s_t0}")
    A(f"s_cmp_lt_u32 s{s_t0}, 80")
    A(f"s_cselect_b32 s{s_isred}, 1, 0")
    A(f"s_cselect_b32 s{s_t0}, s{s_t0}, 0")
    A("s_cmp_eq_u32 s5, 3")
    A(f"s_cselect_b32 s{s_isred}, 0, s{s_isred}")
    A(f"s_lshl_b32 s{s_src}, s{s_t0}, 6")
    A(f"s_mov_b32 s{s_dst}, s{s_src}")
    A(f"s_and_b32 s{s_row}, s{s_t0}, 3")
    A(f"s_lshr_b32 s{s_col}, s{s_t0}, 2")
    A(f"s_lshl_b32 s{s_col}, s{s_col}, 4")
    A(f"s_mov_b32 s{s_cst}, 1")
    A(f"s_mov_b32 s{s_csc2}, 4")
    A(f"v_lshrrev_b32 v{T0}, 2, v{vL}")
    A(f"v_mul_u32_u24 v{T0}, 5120, v{T0}")
    lin(gRED, [(0, 2, 4)], f"s{s_src}")
    A(f"v_add_u32 v{gRED}, v{gRED}, v{T0}")
    lin(gMO, [(5, 1, 5), (2, 1, 4), (4, 1, 3), (1, 1, 2)], f"s{s_dst}")
    A(f"v_mov_b32 v{T0}, {OOB:#x}")
    A(f"v_and_b32 v{T1}, 9, v{vL}")
    A(f"v_cmp_eq_u32 vcc, 0, v{T1}")
    A(f"v_cndmask_b32 v{gMO}, v{T0}, v{gMO}, vcc")
    A(f"s_cmp_eq_u32 s{s_isred}, 0")
    A("s_cbranch_scc0 C_RED_K")
    A(f"v_mov_b32 v{gMO}, {OOB:#x}")
    A.label("C_RED_K")
    A(f"v_and_b32 v{T0}, 3, v{vL}")
    A(f"v_mul_lo_u32 v{T0}, v{T0}, s{s_cst}")
    A(f"v_lshrrev_b32 v{T1}, 4, v{vL}")
    A(f"v_mul_lo_u32 v{T1}, v{T1}, s{s_csc2}")
    A(f"v_add3_u32 v{T0}, v{T0}, v{T1}, s{s_col}")
    A(f"v_bfe_u32 v{T1}, v{vL}, 2, 1")
    A(f"s_lshl_b32 s{s_t0}, s{s_row}, 1")
    A(f"v_add_u32 v{T1}, s{s_t0}, v{T1}")
    A(f"v_mul_u32_u24 v{T1}, 640, v{T1}")
    A(f"s_mul_i32 s{s_t0}, s3, 320")
    A(f"v_add3_u32 v{T0}, v{T0}, v{T1}, s{s_t0}")
    A(f"v_lshlrev_b32 v{vM2}, 1, v{T0}")
    A(f"s_load_dwordx2 s[{P0}:{P0+1}], s[0:1], {KA_MEM0}")
    A("s_waitcnt lgkmcnt(0)")
    srd(A, SW, P0, P0 + 1, 8 * 1280)
    vm.issue(f"buffer_load_ushort v{vM2}, v{vM2}, s[{SW}:{SW+3}], 0 offen", 'mem0')
    A(f"s_lshl_b32 s{s_t0}, s3, 15")
    A(f"s_add_u32 s{s_mlb}, s{s_t0}, {WS_ML:#x}")
    A(f"s_lshl_b32 s{s_t0}, s3, 16")
    A(f"s_add_u32 s{s_mrw}, s{s_t0}, {96*16384}")
    A(f"s_xor_b32 s{s_mrr}, s{s_mrw}, 0x10000")
    A(f"s_lshl_b32 s{s_vxw}, s4, 14")
    A(f"s_lshl_b32 s{s_t0}, s3, 12")
    A(f"s_add_u32 s{s_vxw}, s{s_vxw}, s{s_t0}")
    A(f"s_lshl_b32 s{s_t0}, s5, 9")
    A(f"s_add_u32 s{s_vxw}, s{s_vxw}, s{s_t0}")
    A(f"s_xor_b32 s{s_vxr}, s{s_vxw}, 0x1000")
    for r in (s_mrw, s_mrr, s_vxw, s_vxr): A(f"s_add_u32 s{r}, s{r}, s{s_xb}")
    A(f"s_mul_i32 s{s_pb}, s3, {2*32*5120}")
    A(f"s_add_u32 s{s_pb}, s{s_pb}, {WS_P:#x}")
    A(f"s_mul_i32 s{s_pw}, s4, 5120")
    A(f"s_mul_i32 s{s_t0}, s5, 1280")
    A(f"s_add_u32 s{s_pw}, s{s_pw}, s{s_t0}")
    A(f"s_lshl_b32 s{s_kv}, s4, 13")
    A(f"s_lshl_b32 s{s_km}, s4, 11")
    A(f"s_lshl_b32 s59, s4, 1")
    A(f"s_add_u32 s59, s59, s3")
    A(f"s_lshl_b32 s59, s59, 2")
    A(f"s_add_u32 s59, s59, s5")
    A(f"s_lshl_b32 s59, s59, 9")
    A(f"s_add_u32 s59, s59, {WS_VM:#x}")
    A(f"s_add_u32 s{s_km}, s{s_km}, {WS_KM - 32*2048:#x}")
    A(f"s_mov_b32 s62, 0x00010001")
    A(f"s_mov_b32 s63, 0x00010001")
    A(f"s_xor_b32 s{s_t0}, s5, 3")
    A(f"v_or_b32 v{T1}, s{s_t0}, v{vL}")
    A(f"v_mov_b32 v{T0}, {OOB:#x}")
    A(f"v_cmp_eq_u32 vcc, 0, v{T1}")
    A(f"v_cndmask_b32 v{gPR}, v{T0}, v{vL}, vcc")
    A(f"s_lshl_b32 s{s_prog}, s4, 1")
    A(f"s_add_u32 s{s_prog}, s{s_prog}, s3")
    A(f"s_lshl_b32 s{s_prog}, s{s_prog}, 7")
    A(f"s_add_u32 s{s_prog}, s{s_prog}, {WS_PROG:#x}")
    A(f"s_lshl_b32 s{s_hbit}, 1, s4")
    for sl in range(2):
        A(f"s_add_u32 s{s_t0}, s{s_pb}, s{s_pw}")
        if sl: A(f"s_add_u32 s{s_t0}, s{s_t0}, {32*5120}")
        vm.issue(f"buffer_store_dwordx4 {v(vSENT,4)}, v{vA16}, {W}, s{s_t0} offen sc1", 'poi')
        vm.issue(f"buffer_store_dword v{vSENT}, v{vA4}, {W}, s{s_t0} offen offset:1024 sc1", 'poi')
    vm.wait('wo1')
    for sl in range(2):
        for pol in range(2):
            A(f"s_add_u32 s{s_t0}, s{s_vxw}, {sl*32*16384 + pol*8192}")
            vm.issue(f"buffer_store_dwordx2 {v(vSENT,2)}, v{vA8}, {W}, s{s_t0} offen sc1", 'poi')
    for sl in range(2):
        A(f"s_add_u32 s{s_t0}, s{s_mlb}, {sl*8192}")
        vm.issue(f"buffer_store_dword v{vSENT}, v{gMO}, {W}, s{s_t0} offen sc1", 'poi')
        for pol in range(2):
            A(f"s_add_u32 s{s_t0}, s{s_mrw}, {sl*16384 + pol*8192}")
            vm.issue(f"buffer_store_dword v{vSENT}, v{gMO}, {W}, s{s_t0} offen sc1", 'poi')
    A(f"v_mov_b32 v{T0}, 0")
    A("s_mov_b64 exec, 1")
    vm.issue(f"buffer_store_dword v{T0}, off, {W}, s{s_prog} sc1", 'poi')
    A("s_mov_b64 exec, -1")
    A(f"s_getreg_b32 s{s_t0}, hwreg(HW_REG_XCC_ID, 0, 4)")
    A(f"s_lshl_b32 s{s_t0}, 1, s{s_t0}")
    A(f"v_mov_b32 v{T1}, s{s_t0}")
    A(f"s_lshl_b32 s{s_t1}, s3, 2")
    A("s_mov_b64 exec, 1")
    vm.issue(f"buffer_atomic_or v{T1}, off, {D}, s{s_t1} offset:{DBG_XCC0*4} sc1", 'poi')
    A("s_mov_b64 exec, -1")

    for t in wo_reads(WO1): A(t)
    A("s_waitcnt lgkmcnt(0)")
    dma_wo(0, 'wo0')
    for p in range(20):
        sl = p % 7
        vm.wait(f'p{p}')
        srdn, T, dst = panels[p]
        for tau in range(2):
            for m in range(4):
                ar = aQK[tau] if sl < 5 else aQK[2 + tau]
                off = (sl if sl < 5 else sl - 5) * 4096 + m * 1024
                A(f"ds_read_b64_tr_b16 {u(dst(T,tau)+2*m,2)}, v{ar} offset:{off}")
        A("s_waitcnt lgkmcnt(0)")
        if p + 7 < 20: dma_panel(panels[p + 7][0], panels[p + 7][1], sl, f'p{p+7}')
        elif 14 <= p < 19: dma_panel(SV, p - 14, sl, 'wv')
        if p == 7:
            A("s_barrier")
            A("s_cmp_eq_u32 s5, 0")
            A(f"s_cselect_b32 s{s_t0}, 1, 0")
            A(f"v_mov_b32 v{T0}, s{s_t0}")
            A("s_mov_b64 exec, 1")
            vm.issue(f"buffer_atomic_add v{T0}, off, {D}, 0 offset:{DBG_CHAIN_CNT*4} sc1", 'arr')
            A("s_mov_b64 exec, -1")
    vm.drain()
    for t in range(5):
        for tau in range(2):
            for m in range(4):
                A(f"ds_read_b64_tr_b16 {v(LAND+8*tau+2*m,2)}, v{aWV[tau]} offset:{t*4096 + m*1024}")
        A("s_waitcnt lgkmcnt(0)")
        for q in range(4): A(f"ds_write_b128 v{aRES}, {v(LAND+4*q,4)} offset:{t*4096 + q*1024}")
        A("s_waitcnt lgkmcnt(0)")
    for x in wo_reads(lambda t: LAND + 8 * t): A(x)
    A("s_waitcnt lgkmcnt(0)")
    for q in range(10): A(f"ds_write_b128 v{aRES}, {v(LAND+4*q,4)} offset:{20480 + q*1024}")
    A("s_waitcnt lgkmcnt(0)")
    stamp(A, opt, 1, vt=(T0, T1, T2))
    A("s_barrier")

    def spin_fail(lbl):
        A(f"s_sub_u32 s{s_spin}, s{s_spin}, 1")
        A(f"s_cbranch_scc0 {lbl}")
        A("s_branch C_FAIL")
    s_rdy = 47
    def kv_ready():
        A(f"buffer_load_dword v{vM2}, v{vA4}, {D}, 0 offen offset:{DBG_KV*4} sc1")
        A("s_waitcnt vmcnt(0)")
        A(f"v_and_b32 v{vM2}, s{s_hbit}, v{vM2}")
        A(f"v_cmp_eq_u32 vcc, 0, v{vM2}")
        A(f"s_or_b32 s{s_rdy}, vcc_lo, {1 << NKVB:#x}")
        A(f"s_ff1_i32_b32 s{s_rdy}, s{s_rdy}")
        A(f"s_mul_i32 s{s_rdy}, s{s_rdy}, {KVSEG}")
        A(f"s_cmp_ge_u32 s{s_rdy}, 64")
        A(f"s_cselect_b32 s{s_rdy}, 255, s{s_rdy}")
    A(f"v_lshlrev_b32 v{vM}, 16, v{vM2}")
    A(f"s_mov_b32 s{s_spin}, {opt.spin}")
    A.label("C_TEAM")
    A(f"buffer_load_dwordx4 {v(T0,4)}, off, {D}, 0 sc1")
    kv_ready()
    A(f"v_readfirstlane_b32 s{s_t0}, v{T0}")
    A(f"s_cmp_lg_u32 s{s_rdy}, 0")
    A(f"s_cselect_b32 s{s_t0}, s{s_t0}, 0")
    A(f"s_cmp_ge_u32 s{s_t0}, 64")
    A("s_cbranch_scc1 C_TEAM_OK")
    A("s_sleep 2")
    spin_fail("C_TEAM")
    A.label("C_TEAM_OK")
    A(f"v_readfirstlane_b32 s{s_t0}, v{T0+1}")
    A(f"v_readfirstlane_b32 s{s_t1}, v{T0+2}")
    A(f"v_readfirstlane_b32 s{s_t2}, v{T0+3}")
    A("s_cmp_eq_u32 s3, 0")
    A(f"s_cselect_b32 s{s_t0}, s{s_t0}, s{s_t1}")
    A(f"s_bcnt1_i32_b32 s{s_mode}, s{s_t0}")
    if opt.pol >= 0: A(f"s_mov_b32 s{s_t2}, {opt.pol}")
    A(f"s_and_b32 s{s_t2}, s{s_t2}, 1")
    A(f"s_lshl_b32 s{s_t2}, s{s_t2}, 13")
    for r in (s_mrw, s_mrr, s_vxw, s_vxr): A(f"s_add_u32 s{r}, s{r}, s{s_t2}")
    A(f"s_lshl_b32 s{s_kxm}, s5, 11")
    def kv_dma(s_src_, tmp):
        L = []
        for m in range(2):
            L.append([f"s_add_u32 m0, s{s_kxm}, {L_KX + m*1024 - m*128}",
                      f"buffer_load_dwordx4 v{gKX}, {W}, s{s_src_} offen offset:{m*128} sc1 lds"])
        return L
    for g in kv_dma(s_kv, s_t0):
        for t in g: A(t)
    A("s_waitcnt vmcnt(0)")
    A("s_barrier")
    stamp(A, opt, 2, vt=(T0, T1, T2))
    s_tag, s_tagn, s_dm4, s_dm1, s_lo, s_rng = 41, 42, 43, 44, 45, 46
    s_pcur, s_pc2, s_pst, s_vw, s_vr, s_mlo, s_mro, s_ar = range(64, 72)
    XO_ = {r: (r + 8 if r < 70 else r - 22) for r in range(64, 72)}
    s_cp = 50
    ST0 = 78
    s_w3 = 39
    A("s_cmp_eq_u32 s5, 3")
    A(f"s_cselect_b32 s{s_w3}, 0, {OOB:#x}")
    A(f"s_mov_b32 s{s_step}, -1")
    A(f"s_mov_b32 s{s_tagn}, 0")
    A(f"s_mov_b32 s{s_cp}, s{s_csc}")
    A(f"s_mov_b32 s{s_cp+1}, s{s_csc}")
    A(f"s_mov_b32 s{s_pcur}, s{s_pb}")
    A(f"s_add_u32 s{s_pc2}, s{s_pb}, {16*5120}")
    A(f"s_add_u32 s{s_pst}, s{s_pb}, s{s_pw}")
    A(f"s_mov_b32 s{s_vw}, s{s_vxw}")
    A(f"s_mov_b32 s{s_vr}, s{s_vxr}")
    A(f"s_mov_b32 s{s_mlo}, s{s_mlb}")
    A(f"s_mov_b32 s{s_mro}, s{s_mrw}")
    A(f"s_mov_b32 s{s_ar}, s{s_mrr}")
    for r, d in ((s_pcur, 32*5120), (s_pc2, 32*5120), (s_pst, 32*5120), (s_vw, 32*16384), (s_vr, 32*16384), (s_mlo, 8192), (s_mro, 16384), (s_ar, 16384)):
        A(f"s_add_u32 s{XO_[r]}, s{r}, {d}")
        A(f"s_xor_b32 s{XO_[r]}, s{XO_[r]}, s{r}")
    for r in (s_pcur, s_pc2, s_pst, s_vw, s_vr):
        A(f"s_xor_b32 s{r}, s{r}, s{XO_[r]}")
    A(f"s_lshl_b32 s{s_dm4}, s5, 10")
    A(f"s_lshl_b32 s{s_dm1}, s5, 8")
    A(f"s_add_u32 s{s_dm1}, s{s_dm1}, 4096")
    A(f"s_mov_b32 s{s_lo}, {(127-64) << 23:#x}")
    A(f"s_mov_b32 s{s_rng}, {128 << 23:#x}")
    if opt.stamps:
        for i in range(10): A(f"s_mov_b32 s{ST0+i}, 0")
        A(f"s_memtime s[90:91]")
        A("s_waitcnt lgkmcnt(0)")
        A(f"s_mov_b32 s{ST0+10}, s90")
    if opt.force_slow: A(f"s_mov_b32 s{s_mode}, 2")
    A("s_cmp_eq_u32 s3, 0")
    A("s_cbranch_scc1 C_GO0")
    A(f"s_cmp_eq_u32 s{s_mode}, 1")
    A("s_cbranch_scc1 CF1_ENTRY")
    A("s_branch CS1_ENTRY")
    A.label("C_GO0")
    A(f"s_cmp_eq_u32 s{s_mode}, 1")
    A("s_cbranch_scc0 CS0_ENTRY")

    def smf(acc, a, b): return f"v_smfmac_f32_16x16x64_bf16 {v(acc,4)}, {v(a,4)}, {u(b,8)}, v{vIDX}"
    tr_names = []
    def stampc(i):
        if opt.trace:
            mark(f"c{i}")
            if i == 5: trace_dump()
            return
        if not (opt.stamps and (opt.smask >> i) & 1): return
        A(f"s_memtime s[90:91]")
        A("s_waitcnt lgkmcnt(0)")
        A(f"s_sub_u32 s91, s90, s{ST0+10}")
        A(f"s_add_u32 s{ST0+i}, s{ST0+i}, s91")
        A(f"s_mov_b32 s{ST0+10}, s90")
    sel = opt.marks.split(',')
    def mark(name):
        if opt.trace and name in sel:
            k = sel.index(name)
            A(f"{'s_memrealtime' if opt.trace == 2 else 's_memtime'} s[{78+2*k}:{79+2*k}]")
    def trace_dump():
        L = A.newlabel("TD")
        A(f"s_cmp_eq_u32 s{s_step}, {opt.tstep}")
        A(f"s_cbranch_scc0 {L}")
        A("s_waitcnt lgkmcnt(0)")
        for k in range(10): A(f"v_mov_b32 v{LAND+k}, s{78+2*k}")
        A(f"s_lshl_b32 s{s_t0}, s2, 2")
        A(f"s_add_u32 s{s_t0}, s{s_t0}, s5")
        A(f"s_lshl_b32 s{s_t0}, s{s_t0}, 6")
        A(f"s_add_u32 s{s_t0}, s{s_t0}, {WS_TS + 2*MB:#x}")
        A("s_mov_b64 exec, 1")
        for k in range(3): A(f"buffer_store_dwordx4 {v(LAND+4*k,4)}, off, {W}, s{s_t0} offset:{16*k}")
        A("s_mov_b64 exec, -1")
        A.label(L)
    def weave(mf, fill, nm=None):
        for t in fill.get(-1, []): A(t)
        for i, m in enumerate(mf):
            A(m)
            if nm: mark(f"{nm}{i}")
            for t in fill.get(i, []): A(t)
    def tagchk(regs, tag):
        r = list(regs); L = []; t = []
        while len(r) >= 2:
            d = TG + len(t); t.append(d)
            L.append(f"v_bitop3_b32 v{d}, v{r[0]}, v{r[1]}, s{tag} bitop3:0x7e"); r = r[2:]
        if r: L.append(f"v_bitop3_b32 v{t[0]}, v{t[0]}, v{r[0]}, s{tag} bitop3:0xf6")
        if len(t) == 4:
            L.append(f"v_or3_b32 v{t[0]}, v{t[0]}, v{t[2]}, v{t[3]}")
        L.append(f"v_bitop3_b32 v{t[0]}, v{t[0]}, v{t[1]}, 1 bitop3:0xa8")
        L.append(f"v_cmp_ne_u32 vcc, 0, v{t[0]}")
        return L
    class Sched:
        def __init__(self, n, vcap=1): self.n = n; self.f = {}; self.nv = {}; self.va = {}; self.vcap = vcap
        def cost(self, t): return 0 if t.startswith(';') or t.endswith(':') else (2 if ('b128' in t or t.startswith('buffer')) else 1)
        def put(self, g, t, force=False):
            isv = t.startswith('v_')
            if not force:
                while g < self.n - 1 and ((isv and self.va.get(g, 0) >= self.vcap) or (not isv and self.nv.get(g, 0) + self.cost(t) > 3)): g += 1
            L = self.f.setdefault(g, [])
            if isv or force: L.append(t)
            else:
                k = len(L)
                while k > 0 and L[k-1].startswith('v_'): k -= 1
                L.insert(k, t)
            if isv: self.va[g] = self.va.get(g, 0) + 1
            else: self.nv[g] = self.nv.get(g, 0) + self.cost(t)
            return g
        def seq(self, g, items):
            prevv = False
            for t in items:
                isv = t.startswith('v_')
                if prevv and not isv: g += 1
                g = self.put(min(g, self.n - 1), t); prevv = isv
            return g
        def at(self, g, items):
            for t in items: self.put(g, t, True)

    def loop(P, sc, gam):
        ld = lambda reg, va, so, off=0: f"buffer_load_dwordx4 {v(reg,4)}, v{va}, {W}, s{so} offen offset:{off} sc1"
        ld1 = lambda reg, va, so: f"buffer_load_dword v{reg}, v{va}, {W}, s{so} offen sc1"
        tog = lambda r: f"s_xor_b32 s{r}, s{r}, s{XO_[r]}"
        tagv = lambda L, t: [x + (f" ; @vm:{t}" if x.startswith('buffer') else "") for x in L]
        WVL = [LAND, LAND + 16, LAND + 32, AR[1], LAND]
        def wv_reads(t): return [f"ds_read_b128 {v(WVL[t]+4*q,4)}, v{aRES} offset:{t*4096 + q*1024}" for q in range(4)]
        T4 = AL[4]
        def img_dma(so, img):
            return [f"s_add_u32 m0, s{s_dm4}, {img}", f"buffer_load_dwordx4 v{aMW}, {W}, s{so} offen sc1 lds",
                    f"s_add_u32 m0, s{s_dm1}, {img}", f"buffer_load_dword v{aM4}, {W}, s{so} offen sc1 lds"]
        RQ, RQ4 = AR[0], SP
        r_ld = [ld(RQ, aMW, s_ar), ld1(RQ4, aM4, s_ar)] + img_dma(s_ar, L_MR)
        r_regs = [RQ + i for i in range(4)] + [RQ4]
        r_reads = [f"ds_read_b128 {v(AR[j],4)}, v{vA16} offset:{L_MR + j*1024}" for j in range(5)]
        late = []
        warm = f"v_max_i32 v{vM2}, v{vA16}, v{vA8}"
        def filler(lst, n):
            for i in range(n): A(lst.pop(0) if lst else warm)
        def cnt(k, inc):
            if opt.stamps and not opt.trace: A(f"s_add_u32 s{ST0+k}, s{ST0+k}, {inc}")
        sv = lambda t: [smf(aV[0], AL[t], WVL[t]), smf(aV[1], AL[t], WVL[t] + 8)]
        sq = lambda R, t, T: [smf(aQ[0], R[t], WQ(T, 0)), smf(aQ[1], R[t], WQ(T, 1))]
        sk = lambda R, t, T: [smf(aK[0], R[t], WK(T, 0)), smf(aK[1], R[t], WK(T, 1))]
        mr_st = f"buffer_store_dword v{vM}, v{gMO}, {W}, s{s_mro} offen sc1"

        A.label(f"{P}_ENTRY")
        A(f"s_cmp_eq_u32 s{s_isred}, 0")
        A(f"s_cbranch_scc0 {P}_PUB0")
        wvall = [x for t in range(4) for x in wv_reads(t)]
        A.label(f"{P}_TOPN")
        for x in wvall: A(x)
        A("s_barrier")
        A.label(f"{P}_TOP")
        i0 = len(A.ins)
        mark('tp')
        pv = [f"v_mov_b64 {v(ACC+2*i,2)}, 0" for i in range(12)] + [f"v_xor_b32 v{AL[j]}, {j << 10}, v{aMW}" for j in range(1, 4)]
        l_dma = img_dma(s_mlo, L_ML)
        l_own = [f"ds_read_b128 {v(AL[0],4)}, v{aMW} offset:{L_ML}", f"ds_read_b32 v{T4}, v{aM4} offset:{L_ML}"]
        l_regs = [AL[0] + i for i in range(4)] + [T4]
        lc = tagchk(l_regs, s_tag)
        own = sv(0) + sq(AL, 0, 0) + sk(AL, 0, 0)
        if opt.lreg:
            ns = 0
            T4 = SP + 3
            l_regs = [AL[0] + i for i in range(4)] + [T4]
            lc = tagchk(l_regs, s_tag)
            A(f"s_mov_b32 s{s_tag}, s{s_tagn}")
            A(f"s_xor_b32 s{s_t1}, s{s_tagn}, 1")
            pv = [f"v_mov_b32 v{AL[0]+i}, s{s_t1}" for i in range(4)] + pv
            filler(pv, max(opt.ld1, 4))
            A("s_waitcnt vmcnt(2)")
            A(f"v_mov_b32 v{T4}, s{s_t1}")
            l_ld = [ld(AL[0], aMW, s_mlo), ld1(T4, aM4, s_mlo)]
            for k in range(opt.lnf - 1):
                for x in l_ld: A(x)
                filler(pv, opt.lgap)
            filler(pv, len(pv))
            if opt.rpre:
                A(f"v_lshlrev_b32 v{TG+3}, 3, v{vA16}")
                A(f"v_or_b32 v{TG+3}, s{s_w3}, v{TG+3}")
                A(f"buffer_load_dword v{SP+2}, v{TG+3}, {W}, s{s_ar} offen sc1")
            A("; @DRAINLDS")
            mark('la')
            A.label(f"{P}_LS")
            for x in tagv(l_ld, 'l'): A(x)
            A("s_mov_b64 exec, -1")
            for k in range(opt.lchk):
                for c in lc: A(c)
                if k == 0:
                    cnt(8, 1)
                    A(f"s_sub_u32 s{s_spin}, s{s_spin}, 1")
                    A("s_cbranch_scc1 C_FAIL")
                filler([], opt.lfv)
                if k < opt.lchk - 1: A(f"s_cbranch_vccz {P}_LOK")
            A("s_mov_b64 exec, vcc")
            A(f"s_cbranch_vccnz {P}_LS")
            A("s_mov_b64 exec, -1")
            A.label(f"{P}_LOK")
            A("s_barrier")
        else:
            filler(pv, opt.ld1)
            for k in range(opt.lnf):
                if k: filler(pv, opt.lgap)
                if k == opt.mrpos: A(mr_st)
                for x in tagv(l_dma, f'l{k}'): A(x)
            if opt.mrpos == opt.lnf: A(mr_st)
            if opt.rearly:
                filler(pv, opt.rdly)
                for x in tagv(r_ld, 'r'): A(x)
            if opt.rpre:
                filler(pv, opt.rdly)
                A(f"v_lshlrev_b32 v{TG+3}, 3, v{vA16}")
                A(f"v_or_b32 v{TG+3}, s{s_w3}, v{TG+3}")
                A(f"buffer_load_dword v{SP+3}, v{TG+3}, {W}, s{s_ar} offen sc1")
            A(f"s_mov_b32 s{s_tag}, s{s_tagn}")
            filler(pv, max(opt.lw, len(pv)))
            mark('lb')
            mark('la')
            for x in l_own: A(x)
            filler([], opt.lw2)
            A("; @DRAINLDS")
            lc = tagchk(l_regs, s_tag)
            own = sv(0) + sq(AL, 0, 0) + sk(AL, 0, 0)
            ns = opt.lspec
            for c in lc[:3]: A(c)
            if ns: A(own[0])
            for c in lc[3:]: A(c)
            for x in own[1:ns]: A(x)
            A(f"s_cbranch_vccnz {P}_LS")
            def l_retry():
                A.label(f"{P}_LS")
                for i in range(2 * ns): A(f"v_mov_b64 {v(ACC+2*i,2)}, 0")
                A.label(f"{P}_LS1")
                for x in l_own: A(x)
                A("s_mov_b64 exec, vcc")
                for t in l_dma: A(t)
                A("s_mov_b64 exec, -1")
                for k in range(opt.lchk):
                    if k:
                        for x in l_own: A(x)
                        filler([], 6)
                    A("s_waitcnt lgkmcnt(0)")
                    for c in lc: A(c)
                    if k == 0:
                        cnt(8, 1)
                        A(f"s_sub_u32 s{s_spin}, s{s_spin}, 1")
                        A("s_cbranch_scc1 C_FAIL")
                    A(f"s_cbranch_vccz {P}_LS2")
                A(f"s_branch {P}_LS1")
                A.label(f"{P}_LS2")
                A("s_barrier")
                for x in own[:ns]: A(x)
                A(f"s_branch {P}_LOK2")
            late.append(l_retry)
            A.label(f"{P}_LOK")
            mark('lk')
            A("s_barrier")
        A.label(f"{P}_LOK2")
        stampc(0)
        l_reads = [f"ds_read_b128 {v(AL[j],4)}, v{AL[j]} offset:{L_ML}" for j in range(1, 4)] + [f"ds_read_b128 {v(AL[4],4)}, v{vA16} offset:{L_ML+4096}"]
        KX, VO, VR, XW, VX = LAND, LAND + 32, LAND + 36, LAND + 38, LAND + 40
        s_vm = 59
        XQ = AL[0]; XK = AR[0]; PX = AL[4]
        kxr = [f"ds_read_b128 {v(KX+8*uu+4*m,4)}, v{aKX} offset:{L_KX+uu*2048+m*1024}" for m in range(2) for uu in range(4)]
        xrd = lambda R: [f"ds_read_b64_tr_b16 {v(R+4*uu+2*m,2)}, v{vA8} offset:{L_X + uu*1024 + m*512}" for uu in range(4) for m in range(2)]
        nk = opt.nk
        mf = own[ns:] + sv(1) + sv(2) + sv(3) + sq(AL, 1, 1) + sv(4)
        gvd = len(mf)
        for t in range(2, 5): mf += sq(AL, t, t)
        for t in range(1, 1 + nk): mf += sk(AL, t, t)
        g0 = len(mf)
        for t in range(5): mf += sq(AR, t, 5 + t)
        gq = len(mf)
        for t in range(1 + nk, 5): mf += sk(AL, t, t)
        gl = len(mf)
        for t in range(5): mf += sk(AR, t, 5 + t)
        N = len(mf); assert N == 50 - ns
        S = Sched(N)
        if opt.lreg:
            rl = tagv(r_ld, 'r')
            S.at(-1, [rl[0], f"ds_write_b128 v{aMW}, {v(AL[0],4)} offset:{L_ML}", f"ds_write_b32 v{aM4}, v{T4} offset:{L_ML}"])
            S.at(0, [rl[1], rl[2]]); S.at(1, [rl[3], rl[4]]); S.at(2, [rl[5], "; @WAITLDS", "s_barrier", l_reads[0]])
            g = S.seq(3, l_reads[1:]) + 1
        else: S.at(-1, l_reads[0:1])
        if opt.lreg: pass
        elif not opt.rearly:
            rl = tagv(r_ld, 'r')
            S.at(-1, rl[0:1]); S.at(0, [l_reads[1], rl[1], rl[2]]); S.at(1, [rl[3], rl[4], l_reads[2]]); S.at(2, [rl[5], l_reads[3]])
            g = 3
        else:
            g = S.seq(0, l_reads[1:4]) + 1
        g = S.seq(max(g, 2 - ns), wv_reads(4))
        XP = TG
        dm = [x for gq_ in kv_dma(s_kv, None) for x in gq_]
        slow = tagv([f"buffer_load_dwordx4 {v(VX+4*m,4)}, v{gVX}, {W}, s{s_t1} offen offset:{m*256} sc1" for m in range(2)], 'vx')
        S.seq(3, [f"s_add_u32 s{s_t1}, s{s_kv}, {WS_V:#x}", f"s_xor_b32 s{s_kxm}, s{s_kxm}, 8192", f"s_add_u32 s{s_kv}, s{s_kv}, {0 if opt.kvsame else 32*8192}", tog(s_vw)])
        S.put(0, f"v_max_i32 v{SP+1}, s{s_step}, v{vH+1}")
        rc = tagchk(r_regs, s_tag)
        if opt.rearly:
            rg = opt.rg
            S.at(rg, ["; @WAITVM r"] + rc[0:2])
            S.at(rg + 1, rc[2:5])
            S.at(rg + 3, [f"s_cbranch_vccnz {P}_RS", f"{P}_ROK:", "s_barrier"])
            g = max(g, rg + 3)
        if gam == 0: g = S.seq(g + 1, [f"ds_read_b64_tr_b16 {v(XP+2*m,2)}, v{aXP} offset:{m*512}" for m in range(2)])
        g = S.seq(max(g + 1, opt.sgap, 10 - ns), slow)
        if not opt.kxlate: g = S.seq(g, dm)
        if opt.pk: va = [f"v_pk_add_f32 {v(aV[i],2)}, {v(aV[i],2)}, {v(aV[i]+2,2)}" for i in range(2)]
        else: va = [f"v_add_f32 v{aV[i>>1]+(i&1)}, v{aV[i>>1]+(i&1)}, v{aV[i>>1]+2+(i&1)}" for i in range(4)]
        vv = va + [f"v_cvt_pk_bf16_f32 v{VO+2*i}, v{aV[i]}, v{aV[i]+1}" for i in range(2)] + [f"v_and_or_b32 v{VR+i}, v{VO+2*i}, -2, s{s_tag}" for i in range(2)]
        S.seq(gvd - 1, [f"s_add_u32 s{s_step}, s{s_step}, 1", f"s_add_u32 s{s_t0}, s{s_step}, 1", f"s_bfe_u32 s{s_tagn}, s{s_t0}, 0x10001",
                        f"s_add_u32 s{s_t0}, s{s_step}, 2", tog(s_vr), tog(s_pcur), tog(s_pc2), tog(s_pst)])
        gv = gvd + 1
        for i in range(0, len(vv), opt.vper):
            S.at(gv, vv[i:i+opt.vper]); gv += 1
        st = [f"buffer_store_dwordx2 {v(VR,2)}, v{vA8}, {W}, s{s_vw} offen sc1", f"buffer_store_dwordx2 {v(VR,2)}, v{vA8}, {W}, s{s_vm} offen sc1"]
        if gam == 0: st.append(f"buffer_store_dwordx4 {v(XP,4)}, v{gKM}, {W}, s{s_km} offen sc1")
        st.append(f"buffer_store_dword v{SP+1}, v{gPR}, {W}, s{s_prog} offen sc1")
        gs = S.seq(gv, st)
        if opt.rearly:
            S.at(gs + 1, [f"s_cmp_ge_u32 s{s_t0}, s{s_rdy}", f"s_cbranch_scc1 {P}_KVW", f"{P}_KVB:"])
            g = S.seq(max(g0 - opt.rlead, rg + 4, gvd - 3), r_reads)
            g = max(g, gvd)
        else:
            g = g0 - opt.rlead
            assert g > gs, (g, gs)
            S.at(g, ["; @WAITVM r"] + rc[0:2])
            S.at(g + 1, rc[2:5])
            S.at(g + 2, [f"s_cmp_ge_u32 s{s_t0}, s{s_rdy}", f"s_cbranch_scc1 {P}_KVW", f"{P}_KVB:"])
            S.at(g + 3, [f"s_cbranch_vccnz {P}_RS", f"{P}_ROK:", "s_barrier", r_reads[0]])
            assert g + 3 < g0
            g = S.seq(g + 4, r_reads[1:])
        gk = S.seq(gvd + 1 if opt.kxe else g + 1, kxr)
        def r_retry():
            A.label(f"{P}_RS")
            cnt(9, 1)
            A("s_mov_b64 exec, vcc")
            for t in r_ld: A(t)
            A("s_mov_b64 exec, -1")
            A("s_waitcnt vmcnt(0)")
            for c in rc: A(c)
            A(f"s_cbranch_vccz {P}_ROK")
            spin_fail(f"{P}_RS")
        late.append(r_retry)
        lV = f"buffer_load_dwordx2 {v(VR,2)}, v{vA8}, {W}, s{s_vr} offen sc1"
        g = S.seq(max(g0, gs + 2), [tog(s_ar), tog(s_mlo), tog(s_mro), f"s_add_u32 s{s_km}, s{s_km}, {32*2048}", f"s_add_u32 s{s_vm}, s{s_vm}, {32*4096}",
                       f"s_xor_b32 s{s_t1}, s{s_vw}, s{XO_[s_vw]}", f"s_xor_b32 s{s_t2}, s{s_tagn}, 1", f"v_mov_b32 v{SP+2}, s{s_t2}"])
        S.put(gk + 1, f"v_xor_b32 v{aKX}, 8192, v{aKX}")
        if opt.inv:
            S.at(g + 1, [f"buffer_store_dword v{SP+2}, v{gMO}, {W}, s{s_mro} offen sc1"])
            S.at(g + 2, ["s_mov_b64 exec, s[62:63]", f"buffer_store_dword v{SP+2}, v{vA8}, {W}, s{s_t1} offen sc1", "s_mov_b64 exec, -1"])
        S.at(max(opt.vr_gap, g + 3), [lV + " ; @vm:v0"])
        if opt.pk:
            qq = [f"v_pk_add_f32 {v(aQ[t],2)}, {v(aQ[t],2)}, {v(aQ[t]+2,2)}" for t in range(2)] + \
                 [f"v_pk_mul_f32 {v(aQ[t],2)}, {v(aQ[t],2)}, s[{s_cp}:{s_cp+1}]" for t in range(2)]
        else:
            qq = [f"v_add_f32 v{aQ[i>>1]+(i&1)}, v{aQ[i>>1]+(i&1)}, v{aQ[i>>1]+2+(i&1)}" for i in range(4)] + \
                 [f"v_mul_f32 v{aQ[i>>1]+(i&1)}, s{s_csc}, v{aQ[i>>1]+(i&1)}" for i in range(4)]
        qq += [f"v_cvt_pk_bf16_f32 v{XW+t}, v{aQ[t]}, v{aQ[t]+1}" for t in range(2)]
        gb = N - opt.qb
        gw = gb - opt.qw
        room = max(1, gw - (gq + 1))
        per = -(-len(qq) // room)
        gg = gq + 1
        for i in range(0, len(qq), per):
            S.at(gg, qq[i:i+per]); gg += 1
        S.at(gg - 1, [f"ds_write2_b32 v{aXW}, v{XW}, v{XW+1} offset0:0 offset1:64"])
        gb = max(gb, gg, gl - 1)
        xq = xrd(XQ)
        S.at(gb, ["; @WAITLDS", "s_barrier"] + xq[0:2])
        for i in range(2, 8, 2): S.at(min(gb + i // 2, N - 1), xq[i:i+2])
        weave(mf, S.f, 'l')
        stampc(2)
        S0, S1, SM, LL, O0, O1 = ACC + 8, ACC + 12, ACC + 16, ACC + 20, ACC, ACC + 4
        if opt.pk: kk = [f"v_pk_add_f32 {v(aK[t],2)}, {v(aK[t],2)}, {v(aK[t]+2,2)}" for t in range(2)]
        else: kk = [f"v_add_f32 v{aK[i>>1]+(i&1)}, v{aK[i>>1]+(i&1)}, v{aK[i>>1]+2+(i&1)}" for i in range(4)]
        kk += [f"v_cvt_pk_bf16_f32 v{XW+t}, v{aK[t]}, v{aK[t]+1}" for t in range(2)]
        mf = []
        for m, Sx in ((0, S0), (1, S1)):
            for uu in range(4):
                mf.append(f"v_mfma_f32_16x16x32_bf16 {v(Sx,4)}, {v(KX+8*uu+4*m,4)}, {v(XQ+4*uu,4)}, {'0' if uu == 0 else v(Sx,4)}")
        xk = xrd(XK)
        E = [SP, SP + 1, SP + 2, SP + 3]
        ks = opt.kslot
        fill = {}
        fill.setdefault(ks, []).extend(kk + [f"ds_write2_b32 v{aXW}, v{XW}, v{XW+1} offset0:1 offset1:65"])
        fill.setdefault(opt.vr2, []).append(lV + " ; @vm:v1")
        kb = min(ks + opt.kw, 7)
        fill.setdefault(kb - 1, []).extend([f"s_cmp_eq_u32 s{s_step}, 63"])
        fill.setdefault(kb, []).extend(["; @WAITLDS", "s_barrier", f"s_cbranch_scc1 C_LAST{gam}"] + xk[0:2])
        ex0 = [f"v_exp_f32 v{E[i]}, v{S0+i}" for i in range(4)]
        for i in range(2, 8, 2):
            fill.setdefault(min(kb + i // 2, 7), []).extend(xk[i:i+2])
            if kb + i // 2 >= 7: fill[7].append(ex0.pop(0))
        weave(mf, fill, 's')
        stampc(3)
        for x in ex0: A(x)
        wor = [f"ds_read_b128 {v((LAND+4*q) if q < 8 else (AR[0]+4*(q-8)),4)}, v{aRES} offset:{20480 + q*1024}" for q in range(10)]
        WO0 = lambda t: LAND + 8 * t if t < 4 else AR[0]
        mf = [f"v_mfma_f32_16x16x32_bf16 {v(SM,4)}, {v(XK+4*uu,4)}, {v(XQ+4*uu,4)}, {'0' if uu == 0 else v(SM,4)}" for uu in range(4)]
        fill = {0: [f"v_cvt_pk_bf16_f32 v{PX}, v{E[0]}, v{E[1]}", f"v_cvt_pk_bf16_f32 v{PX+1}, v{E[2]}, v{E[3]}"],
                1: [f"v_exp_f32 v{E[0]}, v{S1}"], 2: [f"v_exp_f32 v{E[1]}, v{S1+1}"],
                3: [wor[0], f"v_exp_f32 v{E[2]}, v{S1+2}", wor[1], f"v_exp_f32 v{E[3]}, v{S1+3}"]}
        weave(mf, fill, 'm')
        A("; @WAITVM v0")
        A(f"v_cvt_pk_bf16_f32 v{PX+2}, v{E[0]}, v{E[1]}")
        A(f"v_cvt_pk_bf16_f32 v{PX+3}, v{E[2]}, v{E[3]}")
        vchk = [f"v_bitop3_b32 v{TG}, v{VR}, v{VR+1}, s{s_tag} bitop3:0x7e", f"v_and_b32 v{TG}, 1, v{TG}", f"v_cmp_ne_u32 vcc, 0, v{TG}"]
        vmv = [f"v_mov_b32 v{VO+1}, v{VR}", f"v_mov_b32 v{VO+3}, v{VR+1}"]
        pvx = [f"v_mfma_f32_16x16x32_bf16 {v(LL,4)}, {v(vONE,4)}, {v(PX,4)}, 0",
               f"v_mfma_f32_16x16x32_bf16 {v(O0,4)}, {v(VX,4)}, {v(PX,4)}, 0",
               f"v_mfma_f32_16x16x32_bf16 {v(O1,4)}, {v(VX+4,4)}, {v(PX,4)}, 0"]
        pvm = [f"v_mfma_f32_16x16x16_bf16 {v(LL,4)}, {v(vH,2)}, {v(vPM,2)}, {v(LL,4)}",
               f"v_mfma_f32_16x16x16_bf16 {v(O0,4)}, {v(VO,2)}, {v(vPM,2)}, {v(O0,4)}",
               f"v_mfma_f32_16x16x16_bf16 {v(O1,4)}, {v(VO+2,2)}, {v(vPM,2)}, {v(O1,4)}"]
        A(vchk[0]); A(vchk[1])
        A(pvx[0])
        A(f"v_exp_f32 v{E[0]}, v{SM+2}")
        A(pvx[1])
        A(wor[2])
        A(f"v_exp_f32 v{E[1]}, v{SM+3}")
        A(pvx[2])
        A(vchk[2])
        A(f"v_cvt_pk_bf16_f32 v{vPM}, v{E[0]}, v{E[1]}")
        A(f"v_cvt_pk_bf16_f32 v{vPM+1}, v{E[0]}, v{E[1]}")
        A(vmv[0]); A(vmv[1])
        A(pvm[0])
        A(f"s_cbranch_vccnz {P}_RV")
        A.label(f"{P}_BV")
        mark('bv')
        A(pvm[1])
        if opt.kxlate: A(dm[0])
        A(wor[3])
        A(pvm[2])
        if opt.kxlate: A(dm[1]); A(dm[2])
        mark('pv')
        CA = AL[0]
        zr = [f"v_mov_b64 {v(CA+2*i,2)}, 0" for i in range(10)]
        A(wor[4])
        if opt.kxlate: A(dm[3])
        A(f"v_rcp_f32 v{vM}, v{LL}")
        A(f"v_subrev_u32 v{vM2}, s{s_lo}, v{LL}")
        A(f"v_cmp_le_u32 vcc, s{s_rng}, v{vM2}")
        OW = AR[2]
        def onorm():
            for tau in range(2):
                for i in range(4): A(f"v_mul_f32 v{E[i]}, v{O0+4*tau+i}, v{vM}")
                for i in range(2): A(f"v_cvt_pk_bf16_f32 v{OW+2*tau+i}, v{E[2*i]}, v{E[2*i+1]}")
        onorm()
        A(f"s_and_b64 vcc, vcc, s[{s_valid}:{s_valid+1}]")
        A(f"s_cbranch_scc1 {P}_FB")
        A.label(f"{P}_BF")
        mark('bf')
        A(f"ds_write_b128 v{aOW}, {v(OW,4)}")
        for x in zr: A(x)
        A("; @WAITLDS")
        A("s_barrier")
        stampc(4)
        OA = ACC + 8
        A(f"ds_read_b128 {v(OA+4,4)}, v{aOR} offset:1024")
        A(f"ds_read_b128 {v(OA,4)}, v{aOR}")
        A(wor[5])
        filler([], opt.ow)
        PO = AR[2]
        mf = []
        for t in range(5): mf += [smf(CA + 4 * t, OA + 4, WO1(t)), smf(CA + 4 * t, OA, WO0(t))]
        def cepi(t):
            c = CA + 4 * t
            if opt.pk: L = [f"v_pk_add_f32 {v(c,2)}, {v(c,2)}, {v(c+2,2)}"]
            else: L = [f"v_add_f32 v{c}, v{c}, v{c+2}", f"v_add_f32 v{c+1}, v{c+1}, v{c+3}"]
            return L + [f"v_cvt_pk_bf16_f32 v{PO+t}, v{c}, v{c+1}", f"v_and_or_b32 v{PO+t}, v{PO+t}, -2, s{s_tag}",
                        f"buffer_store_dword v{PO+t}, v{vA4}, {W}, s{s_pst} offen offset:{t*256}{sc}"]
        fill = {0: [wor[6]], 1: [wor[7], "s_nop 0"], 2: [wor[8], "s_nop 0"], 3: [wor[9], "s_nop 0"]}
        for t in range(3):
            e = cepi(t)
            fill.setdefault(4 + 2 * t, []).extend(e[:2]); fill.setdefault(5 + 2 * t, []).extend(e[2:-1])
            fill.setdefault(min(6 + 2 * t, 9), []).insert(0 if t < 2 else 99, e[-1])
        weave(mf, fill, 'o')
        for t in (3, 4):
            for x in cepi(t): A(x)
        stampc(5)
        A("; @WAITVM v1")
        A(f"s_cmp_eq_u32 s{s_isred}, 0")
        A(f"s_cbranch_scc1 {P}_TOPN")
        RD = ACC
        RS = [AR[0], SP]
        eld = [ld(RS[0], gRED, s_pcur, 0), ld(RS[1], gRED, s_pc2, 0)]
        e_regs = [RS[0] + i for i in range(4)] + [RS[1] + i for i in range(4)]
        def mixfill(n, lds):
            for i in range(n):
                if lds and i % 2 == 0: A(lds.pop(0))
                A(warm)
        wv = list(wvall)
        ec = tagchk(e_regs, s_tag)
        if opt.ereg:
            A(f"s_xor_b32 s{s_t1}, s{s_tag}, 1")
            for r in e_regs: A(f"v_mov_b32 v{r}, s{s_t1}")
            mixfill(opt.ed1, wv)
            for k in range(opt.enf - 1):
                for t in eld: A(t)
                mixfill(opt.egap, wv)
            for x in wv: A(x)
            mark('ea')
            A.label(f"{P}_ES")
            for t in eld: A(t)
            A("s_mov_b64 exec, -1")
            for k in range(opt.echk):
                for c in ec[:4]: A(c)
                A(f"v_mfma_f32_16x16x32_bf16 {v(RD,4)}, {v(RS[0],4)}, {v(vSEL,4)}, 0")
                A(f"v_mfma_f32_16x16x32_bf16 {v(RD,4)}, {v(RS[1],4)}, {v(vSEL,4)}, {v(RD,4)}")
                for c in ec[4:]: A(c)
                if k == 0:
                    cnt(8, 0x10000)
                    A(f"s_sub_u32 s{s_spin}, s{s_spin}, 1")
                    A("s_cbranch_scc1 C_FAIL")
                if k < opt.echk - 1: A(f"s_cbranch_vccz {P}_EOK")
            A("s_mov_b64 exec, vcc")
            A(f"s_cbranch_vccnz {P}_ES")
            A("s_mov_b64 exec, -1")
            A.label(f"{P}_EOK")
        else:
            mixfill(opt.ed1, wv)
            for k in range(opt.enf):
                if k: mixfill(opt.egap, wv)
                for t in tagv(eld, f'e{k}'): A(t)
            mixfill(opt.ew, wv)
            for x in wv: A(x)
            mark('eb')
            A("; @WAITVM e0")
            mark('ea')
            ec = tagchk(e_regs, s_tag)
            A.label(f"{P}_EC")
            for c in ec[:4]: A(c)
            A(f"v_mfma_f32_16x16x32_bf16 {v(RD,4)}, {v(RS[0],4)}, {v(vSEL,4)}, 0")
            A(f"v_mfma_f32_16x16x32_bf16 {v(RD,4)}, {v(RS[1],4)}, {v(vSEL,4)}, {v(RD,4)}")
            for c in ec[4:]: A(c)
            filler([], 4)
            A(f"s_cbranch_vccnz {P}_ES")
            def e_retry():
                A.label(f"{P}_ES")
                A("s_mov_b64 exec, vcc")
                for t in eld: A(t)
                A("s_mov_b64 exec, -1")
                cnt(8, 0x10000)
                spin_fail(f"{P}_EC")
            late.append(e_retry)
        stampc(6)
        A(f"v_permlane32_swap_b32 v{RD}, v{RD+2}")
        A(f"v_permlane32_swap_b32 v{RD+1}, v{RD+3}")
        A(f"v_add_f32 v{RD}, v{RD}, v{RD+2}")
        A(f"v_add_f32 v{RD+1}, v{RD+1}, v{RD+3}")
        A(f"v_permlane16_swap_b32 v{RD}, v{RD+1}")
        A(f"v_add_f32 v{vM}, v{RD}, v{RD+1}")
        A.label(f"{P}_PUB")
        A(f"v_mov_b32_dpp v{vM2}, v{vM} quad_perm:[1,1,3,3] row_mask:0xf bank_mask:0xf")
        A(f"v_cvt_pk_bf16_f32 v{vM}, v{vM}, v{vM2}")
        A(f"v_and_or_b32 v{vM}, v{vM}, -2, s{s_tagn}")
        A(f"buffer_store_dword v{vM}, v{gMO}, {W}, s{s_mlo} offen{sc}")
        if opt.mrpos < 0: A(mr_st)
        stampc(7)
        A("s_barrier")
        A(f"s_branch {P}_TOP")
        A.ins[i0:] = resolve_waits(A.ins[i0:])
        A.label(f"{P}_PUB0")
        for x in wvall: A(x)
        A(f"s_branch {P}_PUB")
        for f in late: f()
        A.label(f"{P}_KVW")
        A(f"s_mov_b64 s[98:99], vcc")
        A.label(f"{P}_KVL")
        kv_ready()
        A(f"s_mov_b64 vcc, s[98:99]")
        A(f"s_cmp_lt_u32 s{s_t0}, s{s_rdy}")
        A(f"s_cbranch_scc1 {P}_KVB")
        spin_fail(f"{P}_KVL")
        A.label(f"{P}_RV")
        A("s_mov_b64 exec, vcc")
        A(lV)
        A("s_mov_b64 exec, -1")
        cnt(9, 0x10000)
        for k in range(2):
            for c in vchk: A(c)
            for c in vmv: A(c)
            filler([], 2)
            A(f"s_cbranch_vccz {P}_BV")
        spin_fail(f"{P}_RV")
        A.label(f"{P}_FB")
        sc10 = [S0, S0 + 1, S0 + 2, S0 + 3, S1, S1 + 1, S1 + 2, S1 + 3, SM + 2, SM + 3]
        A(f"v_max3_f32 v{vM}, v{sc10[0]}, v{sc10[1]}, v{sc10[2]}")
        for i in range(3, 9, 2): A(f"v_max3_f32 v{vM}, v{vM}, v{sc10[i]}, v{sc10[i+1]}")
        A(f"v_max_f32 v{vM}, v{vM}, v{sc10[9]}")
        A(f"v_mov_b32 v{vM2}, v{vM}")
        A(f"v_permlane32_swap_b32 v{vM}, v{vM2}")
        A(f"v_max_f32 v{vM}, v{vM}, v{vM2}")
        A(f"v_mov_b32 v{vM2}, v{vM}")
        A(f"v_permlane16_swap_b32 v{vM}, v{vM2}")
        A(f"v_max_f32 v{vM}, v{vM}, v{vM2}")
        for r in sc10: A(f"v_sub_f32 v{r}, v{r}, v{vM}")
        for r in sc10: A(f"v_exp_f32 v{r}, v{r}")
        for i in range(4): A(f"v_cvt_pk_bf16_f32 v{PX+i}, v{sc10[2*i]}, v{sc10[2*i+1]}")
        A(f"v_cvt_pk_bf16_f32 v{vPM}, v{SM+2}, v{SM+3}")
        A(f"v_cvt_pk_bf16_f32 v{vPM+1}, v{SM+2}, v{SM+3}")
        for x in pvx + pvm: A(x)
        A(f"v_rcp_f32 v{vM}, v{LL}")
        onorm()
        A(f"s_branch {P}_BF")

    for gam in range(2):
        loop(f"CF{gam}", "", gam)
        loop(f"CS{gam}", " sc1", gam)
    A.label("C_LAST0")
    for m in range(2): A(f"ds_read_b64_tr_b16 {v(TG+2*m,2)}, v{aXP} offset:{m*512}")
    A("s_waitcnt lgkmcnt(0)")
    A(f"buffer_store_dwordx4 {v(TG,4)}, v{gKM}, {W}, s{s_km} offen sc1")
    A.label("C_LAST1")
    A("s_waitcnt vmcnt(0)")
    A("s_barrier")
    A(f"v_mov_b32 v{vM}, 64")
    A(f"buffer_store_dword v{vM}, v{gPR}, {W}, s{s_prog} offen sc1")
    A.label("C_DONE")
    stamp(A, opt, 3, vt=(T0, T1, T2))
    if opt.stamps:
        for k in range(12): A(f"v_mov_b32 v{LAND+k}, s{ST0+k}")
        A(f"s_lshl_b32 s90, s2, 2")
        A(f"s_add_u32 s90, s90, s5")
        A(f"s_lshl_b32 s90, s90, 6")
        A(f"s_add_u32 s90, s90, {WS_TS + MB:#x}")
        A("s_mov_b64 exec, 1")
        for k in range(3): A(f"buffer_store_dwordx4 {v(LAND+4*k,4)}, off, {W}, s90 offset:{16*k}")
    A("s_waitcnt vmcnt(0)")
    A("s_endpgm")
    A.label("C_FAIL")
    A(f"v_mov_b32 v{vM}, s{s_step}")
    A(f"v_add_u32 v{vM}, 0x1000, v{vM}")
    A("s_mov_b64 exec, 1")
    A(f"buffer_store_dword v{vM}, off, {D}, 0 offset:{DBG_ERR*4} sc1")
    A("s_waitcnt vmcnt(0)")
    A("s_endpgm")
```

```python
from asmlib import *
from gen import *
from gen_chain import VM

def gen_follow(A, opt):
    W = f"s[{S_WS}:{S_WS+3}]"
    D = f"s[{S_DBG}:{S_DBG+3}]"
    s_t0, s_t1, s_t2, s_spin, s_seg, s_flag = 24, 25, 26, 27, 28, 29
    vL, vA16, vT0, vT1, vT2 = 1, 2, 3, 4, 5
    def spin_fail(lbl, sleep=1):
        A(f"s_sleep {sleep}")
        A(f"s_sub_u32 s{s_spin}, s{s_spin}, 1")
        A(f"s_cbranch_scc0 {lbl}")
        A("s_branch F_FAIL")
    A(f"s_mov_b32 s{s_spin}, {opt.spin}")
    A(f"v_and_b32 v{vL}, 63, v0")
    A(f"v_lshlrev_b32 v{vA16}, 4, v{vL}")
    A(f"s_lshl_b32 s{s_flag}, s3, 10")
    A(f"s_add_u32 s{s_flag}, s{s_flag}, {WS_OFLAG:#x}")
    A("s_cmp_lt_u32 s4, 20")
    A("s_cbranch_scc1 F_ARRIVE")
    A("s_cmp_ge_u32 s4, 28")
    A("s_cbranch_scc1 F_ARRIVE")
    A(f"s_sub_u32 s{s_t0}, s4, 20")
    A(f"s_lshl_b32 s{s_t0}, s{s_t0}, 7")
    A(f"s_add_u32 s{s_flag}, s{s_flag}, s{s_t0}")
    A(f"v_mov_b32 v{vT0}, 0")
    A("s_mov_b64 exec, 1")
    A(f"buffer_store_dword v{vT0}, off, {W}, s{s_flag} sc1")
    A("s_mov_b64 exec, -1")
    A.label("F_ARRIVE")
    A("s_waitcnt vmcnt(0)")
    A("s_barrier")
    A("s_cmp_eq_u32 s5, 0")
    A("s_cbranch_scc0 F_ARRIVED")
    A(f"v_mov_b32 v{vT0}, 1")
    A("s_mov_b64 exec, 1")
    A(f"buffer_atomic_add v{vT0}, off, {D}, 0 offset:{DBG_WBAR*4} sc1")
    A("s_mov_b64 exec, -1")
    A.label("F_ARRIVED")
    stamp(A, opt, 12)
    A("s_cmp_ge_u32 s4, 28")
    A("s_cbranch_scc1 F_END")
    A("s_cmp_ge_u32 s4, 20")
    A("s_cbranch_scc1 F_AT")

    def wait_bar(name):
        A.label(name)
        A(f"buffer_load_dword v{vT0}, off, {D}, 0 offset:{DBG_CHAIN_CNT*4} sc1")
        A(f"buffer_load_dword v{vT1}, off, {D}, 0 offset:{DBG_WBAR*4} sc1")
        A("s_waitcnt vmcnt(0)")
        A(f"v_readfirstlane_b32 s{s_t0}, v{vT0}")
        A(f"v_readfirstlane_b32 s{s_t1}, v{vT1}")
        A(f"s_cmp_ge_u32 s{s_t0}, 64")
        A(f"s_cselect_b32 s{s_t1}, s{s_t1}, 0")
        A(f"s_cmp_ge_u32 s{s_t1}, 192")
        A(f"s_cbranch_scc1 {name}_OK")
        spin_fail(name, 8)
        A.label(name + "_OK")

    SO, SD, SOUT = 32, 36, 40
    A(f"s_load_dwordx2 s[44:45], s[0:1], {KA_WO}")
    A(f"s_load_dwordx2 s[46:47], s[0:1], {KA_WD}")
    A(f"s_load_dwordx2 s[48:49], s[0:1], {KA_OUT}")
    A("s_waitcnt lgkmcnt(0)")
    srd(A, SO, 44, 45, 4096 * 1280); srd(A, SD, 46, 47, 1728 * 1280); srd(A, SOUT, 48, 49, 2048 * 1280)
    vD, aT, gOUT, gG, aRW, aRR, vG, vG1 = 6, 7, 8, 9, 10, 11, 12, 13
    ACA, ACB, RING = 16, 32, 48
    NR = 25
    WR = lambda k: 256 + 4 * k if k < 64 else 148 + 4 * (k - 64)
    s_lds, s_o, s_d, s_par = 50, 51, 52, 53
    A(f"v_lshrrev_b32 v{vT0}, 2, v{vL}")
    A(f"v_mul_u32_u24 v{vT0}, 1280, v{vT0}")
    A(f"v_and_b32 v{vT1}, 3, v{vL}")
    A(f"v_lshl_add_u32 v{vD}, v{vT1}, 4, v{vT0}")
    A(f"s_mul_i32 s{s_lds}, s5, 40960")
    A(f"v_lshrrev_b32 v{vT0}, 5, v{vL}")
    A(f"v_bfe_u32 v{vT1}, v{vL}, 2, 2")
    A(f"v_lshl_add_u32 v{vT0}, v{vT0}, 2, v{vT1}")
    A(f"v_lshlrev_b32 v{vT0}, 6, v{vT0}")
    A(f"v_bfe_u32 v{vT1}, v{vL}, 4, 1")
    A(f"v_lshl_add_u32 v{vT0}, v{vT1}, 5, v{vT0}")
    A(f"v_and_b32 v{vT1}, 3, v{vL}")
    A(f"v_lshl_add_u32 v{vT0}, v{vT1}, 3, v{vT0}")
    A(f"v_add_u32 v{aT}, s{s_lds}, v{vT0}")
    A(f"s_lshl_b32 s{s_t0}, s4, 6")
    A(f"s_mul_i32 s{s_o}, s5, {1024*1280}")
    A(f"s_add_u32 s{s_o}, s{s_o}, s{s_t0}")
    A(f"s_mul_i32 s{s_d}, s5, {432*1280}")
    A(f"s_add_u32 s{s_d}, s{s_d}, s{s_t0}")
    vm = VM(A)
    def dma(k):
        A(f"s_add_u32 m0, s{s_lds}, {(k % 40)*1024}")
        if k < 64:
            vm.issue(f"buffer_load_dwordx4 v{vD}, s[{SO}:{SO+3}], s{s_o} offen lds", k)
            A(f"s_add_u32 s{s_o}, s{s_o}, {16*1280}")
        else:
            vm.issue(f"buffer_load_dwordx4 v{vD}, s[{SD}:{SD+3}], s{s_d} offen lds", k)
            A(f"s_add_u32 s{s_d}, s{s_d}, {16*1280}")
    for k in range(40): dma(k)
    for k0 in range(0, 91, 4):
        ks = [k for k in range(k0, min(k0 + 4, 91))]
        vm.wait(ks[-1])
        for k in ks:
            for m in range(2):
                A(f"ds_read_b64_tr_b16 {u(WR(k)+2*m,2)}, v{aT} offset:{(k%40)*1024 + m*512}")
        A("s_waitcnt lgkmcnt(0)")
        for k in ks:
            if k + 40 < 91: dma(k + 40)
    A(f"v_and_b32 v{vT0}, 31, v{vL}")
    A(f"v_lshlrev_b32 v{gG}, 2, v{vT0}")
    A(f"v_mul_u32_u24 v{vT0}, 1280, v{vT0}")
    A(f"v_lshrrev_b32 v{vT1}, 5, v{vL}")
    A(f"v_lshl_add_u32 v{vT0}, v{vT1}, 3, v{vT0}")
    A(f"s_lshl_b32 s{s_t0}, s4, 6")
    A(f"s_lshl_b32 s{s_t1}, s5, 4")
    A(f"s_add_u32 s{s_t0}, s{s_t0}, s{s_t1}")
    A(f"v_add_u32 v{gOUT}, s{s_t0}, v{vT0}")
    A(f"s_lshl_b32 s{s_t0}, s5, 12")
    A(f"v_add_u32 v{aRW}, s{s_t0}, v{vA16}")
    A(f"s_lshl_b32 s{s_t0}, s5, 10")
    A(f"v_add_u32 v{aRR}, s{s_t0}, v{vA16}")
    A(f"s_lshl_b32 s{s_t0}, s5, 8")
    A(f"s_add_u32 s{s_flag}, s{s_flag}, s{s_t0}")
    A("s_barrier")
    stamp(A, opt, 13, vt=(16, 17, 18))
    wait_bar("F_OPW")
    stamp(A, opt, 14, vt=(16, 17, 18))
    A(f"s_mov_b32 s{s_seg}, s3")
    A.label("F_OP_LOOP")
    vm = VM(A)
    A(f"s_mul_i32 s{s_d}, s{s_seg}, {54*2048}")
    A(f"s_mul_i32 s{s_t0}, s5, {27*1024}")
    A(f"s_add_u32 s{s_d}, s{s_d}, s{s_t0}")
    A(f"s_add_u32 s{s_d}, s{s_d}, {WS_H:#x}")
    A(f"s_lshl_b32 s{s_o}, s{s_seg}, 18")
    A(f"s_lshl_b32 s{s_t0}, s5, 16")
    A(f"s_add_u32 s{s_o}, s{s_o}, s{s_t0}")
    A(f"s_add_u32 s{s_o}, s{s_o}, {WS_O:#x}")
    A(f"s_lshl_b32 s{s_t0}, s{s_seg}, 7")
    A(f"s_add_u32 s{s_t0}, s{s_t0}, {WS_G:#x}")
    vm.issue(f"buffer_load_dword v{vG}, v{gG}, {W}, s{s_t0} offen sc1", 'g')
    def stream(n, sreg, acc, w0):
        def ldk(k):
            vm.issue(f"buffer_load_dwordx4 {v(RING+4*(k%NR),4)}, v{vA16}, {W}, s{sreg} offen offset:{(k%4)*1024} sc1", k)
            if k % 4 == 3: A(f"s_add_u32 s{sreg}, s{sreg}, 4096")
        for k in range(min(NR - 1, n)): ldk(k)
        for k in range(n):
            vm.wait(k)
            c = "0" if k == 0 else v(acc, 16)
            A(f"v_mfma_f32_32x32x16_bf16 {v(acc,16)}, {u(WR(w0+k),4)}, {v(RING+4*(k%NR),4)}, {c}")
            if k + NR - 1 < n: ldk(k + NR - 1)
    stream(27, s_d, ACB, 64)
    A.label("F_OP_POLL")
    A(f"buffer_load_dword v{vT0}, off, {W}, s{s_flag} sc1")
    A(f"buffer_load_dword v{vT1}, off, {W}, s{s_flag} offset:128 sc1")
    A("s_waitcnt vmcnt(0)")
    A(f"v_min_u32 v{vT0}, v{vT0}, v{vT1}")
    A(f"v_readfirstlane_b32 s{s_t0}, v{vT0}")
    A(f"s_cmp_gt_u32 s{s_t0}, s{s_seg}")
    A("s_cbranch_scc1 F_OP_GO")
    spin_fail("F_OP_POLL", 2)
    A.label("F_OP_GO")
    vm = VM(A)
    stream(64, s_o, ACA, 0)
    A(f"v_sub_f32 v{vG1}, 1.0, v{vG}")
    for i in range(16): A(f"v_mul_f32 v{ACB+i}, v{ACB+i}, v{vG1}")
    for i in range(16): A(f"v_fmac_f32 v{ACB+i}, v{ACA+i}, v{vG}")
    for q in range(4): A(f"ds_write_b128 v{aRW}, {v(ACB+4*q,4)} offset:{q*1024}")
    A("s_waitcnt lgkmcnt(0)")
    A("s_barrier")
    for q in range(4): A(f"ds_read_b128 {v(ACA+4*q,4)}, v{aRR} offset:{q*4096}")
    A(f"v_xor_b32 v{aRW}, 0x4000, v{aRW}")
    A(f"v_xor_b32 v{aRR}, 0x4000, v{aRR}")
    A(f"s_mul_i32 s{s_t0}, s{s_seg}, {32*1280}")
    A("s_waitcnt lgkmcnt(0)")
    for i in range(4):
        A(f"v_add_f32 v{ACA+i}, v{ACA+i}, v{ACA+4+i}")
        A(f"v_add_f32 v{ACA+8+i}, v{ACA+8+i}, v{ACA+12+i}")
    for i in range(4): A(f"v_add_f32 v{ACA+i}, v{ACA+i}, v{ACA+8+i}")
    A(f"v_cvt_pk_bf16_f32 v14, v{ACA}, v{ACA+1}")
    A(f"v_cvt_pk_bf16_f32 v15, v{ACA+2}, v{ACA+3}")
    A(f"buffer_store_dwordx2 v[14:15], v{gOUT}, s[{SOUT}:{SOUT+3}], s{s_t0} offen")
    A(f"s_add_u32 s{s_seg}, s{s_seg}, 6")
    A(f"s_cmp_lt_u32 s{s_seg}, 64")
    A("s_cbranch_scc1 F_OP_LOOP")
    stamp(A, opt, 15, vt=(16, 17, 18))
    A("s_branch F_END")

    A.label("F_AT")
    QF, KF, VF, KM, VMm, MSK, SX, SM, PX, PM = 16, 48, 80, 112, 200, 152, 168, 184, 6, 144
    gKM, gVM, vMX, vMY = 250, 251, 252, 253
    s_h, s_qkv, s_m, s_prog = 30, 31, 32, 33
    A(f"s_sub_u32 s{s_h}, s4, 20")
    A(f"s_lshl_b32 s{s_h}, s{s_h}, 2")
    A(f"s_add_u32 s{s_h}, s{s_h}, s5")
    A(f"s_lshl_b32 s{s_prog}, s{s_h}, 8")
    A(f"s_add_u32 s{s_prog}, s{s_prog}, {WS_PROG:#x}")
    A(f"v_and_b32 v{vT0}, 31, v{vL}")
    A(f"v_lshrrev_b32 v{vT1}, 5, v{vL}")
    A(f"v_lshlrev_b32 v{vT2}, 4, v{vT0}")
    A(f"v_and_b32 v{gVM}, 15, v{vL}")
    A(f"v_lshlrev_b32 v{gVM}, 3, v{gVM}")
    A(f"v_lshl_add_u32 v{gVM}, v{vT1}, 8, v{gVM}")
    A(f"v_bfe_u32 v{gKM}, v{vL}, 4, 1")
    A(f"v_lshl_add_u32 v{gVM}, v{gKM}, 2, v{gVM}")
    A(f"v_lshl_add_u32 v{gKM}, v{vT1}, 7, v{vT2}")
    A(f"v_mov_b32 v{vT2}, {OOB:#x}")
    A(f"v_cmp_gt_u32 vcc, 8, v{vT0}")
    A(f"v_cndmask_b32 v{gKM}, v{vT2}, v{gKM}, vcc")
    A(f"v_lshlrev_b32 v{vT1}, 2, v{vT1}")
    A(f"v_sub_u32 v{vT0}, v{vT0}, v{vT1}")
    A(f"v_mov_b32 v{vT1}, {fbits(-1e30):#x}")
    A(f"v_mov_b32 v{vT2}, 0")
    for R in range(16):
        A(f"v_cmp_gt_i32 vcc, {8*(R>>2)+(R&3)}, v{vT0}")
        A(f"v_cndmask_b32 v{MSK+R}, v{vT2}, v{vT1}, vcc")
    wait_bar("F_ATW")
    A(f"s_mov_b32 s{s_seg}, s3")
    A.label("F_AT_LOOP")
    A(f"s_lshl_b32 s{s_t0}, s{s_seg}, 5")
    A(f"s_add_u32 s{s_t0}, s{s_t0}, s{s_h}")
    A(f"s_lshl_b32 s{s_qkv}, s{s_t0}, 13")
    A(f"s_lshl_b32 s{s_m}, s{s_t0}, 11")
    A(f"s_add_u32 s{s_m}, s{s_m}, {WS_KM:#x}")
    vm = VM(A)
    for reg, base, tag in ((KF, WS_K, 'k'), (QF, WS_Q, 'q'), (VF, WS_V, 'v')):
        for hf in range(2):
            A(f"s_add_u32 s{s_t0}, s{s_qkv}, {base + hf*4096:#x}")
            for k in range(4):
                vm.issue(f"buffer_load_dwordx4 {v(reg+16*hf+4*k,4)}, v{vA16}, {W}, s{s_t0} offen offset:{k*1024} sc1", tag)
    vm.wait('q')
    for k in range(8):
        c = v(MSK, 16) if k == 0 else v(SX, 16)
        A(f"v_mfma_f32_32x32x16_bf16 {v(SX,16)}, {v(KF+4*k,4)}, {v(QF+4*k,4)}, {c}")
    A.label("F_AT_POLL")
    A(f"buffer_load_dword v{vT0}, off, {W}, s{s_prog} sc1")
    A(f"buffer_load_dword v{vT1}, off, {W}, s{s_prog} offset:128 sc1")
    A("s_waitcnt vmcnt(0)")
    A(f"v_min_u32 v{vT0}, v{vT0}, v{vT1}")
    A(f"v_readfirstlane_b32 s{s_t0}, v{vT0}")
    A(f"s_cmp_gt_u32 s{s_t0}, s{s_seg}")
    A("s_cbranch_scc1 F_AT_GO")
    spin_fail("F_AT_POLL", 2)
    A.label("F_AT_GO")
    vm = VM(A)
    for k in range(8):
        vm.issue(f"buffer_load_dwordx4 {v(KM+4*k,4)}, v{gKM}, {W}, s{s_m} offen offset:{k*256} sc1", k)
    A(f"s_lshr_b32 s{s_t0}, s{s_qkv}, 1")
    A(f"s_add_u32 s{s_t0}, s{s_t0}, {WS_VM:#x}")
    for et in range(4):
        for gm in range(2):
            for j in range(2):
                vm.issue(f"buffer_load_dword v{VMm+4*et+2*gm+j}, v{gVM}, {W}, s{s_t0} offen offset:{gm*2048 + et*512 + j*128} sc1", 'vm')
    A(f"v_max3_f32 v{vMX}, v{SX}, v{SX+1}, v{SX+2}")
    for i in range(3, 15, 2): A(f"v_max3_f32 v{vMX}, v{vMX}, v{SX+i}, v{SX+i+1}")
    A(f"v_max_f32 v{vMX}, v{vMX}, v{SX+15}")
    for k in range(8):
        vm.wait(k)
        c = "0" if k == 0 else v(SM, 16)
        A(f"v_mfma_f32_32x32x16_bf16 {v(SM,16)}, {v(KM+4*k,4)}, {v(QF+4*k,4)}, {c}")
    A(f"v_max3_f32 v{vMX}, v{vMX}, v{SM}, v{SM+1}")
    A(f"v_max3_f32 v{vMX}, v{vMX}, v{SM+2}, v{SM+3}")
    A(f"v_mov_b32 v{vMY}, v{vMX}")
    A(f"v_permlane32_swap_b32 v{vMX}, v{vMY}")
    A(f"v_max_f32 v{vMX}, v{vMX}, v{vMY}")
    sc = [SX + i for i in range(16)] + [SM + i for i in range(4)]
    for r in sc: A(f"v_sub_f32 v{r}, v{r}, v{vMX}")
    for r in sc: A(f"v_exp_f32 v{r}, v{r}")
    for i in range(8): A(f"v_cvt_pk_bf16_f32 v{PX+i}, v{SX+2*i}, v{SX+2*i+1}")
    for i in range(4): A(f"v_cvt_pk_bf16_f32 v{PM+i}, v{SM+2*(i&1)}, v{SM+2*(i&1)+1}")
    vm.wait('vm')
    OT = lambda et: QF + 16 * et
    for et in range(4):
        A(f"v_mfma_f32_32x32x16_bf16 {v(OT(et),16)}, {v(VF+8*et,4)}, {v(PX,4)}, 0")
    A(f"v_add_f32 v{vMX}, v{sc[0]}, v{sc[1]}")
    for et in range(4):
        A(f"v_mfma_f32_32x32x16_bf16 {v(OT(et),16)}, {v(VF+8*et+4,4)}, {v(PX+4,4)}, {v(OT(et),16)}")
        for r in sc[2+4*et:6+4*et]: A(f"v_add_f32 v{vMX}, v{vMX}, v{r}")
    for et in range(4):
        A(f"v_mfma_f32_32x32x16_bf16 {v(OT(et),16)}, {v(VMm+4*et,4)}, {v(PM,4)}, {v(OT(et),16)}")
        if et == 0:
            for r in sc[18:20]: A(f"v_add_f32 v{vMX}, v{vMX}, v{r}")
            A(f"v_mov_b32 v{vMY}, v{vMX}")
        if et == 1:
            A(f"v_permlane32_swap_b32 v{vMX}, v{vMY}")
            A(f"v_add_f32 v{vMX}, v{vMX}, v{vMY}")
            A(f"v_rcp_f32 v{vMX}, v{vMX}")
    A(f"s_add_u32 s{s_t0}, s{s_qkv}, {WS_O:#x}")
    for et in range(4):
        for i in range(16): A(f"v_mul_f32 v{OT(et)+i}, v{OT(et)+i}, v{vMX}")
        for i in range(8): A(f"v_cvt_pk_bf16_f32 v{KM+8*et+i}, v{OT(et)+2*i}, v{OT(et)+2*i+1}")
        if et == 2: A(f"s_add_u32 s{s_t0}, s{s_t0}, 4096")
        for ab in range(2):
            A(f"buffer_store_dwordx4 {v(KM+8*et+4*ab,4)}, v{vA16}, {W}, s{s_t0} offen offset:{(et&1)*2048+ab*1024} sc1")
    A("s_waitcnt vmcnt(0)")
    A("s_barrier")
    A("s_cmp_eq_u32 s5, 0")
    A("s_cbranch_scc0 F_AT_NF")
    A(f"s_add_u32 s{s_t0}, s{s_seg}, 1")
    A(f"v_mov_b32 v{vT0}, s{s_t0}")
    A("s_mov_b64 exec, 1")
    A(f"buffer_store_dword v{vT0}, off, {W}, s{s_flag} sc1")
    A("s_mov_b64 exec, -1")
    A.label("F_AT_NF")
    A(f"s_add_u32 s{s_seg}, s{s_seg}, 6")
    A(f"s_cmp_lt_u32 s{s_seg}, 64")
    A("s_cbranch_scc1 F_AT_LOOP")
    stamp(A, opt, 15, vt=(16, 17, 18))
    A("s_branch F_END")
    A.label("F_FAIL")
    A(f"v_mov_b32 v{vT0}, 0x2000")
    A("s_mov_b64 exec, 1")
    A(f"buffer_store_dword v{vT0}, off, {D}, 0 offset:{(DBG_ERR+1)*4} sc1")
    A.label("F_END")
```

```python
import sys, math, struct
from asmlib import *

KNAME = "gated_mix__memory_aug_recurrent_mem_tr__glu_gated_bilinear__prompt_kernel"
MB = 1 << 20
WS_K, WS_V, WS_Q, WS_O = 0, 16 * MB, 32 * MB, 48 * MB
WS_H = 64 * MB
WS_KM, WS_VM = 72 * MB, 96 * MB
WS_G = 80 * MB
WS_PROG = 80 * MB + 0x10000
WS_OFLAG = 80 * MB + 0x20000
WS_P = 81 * MB
WS_ML = 82 * MB
WS_X = 84 * MB
WS_SIZE = 256 * MB
OOB = 0x80000000
SENT = 0x7F817F81
SUSP = 0x7F810000
CSCALE = math.log2(math.e) / math.sqrt(128.0)
def fbits(x): return struct.unpack('<I', struct.pack('<f', x))[0]
KA_X, KA_MEM0, KA_WQ, KA_WK, KA_WV, KA_WO, KA_WG, KA_WU, KA_WD, KA_GW, KA_OUT, KA_DBG, KA_WS = 0, 8, 16, 24, 32, 40, 64, 72, 80, 88, 96, 104, 112
DBG_CHAIN_CNT, DBG_XCC0, DBG_POL, DBG_WBAR, DBG_ERR, DBG_ROT, DBG_KV = 0, 1, 3, 4, 5, 7, 8

S_WS, S_DBG = 8, 12
LDS_BYTES = 163840
NKVB, KVSEG = 8, 8

def srd(A, d, lo, hi, nbytes):
    A(f"s_mov_b32 s{d}, s{lo}")
    A(f"s_and_b32 s{d+1}, s{hi}, 0xffff")
    A(f"s_mov_b32 s{d+2}, {nbytes:#x}")
    A(f"s_mov_b32 s{d+3}, 0x20000")

WS_TS = 90 * MB
def stamp(A, opt, idx, sidx=None, vt=(250, 251, 252), st=(96, 97, 98)):
    if not opt.stamps: return
    L = A.newlabel("ST")
    A("s_cmp_eq_u32 s5, 0")
    A(f"s_cbranch_scc0 {L}")
    A(f"s_memrealtime s[{st[0]}:{st[1]}]")
    A(f"s_memtime s[100:101]")
    A(f"s_lshl_b32 s{st[2]}, s2, 10")
    A(f"s_add_u32 s{st[2]}, s{st[2]}, {WS_TS + idx*8:#x}")
    if sidx is not None:
        A(f"s_lshl_b32 s99, s{sidx[0]}, {sidx[1]}")
        A(f"s_add_u32 s{st[2]}, s{st[2]}, s99")
    A("s_waitcnt lgkmcnt(0)")
    A(f"v_mov_b32 v{vt[0]}, s{st[0]}")
    A(f"v_mov_b32 v{vt[1]}, s100")
    A(f"v_mov_b32 v{vt[2]}, 0")
    A(f"buffer_store_dwordx2 v[{vt[0]}:{vt[1]}], v{vt[2]}, s[{S_WS}:{S_WS+3}], s{st[2]} offen")
    A("s_waitcnt vmcnt(0)")
    A.label(L)

class Opt:
    stamps = 0; trace = 0; smask = 0; marks = ''; tstep = 40
    workers = True; chain = True; followers = True; gemm = True
    spin = 200000
    pol = -1; force_slow = 0
    lreg = 1; ereg = 1; echk = 2; lfv = 0; rpre = 0; lchk = 2; kxe = 1; rg = 6; mrpos = -1; rdly = 0; lwait = 0; lspec = 3; qb = 3; qw = 4; kw = 4; ld1 = 40; lgap = 12; lw = 0; lw2 = 8; lnf = 1; rearly = 0
    ed1 = 0; egap = 32; ew = 0; enf = 2
    rlead = 6; kxlate = 1; sgap = 10; inv = 1; ow = 6; kvsame = 0; kmsame = 0; nokm = 0; vr_gap = 40; vr2 = 3; vper = 4; pk = 0; nk = 4; kslot = 0

def gen_gemm(A, opt):
    SX, SW = 16, 20
    s_rb, s_type, s_stride, s_h, s_out, s_sx, s_sw, s_wstep = 24, 25, 26, 27, 28, 29, 30, 31
    s_it, s_t0, s_t1 = 32, 33, 34
    P0, P1 = 36, 38
    s_m0x, s_m0w = 40, 41
    s_wsz = 42
    vXA = [1, 2, 3, 4]
    vWA = [5, 6, 7, 8]
    vDX = [9, 10, 11, 12]
    vDW = [13, 14, 15, 16]
    vL, vT0, vT1, vT2, vOUT = 17, 18, 19, 20, 21
    XF = lambda sg, j: 64 + 32 * sg + 4 * j
    WF = lambda sg, i: 80 + 32 * sg + 4 * i
    ACC = lambda i, j: 16 * (4 * i + j)

    A("s_load_dwordx2 s[36:37], s[0:1], %d" % KA_X)
    A("s_waitcnt lgkmcnt(0)")
    srd(A, SX, 36, 37, 2048 * 1280)
    A(f"v_and_b32 v{vL}, 63, v0")
    A(f"v_and_b32 v{vT0}, 31, v{vL}")
    A(f"v_lshrrev_b32 v{vT1}, 5, v{vL}")
    A(f"v_bfe_u32 v{vT2}, v{vL}, 2, 2")
    A(f"v_xor_b32 v{vT1}, v{vT1}, v{vT2}")
    A(f"v_lshlrev_b32 v{vT1}, 4, v{vT1}")
    A(f"v_lshl_add_u32 v{vT1}, v{vT0}, 6, v{vT1}")
    A(f"s_and_b32 s{s_t0}, s5, 1")
    A(f"s_lshl_b32 s{s_t0}, s{s_t0}, 13")
    A(f"v_add_u32 v{vXA[0]}, s{s_t0}, v{vT1}")
    A(f"v_xor_b32 v{vXA[1]}, 32, v{vXA[0]}")
    A(f"v_add_u32 v{vXA[2]}, 0x10000, v{vXA[0]}")
    A(f"v_add_u32 v{vXA[3]}, 0x10000, v{vXA[1]}")
    A(f"v_lshrrev_b32 v{vT0}, 5, v{vL}")
    A(f"v_bfe_u32 v{vT1}, v{vL}, 2, 2")
    A(f"v_lshl_add_u32 v{vT0}, v{vT0}, 3, v{vT1}")
    A(f"v_lshlrev_b32 v{vT0}, 7, v{vT0}")
    A(f"v_bfe_u32 v{vT1}, v{vL}, 3, 1")
    A(f"v_lshl_add_u32 v{vT0}, v{vT1}, 6, v{vT0}")
    A(f"v_bfe_u32 v{vT1}, v{vL}, 4, 1")
    A(f"v_lshl_add_u32 v{vT0}, v{vT1}, 5, v{vT0}")
    A(f"v_and_b32 v{vT1}, 3, v{vL}")
    A(f"v_lshl_add_u32 v{vT0}, v{vT1}, 3, v{vT0}")
    A(f"s_lshr_b32 s{s_t0}, s5, 1")
    A(f"s_lshl_b32 s{s_t0}, s{s_t0}, 13")
    A(f"v_add_u32 v{vWA[0]}, s{s_t0}, v{vT0}")
    A(f"v_xor_b32 v{vWA[1]}, 64, v{vWA[0]}")
    A(f"v_add_u32 v{vWA[2]}, 0x10000, v{vWA[0]}")
    A(f"v_add_u32 v{vWA[3]}, 0x10000, v{vWA[1]}")
    A(f"v_lshrrev_b32 v{vT0}, 2, v{vL}")
    A(f"s_lshl_b32 s{s_t0}, s5, 6")
    A(f"v_add_u32 v{vT0}, s{s_t0}, v{vT0}")
    A(f"v_mul_u32_u24 v{vT0}, 1280, v{vT0}")
    A(f"v_and_b32 v{vT1}, 3, v{vL}")
    A(f"v_lshrrev_b32 v{vT2}, 4, v{vL}")
    A(f"v_xor_b32 v{vT1}, v{vT1}, v{vT2}")
    A(f"v_lshl_add_u32 v{vDX[0]}, v{vT1}, 4, v{vT0}")
    for n in range(1, 4):
        A(f"v_add_u32 v{vDX[n]}, {n*(16*1280-1024)}, v{vDX[0]}")
    A(f"s_lshl_b32 s{s_m0x}, s5, 12")
    A(f"s_add_u32 s{s_m0w}, s{s_m0x}, 16384")
    A(f"v_lshlrev_b32 v{vOUT}, 4, v{vL}")
    A("s_lshl_b32 s7, s3, 5")
    A("s_add_u32 s7, s7, s4")
    A("s_mov_b32 s6, 0")

    A.label("G_ROUND")
    A("s_cmp_eq_u32 s6, 2")
    A("s_cbranch_scc1 G_DEC_FFN")
    A("s_cmp_eq_u32 s6, 1")
    A("s_cbranch_scc1 G_DEC_R1")
    A(f"s_mul_i32 s{s_h}, s7, 43691")
    A(f"s_lshr_b32 s{s_h}, s{s_h}, 18")
    A(f"s_mul_i32 s{s_t0}, s{s_h}, 6")
    A(f"s_sub_u32 s{s_rb}, s7, s{s_t0}")
    A("s_branch G_DEC_KV")
    A.label("G_DEC_R1")
    A("s_cmp_ge_u32 s7, 64")
    A("s_cbranch_scc1 G_DEC_Q")
    A(f"s_lshr_b32 s{s_h}, s7, 1")
    A(f"s_and_b32 s{s_rb}, s7, 1")
    A(f"s_add_u32 s{s_rb}, s{s_rb}, 6")
    A.label("G_DEC_KV")
    A(f"s_load_dwordx2 s[{P0}:{P0+1}], s[0:1], {KA_WK}")
    A(f"s_load_dwordx2 s[{P1}:{P1+1}], s[0:1], {KA_WV}")
    A("s_waitcnt lgkmcnt(0)")
    A("s_cmp_ge_u32 s5, 2")
    A(f"s_cselect_b32 s{P0}, s{P1}, s{P0}")
    A(f"s_cselect_b32 s{P0+1}, s{P1+1}, s{P0+1}")
    A(f"s_cselect_b32 s{s_type}, 1, 0")
    A(f"s_cselect_b32 s{s_out}, {WS_V:#x}, {WS_K:#x}")
    A(f"s_lshl_b32 s{s_sw}, s{s_h}, 8")
    A(f"s_and_b32 s{s_t0}, s5, 1")
    A(f"s_lshl_b32 s{s_t0}, s{s_t0}, 7")
    A(f"s_add_u32 s{s_sw}, s{s_sw}, s{s_t0}")
    A(f"s_lshl_b32 s{s_t0}, s{s_h}, 13")
    A(f"s_add_u32 s{s_out}, s{s_out}, s{s_t0}")
    A(f"s_mov_b32 s{s_stride}, 8192")
    A(f"s_mov_b32 s{s_wsz}, {640*8192}")
    A("s_branch G_DEC_QKV")
    A.label("G_DEC_Q")
    A(f"s_sub_u32 s{s_t0}, s7, 64")
    A(f"s_and_b32 s{s_rb}, s{s_t0}, 7")
    A(f"s_lshr_b32 s{s_h}, s{s_t0}, 3")
    A(f"s_load_dwordx2 s[{P0}:{P0+1}], s[0:1], {KA_WQ}")
    A("s_waitcnt lgkmcnt(0)")
    A(f"s_mov_b32 s{s_type}, 2")
    A(f"s_lshl_b32 s{s_sw}, s{s_h}, 9")
    A(f"s_lshl_b32 s{s_t0}, s5, 7")
    A(f"s_add_u32 s{s_sw}, s{s_sw}, s{s_t0}")
    A(f"s_lshl_b32 s{s_t0}, s{s_h}, 1")
    A(f"s_lshr_b32 s{s_t1}, s5, 1")
    A(f"s_add_u32 s{s_t0}, s{s_t0}, s{s_t1}")
    A(f"s_lshl_b32 s{s_t0}, s{s_t0}, 13")
    A(f"s_add_u32 s{s_out}, s{s_t0}, {WS_Q:#x}")
    A(f"s_mov_b32 s{s_stride}, 8192")
    A(f"s_mov_b32 s{s_wsz}, {640*8192}")
    A.label("G_DEC_QKV")
    A(f"s_lshl_b32 s{s_t0}, s{s_rb}, 1")
    A(f"s_and_b32 s{s_t1}, s5, 1")
    A(f"s_add_u32 s{s_t0}, s{s_t0}, s{s_t1}")
    A(f"s_lshl_b32 s{s_t0}, s{s_t0}, 20")
    A(f"s_add_u32 s{s_out}, s{s_out}, s{s_t0}")
    A("s_branch G_DEC_DONE")
    A.label("G_DEC_FFN")
    A(f"s_sub_u32 s{s_t0}, 31, s4")
    A(f"s_cmp_ge_u32 s{s_t0}, 19")
    A("s_cbranch_scc1 G_END")
    A(f"s_mul_i32 s{s_t1}, s3, 19")
    A(f"s_add_u32 s{s_t0}, s{s_t0}, s{s_t1}")
    A(f"s_cmp_ge_u32 s{s_t0}, 112")
    A("s_cbranch_scc1 G_END")
    A(f"s_and_b32 s{s_rb}, s{s_t0}, 7")
    A(f"s_lshr_b32 s{s_h}, s{s_t0}, 3")
    A(f"s_load_dwordx2 s[{P0}:{P0+1}], s[0:1], {KA_WG}")
    A(f"s_load_dwordx2 s[{P1}:{P1+1}], s[0:1], {KA_WU}")
    A("s_waitcnt lgkmcnt(0)")
    A(f"s_bitcmp1_b32 s5, 0")
    A(f"s_cselect_b32 s{P0}, s{P1}, s{P0}")
    A(f"s_cselect_b32 s{P0+1}, s{P1+1}, s{P0+1}")
    A(f"s_mov_b32 s{s_type}, 3")
    A(f"s_lshl_b32 s{s_sw}, s{s_h}, 8")
    A(f"s_lshr_b32 s{s_t0}, s5, 1")
    A(f"s_lshl_b32 s{s_t1}, s{s_t0}, 7")
    A(f"s_add_u32 s{s_sw}, s{s_sw}, s{s_t1}")
    A(f"s_lshl_b32 s{s_t0}, s{s_t0}, 1")
    A(f"s_lshl_b32 s{s_t1}, s{s_h}, 2")
    A(f"s_add_u32 s{s_h}, s{s_t0}, s{s_t1}")
    A(f"s_lshl_b32 s{s_t0}, s{s_rb}, 1")
    A(f"s_and_b32 s{s_t1}, s5, 1")
    A(f"s_add_u32 s{s_t0}, s{s_t0}, s{s_t1}")
    A(f"s_mul_i32 s{s_t0}, s{s_t0}, {4*54}")
    A(f"s_add_u32 s{s_t0}, s{s_t0}, s{s_h}")
    A(f"s_lshl_b32 s{s_t0}, s{s_t0}, 11")
    A(f"s_add_u32 s{s_out}, s{s_t0}, {WS_H:#x}")
    A(f"s_mov_b32 s{s_stride}, 3456")
    A(f"s_mov_b32 s{s_wsz}, {640*3456}")
    A.label("G_DEC_DONE")
    A(f"s_mov_b32 s{SW}, s{P0}")
    A(f"s_and_b32 s{SW+1}, s{P0+1}, 0xffff")
    A(f"s_mov_b32 s{SW+2}, s{s_wsz}")
    A(f"s_mov_b32 s{SW+3}, 0x20000")
    A(f"s_mul_i32 s{s_sx}, s{s_rb}, {256*1280}")
    A(f"s_lshl_b32 s{s_wstep}, s{s_stride}, 5")
    A(f"v_lshrrev_b32 v{vT0}, 3, v{vL}")
    A(f"v_mul_lo_u32 v{vT0}, v{vT0}, s{s_stride}")
    A(f"v_bfe_u32 v{vT1}, v{vL}, 4, 1")
    A(f"v_lshlrev_b32 v{vT1}, 2, v{vT1}")
    A(f"v_and_b32 v{vT2}, 7, v{vL}")
    A(f"v_xor_b32 v{vT1}, v{vT1}, v{vT2}")
    A(f"v_lshl_add_u32 v{vDW[0]}, v{vT1}, 4, v{vT0}")
    A(f"s_lshl_b32 s{s_t0}, s{s_stride}, 3")
    A(f"s_sub_u32 s{s_t0}, s{s_t0}, 1024")
    for n in range(1, 4):
        A(f"v_add_u32 v{vDW[n]}, s{s_t0}, v{vDW[n-1]}")

    def dma_list(slot):
        L = []
        L.append([f"s_add_u32 m0, s{s_m0x}, {slot*32768}"])
        for n in range(4):
            L.append([f"buffer_load_dwordx4 v{vDX[n]}, s[{SX}:{SX+3}], s{s_sx} offen offset:{n*1024} lds"])
        L.append([f"s_add_u32 m0, s{s_m0w}, {slot*32768}", f"s_add_u32 s{s_sx}, s{s_sx}, 64"])
        for n in range(4):
            L.append([f"buffer_load_dwordx4 v{vDW[n]}, s[{SW}:{SW+3}], s{s_sw} offen offset:{n*1024} lds"])
        L.append([f"s_add_u32 s{s_sw}, s{s_sw}, s{s_wstep}"])
        return L
    def read_list(slot, ks, sg):
        hi = slot >> 1; base = (slot & 1) * 32768
        L = []
        order = [('x', 0), ('w', 0), ('x', 1), ('x', 2), ('x', 3), ('w', 1), ('w', 2), ('w', 3)]
        for t, i in order:
            if t == 'x':
                L.append([f"ds_read_b128 {v(XF(sg,i),4)}, v{vXA[2*hi+ks]} offset:{base + i*2048}"])
            else:
                for m in range(2):
                    L.append([f"ds_read_b64_tr_b16 {v(WF(sg,i)+2*m,2)}, v{vWA[2*hi+(i&1)]} offset:{base + 16384 + (i>>1)*4096 + ks*2048 + m*512}"])
        return L
    def mfmas(sg, vtype, first):
        L = []
        for i in range(4):
            for j in range(4):
                d = a_(ACC(i, j), 16)
                c = "0" if first else d
                if vtype: L.append(f"v_mfma_f32_32x32x16_bf16 {d}, {v(XF(sg,j),4)}, {v(WF(sg,i),4)}, {c}")
                else:     L.append(f"v_mfma_f32_32x32x16_bf16 {d}, {v(WF(sg,i),4)}, {v(XF(sg,j),4)}, {c}")
        return L
    def interleave(ms, fill, per=1):
        fi = 0
        for k, m in enumerate(ms):
            A(m)
            for _ in range(per):
                if fi < len(fill):
                    for t in fill[fi]: A(t)
                    fi += 1
        while fi < len(fill):
            for t in fill[fi]: A(t)
            fi += 1

    stamp(A, opt, 0, (6, 5))
    for st in range(4):
        for g in dma_list(st):
            for t in g: A(t)
    A("s_waitcnt vmcnt(24)")
    A("s_barrier")
    for g in read_list(0, 0, 0):
        for t in g: A(t)
    A(f"s_cmp_eq_u32 s{s_type}, 1")
    A("s_cbranch_scc1 G_LOOP_V")

    def body(st_slot, vtype, first, dma, vm, last):
        A("s_waitcnt lgkmcnt(0)")
        interleave(mfmas(0, vtype, first), read_list(st_slot, 1, 1))
        if last:
            A("s_waitcnt lgkmcnt(0)")
            A("s_barrier")
            interleave(mfmas(1, vtype, False), [])
            return
        A(f"s_waitcnt vmcnt({vm}) lgkmcnt(0)")
        A("s_barrier")
        rl = read_list((st_slot + 1) & 3, 0, 0)
        dl = dma_list(st_slot) if dma else []
        fill = []
        for k in range(0, len(rl), 2):
            fill.append(rl[k] + (rl[k+1] if k + 1 < len(rl) else []))
        if dl:
            fill.append(dl[0] + dl[1]); fill += dl[2:5]; fill.append(dl[5] + dl[6]); fill += dl[7:9]; fill.append(dl[9] + dl[10])
        interleave(mfmas(1, vtype, False), fill)

    for vtype in (0, 1):
        nm = "V" if vtype else "K"
        A.label(f"G_LOOP_{nm}")
        body(0, vtype, True, True, 16, False)
        A(f"s_mov_b32 s{s_it}, 0")
        A(f"s_branch G_LOOP_{nm}_1")
        A.label(f"G_LOOP_{nm}_0")
        body(0, vtype, False, True, 16, False)
        A.label(f"G_LOOP_{nm}_1")
        for sl in (1, 2, 3): body(sl, vtype, False, True, 16, False)
        A(f"s_add_u32 s{s_it}, s{s_it}, 1")
        A(f"s_cmp_lt_u32 s{s_it}, 4")
        A(f"s_cbranch_scc1 G_LOOP_{nm}_0")
        body(0, vtype, False, False, 16, False)
        body(1, vtype, False, False, 8, False)
        body(2, vtype, False, False, 0, False)
        body(3, vtype, False, False, 0, True)
        if vtype == 0: A("s_branch G_EPI")
    A.label("G_EPI")
    stamp(A, opt, 2, (6, 5))
    A(f"s_cmp_eq_u32 s{s_type}, 3")
    A("s_cbranch_scc1 G_EPI_FFN")
    A(f"s_cmp_eq_u32 s{s_type}, 2")
    A("s_cbranch_scc1 G_EPI_Q")
    def epi_qkv(scale):
        if scale: A(f"s_mov_b32 s{s_t1}, {fbits(CSCALE):#x}")
        k = 0
        for j in range(4):
            for i in range(4):
                for ab in range(2):
                    t = 64 + 12 * (k % 8); k += 1
                    for r in range(8): A(f"v_accvgpr_read_b32 v{t+r}, a{ACC(i,j)+8*ab+r}")
                    if scale:
                        for r in range(8): A(f"v_mul_f32 v{t+r}, s{s_t1}, v{t+r}")
                    for r in range(4): A(f"v_cvt_pk_bf16_f32 v{t+8+r}, v{t+2*r}, v{t+2*r+1}")
                    if i == 2 and ab == 0: A(f"s_add_u32 s{s_out}, s{s_out}, 4096")
                    A(f"buffer_store_dwordx4 {v(t+8,4)}, v{vOUT}, s[{S_WS}:{S_WS+3}], s{s_out} offen offset:{(i&1)*2048+ab*1024} sc1")
            A(f"s_add_u32 s{s_out}, s{s_out}, {32*8192-4096}")
    epi_qkv(False)
    A("s_waitcnt vmcnt(0)")
    A("s_barrier")
    A("s_cmp_eq_u32 s5, 0")
    A("s_cbranch_scc0 G_NEXT")
    A(f"s_lshl_b32 s{s_t0}, 1, s{s_h}")
    A(f"s_lshl_b32 s{s_t1}, s{s_rb}, 2")
    A(f"v_mov_b32 v{vT0}, s{s_t0}")
    A(f"v_mov_b32 v{vT1}, {OOB:#x}")
    A(f"v_cmp_eq_u32 vcc, 0, v{vL}")
    A(f"v_cndmask_b32 v{vT1}, v{vT1}, v{vL}, vcc")
    A(f"buffer_atomic_or v{vT0}, v{vT1}, s[{S_DBG}:{S_DBG+3}], s{s_t1} offen offset:{DBG_KV*4} sc1")
    A("s_branch G_NEXT")
    A.label("G_EPI_Q")
    epi_qkv(True)
    A("s_branch G_NEXT")
    A.label("G_EPI_FFN")
    A(f"s_cmp_ge_u32 s{s_h}, 54")
    A("s_cbranch_scc1 G_NEXT")
    k = 0
    for j in range(4):
        for i in range(2):
            for ab in range(2):
                t = 64 + 20 * (k % 8); k += 1
                for r in range(8): A(f"v_accvgpr_read_b32 v{t+r}, a{ACC(i,j)+8*ab+r}")
                for r in range(8): A(f"v_accvgpr_read_b32 v{t+8+r}, a{ACC(i+2,j)+8*ab+r}")
                for r in range(8): A(f"v_mul_f32 v{t+r}, v{t+r}, v{t+8+r}")
                for r in range(4): A(f"v_cvt_pk_bf16_f32 v{t+16+r}, v{t+2*r}, v{t+2*r+1}")
                A(f"buffer_store_dwordx4 {v(t+16,4)}, v{vOUT}, s[{S_WS}:{S_WS+3}], s{s_out} offen offset:{i*2048+ab*1024} sc1")
        A(f"s_add_u32 s{s_out}, s{s_out}, {54*2048}")
    A.label("G_NEXT")
    A("s_waitcnt vmcnt(0)")
    stamp(A, opt, 3, (6, 5))
    A("s_add_u32 s6, s6, 1")
    A("s_cmp_lt_u32 s6, 3")
    A("s_cbranch_scc1 G_ROUND")
    A.label("G_END")
    A("s_cmp_ge_u32 s7, 128")
    A("s_cbranch_scc1 G_GATE_END")
    A(f"s_load_dwordx2 s[{P0}:{P0+1}], s[0:1], {KA_GW}")
    A("s_waitcnt lgkmcnt(0)")
    srd(A, SW, P0, P0 + 1, 1280)
    A(f"v_lshrrev_b32 v{vT0}, 4, v0")
    A(f"s_lshl_b32 s{s_t0}, s7, 4")
    A(f"v_add_u32 v{vT0}, s{s_t0}, v{vT0}")
    A(f"v_and_b32 v{vT1}, 15, v0")
    A(f"v_lshlrev_b32 v{vT1}, 4, v{vT1}")
    A(f"v_mul_u32_u24 v{vT2}, 1280, v{vT0}")
    A(f"v_add_u32 v{vT2}, v{vT2}, v{vT1}")
    for c in range(5):
        A(f"buffer_load_dwordx4 {v(64+4*c,4)}, v{vT2}, s[{SX}:{SX+3}], 0 offen offset:{c*256}")
        A(f"buffer_load_dwordx4 {v(96+4*c,4)}, v{vT1}, s[{SW}:{SW+3}], 0 offen offset:{c*256}")
    A("v_mov_b32 v60, 0")
    A("v_mov_b32 v61, 0")
    A("s_waitcnt vmcnt(0)")
    for c in range(20):
        A(f"v_lshlrev_b32 v56, 16, v{64+c}")
        A(f"v_lshlrev_b32 v57, 16, v{96+c}")
        A(f"v_and_b32 v58, 0xffff0000, v{64+c}")
        A(f"v_and_b32 v59, 0xffff0000, v{96+c}")
        A(f"v_fmac_f32 v60, v56, v57")
        A(f"v_fmac_f32 v61, v58, v59")
    A("v_add_f32 v60, v60, v61")
    for ror in (8, 4, 2, 1):
        A(f"v_mov_b32_dpp v61, v60 row_ror:{ror} row_mask:0xf bank_mask:0xf")
        A("v_add_f32 v60, v60, v61")
    A(f"v_mul_f32 v60, {fbits(-math.log2(math.e)):#x}, v60")
    A("v_exp_f32 v60, v60")
    A("v_add_f32 v60, 1.0, v60")
    A("v_rcp_f32 v60, v60")
    A(f"v_lshlrev_b32 v{vT0}, 2, v{vT0}")
    A(f"v_mov_b32 v{vT2}, {OOB:#x}")
    A(f"v_cmp_eq_u32 vcc, 0, v{vT1}")
    A(f"v_cndmask_b32 v{vT0}, v{vT2}, v{vT0}, vcc")
    A(f"s_mov_b32 s{s_t0}, {WS_G:#x}")
    A(f"buffer_store_dword v60, v{vT0}, s[{S_WS}:{S_WS+3}], s{s_t0} offen sc1")
    A.label("G_GATE_END")

def generate(opt):
    A = Asm()
    A("s_cmp_ge_u32 s2, 256")
    A("s_cbranch_scc1 K_EXIT")
    A(f"s_load_dwordx2 s[36:37], s[0:1], {KA_WS}")
    A(f"s_load_dwordx2 s[38:39], s[0:1], {KA_DBG}")
    A("v_lshrrev_b32 v1, 6, v0")
    A("v_readfirstlane_b32 s5, v1")
    A("s_and_b32 s3, s2, 7")
    A("s_lshr_b32 s4, s2, 3")
    A("s_waitcnt lgkmcnt(0)")
    srd(A, S_WS, 36, 37, WS_SIZE)
    srd(A, S_DBG, 38, 39, 256)
    A("s_or_b32 s6, s2, s5")
    A("s_cmp_eq_u32 s6, 0")
    A("s_cbranch_scc0 K_ROTW")
    A("s_getreg_b32 s6, hwreg(HW_REG_XCC_ID, 0, 3)")
    A("s_or_b32 s6, s6, 8")
    A("v_mov_b32 v1, s6")
    A("s_mov_b64 exec, 1")
    A(f"buffer_store_dword v1, off, s[{S_DBG}:{S_DBG+3}], 0 offset:{DBG_ROT*4} sc1")
    A("s_mov_b64 exec, -1")
    A.label("K_ROTW")
    A(f"s_mov_b32 s7, {opt.spin}")
    A.label("K_ROTL")
    A(f"buffer_load_dword v1, off, s[{S_DBG}:{S_DBG+3}], 0 offset:{DBG_ROT*4} sc1")
    A("s_waitcnt vmcnt(0)")
    A("v_readfirstlane_b32 s6, v1")
    A("s_cmp_lg_u32 s6, 0")
    A("s_cbranch_scc1 K_ROTD")
    A("s_sub_u32 s7, s7, 1")
    A("s_cbranch_scc0 K_ROTL")
    A("s_endpgm")
    A.label("K_ROTD")
    A("s_add_u32 s3, s3, s6")
    A("s_and_b32 s3, s3, 7")
    A("s_cmp_lt_u32 s3, 2")
    A("s_cbranch_scc1 K_CHAIN")
    A("s_sub_u32 s3, s3, 2")
    if opt.gemm: gen_gemm(A, opt)
    if opt.followers:
        from gen_follow import gen_follow
        gen_follow(A, opt)
    A("s_waitcnt vmcnt(0)")
    A("s_endpgm")
    A.label("K_CHAIN")
    if opt.chain:
        from gen_chain import gen_chain
        gen_chain(A, opt)
    A.label("K_EXIT")
    A("s_endpgm")
    A.pad()
    hdr = open('gated_mix__memory_aug_recurrent_mem_tr__glu_gated_bilinear__prompt.s.ref').read().split('\n')
    head = [l for l in hdr if l.startswith(';') and '@launch' not in l]
    out = '\n'.join(head) + f"\n; @launch grid=(256,1,1) block=(256,1,1) lds={LDS_BYTES}\n"
    out += f""".amdgcn_target "amdgcn-amd-amdhsa--gfx950"
.text
.globl {KNAME}
.p2align 8
.type {KNAME},@function
{KNAME}:
""" + A.text() + f""".section .rodata,"a"
.p2align 6
.amdhsa_kernel {KNAME}
  .amdhsa_next_free_vgpr 512
  .amdhsa_next_free_sgpr 102
  .amdhsa_accum_offset 256
  .amdhsa_group_segment_fixed_size 0
  .amdhsa_kernarg_size 120
  .amdhsa_user_sgpr_count 2
  .amdhsa_user_sgpr_kernarg_segment_ptr 1
  .amdhsa_system_sgpr_workgroup_id_x 1
.end_amdhsa_kernel
"""
    return out

if __name__ == "__main__":
    opt = Opt()
    outp = sys.argv[1]
    for a in sys.argv[2:]:
        k, val = a.split('=')
        setattr(opt, k, val if k == 'marks' else int(val))
    open(outp, 'w').write(generate(opt))
```

```python
from asmlib import *
from gen import *

L_KX = 0
L_ML = 16384
L_MR = 16384 + 8192
L_X  = 30720
L_O  = 34816
L_RES = 40960
RES_STRIDE = 30720

class VM:
    def __init__(self, A): self.A = A; self.q = []
    def issue(self, text, tag): self.A(text); self.q.append(tag)
    def wait(self, tag, extra=""):
        last = max(i for i, t in enumerate(self.q) if t == tag)
        n = len(self.q) - 1 - last
        assert n <= 63
        self.A(f"s_waitcnt vmcnt({n})" + extra)
        self.q = self.q[last + 1:]
    def drain(self, extra=""):
        self.A("s_waitcnt vmcnt(0)" + extra); self.q = []

def gen_chain(A, opt):
    W = f"s[{S_WS}:{S_WS+3}]"
    D = f"s[{S_DBG}:{S_DBG+3}]"
    SW = 16
    s_step, s_t0, s_t1, s_t2, s_spin = 20, 21, 22, 23, 24
    s_xb = 25
    s_mlb, s_mrw, s_mrr = 26, 27, 28
    s_vxw, s_vxr = 29, 30
    s_pb = 31
    s_pw = 32
    s_isred = 33
    s_susp, s_sent, s_kv = 34, 35, 40
    P0 = 36
    s_al, s_ar, s_pcur, s_poth, s_vw, s_vr, s_vpo, s_mlo, s_mro, s_mlp, s_mrp = range(41, 52)
    s_res, s_kxm, s_csc, s_km, s_prog, s_hbit, s_mode = range(52, 59)
    s_valid = 60
    s_c0 = 62
    n = [1]
    def al(k=1, align=1):
        while n[0] % align: n[0] += 1
        r = n[0]; n[0] += k; return r
    vL = 0; vA16 = al()
    vH = al(2, 2)
    vPM = al(2, 2)
    vSEL = al(4, 2); vONE = al(4, 2); TG = al(4, 2); vSENT = TG
    vA8 = al()
    aRES = al(); aXW = al(); XW = al(2); aKX = al(); aOW = al(); aOR = al(); aMW = al(); aM4 = al()
    gRED = al(); gMO = al(); gKX = al(); gVX = al(); gPR = vL
    vM = al(); vM2 = al(); vIDX = al(); vA4 = al()
    base = al(0, 4)
    AL = [base + 4 * i for i in range(5)]; AR = [base + 20 + 4 * i for i in range(5)]
    ACC = base + 40
    LAND = base + 64
    SP = LAND + 48
    assert SP + 4 <= 152, LAND
    aV = [ACC, ACC + 4]; aQ = [ACC + 8, ACC + 12]; aK = [ACC + 16, ACC + 20]
    wl = [256 + 8 * i for i in range(32)] + [152 + 8 * i for i in range(13)]
    WQ = lambda T, t: wl[(T * 2 + t) * 2]
    WK = lambda T, t: wl[(T * 2 + t) * 2 + 1]
    WO1 = lambda t: wl[40 + t]
    T0, T1, T2, T3 = LAND, LAND + 1, LAND + 2, LAND + 3

    def bf(dst, src, off, wd): A(f"v_bfe_u32 v{dst}, v{src}, {off}, {wd}")
    def lin(dst, terms, const=None):
        first = True
        for (off, wd, sh) in terms:
            if first:
                bf(dst, vL, off, wd)
                if sh: A(f"v_lshlrev_b32 v{dst}, {sh}, v{dst}")
                first = False
            else:
                bf(T3, vL, off, wd)
                A(f"v_lshl_add_u32 v{dst}, v{T3}, {sh}, v{dst}")
        if const is not None: A(f"v_add_u32 v{dst}, {const}, v{dst}")

    stamp(A, opt, 0, vt=(T0, T1, T2))
    A(f"v_and_b32 v{vL}, 63, v0")
    A(f"v_lshlrev_b32 v{vA16}, 4, v{vL}")
    A(f"v_lshlrev_b32 v{vA8}, 3, v{vL}")
    A(f"v_lshlrev_b32 v{vA4}, 2, v{vL}")
    A(f"s_mul_i32 s{s_res}, s5, {RES_STRIDE}")
    A(f"s_add_u32 s{s_res}, s{s_res}, {L_RES}")
    A(f"s_mov_b32 s{s_xb}, {WS_X:#x}")
    vm = VM(A)
    HB = 81920
    dQ = [AL[0], AL[0] + 1]; dO = AL[0] + 2
    aQK = [AL[1], AL[1] + 1]; aWV = [AL[1] + 2, AL[1] + 3]; aT = [AL[2], AL[2] + 1]; aWO = [AL[3] + i for i in range(5)]
    lin(dQ[0], [(5, 1, 16), (4, 1, 13)])
    A(f"v_bfe_u32 v{T0}, v{vL}, 4, 2")
    A(f"v_lshlrev_b32 v{T0}, 1, v{T0}")
    A(f"v_and_b32 v{T1}, 15, v{vL}")
    A(f"v_xor_b32 v{T0}, v{T0}, v{T1}")
    A(f"v_lshl_add_u32 v{dQ[0]}, v{T0}, 4, v{dQ[0]}")
    A(f"v_xor_b32 v{dQ[1]}, 128, v{dQ[0]}")
    lin(T2, [(4, 1, 5), (5, 1, 4), (3, 1, 0)])
    A(f"v_mul_u32_u24 v{dO}, 1280, v{T2}")
    A(f"v_and_b32 v{T1}, 7, v{vL}")
    A(f"v_bfe_u32 v{T0}, v{vL}, 4, 2")
    A(f"v_lshlrev_b32 v{T0}, 1, v{T0}")
    A(f"v_xor_b32 v{T0}, v{T0}, v{T1}")
    A(f"v_lshl_add_u32 v{dO}, v{T0}, 4, v{dO}")
    SQ, SK, SV, SO = 64, 68, 72, 76
    A(f"s_load_dwordx4 s[80:83], s[0:1], {KA_WQ}")
    A(f"s_load_dwordx4 s[84:87], s[0:1], {KA_WV}")
    s_loc, s_rem, s_oa, s_lw = 89, 90, 91, 88
    A(f"s_lshr_b32 s{s_t0}, s5, 1")
    A(f"s_and_b32 s{s_t1}, s5, 1")
    A(f"s_lshl_b32 s{s_t2}, s{s_t0}, 4")
    A(f"s_add_u32 s{s_t2}, s{s_t2}, s{s_t1}")
    A(f"s_lshl_b32 s{s_t2}, s{s_t2}, 14")
    A(f"s_lshl_b32 s{s_rem}, s4, 8")
    A(f"s_add_u32 s{s_t2}, s{s_t2}, s{s_rem}")
    A(f"s_mul_i32 s{s_loc}, s3, {320*8192}")
    A(f"s_sub_u32 s{s_rem}, {320*8192}, s{s_loc}")
    A(f"s_add_u32 s{s_loc}, s{s_loc}, s{s_t2}")
    A(f"s_add_u32 s{s_rem}, s{s_rem}, s{s_t2}")
    A(f"s_lshl_b32 s{s_t0}, s{s_t0}, 2")
    A(f"s_add_u32 s{s_t0}, s{s_t0}, s{s_t1}")
    A(f"s_mul_i32 s{s_t0}, s{s_t0}, {2*1280}")
    A(f"s_mul_i32 s{s_oa}, s4, {128*1280}")
    A(f"s_add_u32 s{s_oa}, s{s_oa}, s{s_t0}")
    A(f"s_mul_i32 s{s_t0}, s3, 640")
    A(f"s_add_u32 s{s_oa}, s{s_oa}, s{s_t0}")
    A(f"s_lshl_b32 s{s_lw}, s5, 12")
    A("s_waitcnt lgkmcnt(0)")
    srd(A, SQ, 80, 81, 640 * 8192); srd(A, SK, 82, 83, 640 * 8192); srd(A, SV, 84, 85, 640 * 8192); srd(A, SO, 86, 87, 4096 * 1280)
    def dma_batch(kind, half, tag):
        if kind == 'o':
            A(f"s_lshr_b32 s{s_t1}, s{s_lw}, 1")
            for kap in range(2):
                for j in range(5):
                    for gh in range(2):
                        A(f"s_add_u32 m0, s{s_t1}, {half*HB + kap*40960 + j*8192 + gh*1024}")
                        A(f"s_add_u32 s{s_t0}, s{s_oa}, {(64*kap + 4*gh)*1280 + j*128}")
                        vm.issue(f"buffer_load_dwordx4 v{dO}, s[{SO}:{SO+3}], s{s_t0} offen lds", tag)
            return
        srdn, sb = kind
        for t in range(5):
            for i in range(4):
                A(f"s_add_u32 m0, s{s_lw}, {half*HB + t*16384 + i*1024}")
                A(f"s_add_u32 s{s_t0}, s{sb}, {(64*t + 16*(i>>1) + 4*(i&1))*8192}")
                vm.issue(f"buffer_load_dwordx4 v{dQ[i&1]}, s[{srdn}:{srdn+3}], s{s_t0} offen lds", tag)
    batches = [(SQ, s_loc), (SK, s_loc), (SQ, s_rem), (SK, s_rem), 'o', (SV, s_loc)]
    halves = [1, 0, 1, 0, 1, 0]
    dma_batch(batches[0], halves[0], 'b0')
    dma_batch(batches[1], halves[1], 'b1')
    A(f"s_lshl_b32 s{s_t0}, s5, 6")
    lin(aWV[0], [(2, 4, 8), (2, 3, 5), (0, 2, 3)])
    A(f"v_xor_b32 v{aWV[0]}, s{s_t0}, v{aWV[0]}")
    A(f"v_xor_b32 v{aWV[1]}, 32, v{aWV[0]}")
    lin(aQK[0], [(2, 4, 8), (2, 3, 5), (0, 1, 4), (1, 1, 3)])
    A(f"v_xor_b32 v{aQK[0]}, s{s_t0}, v{aQK[0]}")
    A(f"v_xor_b32 v{aQK[1]}, 32, v{aQK[0]}")
    lin(T2, [(2, 4, 7), (3, 2, 5), (0, 2, 3)])
    for t in range(5):
        A(f"s_mul_i32 s{s_t0}, s5, 5")
        A(f"s_add_u32 s{s_t0}, s{s_t0}, {t}")
        A(f"s_and_b32 s{s_t1}, s{s_t0}, 3")
        A(f"s_lshl_b32 s{s_t1}, s{s_t1}, 5")
        A(f"v_xor_b32 v{aWO[t]}, s{s_t1}, v{T2}")
        A(f"s_lshr_b32 s{s_t0}, s{s_t0}, 2")
        A(f"s_lshl_b32 s{s_t0}, s{s_t0}, 13")
        A(f"s_add_u32 s{s_t0}, s{s_t0}, {halves[4]*HB}")
        A(f"v_add_u32 v{aWO[t]}, s{s_t0}, v{aWO[t]}")

    A(f"s_mov_b32 s{s_sent}, {SENT:#x}")
    A(f"s_mov_b32 s{s_csc}, {fbits(CSCALE):#x}")
    A(f"s_mov_b32 s{s_valid}, 0x33333333")
    A(f"s_mov_b32 s{s_valid+1}, 0x33333333")
    for i in range(4):
        A(f"v_mov_b32 v{vONE+i}, 0x3f803f80")
        A(f"v_mov_b32 v{vSENT+i}, s{s_sent}")
    A(f"v_mov_b32 v{vH}, 0x3f803f80")
    A(f"v_mov_b32 v{vH+1}, 0")
    A(f"v_mov_b32 v{vIDX}, 0x4444")
    A(f"v_mov_b32 v{T0}, 0xeeee")
    A(f"v_and_b32 v{T1}, 2, v{vL}")
    A(f"v_cmp_ne_u32 vcc, 0, v{T1}")
    A(f"v_cndmask_b32 v{vIDX}, v{vIDX}, v{T0}, vcc")
    A(f"v_and_b32 v{T1}, 15, v{vL}")
    for t in range(4):
        A(f"v_mov_b32 v{vSEL+t}, 0")
        A(f"v_mov_b32 v{T0}, 0x3f80")
        A(f"v_cmp_eq_u32 vcc, {t}, v{T1}")
        A(f"v_cndmask_b32 v{vSEL+t}, v{vSEL+t}, v{T0}, vcc")
        A(f"v_mov_b32 v{T0}, 0x3f800000")
        A(f"v_cmp_eq_u32 vcc, {4+t}, v{T1}")
        A(f"v_cndmask_b32 v{vSEL+t}, v{vSEL+t}, v{T0}, vcc")
    A(f"s_lshl_b32 s{s_t0}, s5, 10")
    A(f"s_add_u32 s{s_t0}, s{s_t0}, {L_X}")
    lin(aXW, [(2, 1, 9), (3, 1, 7), (0, 2, 5)], f"s{s_t0}")
    A(f"v_bfe_u32 v{T0}, v{vL}, 2, 2")
    A(f"v_bfe_u32 v{T1}, v{vL}, 4, 2")
    A(f"v_xor_b32 v{T0}, v{T0}, v{T1}")
    A(f"v_lshl_add_u32 v{aXW}, v{T0}, 3, v{aXW}")
    A(f"v_add_u32 v{aRES}, s{s_res}, v{vA16}")
    A(f"v_xor_b32 v{aKX}, 8192, v{vA16}")
    A(f"s_lshr_b32 s{s_t0}, s5, 1")
    A(f"s_lshl_b32 s{s_t0}, s{s_t0}, 10")
    A(f"s_and_b32 s{s_t1}, s5, 1")
    A(f"s_lshl_b32 s{s_t1}, s{s_t1}, 7")
    A(f"s_add_u32 s{s_t0}, s{s_t0}, s{s_t1}")
    A(f"s_add_u32 s{s_t0}, s{s_t0}, {L_O}")
    lin(aOW, [(4, 2, 8), (2, 2, 5), (0, 1, 4), (1, 1, 11), (1, 1, 3)], f"s{s_t0}")
    lin(aOR, [(4, 2, 8), (2, 2, 5), (0, 1, 4), (1, 1, 7)], L_O)
    A(f"s_lshl_b32 s{s_t0}, s5, 11")
    lin(gKX, [(4, 2, 9), (3, 1, 8), (0, 3, 4)], f"s{s_t0}")
    lin(gVX, [(4, 2, 9), (0, 4, 4)], f"s{s_t0}")
    A(f"s_lshl_b32 s{s_t0}, s5, 10")
    A(f"v_add_u32 v{aMW}, s{s_t0}, v{vA16}")
    A(f"s_lshl_b32 s{s_t0}, s5, 8")
    A(f"s_add_u32 s{s_t0}, s{s_t0}, 4096")
    A(f"v_add_u32 v{aM4}, s{s_t0}, v{vA4}")
    s_src, s_dst, s_col, s_cst, s_csc2, s_row = 92, 93, 94, 95, 96, 97
    A(f"s_lshl_b32 s{s_t0}, s4, 1")
    A(f"s_add_u32 s{s_t0}, s{s_t0}, s5")
    A(f"s_add_u32 s{s_t1}, s4, 64")
    A("s_cmp_ge_u32 s5, 2")
    A(f"s_cselect_b32 s{s_t0}, s{s_t1}, s{s_t0}")
    A(f"s_cmp_lt_u32 s{s_t0}, 80")
    A(f"s_cselect_b32 s{s_isred}, 1, 0")
    A(f"s_cselect_b32 s{s_t0}, s{s_t0}, 0")
    A("s_cmp_eq_u32 s5, 3")
    A(f"s_cselect_b32 s{s_isred}, 0, s{s_isred}")
    A(f"s_lshl_b32 s{s_src}, s{s_t0}, 6")
    A(f"s_mov_b32 s{s_dst}, s{s_src}")
    A(f"s_and_b32 s{s_row}, s{s_t0}, 3")
    A(f"s_lshr_b32 s{s_col}, s{s_t0}, 2")
    A(f"s_lshl_b32 s{s_col}, s{s_col}, 4")
    A(f"s_mov_b32 s{s_cst}, 1")
    A(f"s_mov_b32 s{s_csc2}, 4")
    lin(gRED, [(4, 2, 11), (0, 4, 2)])
    A(f"s_lshl_b32 s48, s{s_src}, 5")
    lin(gMO, [(5, 1, 5), (2, 1, 4), (4, 1, 3), (1, 1, 2)], f"s{s_dst}")
    A(f"v_mov_b32 v{T0}, {OOB:#x}")
    A(f"v_and_b32 v{T1}, 9, v{vL}")
    A(f"v_cmp_eq_u32 vcc, 0, v{T1}")
    A(f"v_cndmask_b32 v{gMO}, v{T0}, v{gMO}, vcc")
    A(f"s_cmp_eq_u32 s{s_isred}, 0")
    A("s_cbranch_scc0 C_RED_K")
    A(f"v_mov_b32 v{gMO}, {OOB:#x}")
    A.label("C_RED_K")
    A(f"v_and_b32 v{T0}, 3, v{vL}")
    A(f"v_mul_lo_u32 v{T0}, v{T0}, s{s_cst}")
    A(f"v_lshrrev_b32 v{T1}, 4, v{vL}")
    A(f"v_mul_lo_u32 v{T1}, v{T1}, s{s_csc2}")
    A(f"v_add3_u32 v{T0}, v{T0}, v{T1}, s{s_col}")
    A(f"v_bfe_u32 v{T1}, v{vL}, 2, 1")
    A(f"s_lshl_b32 s{s_t0}, s{s_row}, 1")
    A(f"v_add_u32 v{T1}, s{s_t0}, v{T1}")
    A(f"v_mul_u32_u24 v{T1}, 640, v{T1}")
    A(f"s_mul_i32 s{s_t0}, s3, 320")
    A(f"v_add3_u32 v{T0}, v{T0}, v{T1}, s{s_t0}")
    A(f"v_lshlrev_b32 v{vM2}, 1, v{T0}")
    A(f"s_load_dwordx2 s[{P0}:{P0+1}], s[0:1], {KA_MEM0}")
    A("s_waitcnt lgkmcnt(0)")
    srd(A, SW, P0, P0 + 1, 8 * 1280)
    vm.issue(f"buffer_load_ushort v{vM2}, v{vM2}, s[{SW}:{SW+3}], 0 offen", 'mem0')
    A(f"s_lshl_b32 s{s_t0}, s3, 15")
    A(f"s_add_u32 s{s_mlb}, s{s_t0}, {WS_ML:#x}")
    A(f"s_lshl_b32 s{s_t0}, s3, 16")
    A(f"s_add_u32 s{s_mrw}, s{s_t0}, {96*16384}")
    A(f"s_xor_b32 s{s_mrr}, s{s_mrw}, 0x10000")
    A(f"s_lshl_b32 s{s_vxw}, s4, 14")
    A(f"s_lshl_b32 s{s_t0}, s3, 12")
    A(f"s_add_u32 s{s_vxw}, s{s_vxw}, s{s_t0}")
    A(f"s_lshl_b32 s{s_t0}, s5, 9")
    A(f"s_add_u32 s{s_vxw}, s{s_vxw}, s{s_t0}")
    A(f"s_xor_b32 s{s_vxr}, s{s_vxw}, 0x1000")
    for r in (s_mrw, s_mrr, s_vxw, s_vxr): A(f"s_add_u32 s{r}, s{r}, s{s_xb}")
    A(f"s_mul_i32 s{s_pb}, s3, {2*32*5120}")
    A(f"s_add_u32 s{s_pb}, s{s_pb}, {WS_P:#x}")
    A(f"s_mul_i32 s{s_pw}, s4, 5120")
    A(f"s_mul_i32 s{s_t0}, s5, 1280")
    A(f"s_add_u32 s{s_pw}, s{s_pw}, s{s_t0}")
    A(f"s_lshl_b32 s{s_kv}, s4, 14")
    A(f"s_lshl_b32 s34, s3, 2")
    A(f"s_add_u32 s34, s34, s5")
    A(f"s_lshl_b32 s34, s34, 9")
    A(f"s_add_u32 s34, s34, {WS_MM:#x}")
    A(f"s_mov_b32 s62, 0x00010001")
    A(f"s_mov_b32 s63, 0x00010001")
    A(f"s_xor_b32 s{s_t0}, s5, 3")
    A(f"v_or_b32 v{T1}, s{s_t0}, v{vL}")
    A(f"v_mov_b32 v{T0}, {OOB:#x}")
    A(f"v_cmp_eq_u32 vcc, 0, v{T1}")
    A(f"v_cndmask_b32 v{gPR}, v{T0}, v{vL}, vcc")
    A(f"s_lshl_b32 s{s_prog}, s4, 1")
    A(f"s_add_u32 s{s_prog}, s{s_prog}, s3")
    A(f"s_lshl_b32 s{s_prog}, s{s_prog}, 7")
    A(f"s_add_u32 s{s_prog}, s{s_prog}, {WS_PROG:#x}")
    A(f"s_lshl_b32 s{s_hbit}, s4, 7")
    A(f"s_add_u32 s{s_hbit}, s{s_hbit}, {WS_KVF:#x}")
    for sl in range(2):
        A(f"s_add_u32 s{s_t0}, s{s_pb}, s{s_pw}")
        if sl: A(f"s_add_u32 s{s_t0}, s{s_t0}, {32*5120}")
        vm.issue(f"buffer_store_dwordx4 {v(vSENT,4)}, v{vA16}, {W}, s{s_t0} offen sc1", 'poi')
        vm.issue(f"buffer_store_dword v{vSENT}, v{vA4}, {W}, s{s_t0} offen offset:1024 sc1", 'poi')
    for sl in range(2):
        for pol in range(2):
            A(f"s_add_u32 s{s_t0}, s{s_vxw}, {sl*32*16384 + pol*8192}")
            vm.issue(f"buffer_store_dwordx2 {v(vSENT,2)}, v{vA8}, {W}, s{s_t0} offen sc1", 'poi')
    for sl in range(2):
        A(f"s_add_u32 s{s_t0}, s{s_mlb}, {sl*8192}")
        vm.issue(f"buffer_store_dword v{vSENT}, v{gMO}, {W}, s{s_t0} offen sc1", 'poi')
        for pol in range(2):
            A(f"s_add_u32 s{s_t0}, s{s_mrw}, {sl*16384 + pol*8192}")
            vm.issue(f"buffer_store_dword v{vSENT}, v{gMO}, {W}, s{s_t0} offen sc1", 'poi')
    A(f"v_mov_b32 v{T0}, 0")
    vm.issue(f"buffer_store_dword v{T0}, v{gPR}, {W}, s{s_prog} offen sc1", 'poi')
    A(f"s_add_u32 s{s_t0}, s{s_prog}, 8192")
    vm.issue(f"buffer_store_dword v{T0}, v{gPR}, {W}, s{s_t0} offen sc1", 'poi')
    A(f"s_or_b32 s{s_t0}, s3, s5")
    A(f"s_cmp_eq_u32 s{s_t0}, 0")
    A(f"s_cselect_b32 s{s_t0}, 64, 0")
    A(f"v_mov_b32 v{T1}, {OOB:#x}")
    A(f"v_cmp_gt_u32 vcc, s{s_t0}, v{vA4}")
    A(f"v_cndmask_b32 v{T1}, v{T1}, v{vA4}, vcc")
    if opt.kvall: A(f"v_mov_b32 v{T0}, 1")
    vm.issue(f"buffer_store_dword v{T0}, v{T1}, {W}, s{s_hbit} offen sc1", 'poi')
    A(f"s_getreg_b32 s{s_t0}, hwreg(HW_REG_XCC_ID, 0, 4)")
    A(f"s_lshl_b32 s{s_t0}, 1, s{s_t0}")
    A(f"v_mov_b32 v{T1}, s{s_t0}")
    A(f"s_lshl_b32 s{s_t1}, s3, 2")
    vm.issue(f"buffer_atomic_or v{T1}, v{gPR}, {D}, s{s_t1} offen offset:{DBG_XCC0*4} sc1", 'poi')

    def panel_reads(ad, half, t, rot, dst):
        if rot:
            A(f"s_xor_b32 s{s_t0}, s5, {t}")
            A(f"s_lshl_b32 s{s_t0}, s{s_t0}, 14")
            A(f"s_add_u32 s{s_t0}, s{s_t0}, {half*HB}")
        else:
            A(f"s_mov_b32 s{s_t0}, {half*HB + t*16384}")
        for tau in range(2): A(f"v_add_u32 v{aT[tau]}, s{s_t0}, v{ad[tau]}")
        for tau in range(2):
            for m in range(4):
                A(f"ds_read_b64_tr_b16 {u(dst(tau)+2*m,2)}, v{aT[tau]} offset:{m*4096}")
    WO0T = AR[0]
    for bi in range(5):
        vm.wait(f'b{bi}')
        A("s_barrier")
        if bi == 2:
            A(f"v_mov_b32 v{T0}, 1")
            vm.issue(f"buffer_atomic_add v{T0}, v{gPR}, {D}, 0 offen offset:{DBG_CHAIN_CNT*4} sc1", 'arr')
        if bi < 4:
            Wd = WQ if bi % 2 == 0 else WK
            for t in range(5):
                T = t + 5 * (bi // 2)
                panel_reads(aQK, halves[bi], t, bi < 2 and t < 4, lambda tau: Wd(T, tau))
        else:
            for kap in range(2):
                for t in range(5):
                    for m in range(4):
                        d = (WO1(t) if kap else WO0T + 8 * t) + 2 * m
                        A(f"ds_read_b64_tr_b16 {u(d,2)}, v{aWO[t]} offset:{kap*40960 + m*2048}")
        A("s_waitcnt lgkmcnt(0)")
        if bi + 2 < 6:
            A("s_barrier")
            dma_batch(batches[bi + 2], halves[bi + 2], f'b{bi+2}')
    vm.drain()
    A("s_barrier")
    for t in (2, 3, 4): panel_reads(aWV, 0, t, False, lambda tau: LAND + 16 * (t - 2) + 8 * tau)
    A("s_waitcnt lgkmcnt(0)")
    A("s_barrier")
    def wv_put(t, src):
        if t < 4:
            A(f"s_xor_b32 s{s_t0}, s5, {t}")
            A(f"s_lshl_b32 s{s_t0}, s{s_t0}, 12")
        else: A(f"s_mov_b32 s{s_t0}, 16384")
        A(f"v_add_u32 v{aT[0]}, s{s_t0}, v{aRES}")
        for q in range(4): A(f"ds_write_b128 v{aT[0]}, {v(src+4*q,4)} offset:{q*1024}")
    for q in range(10): A(f"ds_write_b128 v{aRES}, {v(WO0T+4*q,4)} offset:{20480 + q*1024}")
    A("s_waitcnt lgkmcnt(0)")
    for t in (0, 1): panel_reads(aWV, 0, t, False, lambda tau: WO0T + 16 * t + 8 * tau)
    for t in (2, 3, 4): wv_put(t, LAND + 16 * (t - 2))
    A("s_waitcnt lgkmcnt(0)")
    for t in (0, 1): wv_put(t, WO0T + 16 * t)
    A("s_waitcnt lgkmcnt(0)")
    stamp(A, opt, 1, vt=(T0, T1, T2))
    A("s_cmp_eq_u32 s5, 0")
    A("s_cbranch_scc1 C_W0")
    A("s_barrier")
    A.label("C_W0")

    def spin_fail(lbl):
        A(f"s_sub_u32 s{s_spin}, s{s_spin}, 1")
        A(f"s_cbranch_scc0 {lbl}")
        A("s_branch C_FAIL")
    s_rdy = 47
    def kv_ready():
        A(f"v_and_b32 v{vM2}, 63, v{vA4}")
        A(f"buffer_load_dword v{vM2}, v{vM2}, {W}, s{s_hbit} offen sc1")
        A("s_waitcnt vmcnt(0)")
        A(f"v_cmp_eq_u32 vcc, 0, v{vM2}")
        A(f"s_or_b32 s{s_rdy}, vcc_lo, {1 << NKVB:#x}")
        A(f"s_ff1_i32_b32 s{s_rdy}, s{s_rdy}")
        A(f"s_mul_i32 s{s_rdy}, s{s_rdy}, {KVSEG}")
        A(f"s_cmp_ge_u32 s{s_rdy}, 64")
        A(f"s_cselect_b32 s{s_rdy}, 255, s{s_rdy}")
    A(f"v_lshlrev_b32 v{vM}, 16, v{vM2}")
    A(f"s_mov_b32 s{s_spin}, {opt.spin}")
    A.label("C_TEAM")
    A(f"buffer_load_dwordx4 {v(T0,4)}, off, {D}, 0 sc1")
    A("s_waitcnt vmcnt(0)")
    kv_ready()
    A(f"v_readfirstlane_b32 s{s_t0}, v{T0}")
    A(f"s_cmp_lg_u32 s{s_rdy}, 0")
    A(f"s_cselect_b32 s{s_t0}, s{s_t0}, 0")
    if opt.pol < 0:
        A(f"v_readfirstlane_b32 s{s_t1}, v{T0+3}")
        A(f"s_cmp_lg_u32 s{s_t1}, 0")
        A(f"s_cselect_b32 s{s_t0}, s{s_t0}, 0")
    A(f"s_cmp_ge_u32 s{s_t0}, 64")
    A("s_cbranch_scc1 C_TEAM_OK")
    A("s_sleep 4")
    spin_fail("C_TEAM")
    A.label("C_TEAM_OK")
    A("s_cmp_eq_u32 s5, 0")
    A("s_cbranch_scc0 C_W1")
    A("s_barrier")
    A.label("C_W1")
    A(f"v_readfirstlane_b32 s{s_t0}, v{T0+1}")
    A(f"v_readfirstlane_b32 s{s_t1}, v{T0+2}")
    A(f"v_readfirstlane_b32 s{s_t2}, v{T0+3}")
    A("s_cmp_eq_u32 s3, 0")
    A(f"s_cselect_b32 s{s_t0}, s{s_t0}, s{s_t1}")
    A(f"s_bcnt1_i32_b32 s{s_mode}, s{s_t0}")
    if opt.pol >= 0: A(f"s_mov_b32 s{s_t2}, {opt.pol}")
    A(f"s_and_b32 s{s_t2}, s{s_t2}, 1")
    A(f"s_lshl_b32 s{s_t2}, s{s_t2}, 13")
    for r in (s_mrw, s_mrr, s_vxw, s_vxr, s_prog, s_kv): A(f"s_add_u32 s{r}, s{r}, s{s_t2}")
    A(f"s_add_u32 s59, s{s_kv}, s34")
    A(f"s_lshl_b32 s{s_kxm}, s5, 11")
    def kv_dma(s_src_, tmp):
        L = []
        for m in range(2):
            L.append([f"s_add_u32 m0, s{s_kxm}, {L_KX + m*1024 - m*128}",
                      f"buffer_load_dwordx4 v{gKX}, {W}, s{s_src_} offen offset:{m*128} sc1 lds"])
        return L
    for g in kv_dma(s_kv, s_t0):
        for t in g: A(t)
    A("s_waitcnt vmcnt(0)")
    A("s_barrier")
    stamp(A, opt, 2, vt=(T0, T1, T2))
    s_tag, s_tagn, s_dm4, s_dm1, s_lo, s_rng = 41, 42, 43, 44, 45, 46
    s_pcur, s_pc2, s_pst, s_vw, s_vr, s_mlo, s_mro, s_ar = range(64, 72)
    XO_ = {r: (r + 8 if r < 70 else r - 22) for r in range(64, 72)}
    s_cp = 50
    ST0 = 78
    s_w3 = 39
    A("s_cmp_eq_u32 s5, 3")
    A(f"s_cselect_b32 s{s_w3}, 0, {OOB:#x}")
    A(f"v_and_b32 v{T0}, 0x80, v{vA8}")
    A(f"v_lshrrev_b32 v{T0}, 3, v{T0}")
    A(f"v_xor_b32 v{vA8}, v{vA8}, v{T0}")
    A(f"s_mov_b32 s{s_step}, -1")
    A(f"s_mov_b32 s{s_tagn}, 0")
    A(f"s_mov_b32 s35, 1")
    A(f"s_mov_b32 s{s_cp}, s{s_csc}")
    A(f"s_mov_b32 s{s_cp+1}, s{s_csc}")
    A(f"s_add_u32 s{s_pcur}, s{s_pb}, s48")
    A(f"s_mul_i32 s{s_pst}, s5, {20*2048}")
    A(f"s_lshl_b32 s{s_t0}, s4, 6")
    A(f"s_add_u32 s{s_pst}, s{s_pst}, s{s_t0}")
    A(f"s_add_u32 s{s_pst}, s{s_pst}, s{s_pb}")
    A(f"s_mov_b32 s{s_vw}, s{s_vxw}")
    A(f"s_mov_b32 s{s_vr}, s{s_vxr}")
    A(f"s_mov_b32 s{s_mlo}, s{s_mlb}")
    A(f"s_mov_b32 s{s_mro}, s{s_mrw}")
    A(f"s_mov_b32 s{s_ar}, s{s_mrr}")
    for r, d in ((s_pcur, 32*5120), (s_pst, 32*5120), (s_vw, 32*16384), (s_vr, 32*16384), (s_mlo, 8192), (s_mro, 16384), (s_ar, 16384)):
        A(f"s_add_u32 s{XO_[r]}, s{r}, {d}")
        A(f"s_xor_b32 s{XO_[r]}, s{XO_[r]}, s{r}")
    for r in (s_pcur, s_pst, s_vw, s_vr, s_ar):
        A(f"s_xor_b32 s{r}, s{r}, s{XO_[r]}")
    A(f"s_lshl_b32 s{s_dm4}, s5, 10")
    A(f"s_lshl_b32 s{s_dm1}, s5, 8")
    A(f"s_add_u32 s{s_dm1}, s{s_dm1}, 4096")
    A(f"s_mov_b32 s{s_lo}, {(127-64) << 23:#x}")
    A(f"s_mov_b32 s{s_rng}, {128 << 23:#x}")
    if opt.stamps:
        for i in range(10): A(f"s_mov_b32 s{ST0+i}, 0")
        A(f"s_memtime s[90:91]")
        A("s_waitcnt lgkmcnt(0)")
        A(f"s_mov_b32 s{ST0+10}, s90")
    if opt.force_slow: A(f"s_mov_b32 s{s_mode}, 2")
    A("s_cmp_eq_u32 s3, 0")
    A("s_cbranch_scc1 C_GO0")
    A(f"s_cmp_eq_u32 s{s_mode}, 1")
    A("s_cbranch_scc1 CF1_ENTRY")
    A("s_branch CS1_ENTRY")
    A.label("C_GO0")
    A(f"s_cmp_eq_u32 s{s_mode}, 1")
    A("s_cbranch_scc0 CS0_ENTRY")

    def smf(acc, a, b): return f"v_smfmac_f32_16x16x64_bf16 {v(acc,4)}, {v(a,4)}, {u(b,8)}, v{vIDX}"
    tr_names = []
    def stampc(i):
        if opt.trace:
            mark(f"c{i}")
            if i == 5: trace_dump()
            return
        if not (opt.stamps and (opt.smask >> i) & 1): return
        A(f"s_memtime s[90:91]")
        A("s_waitcnt lgkmcnt(0)")
        A(f"s_sub_u32 s91, s90, s{ST0+10}")
        A(f"s_add_u32 s{ST0+i}, s{ST0+i}, s91")
        A(f"s_mov_b32 s{ST0+10}, s90")
    sel = opt.marks.split(',')
    def mark(name):
        if opt.trace and name in sel:
            k = sel.index(name)
            A(f"{'s_memrealtime' if opt.trace == 2 else 's_memtime'} s[{78+2*k}:{79+2*k}]")
    def trace_dump():
        L = A.newlabel("TD")
        A(f"s_cmp_eq_u32 s{s_step}, {opt.tstep}")
        A(f"s_cbranch_scc0 {L}")
        A("s_waitcnt lgkmcnt(0)")
        for k in range(10): A(f"v_mov_b32 v{LAND+k}, s{78+2*k}")
        A(f"s_lshl_b32 s{s_t0}, s2, 2")
        A(f"s_add_u32 s{s_t0}, s{s_t0}, s5")
        A(f"s_lshl_b32 s{s_t0}, s{s_t0}, 6")
        A(f"s_add_u32 s{s_t0}, s{s_t0}, {WS_TS + 2*MB:#x}")
        A("s_mov_b64 exec, 1")
        for k in range(3): A(f"buffer_store_dwordx4 {v(LAND+4*k,4)}, off, {W}, s{s_t0} offset:{16*k}")
        A("s_mov_b64 exec, -1")
        A.label(L)
    def weave(mf, fill, nm=None):
        for t in fill.get(-1, []): A(t)
        for i, m in enumerate(mf):
            A(m)
            if nm: mark(f"{nm}{i}")
            for t in fill.get(i, []): A(t)
    def tagchk(regs, tag):
        r = list(regs); L = []; t = []
        while len(r) >= 2:
            d = TG + len(t); t.append(d)
            L.append(f"v_bitop3_b32 v{d}, v{r[0]}, v{r[1]}, s{tag} bitop3:0x7e"); r = r[2:]
        if r: L.append(f"v_bitop3_b32 v{t[0]}, v{t[0]}, v{r[0]}, s{tag} bitop3:0xf6")
        if len(t) == 4:
            L.append(f"v_or3_b32 v{t[0]}, v{t[0]}, v{t[2]}, v{t[3]}")
        L.append(f"v_bitop3_b32 v{t[0]}, v{t[0]}, v{t[1]}, {0 if opt.solo else 1} bitop3:0xa8")
        L.append(f"v_cmp_ne_u32 vcc, 0, v{t[0]}")
        return L

    def loop(P, sc, gam):
        ld = lambda reg, va, so, off=0: f"buffer_load_dwordx4 {v(reg,4)}, v{va}, {W}, s{so} offen offset:{off} sc1"
        ld1 = lambda reg, va, so: f"buffer_load_dword v{reg}, v{va}, {W}, s{so} offen sc1"
        tog = lambda r: f"s_xor_b32 s{r}, s{r}, s{XO_[r]}"
        tagv = lambda L, t: [x + (f" ; @vm:{t}" if x.startswith('buffer') else "") for x in L]
        WVL = [LAND, LAND + 16, LAND + 32, AR[1], LAND]
        def wv_reads(t): return [f"ds_read_b128 {v(WVL[t]+4*q,4)}, v{aRES} offset:{t*4096 + q*1024}" for q in range(4)]
        s_al, s_vo, s_vxa, s_itag, s_vm = 36, 37, 38, 35, 59
        RQ, RQ4 = AR[0], SP
        r_ld = [ld(RQ, aMW, s_ar), ld1(RQ4, aM4, s_ar),
                f"s_add_u32 m0, s{s_dm4}, {L_MR}", f"buffer_load_dwordx4 v{aMW}, {W}, s{s_ar} offen sc1 lds",
                f"s_add_u32 m0, s{s_dm1}, {L_MR}", f"buffer_load_dword v{aM4}, {W}, s{s_ar} offen sc1 lds"]
        r_regs = [RQ + i for i in range(4)] + [RQ4]
        r_reads = [f"ds_read_b128 {v(AR[j],4)}, v{vA16} offset:{L_MR + j*1024}" for j in range(5)]
        late = []
        warm = f"v_max_i32 v{vM2}, v{vA16}, v{vA8}"
        def filler(lst, n):
            for i in range(n): A(lst.pop(0) if lst else warm)
        def cnt(k, inc):
            if opt.stamps and not opt.trace: A(f"s_add_u32 s{ST0+k}, s{ST0+k}, {inc}")
        sv = lambda t: [smf(aV[0], AL[t], WVL[t]), smf(aV[1], AL[t], WVL[t] + 8)]
        sq = lambda R, t, T: [smf(aQ[0], R[t], WQ(T, 0)), smf(aQ[1], R[t], WQ(T, 1))]
        sk = lambda R, t, T: [smf(aK[0], R[t], WK(T, 0)), smf(aK[1], R[t], WK(T, 1))]
        mr_st = f"buffer_store_dword v{vM}, v{gMO}, {W}, s{s_mro} offen sc1"

        wvall = [x for t in range(4) for x in wv_reads(t)]
        T4 = vM
        l_regs = [AL[0] + i for i in range(4)] + [T4]
        lc = tagchk(l_regs, s_tag)
        s_tnn = 16
        pvv = [f"v_mov_b32 v{AL[0]+i}, s{s_itag}" for i in range(4)] + [f"v_mov_b64 {v(ACC+2*i,2)}, 0" for i in range(12)] + \
              [f"v_xor_b32 v{AL[j]}, {j << 10}, v{aMW}" for j in range(1, 4)] + [f"v_xor_b32 v{aKX}, 8192, v{aKX}"]
        sal = [f"s_max_i32 s{s_t2}, s{s_step}, 0", f"s_add_u32 s{s_step}, s{s_step}, 1", f"s_add_u32 s{s_t0}, s{s_step}, 1",
               f"s_bfe_u32 s{s_tnn}, s{s_t0}, 0x10001", f"s_mov_b32 s{s_vo}, s{s_vw}", tog(s_vw), tog(s_vr), tog(s_pst), tog(s_ar),
               f"s_add_u32 s{s_vxa}, s{s_kv}, {WS_VO:#x}", f"s_add_u32 s{s_km}, s{s_vm}, {4096 - 2048*gam}", f"s_add_u32 s{s_vm}, s{s_kv}, s34",
               f"s_add_u32 s{s_kv}, s{s_kv}, {0 if opt.kvsame else 32*16384}", f"s_and_b32 s{s_t1}, s{s_t0}, 3\ns_cselect_b32 s{s_t1}, 0, {0 if opt.kvsame else 8192}",
               f"s_xor_b32 s{s_kv}, s{s_kv}, s{s_t1}", f"s_xor_b32 s{s_kxm}, s{s_kxm}, 8192", r_ld[2]]
        units = []
        for i in range(16): units.append("\n".join([wvall[i]] + pvv[i*20//16:(i+1)*20//16] + sal[i*len(sal)//16:(i+1)*len(sal)//16]))
        ne = max(opt.ne, 4)
        A.label(f"{P}_ENTRY")
        A(f"s_cmp_eq_u32 s{s_isred}, 0")
        A(f"s_cbranch_scc0 {P}_PUB0")
        A.label(f"{P}_TOPN")
        for x in units[:ne]: A(x)
        A("s_barrier")
        A.label(f"{P}_TOP2")
        i0 = len(A.ins)
        mark('tp')
        A(f"s_mov_b32 s{s_al}, s{s_mlo}")
        A(f"v_mov_b32 v{T4}, s{s_itag}")
        pv = [f"s_mov_b32 s{s_tag}, s{s_tagn}\ns_mov_b32 s{s_tagn}, s{s_tnn}\ns_xor_b32 s{s_itag}, s{s_tnn}, 1\n" + warm,
              "\n".join([tog(s_mlo), tog(s_mro), tog(s_pcur), warm])] + units[ne:]
        l_ld = [ld(AL[0], aMW, s_al), ld1(T4, aM4, s_al)]
        if opt.l1:
            filler(pv, opt.ld1)
            for x in l_ld: A(x)
            filler(pv, max(opt.lw, len(pv)))
            A(f"s_cmp_ge_u32 s{s_t0}, s{s_rdy}")
            A(f"s_cbranch_scc1 {P}_KVW")
            A.label(f"{P}_KVB")
            mark('lb')
            A("s_waitcnt vmcnt(0) lgkmcnt(0)")
            mark('la')
            for c in lc: A(c)
            A(f"ds_write_b128 v{aMW}, {v(AL[0],4)} offset:{L_ML}")
            A(f"s_cbranch_vccnz {P}_LS")
            def l_retry():
                A.label(f"{P}_LS")
                A("s_mov_b64 exec, vcc")
                for t in l_ld: A(t)
                A("s_mov_b64 exec, -1")
                for k in range(opt.lchk):
                    for c in lc: A(c)
                    if k == 0:
                        cnt(8, 1)
                        A(f"s_sub_u32 s{s_spin}, s{s_spin}, 1")
                        A("s_cbranch_scc1 C_FAIL")
                    A(f"s_cbranch_vccz {P}_LD")
                A(f"s_branch {P}_LS")
                A.label(f"{P}_LD")
                A(f"ds_write_b128 v{aMW}, {v(AL[0],4)} offset:{L_ML}")
                A(f"s_branch {P}_LOK")
            late.append(l_retry)
            A.label(f"{P}_LOK")
        else:
            filler(pv, opt.ld1)
            for k in range(opt.lnf - 1):
                for x in l_ld: A(x)
                filler(pv, opt.lgap)
            filler(pv, len(pv))
            A(f"s_cmp_ge_u32 s{s_t0}, s{s_rdy}")
            A(f"s_cbranch_scc1 {P}_KVW")
            A.label(f"{P}_KVB")
            A("; @DRAINLDS")
            mark('la')
            A.label(f"{P}_LS")
            for x in tagv(l_ld, 'l'): A(x)
            A("s_mov_b64 exec, -1")
            for k in range(opt.lchk):
                for c in lc: A(c)
                if k == 0:
                    cnt(8, 1)
                    A(f"s_sub_u32 s{s_spin}, s{s_spin}, 1")
                    A("s_cbranch_scc1 C_FAIL")
                filler([], opt.lfv)
                if k < opt.lchk - 1: A(f"s_cbranch_vccz {P}_LOK")
            A("s_mov_b64 exec, vcc")
            A(f"s_cbranch_vccnz {P}_LS")
            A("s_mov_b64 exec, -1")
            A.label(f"{P}_LOK")
            A(f"ds_write_b128 v{aMW}, {v(AL[0],4)} offset:{L_ML}")
        if opt.b0p: A("s_barrier")
        stampc(0)
        lr = [f"ds_read_b128 {v(AL[j],4)}, v{AL[j]} offset:{L_ML}" for j in range(1, 4)] + [f"ds_read_b128 {v(AL[4],4)}, v{vA16} offset:{L_ML+4096}"]
        KX, VO, XU, VX = LAND, LAND + 32, LAND + 36, LAND + 40
        XQ = AL[0]; XK = AR[0]; PX = AL[4]
        kxr = [f"ds_read_b128 {v(KX+8*uu+4*m,4)}, v{aKX} offset:{L_KX+uu*2048+m*1024}" for m in range(2) for uu in range(4)]
        xrd = lambda R: [f"ds_read_b64_tr_b16 {v(R+4*uu+2*m,2)}, v{(vA8, XU + 2)[m]} offset:{L_X + uu*1024 + m*512}" for uu in range(4) for m in range(2)]
        mf = sv(0) + sq(AL, 0, 0) + sk(AL, 0, 0) + sv(1) + sv(2) + sv(3) + sq(AL, 1, 1) + sv(4)
        for t in range(2, 5): mf += sq(AL, t, t)
        for t in range(1, 5): mf += sk(AL, t, t)
        for t in range(5): mf += sq(AR, t, 5 + t)
        for t in range(5): mf += sk(AR, t, 5 + t)
        N = 50
        rl = tagv(r_ld, 'r'); w4 = wv_reads(4)
        dm = [x for gq_ in kv_dma(s_kv, None) for x in gq_]
        vxl = tagv([f"buffer_load_dwordx4 {v(VX+4*m,4)}, v{gVX}, {W}, s{s_vxa} offen offset:{m*256} sc1" for m in range(2)], 'vx')
        st1 = lambda r, va, so, off=0: f"buffer_store_dword v{r}, v{va}, {W}, s{so} offen offset:{off} sc1"
        add2 = lambda a: [f"v_add_f32 v{a+i}, v{a+i}, v{a+2+i}" for i in range(2)]
        vv = [add2(aV[t]) + [f"v_cvt_pk_bf16_f32 v{VO+2*t}, v{aV[t]}, v{aV[t]+1}", f"v_and_or_b32 v{VO+2*t}, v{VO+2*t}, -2, s{s_tag}"] for t in range(2)]
        rc = tagchk(r_regs, s_tag)
        lV = [f"buffer_load_dword v{VO+1+2*i}, v{vA4}, {W}, s{s_vr} offen offset:{256*i} sc1" for i in range(2)]
        w32 = f"ds_write_b32 v{aM4}, v{T4} offset:{L_ML}"
        F = {}
        mvp, mvi = f"v_mov_b32 v{SP+1}, s{s_t2}", f"v_mov_b32 v{SP+2}, s{s_itag}"
        if opt.b0p:
            F.update({0: [w32, rl[0]], 1: [rl[1], mvp], 2: ["; @WAITLDS", "s_barrier", lr[0]], 3: [lr[1], rl[3]], 4: [lr[2], rl[4]],
                      5: [lr[3]], 6: [w4[0], rl[5]]})
        else:
            F.update({0: [w32, mvp], 2: ["; @WAITLDS", "s_barrier", lr[0]], 3: [lr[1], rl[0]], 4: [lr[2], rl[1]],
                      5: [lr[3]], 6: [w4[0], rl[3]], 8: [rl[4]], 10: [rl[5]]})
        def put(g, L): F.setdefault(g, []).extend(L)
        put(7, [w4[1]]); put(8, [w4[2]]); put(9, [w4[3]]); put(10, [mvi]); put(11, [f"v_xor_b32 v{XU+2}, 8, v{vA8}"])
        put(13, ["; @DRAINLDS"])
        pubs = [st1(XW + gam, vA4, s_km, 256 * gam), st1(SP + 1, gPR, s_prog), st1(VO, vA4, s_vm), st1(VO + 2, vA4, s_vm, 256)]
        put(14, ["s_nop 1"]); put(15, [kxr[0], "s_nop 0"]); put(16, [kxr[1], "s_nop 0"])
        if opt.vfast:
            put(17, vv[0]); put(18, [st1(VO, vA4, s_vw)] + vv[1]); put(19, [st1(VO + 2, vA4, s_vw, 256)]); gs = 20
        else:
            put(17, vv[0][0:2]); put(18, vv[0][2:4]); put(19, [st1(VO, vA4, s_vw)] + vv[1][0:2]); put(20, vv[1][2:4])
            put(21, [st1(VO + 2, vA4, s_vw, 256)]); gs = 22
        if opt.vxg < 0:
            put(gs, [kxr[2], vxl[0]]); put(gs + 1, [kxr[3], vxl[1]])
            if opt.kxlate == 5: put(gs - 1, [dm[0]]); put(26, [dm[1]])
        else:
            F[opt.vxg].insert(0, vxl[0]) if opt.vxg in F else put(opt.vxg, [vxl[0]])
            F[14] = [vxl[1], "s_nop 0"]
            put(gs, [kxr[2]]); put(gs + 1, [kxr[3]])
        pg = [int(x) for x in opt.pubg.split(',')]
        pub_late = list(zip(pg, pubs))
        g = 30 - opt.rlead
        put(g, ["; @WAITVM r"] + rc[0:2]); put(g + 1, rc[2:5])
        gb_ = g + 3
        put(gb_, [f"s_cbranch_vccnz {P}_RS", f"{P}_ROK:", "s_barrier", r_reads[0]])
        for j in range(1, 5): put(gb_ + j, [r_reads[j]])
        for j in range(4): put(gb_ + 5 + j, [kxr[4 + j]])
        g = gb_ + 9
        if opt.inv:
            put(g, [st1(SP + 2, gMO, s_mro)])
            put(g + 1, ["s_mov_b64 exec, s[62:63]", st1(SP + 2, vA8, s_vo), "s_mov_b64 exec, -1"])
        for i, x in enumerate(tagv(lV, 'v0')): put(max(opt.vr_gap, g + 2) + i, [x])
        for g_, x in pub_late:
            L = F.setdefault(g_, []); k = len(L)
            while k > 0 and L[k-1].startswith('v_'): k -= 1
            L.insert(k, x)
        def r_retry():
            A.label(f"{P}_RS")
            cnt(9, 1)
            A("s_mov_b64 exec, vcc")
            for t in r_ld: A(t)
            A("s_mov_b64 exec, -1")
            A("s_waitcnt vmcnt(0)")
            for c in rc: A(c)
            A(f"s_cbranch_vccz {P}_ROK")
            spin_fail(f"{P}_RS")
        late.append(r_retry)
        qd = XU if opt.uni else XW
        mul2 = lambda a: [f"v_mul_f32 v{a+i}, s{s_csc}, v{a+i}" for i in range(2)]
        qq = add2(aQ[0]) + mul2(aQ[0]) + add2(aQ[1]) + mul2(aQ[1]) + [f"v_cvt_pk_bf16_f32 v{qd+t}, v{aQ[t]}, v{aQ[t]+1}" for t in range(2)]
        qwr = f"ds_write2_b32 v{aXW}, v{qd}, v{qd+1} offset0:0 offset1:64"
        for g_ in (38, 39, 40):
            if len(F.get(g_, [])) < 2: put(g_, ["s_nop 1"])
        if opt.uni:
            for i, x in enumerate(qq): put(41 + (i * 7) // 10, [x])
            put(48, [qwr])
        else:
            per = opt.qper
            for i, x in enumerate(qq): put(41 + i // per, [x])
            gw = 41 + (len(qq) - 1) // per
            put(gw, [qwr])
            gb = min(gw + opt.qw, 48)
            xq = xrd(XQ)
            put(gb, ["; @WAITLDS", "s_barrier"] + xq[0:1])
            k = 1
            for g_ in range(gb + 1, 49): put(g_, xq[k:k+2]); k += 2
            put(49, xq[k:])
        weave(mf, F, 'l')
        stampc(2)
        S0, S1, SM, LL, O0, O1 = ACC + 8, ACC + 12, ACC + 16, ACC + 20, ACC, ACC + 4
        if opt.pk: kk = [f"v_pk_add_f32 {v(aK[t],2)}, {v(aK[t],2)}, {v(aK[t]+2,2)}" for t in range(2)]
        else: kk = [f"v_add_f32 v{aK[i>>1]+(i&1)}, v{aK[i>>1]+(i&1)}, v{aK[i>>1]+2+(i&1)}" for i in range(4)]
        kk += [f"v_cvt_pk_bf16_f32 v{XW+t}, v{aK[t]}, v{aK[t]+1}" for t in range(2)]
        mf = []
        for m, Sx in ((0, S0), (1, S1)):
            for uu in range(4):
                mf.append(f"v_mfma_f32_16x16x32_bf16 {v(Sx,4)}, {v(KX+8*uu+4*m,4)}, {v(XQ+4*uu,4)}, {'0' if uu == 0 else v(Sx,4)}")
        xk = xrd(XK)
        E = [SP, SP + 1, SP + 2, SP + 3]
        vchk = [f"v_bitop3_b32 v{TG}, v{VO+1}, v{VO+3}, s{s_tag} bitop3:0x7e", f"v_and_b32 v{TG}, {0 if opt.solo else 1}, v{TG}", f"v_cmp_ne_u32 vcc, 0, v{TG}"]
        wor = [f"ds_read_b128 {v((LAND+4*q) if q < 8 else (AR[0]+4*(q-8)),4)}, v{aRES} offset:{20480 + q*1024}" for q in range(10)]
        WO0 = lambda t: LAND + 8 * t if t < 4 else AR[0]
        if opt.uni:
            for t in range(2):
                for x in kk[(1 if opt.pk else 2)*t:(1 if opt.pk else 2)*(t+1)]: A(x)
                A(f"v_cvt_pk_bf16_f32 v{XW+t}, v{aK[t]}, v{aK[t]+1}")
            A(f"ds_write2_b32 v{aXW}, v{XW}, v{XW+1} offset0:1 offset1:65")
            for x in tagv(lV, 'v1'): A(x)
            A(f"s_cmp_eq_u32 s{s_step}, 63")
            filler([], opt.uf)
            A("; @WAITLDS")
            A("s_barrier")
            for x in xrd(XQ): A(x)
            A(f"s_cbranch_scc1 C_LAST{gam}")
            mf += [f"v_mfma_f32_16x16x32_bf16 {v(SM,4)}, {v(XQ+4*uu,4)}, {v(XQ+4*uu,4)}, {'0' if uu == 0 else v(SM,4)}" for uu in range(4)]
            fill = {5: ["s_nop 3"], 6: [f"v_exp_f32 v{E[0]}, v{S0}"], 7: [f"v_exp_f32 v{E[1]}, v{S0+1}"], 8: [f"v_exp_f32 v{E[2]}, v{S0+2}"],
                    9: [f"v_exp_f32 v{E[3]}, v{S0+3}", f"v_cvt_pk_bf16_f32 v{PX}, v{E[0]}, v{E[1]}"],
                    10: [f"v_cvt_pk_bf16_f32 v{PX+1}, v{E[2]}, v{E[3]}", f"v_exp_f32 v{E[0]}, v{S1}"],
                    11: [f"v_exp_f32 v{E[i]}, v{S1+i}" for i in range(1, 4)]}
            weave(mf, fill, 's')
        else:
            ks = opt.kslot
            fill = {}
            fill.setdefault(ks, []).extend(kk + [f"ds_write2_b32 v{aXW}, v{XW}, v{XW+1} offset0:1 offset1:65"])
            v1 = tagv(lV, 'v1')
            fill.setdefault(opt.vr2, []).extend(v1[0:1]); fill.setdefault(opt.vr2 + 1, []).extend(v1[1:2])
            if opt.kxlate == 3:
                fill[opt.vr2 + 1].append(dm[0]); fill.setdefault(opt.vr2 + 2, []).extend(dm[1:3]); fill.setdefault(opt.vr2 + 3, []).append(dm[3])
            kb = min(ks + opt.kw, 7)
            fill.setdefault(kb - 1, []).extend([f"s_cmp_eq_u32 s{s_step}, 63"])
            fill.setdefault(kb, []).extend(["; @WAITLDS", "s_barrier"] + xk[0:2] + [f"s_cbranch_scc1 C_LAST{gam}"])
            ex0 = [f"v_exp_f32 v{E[i]}, v{S0+i}" for i in range(4)]
            for i in range(2, 8, 2): fill.setdefault(min(kb + i // 2, 7), []).extend(xk[i:i+2])
            for g_ in range(opt.e0, 8): fill.setdefault(g_, []).append(ex0.pop(0))
            weave(mf, fill, 's')
            stampc(3)
            for x in ex0: A(x)
            A(f"v_cvt_pk_bf16_f32 v{PX}, v{E[0]}, v{E[1]}")
            A(f"v_cvt_pk_bf16_f32 v{PX+1}, v{E[2]}, v{E[3]}")
            mf = [f"v_mfma_f32_16x16x32_bf16 {v(SM,4)}, {v(XK+4*uu,4)}, {v(XQ+4*uu,4)}, {'0' if uu == 0 else v(SM,4)}" for uu in range(4)]
            fill = {i: [f"v_exp_f32 v{E[i]}, v{S1+i}"] for i in range(4)}
            if opt.vearly:
                fill[-1] = ["; @WAITVM v0"] + vchk + [dm[0]]
                fill[1] = [f"s_cbranch_vccnz {P}_RV", f"{P}_BV:"] + fill[1]
                fill[2] = [dm[1], dm[2]] + fill[2]
                fill[3] = [dm[3]] + fill[3]
            if opt.kxlate == 4:
                fill[-1] = [dm[0]]; fill[0].insert(0, dm[1]); fill[1].insert(0, dm[2]); fill[2].insert(0, dm[3])
            weave(mf, fill, 'm')
        pvx = [f"v_mfma_f32_16x16x32_bf16 {v(LL,4)}, {v(vONE,4)}, {v(PX,4)}, 0",
               f"v_mfma_f32_16x16x32_bf16 {v(O0,4)}, {v(VX,4)}, {v(PX,4)}, 0",
               f"v_mfma_f32_16x16x32_bf16 {v(O1,4)}, {v(VX+4,4)}, {v(PX,4)}, 0"]
        pvm = [f"v_mfma_f32_16x16x16_bf16 {v(LL,4)}, {v(vH,2)}, {v(vPM,2)}, {v(LL,4)}",
               f"v_mfma_f32_16x16x16_bf16 {v(O0,4)}, {v(VO,2)}, {v(vPM,2)}, {v(O0,4)}",
               f"v_mfma_f32_16x16x16_bf16 {v(O1,4)}, {v(VO+2,2)}, {v(vPM,2)}, {v(O1,4)}"]
        A(f"v_cvt_pk_bf16_f32 v{PX+2}, v{E[0]}, v{E[1]}")
        A(f"v_cvt_pk_bf16_f32 v{PX+3}, v{E[2]}, v{E[3]}")
        if not opt.vearly:
            A("; @WAITVM v0")
            A(vchk[0]); A(vchk[1])
        else: A(wor[0]); A(wor[1])
        A(pvx[0])
        if not opt.vearly: A(vchk[2])
        A(f"v_exp_f32 v{E[0]}, v{SM+2}")
        A(pvx[1])
        A(f"v_exp_f32 v{E[1]}, v{SM+3}")
        A(pvx[2])
        A(f"v_cvt_pk_bf16_f32 v{vPM}, v{E[0]}, v{E[1]}")
        A(f"v_cvt_pk_bf16_f32 v{vPM+1}, v{E[0]}, v{E[1]}")
        A(pvm[0])
        if not opt.vearly:
            A(f"s_cbranch_vccnz {P}_RV")
            A.label(f"{P}_BV")
        mark('bv')
        A(pvm[1])
        A(wor[3 if opt.vearly else 0])
        if opt.kxlate in (1, 2): A(dm[0])
        if opt.kxlate == 5: A(dm[2])
        A(pvm[2])
        A(wor[4 if opt.vearly else 1])
        if opt.kxlate == 1: A(dm[1]); A(dm[2])
        if opt.kxlate == 5: A(dm[3])
        mark('pv')
        CA = AL[0]
        zr = [f"v_mov_b64 {v(CA+2*i,2)}, 0" for i in range(10)]
        A(wor[2])
        if opt.kxlate == 1: A(dm[3])
        A(f"v_rcp_f32 v{vM}, v{LL}")
        A(f"v_subrev_u32 v{vM2}, s{s_lo}, v{LL}")
        A(f"v_cmp_le_u32 vcc, s{s_rng}, v{vM2}")
        OW = AR[2]
        def onorm():
            for tau in range(2):
                for i in range(4): A(f"v_mul_f32 v{E[i]}, v{O0+4*tau+i}, v{vM}")
                for i in range(2): A(f"v_cvt_pk_bf16_f32 v{OW+2*tau+i}, v{E[2*i]}, v{E[2*i+1]}")
                if opt.ow64 and tau == 0: A(f"ds_write_b64 v{aOW}, {v(OW,2)}")
        onorm()
        A(f"s_and_b64 vcc, vcc, {0 if opt.solo else f's[{s_valid}:{s_valid+1}]'}")
        A(f"s_cbranch_scc1 {P}_FB")
        A.label(f"{P}_BF")
        mark('bf')
        if opt.ow64:
            A(f"ds_write_b64 v{aOW}, {v(OW+2,2)} offset:8")
        else:
            A(f"ds_write_b128 v{aOW}, {v(OW,4)}")
        if opt.kxlate == 2: A(dm[1]); A(dm[2])
        for x in zr[:5]: A(x)
        if opt.kxlate == 2: A(dm[3])
        for x in zr[5:]: A(x)
        A("; @WAITLDS")
        A("s_barrier")
        stampc(4)
        OA = ACC + 8
        A(f"ds_read_b128 {v(OA+4,4)}, v{aOR} offset:1024")
        A(f"ds_read_b128 {v(OA,4)}, v{aOR}")
        for x in (wor[5:6] if opt.vearly else wor[3:6]): A(x)
        filler([], opt.ow)
        PO = AR[2]
        mf = []
        for t in range(5): mf += [smf(CA + 4 * t, OA + 4, WO1(t)), smf(CA + 4 * t, OA, WO0(t))]
        def cepi(t):
            c = CA + 4 * t
            if opt.pk: L = [f"v_pk_add_f32 {v(c,2)}, {v(c,2)}, {v(c+2,2)}"]
            else: L = [f"v_add_f32 v{c}, v{c}, v{c+2}", f"v_add_f32 v{c+1}, v{c+1}, v{c+3}"]
            return L + [f"v_cvt_pk_bf16_f32 v{PO+t}, v{c}, v{c+1}", f"v_and_or_b32 v{PO+t}, v{PO+t}, -2, s{s_tag}",
                        f"buffer_store_dword v{PO+t}, v{gRED}, {W}, s{(s_pst, 17, 18, 19, s_pc2)[t]} offen{sc}"]
        fill = {i: [wor[6 + i], f"s_add_u32 s{(17, 18, 19, s_pc2)[i]}, s{s_pst}, {(i+1)*8192}"] for i in range(4)}
        for t in range(3):
            e = cepi(t)
            fill.setdefault(4 + 2 * t, []).extend(e[:2]); fill.setdefault(5 + 2 * t, []).extend(e[2:-1])
            fill.setdefault(min(6 + 2 * t, 9), []).insert(0 if t < 2 else 99, e[-1])
        weave(mf, fill, 'o')
        for t in (3, 4):
            for x in cepi(t): A(x)
        stampc(5)
        A("; @WAITVM v1")
        A(f"s_cmp_eq_u32 s{s_isred}, 0")
        A(f"s_cbranch_scc1 {P}_TOPN")
        RD = AL[4]
        RS = [AR[0], SP]
        eld = [ld(RS[0], vA16, s_pcur, 0), ld(RS[1], vA16, s_pcur, 1024)]
        e_regs = [RS[0] + i for i in range(4)] + [RS[1] + i for i in range(4)]
        ec = tagchk(e_regs, s_tag)
        if opt.e1:
            un = list(units[:ne])
            filler(un, opt.ed1)
            for t in eld: A(t)
            filler(un, max(opt.ew, len(un)))
            mark('eb')
            A("s_waitcnt vmcnt(0)")
            mark('ea')
            def etry():
                A(f"v_mfma_f32_16x16x32_bf16 {v(RD,4)}, {v(RS[0],4)}, {v(vSEL,4)}, 0")
                A(f"v_mfma_f32_16x16x32_bf16 {v(RD,4)}, {v(RS[1],4)}, {v(vSEL,4)}, {v(RD,4)}")
            etry()
            for c in ec: A(c)
            def e_retry():
                A.label(f"{P}_ES")
                A("s_mov_b64 exec, vcc")
                for t in eld: A(t)
                A("s_mov_b64 exec, -1")
                for k in range(opt.echk):
                    for c in ec[:4]: A(c)
                    etry()
                    for c in ec[4:]: A(c)
                    if k == 0:
                        cnt(8, 0x10000)
                        A(f"s_sub_u32 s{s_spin}, s{s_spin}, 1")
                        A("s_cbranch_scc1 C_FAIL")
                    A(f"s_cbranch_vccz {P}_EOK")
                A(f"s_branch {P}_ES")
            late.append(e_retry)
            A.label(f"{P}_EOK")
        else:
            A(f"s_xor_b32 s{s_t1}, s{s_tag}, 1")
            for r in e_regs: A(f"v_mov_b32 v{r}, s{s_t1}")
            un = list(units[:ne])
            filler(un, opt.ed1)
            for k in range(opt.enf - 1):
                for t in eld: A(t)
                filler(un, opt.egap)
            filler(un, len(un))
            mark('ea')
            A.label(f"{P}_ES")
            for t in eld: A(t)
            A("s_mov_b64 exec, -1")
            for k in range(opt.echk):
                for c in ec[:4]: A(c)
                A(f"v_mfma_f32_16x16x32_bf16 {v(RD,4)}, {v(RS[0],4)}, {v(vSEL,4)}, 0")
                A(f"v_mfma_f32_16x16x32_bf16 {v(RD,4)}, {v(RS[1],4)}, {v(vSEL,4)}, {v(RD,4)}")
                for c in ec[4:]: A(c)
                if k == 0:
                    cnt(8, 0x10000)
                    A(f"s_sub_u32 s{s_spin}, s{s_spin}, 1")
                    A("s_cbranch_scc1 C_FAIL")
                if k < opt.echk - 1: A(f"s_cbranch_vccz {P}_EOK")
            A("s_mov_b64 exec, vcc")
            A(f"s_cbranch_vccnz {P}_ES")
            A("s_mov_b64 exec, -1")
            A.label(f"{P}_EOK")
        stampc(6)
        A(f"v_permlane32_swap_b32 v{RD}, v{RD+2}")
        A(f"v_permlane32_swap_b32 v{RD+1}, v{RD+3}")
        A(f"v_add_f32 v{RD}, v{RD}, v{RD+2}")
        A(f"v_add_f32 v{RD+1}, v{RD+1}, v{RD+3}")
        A(f"v_permlane16_swap_b32 v{RD}, v{RD+1}")
        if opt.e1: A(f"s_cbranch_vccnz {P}_ES")
        A(f"v_add_f32 v{vM}, v{RD}, v{RD+1}")
        A.label(f"{P}_PUB")
        A(f"v_mov_b32_dpp v{vM2}, v{vM} quad_perm:[1,1,3,3] row_mask:0xf bank_mask:0xf")
        A(f"v_cvt_pk_bf16_f32 v{vM}, v{vM}, v{vM2}")
        A(f"v_and_or_b32 v{vM}, v{vM}, -2, s{s_tagn}")
        A(f"buffer_store_dword v{vM}, v{gMO}, {W}, s{s_mlo} offen{sc}")
        if opt.mrpos < 0: A(mr_st)
        stampc(7)
        A("s_barrier")
        if opt.mrpos == 0: A(mr_st)
        A(f"s_branch {P}_TOP2")
        if opt.drop:
            import re as _re
            A.ins[i0:] = [x for x in A.ins[i0:] if not _re.search(opt.drop.replace('~', ' '), x.text)]
        A.ins[i0:] = resolve_waits(A.ins[i0:])
        A.label(f"{P}_PUB0")
        for x in units[:ne]: A(x)
        A(f"s_branch {P}_PUB")
        for f in late: f()
        A.label(f"{P}_KVW")
        A.label(f"{P}_KVL")
        kv_ready()
        A(f"s_cmp_lt_u32 s{s_t0}, s{s_rdy}")
        A(f"s_cbranch_scc1 {P}_KVB")
        spin_fail(f"{P}_KVL")
        A.label(f"{P}_RV")
        A("s_mov_b64 exec, vcc")
        for x in lV: A(x)
        A("s_mov_b64 exec, -1")
        cnt(9, 0x10000)
        for k in range(2):
            for c in vchk: A(c)
            filler([], 2)
            A(f"s_cbranch_vccz {P}_BV")
        spin_fail(f"{P}_RV")
        A.label(f"{P}_FB")
        sc10 = [S0, S0 + 1, S0 + 2, S0 + 3, S1, S1 + 1, S1 + 2, S1 + 3, SM + 2, SM + 3]
        A(f"v_max3_f32 v{vM}, v{sc10[0]}, v{sc10[1]}, v{sc10[2]}")
        for i in range(3, 9, 2): A(f"v_max3_f32 v{vM}, v{vM}, v{sc10[i]}, v{sc10[i+1]}")
        A(f"v_max_f32 v{vM}, v{vM}, v{sc10[9]}")
        A(f"v_mov_b32 v{vM2}, v{vM}")
        A(f"v_permlane32_swap_b32 v{vM}, v{vM2}")
        A(f"v_max_f32 v{vM}, v{vM}, v{vM2}")
        A(f"v_mov_b32 v{vM2}, v{vM}")
        A(f"v_permlane16_swap_b32 v{vM}, v{vM2}")
        A(f"v_max_f32 v{vM}, v{vM}, v{vM2}")
        for r in sc10: A(f"v_sub_f32 v{r}, v{r}, v{vM}")
        for r in sc10: A(f"v_exp_f32 v{r}, v{r}")
        for i in range(4): A(f"v_cvt_pk_bf16_f32 v{PX+i}, v{sc10[2*i]}, v{sc10[2*i+1]}")
        A(f"v_cvt_pk_bf16_f32 v{vPM}, v{SM+2}, v{SM+3}")
        A(f"v_cvt_pk_bf16_f32 v{vPM+1}, v{SM+2}, v{SM+3}")
        for x in pvx + pvm: A(x)
        A(f"v_rcp_f32 v{vM}, v{LL}")
        onorm()
        A(f"s_branch {P}_BF")

    for gam in range(2):
        loop(f"CF{gam}", "", gam)
        loop(f"CS{gam}", " sc1", gam)
    A.label("C_LAST0")
    A(f"s_add_u32 s{s_km}, s59, 4096")
    A(f"buffer_store_dword v{XW}, v{vA4}, {W}, s{s_km} offen sc1")
    A("s_branch C_LAST")
    A.label("C_LAST1")
    A(f"s_add_u32 s{s_km}, s59, 2048")
    A(f"buffer_store_dword v{XW+1}, v{vA4}, {W}, s{s_km} offen offset:256 sc1")
    A.label("C_LAST")
    A("s_waitcnt vmcnt(0)")
    A("s_barrier")
    A(f"v_mov_b32 v{vM}, 64")
    A(f"buffer_store_dword v{vM}, v{gPR}, {W}, s{s_prog} offen sc1")
    A.label("C_DONE")
    stamp(A, opt, 3, vt=(T0, T1, T2))
    if opt.stamps:
        for k in range(12): A(f"v_mov_b32 v{LAND+k}, s{ST0+k}")
        A(f"s_lshl_b32 s90, s2, 2")
        A(f"s_add_u32 s90, s90, s5")
        A(f"s_lshl_b32 s90, s90, 6")
        A(f"s_add_u32 s90, s90, {WS_TS + MB:#x}")
        A("s_mov_b64 exec, 1")
        for k in range(3): A(f"buffer_store_dwordx4 {v(LAND+4*k,4)}, off, {W}, s90 offset:{16*k}")
    A("s_waitcnt vmcnt(0)")
    A("s_endpgm")
    A.label("C_FAIL")
    A(f"v_mov_b32 v{vM}, s{s_step}")
    A(f"v_add_u32 v{vM}, 0x1000, v{vM}")
    A("s_mov_b64 exec, 1")
    A(f"buffer_store_dword v{vM}, off, {D}, 0 offset:{DBG_ERR*4} sc1")
    A("s_waitcnt vmcnt(0)")
    A("s_endpgm")
```

```python
from asmlib import *
from gen import *
from gen_chain import VM

def gen_follow(A, opt):
    W = f"s[{S_WS}:{S_WS+3}]"
    D = f"s[{S_DBG}:{S_DBG+3}]"
    s_t0, s_t1, s_t2, s_spin, s_seg, s_flag = 24, 25, 26, 27, 28, 29
    vL, vA16, vT0, vT1, vT2 = 1, 2, 3, 4, 5
    def spin_fail(lbl, sleep=1):
        A(f"s_sleep {sleep}")
        A(f"s_sub_u32 s{s_spin}, s{s_spin}, 1")
        A(f"s_cbranch_scc0 {lbl}")
        A("s_branch F_FAIL")
    def near(r):
        A(f"s_lshr_b32 s{s_t0}, s{s_seg}, 2")
        A(f"s_xor_b32 s{s_t0}, s{s_t0}, s{S_POL}")
        A(f"s_and_b32 s{s_t0}, s{s_t0}, 1")
        A(f"s_lshl_b32 s{s_t0}, s{s_t0}, 13")
        A(f"s_xor_b32 s{r}, s{r}, s{s_t0}")
    get_pol(A, opt, "F", vT0, s_spin)
    A(f"s_mov_b32 s{s_spin}, {opt.spin}")
    A(f"v_and_b32 v{vL}, 63, v0")
    A(f"v_lshlrev_b32 v{vA16}, 4, v{vL}")
    A(f"s_lshl_b32 s{s_flag}, s3, 10")
    A(f"s_add_u32 s{s_flag}, s{s_flag}, {WS_OFLAG:#x}")
    A("s_cmp_lt_u32 s4, 20")
    A("s_cbranch_scc1 F_ARRIVE")
    A("s_cmp_ge_u32 s4, 28")
    A("s_cbranch_scc1 F_ARRIVE")
    A(f"s_sub_u32 s{s_t0}, s4, 20")
    A(f"s_lshl_b32 s{s_t0}, s{s_t0}, 7")
    A(f"s_add_u32 s{s_flag}, s{s_flag}, s{s_t0}")
    A(f"v_mov_b32 v{vT0}, 0")
    A("s_mov_b64 exec, 1")
    A(f"buffer_store_dword v{vT0}, off, {W}, s{s_flag} sc1")
    A("s_mov_b64 exec, -1")
    A.label("F_ARRIVE")
    A("s_waitcnt vmcnt(0)")
    A("s_barrier")
    A("s_cmp_eq_u32 s5, 0")
    A("s_cbranch_scc0 F_ARRIVED")
    A(f"v_mov_b32 v{vT0}, 1")
    A("s_mov_b64 exec, 1")
    A(f"buffer_atomic_add v{vT0}, off, {D}, 0 offset:{DBG_WBAR*4} sc1")
    A("s_mov_b64 exec, -1")
    A.label("F_ARRIVED")
    stamp(A, opt, 24)
    A("s_cmp_ge_u32 s4, 28")
    A("s_cbranch_scc1 F_END")
    A("s_cmp_ge_u32 s4, 20")
    A("s_cbranch_scc1 F_AT")

    def wait_bar(name):
        A.label(name)
        A(f"buffer_load_dword v{vT0}, off, {D}, 0 offset:{DBG_CHAIN_CNT*4} sc1")
        A(f"buffer_load_dword v{vT1}, off, {D}, 0 offset:{DBG_WBAR*4} sc1")
        A("s_waitcnt vmcnt(0)")
        A(f"v_readfirstlane_b32 s{s_t0}, v{vT0}")
        A(f"v_readfirstlane_b32 s{s_t1}, v{vT1}")
        A(f"s_cmp_ge_u32 s{s_t0}, 64")
        A(f"s_cselect_b32 s{s_t1}, s{s_t1}, 0")
        A(f"s_cmp_ge_u32 s{s_t1}, 192")
        A(f"s_cbranch_scc1 {name}_OK")
        spin_fail(name, 8)
        A.label(name + "_OK")

    SO, SD, SOUT = 32, 36, 40
    A(f"s_load_dwordx2 s[44:45], s[0:1], {KA_WO}")
    A(f"s_load_dwordx2 s[46:47], s[0:1], {KA_WD}")
    A(f"s_load_dwordx2 s[48:49], s[0:1], {KA_OUT}")
    A("s_waitcnt lgkmcnt(0)")
    srd(A, SO, 44, 45, 4096 * 1280); srd(A, SD, 46, 47, 1728 * 1280); srd(A, SOUT, 48, 49, 2048 * 1280)
    vD, aT, gOUT, gG, aRW, aRR, vG, vG1 = 6, 7, 8, 9, 10, 11, 12, 13
    ACA, ACB, RING = 16, 32, 48
    NR = 25
    WR = lambda k: 256 + 4 * k if k < 64 else 148 + 4 * (k - 64)
    s_lds, s_o, s_d, s_par = 50, 51, 52, 53
    A(f"v_lshrrev_b32 v{vT0}, 2, v{vL}")
    A(f"v_mul_u32_u24 v{vT0}, 1280, v{vT0}")
    A(f"v_and_b32 v{vT1}, 3, v{vL}")
    A(f"v_lshl_add_u32 v{vD}, v{vT1}, 4, v{vT0}")
    A(f"s_mul_i32 s{s_lds}, s5, 40960")
    A(f"v_lshrrev_b32 v{vT0}, 5, v{vL}")
    A(f"v_bfe_u32 v{vT1}, v{vL}, 2, 2")
    A(f"v_lshl_add_u32 v{vT0}, v{vT0}, 2, v{vT1}")
    A(f"v_lshlrev_b32 v{vT0}, 6, v{vT0}")
    A(f"v_bfe_u32 v{vT1}, v{vL}, 4, 1")
    A(f"v_lshl_add_u32 v{vT0}, v{vT1}, 5, v{vT0}")
    A(f"v_and_b32 v{vT1}, 3, v{vL}")
    A(f"v_lshl_add_u32 v{vT0}, v{vT1}, 3, v{vT0}")
    A(f"v_add_u32 v{aT}, s{s_lds}, v{vT0}")
    A(f"s_lshl_b32 s{s_t0}, s4, 6")
    A(f"s_mul_i32 s{s_o}, s5, {1024*1280}")
    A(f"s_add_u32 s{s_o}, s{s_o}, s{s_t0}")
    A(f"s_mul_i32 s{s_d}, s5, {432*1280}")
    A(f"s_add_u32 s{s_d}, s{s_d}, s{s_t0}")
    vm = VM(A)
    def dma(k):
        A(f"s_add_u32 m0, s{s_lds}, {(k % 40)*1024}")
        if k < 64:
            vm.issue(f"buffer_load_dwordx4 v{vD}, s[{SO}:{SO+3}], s{s_o} offen lds", k)
            A(f"s_add_u32 s{s_o}, s{s_o}, {16*1280}")
        else:
            vm.issue(f"buffer_load_dwordx4 v{vD}, s[{SD}:{SD+3}], s{s_d} offen lds", k)
            A(f"s_add_u32 s{s_d}, s{s_d}, {16*1280}")
    for k in range(40): dma(k)
    for k0 in range(0, 91, 4):
        ks = [k for k in range(k0, min(k0 + 4, 91))]
        vm.wait(ks[-1])
        for k in ks:
            for m in range(2):
                A(f"ds_read_b64_tr_b16 {u(WR(k)+2*m,2)}, v{aT} offset:{(k%40)*1024 + m*512}")
        A("s_waitcnt lgkmcnt(0)")
        for k in ks:
            if k + 40 < 91: dma(k + 40)
    A(f"v_and_b32 v{vT0}, 31, v{vL}")
    A(f"v_lshlrev_b32 v{gG}, 2, v{vT0}")
    A(f"v_mul_u32_u24 v{vT0}, 1280, v{vT0}")
    A(f"v_lshrrev_b32 v{vT1}, 5, v{vL}")
    A(f"v_lshl_add_u32 v{vT0}, v{vT1}, 3, v{vT0}")
    A(f"s_lshl_b32 s{s_t0}, s4, 6")
    A(f"s_lshl_b32 s{s_t1}, s5, 4")
    A(f"s_add_u32 s{s_t0}, s{s_t0}, s{s_t1}")
    A(f"v_add_u32 v{gOUT}, s{s_t0}, v{vT0}")
    A(f"s_lshl_b32 s{s_t0}, s5, 12")
    A(f"v_add_u32 v{aRW}, s{s_t0}, v{vA16}")
    A(f"s_lshl_b32 s{s_t0}, s5, 10")
    A(f"v_add_u32 v{aRR}, s{s_t0}, v{vA16}")
    A(f"s_lshl_b32 s{s_t0}, s5, 8")
    A(f"s_add_u32 s{s_flag}, s{s_flag}, s{s_t0}")
    A("s_barrier")
    stamp(A, opt, 25, vt=(16, 17, 18))
    wait_bar("F_OPW")
    stamp(A, opt, 26, vt=(16, 17, 18))
    A(f"s_mov_b32 s{s_seg}, s3")
    A.label("F_OP_LOOP")
    vm = VM(A)
    A(f"s_mul_i32 s{s_d}, s{s_seg}, {54*2048}")
    A(f"s_mul_i32 s{s_t0}, s5, {27*1024}")
    A(f"s_add_u32 s{s_d}, s{s_d}, s{s_t0}")
    A(f"s_add_u32 s{s_d}, s{s_d}, {WS_H:#x}")
    A(f"s_lshl_b32 s{s_o}, s{s_seg}, 19")
    A(f"s_lshl_b32 s{s_t0}, s5, 17")
    A(f"s_add_u32 s{s_o}, s{s_o}, s{s_t0}")
    A(f"s_add_u32 s{s_o}, s{s_o}, {WS_VO + 8192:#x}")
    near(s_o)
    A(f"s_lshl_b32 s{s_t0}, s{s_seg}, 7")
    A(f"s_add_u32 s{s_t0}, s{s_t0}, {WS_G:#x}")
    vm.issue(f"buffer_load_dword v{vG}, v{gG}, {W}, s{s_t0} offen sc1", 'g')
    def stream(n, sreg, acc, w0):
        def ldk(k):
            vm.issue(f"buffer_load_dwordx4 {v(RING+4*(k%NR),4)}, v{vA16}, {W}, s{sreg} offen offset:{(k%4)*1024} sc1", k)
            if k % 4 == 3: A(f"s_add_u32 s{sreg}, s{sreg}, {4096 + (8192 if (w0 == 0 and k % 8 == 7) else 0)}")
        for k in range(min(NR - 1, n)): ldk(k)
        for k in range(n):
            vm.wait(k)
            c = "0" if k == 0 else v(acc, 16)
            A(f"v_mfma_f32_32x32x16_bf16 {v(acc,16)}, {u(WR(w0+k),4)}, {v(RING+4*(k%NR),4)}, {c}")
            if k + NR - 1 < n: ldk(k + NR - 1)
    stream(27, s_d, ACB, 64)
    A.label("F_OP_POLL")
    A(f"buffer_load_dword v{vT0}, off, {W}, s{s_flag} sc1")
    A(f"buffer_load_dword v{vT1}, off, {W}, s{s_flag} offset:128 sc1")
    A("s_waitcnt vmcnt(0)")
    A(f"v_min_u32 v{vT0}, v{vT0}, v{vT1}")
    A(f"v_readfirstlane_b32 s{s_t0}, v{vT0}")
    A(f"s_cmp_gt_u32 s{s_t0}, s{s_seg}")
    A("s_cbranch_scc1 F_OP_GO")
    spin_fail("F_OP_POLL", 2)
    A.label("F_OP_GO")
    vm = VM(A)
    stream(64, s_o, ACA, 0)
    A(f"v_sub_f32 v{vG1}, 1.0, v{vG}")
    for i in range(16): A(f"v_mul_f32 v{ACB+i}, v{ACB+i}, v{vG1}")
    for i in range(16): A(f"v_fmac_f32 v{ACB+i}, v{ACA+i}, v{vG}")
    for q in range(4): A(f"ds_write_b128 v{aRW}, {v(ACB+4*q,4)} offset:{q*1024}")
    A("s_waitcnt lgkmcnt(0)")
    A("s_barrier")
    for q in range(4): A(f"ds_read_b128 {v(ACA+4*q,4)}, v{aRR} offset:{q*4096}")
    A(f"v_xor_b32 v{aRW}, 0x4000, v{aRW}")
    A(f"v_xor_b32 v{aRR}, 0x4000, v{aRR}")
    A(f"s_mul_i32 s{s_t0}, s{s_seg}, {32*1280}")
    A("s_waitcnt lgkmcnt(0)")
    for i in range(4):
        A(f"v_add_f32 v{ACA+i}, v{ACA+i}, v{ACA+4+i}")
        A(f"v_add_f32 v{ACA+8+i}, v{ACA+8+i}, v{ACA+12+i}")
    for i in range(4): A(f"v_add_f32 v{ACA+i}, v{ACA+i}, v{ACA+8+i}")
    A(f"v_cvt_pk_bf16_f32 v14, v{ACA}, v{ACA+1}")
    A(f"v_cvt_pk_bf16_f32 v15, v{ACA+2}, v{ACA+3}")
    A(f"buffer_store_dwordx2 v[14:15], v{gOUT}, s[{SOUT}:{SOUT+3}], s{s_t0} offen")
    A(f"s_add_u32 s{s_seg}, s{s_seg}, 6")
    A(f"s_cmp_lt_u32 s{s_seg}, 64")
    A("s_cbranch_scc1 F_OP_LOOP")
    stamp(A, opt, 27, vt=(16, 17, 18))
    A("s_branch F_END")

    A.label("F_AT")
    QF, KF, VF, KM, VMm, MSK, SX, SM, PX, PM = 16, 48, 80, 112, 200, 152, 168, 184, 6, 144
    gKM, gVM, vMX, vMY, vSEL = 250, 251, 252, 253, 254
    KR = lambda k: (KF + 8 * k) if k < 4 else (216 + 8 * (k - 4))
    s_h, s_qkv, s_m, s_prog = 30, 31, 32, 33
    A(f"s_sub_u32 s{s_h}, s4, 20")
    A(f"s_lshl_b32 s{s_h}, s{s_h}, 2")
    A(f"s_add_u32 s{s_h}, s{s_h}, s5")
    A(f"s_lshl_b32 s{s_prog}, s{s_h}, 8")
    A(f"s_add_u32 s{s_prog}, s{s_prog}, {WS_PROG:#x}")
    A(f"s_and_b32 s{s_t0}, s{S_POL}, 1")
    A(f"s_lshl_b32 s{s_t0}, s{s_t0}, 13")
    A(f"s_add_u32 s{s_prog}, s{s_prog}, s{s_t0}")
    A(f"v_and_b32 v{vT0}, 31, v{vL}")
    A(f"v_lshrrev_b32 v{vT1}, 5, v{vL}")
    A(f"v_lshlrev_b32 v{vT2}, 4, v{vT0}")
    A(f"v_and_b32 v{gVM}, 15, v{vL}")
    A(f"v_lshlrev_b32 v{gVM}, 2, v{gVM}")
    A(f"v_lshl_add_u32 v{gVM}, v{vT1}, 7, v{gVM}")
    A(f"v_bfe_u32 v{gKM}, v{vL}, 4, 1")
    A(f"v_lshl_add_u32 v{gVM}, v{gKM}, 8, v{gVM}")
    A(f"v_lshrrev_b32 v{gKM}, 1, v{vT0}")
    A(f"v_lshlrev_b32 v{gKM}, 6, v{gKM}")
    A(f"v_lshl_add_u32 v{gKM}, v{vT1}, 5, v{gKM}")
    A(f"v_mov_b32 v{vSEL}, 0x05040100")
    A(f"v_mov_b32 v{vT2}, 0x07060302")
    A(f"v_and_b32 v{vMX}, 1, v{vL}")
    A(f"v_cmp_eq_u32 vcc, 1, v{vMX}")
    A(f"v_cndmask_b32 v{vSEL}, v{vSEL}, v{vT2}, vcc")
    A(f"v_mov_b32 v{vT2}, {OOB:#x}")
    A(f"v_cmp_gt_u32 vcc, 8, v{vT0}")
    A(f"v_cndmask_b32 v{gKM}, v{vT2}, v{gKM}, vcc")
    A(f"v_lshlrev_b32 v{vT1}, 2, v{vT1}")
    A(f"v_sub_u32 v{vT0}, v{vT0}, v{vT1}")
    A(f"v_mov_b32 v{vT1}, {fbits(-1e30):#x}")
    A(f"v_mov_b32 v{vT2}, 0")
    for R in range(16):
        A(f"v_cmp_gt_i32 vcc, {8*(R>>2)+(R&3)}, v{vT0}")
        A(f"v_cndmask_b32 v{MSK+R}, v{vT2}, v{vT1}, vcc")
    wait_bar("F_ATW")
    A(f"s_mov_b32 s{s_seg}, s3")
    A.label("F_AT_LOOP")
    A(f"s_lshl_b32 s{s_t0}, s{s_seg}, 5")
    A(f"s_add_u32 s{s_t0}, s{s_t0}, s{s_h}")
    A(f"s_lshl_b32 s{s_qkv}, s{s_t0}, 14")
    near(s_qkv)
    A(f"s_xor_b32 s34, s{s_qkv}, 8192")
    A(f"s_add_u32 s{s_m}, s{s_qkv}, {WS_MM + 4096:#x}")
    vm = VM(A)
    for reg, base, tag in ((KF, WS_KQ, 'k'), (QF, WS_KQ, 'q'), (VF, WS_VO, 'v')):
        for hf in range(2):
            A(f"s_add_u32 s{s_t0}, s{34 if tag == 'q' else s_qkv}, {base + hf*4096:#x}")
            for k in range(4):
                vm.issue(f"buffer_load_dwordx4 {v(reg+16*hf+4*k,4)}, v{vA16}, {W}, s{s_t0} offen offset:{k*1024} sc1", tag)
    vm.wait('q')
    for k in range(8):
        c = v(MSK, 16) if k == 0 else v(SX, 16)
        A(f"v_mfma_f32_32x32x16_bf16 {v(SX,16)}, {v(KF+4*k,4)}, {v(QF+4*k,4)}, {c}")
    A.label("F_AT_POLL")
    A(f"buffer_load_dword v{vT0}, off, {W}, s{s_prog} sc1")
    A(f"buffer_load_dword v{vT1}, off, {W}, s{s_prog} offset:128 sc1")
    A("s_waitcnt vmcnt(0)")
    A(f"v_min_u32 v{vT0}, v{vT0}, v{vT1}")
    A(f"v_readfirstlane_b32 s{s_t0}, v{vT0}")
    A(f"s_cmp_gt_u32 s{s_t0}, s{s_seg}")
    A("s_cbranch_scc1 F_AT_GO")
    spin_fail("F_AT_POLL", 2)
    A.label("F_AT_GO")
    vm = VM(A)
    for k in range(8):
        for j in range(2):
            vm.issue(f"buffer_load_dwordx4 {v(KR(k)+4*j,4)}, v{gKM}, {W}, s{s_m} offen offset:{k*256+j*16} sc1", k)
    A(f"s_add_u32 s{s_t0}, s{s_qkv}, {WS_MM:#x}")
    for et in range(4):
        for gm in range(2):
            for j in range(2):
                vm.issue(f"buffer_load_dword v{VMm+4*et+2*gm+j}, v{gVM}, {W}, s{s_t0} offen offset:{gm*2048 + et*512 + j*64} sc1", 'vm')
    A(f"v_max3_f32 v{vMX}, v{SX}, v{SX+1}, v{SX+2}")
    for i in range(3, 15, 2): A(f"v_max3_f32 v{vMX}, v{vMX}, v{SX+i}, v{SX+i+1}")
    A(f"v_max_f32 v{vMX}, v{vMX}, v{SX+15}")
    for k in range(8):
        vm.wait(k)
        for j in range(4): A(f"v_perm_b32 v{KM+4*k+j}, v{KR(k)+2*j+1}, v{KR(k)+2*j}, v{vSEL}")
        c = "0" if k == 0 else v(SM, 16)
        A(f"v_mfma_f32_32x32x16_bf16 {v(SM,16)}, {v(KM+4*k,4)}, {v(QF+4*k,4)}, {c}")
    A(f"v_max3_f32 v{vMX}, v{vMX}, v{SM}, v{SM+1}")
    A(f"v_max3_f32 v{vMX}, v{vMX}, v{SM+2}, v{SM+3}")
    A(f"v_mov_b32 v{vMY}, v{vMX}")
    A(f"v_permlane32_swap_b32 v{vMX}, v{vMY}")
    A(f"v_max_f32 v{vMX}, v{vMX}, v{vMY}")
    sc = [SX + i for i in range(16)] + [SM + i for i in range(4)]
    for r in sc: A(f"v_sub_f32 v{r}, v{r}, v{vMX}")
    for r in sc: A(f"v_exp_f32 v{r}, v{r}")
    for i in range(8): A(f"v_cvt_pk_bf16_f32 v{PX+i}, v{SX+2*i}, v{SX+2*i+1}")
    for i in range(4): A(f"v_cvt_pk_bf16_f32 v{PM+i}, v{SM+2*(i&1)}, v{SM+2*(i&1)+1}")
    vm.wait('vm')
    OT = lambda et: QF + 16 * et
    for et in range(4):
        A(f"v_mfma_f32_32x32x16_bf16 {v(OT(et),16)}, {v(VF+8*et,4)}, {v(PX,4)}, 0")
    A(f"v_add_f32 v{vMX}, v{sc[0]}, v{sc[1]}")
    for et in range(4):
        A(f"v_mfma_f32_32x32x16_bf16 {v(OT(et),16)}, {v(VF+8*et+4,4)}, {v(PX+4,4)}, {v(OT(et),16)}")
        for r in sc[2+4*et:6+4*et]: A(f"v_add_f32 v{vMX}, v{vMX}, v{r}")
    for et in range(4):
        A(f"v_mfma_f32_32x32x16_bf16 {v(OT(et),16)}, {v(VMm+4*et,4)}, {v(PM,4)}, {v(OT(et),16)}")
        if et == 0:
            for r in sc[18:20]: A(f"v_add_f32 v{vMX}, v{vMX}, v{r}")
            A(f"v_mov_b32 v{vMY}, v{vMX}")
        if et == 1:
            A(f"v_permlane32_swap_b32 v{vMX}, v{vMY}")
            A(f"v_add_f32 v{vMX}, v{vMX}, v{vMY}")
            A(f"v_rcp_f32 v{vMX}, v{vMX}")
    A(f"s_add_u32 s{s_t0}, s34, {WS_VO:#x}")
    for et in range(4):
        for i in range(16): A(f"v_mul_f32 v{OT(et)+i}, v{OT(et)+i}, v{vMX}")
        for i in range(8): A(f"v_cvt_pk_bf16_f32 v{KM+8*et+i}, v{OT(et)+2*i}, v{OT(et)+2*i+1}")
        if et == 2: A(f"s_add_u32 s{s_t0}, s{s_t0}, 4096")
        for ab in range(2):
            A(f"buffer_store_dwordx4 {v(KM+8*et+4*ab,4)}, v{vA16}, {W}, s{s_t0} offen offset:{(et&1)*2048+ab*1024} sc1")
    A("s_waitcnt vmcnt(0)")
    A("s_barrier")
    A("s_cmp_eq_u32 s5, 0")
    A("s_cbranch_scc0 F_AT_NF")
    A(f"s_add_u32 s{s_t0}, s{s_seg}, 1")
    A(f"v_mov_b32 v{vT0}, s{s_t0}")
    A("s_mov_b64 exec, 1")
    A(f"buffer_store_dword v{vT0}, off, {W}, s{s_flag} sc1")
    A("s_mov_b64 exec, -1")
    A.label("F_AT_NF")
    A(f"s_add_u32 s{s_seg}, s{s_seg}, 6")
    A(f"s_cmp_lt_u32 s{s_seg}, 64")
    A("s_cbranch_scc1 F_AT_LOOP")
    stamp(A, opt, 27, vt=(16, 17, 18))
    A("s_branch F_END")
    A.label("F_FAIL")
    A(f"v_mov_b32 v{vT0}, 0x2000")
    A("s_mov_b64 exec, 1")
    A(f"buffer_store_dword v{vT0}, off, {D}, 0 offset:{(DBG_ERR+1)*4} sc1")
    A.label("F_END")
```

```python
import sys, math, struct
from asmlib import *

KNAME = "gated_mix__memory_aug_recurrent_mem_tr__glu_gated_bilinear__prompt_kernel"
MB = 1 << 20
WS_KQ, WS_VO, WS_MM = 0, 32 * MB, 96 * MB
WS_H = 64 * MB
WS_G = 80 * MB
WS_PROG = 80 * MB + 0x10000
WS_KVF = 80 * MB + 0x30000
WS_OFLAG = 80 * MB + 0x20000
WS_P = 81 * MB
WS_ML = 82 * MB
WS_X = 84 * MB
WS_SIZE = 256 * MB
OOB = 0x80000000
SENT = 0x7F817F81
SUSP = 0x7F810000
CSCALE = math.log2(math.e) / math.sqrt(128.0)
def fbits(x): return struct.unpack('<I', struct.pack('<f', x))[0]
KA_X, KA_MEM0, KA_WQ, KA_WK, KA_WV, KA_WO, KA_WG, KA_WU, KA_WD, KA_GW, KA_OUT, KA_DBG, KA_WS = 0, 8, 16, 24, 32, 40, 64, 72, 80, 88, 96, 104, 112
DBG_CHAIN_CNT, DBG_XCC0, DBG_POL, DBG_WBAR, DBG_ERR, DBG_ROT, DBG_KV, DBG_TICKET = 0, 1, 3, 4, 5, 7, 8, 32

S_WS, S_DBG = 8, 12
LDS_BYTES = 163840
NKVB, KVSEG = 16, 4

def srd(A, d, lo, hi, nbytes):
    A(f"s_mov_b32 s{d}, s{lo}")
    A(f"s_and_b32 s{d+1}, s{hi}, 0xffff")
    A(f"s_mov_b32 s{d+2}, {nbytes:#x}")
    A(f"s_mov_b32 s{d+3}, 0x20000")

WS_TS = 90 * MB
def stamp(A, opt, idx, sidx=None, vt=(250, 251, 252), st=(96, 97, 98)):
    if not opt.stamps: return
    L = A.newlabel("ST")
    A("s_cmp_eq_u32 s5, 0")
    A(f"s_cbranch_scc0 {L}")
    A(f"s_memrealtime s[{st[0]}:{st[1]}]")
    A(f"s_memtime s[100:101]")
    A(f"s_lshl_b32 s{st[2]}, s2, 10")
    A(f"s_add_u32 s{st[2]}, s{st[2]}, {WS_TS + idx*8:#x}")
    if sidx is not None:
        A(f"s_lshl_b32 s99, s{sidx[0]}, {sidx[1]}")
        A(f"s_add_u32 s{st[2]}, s{st[2]}, s99")
    A("s_waitcnt lgkmcnt(0)")
    A(f"v_mov_b32 v{vt[0]}, s{st[0]}")
    A(f"v_mov_b32 v{vt[1]}, s100")
    A(f"v_mov_b32 v{vt[2]}, 0")
    A(f"buffer_store_dwordx2 v[{vt[0]}:{vt[1]}], v{vt[2]}, s[{S_WS}:{S_WS+3}], s{st[2]} offen")
    A("s_waitcnt vmcnt(0)")
    A.label(L)

S_POL = 60
def get_pol(A, opt, nm, vt, st):
    A(f"s_cmp_lg_u32 s{S_POL}, 0")
    A(f"s_cbranch_scc1 {nm}_POLD")
    A(f"s_mov_b32 s{st}, {opt.spin}")
    A.label(f"{nm}_POLL")
    A(f"buffer_load_dword v{vt}, off, s[{S_DBG}:{S_DBG+3}], 0 offset:{DBG_POL*4} sc1")
    A("s_waitcnt vmcnt(0)")
    A(f"v_readfirstlane_b32 s{S_POL}, v{vt}")
    A(f"s_cmp_lg_u32 s{S_POL}, 0")
    A(f"s_cbranch_scc1 {nm}_POLD")
    A(f"s_sub_u32 s{st}, s{st}, 1")
    A(f"s_cbranch_scc0 {nm}_POLL")
    A("s_endpgm")
    A.label(f"{nm}_POLD")

class Opt:
    stamps = 0; trace = 0; smask = 0; marks = ''; drop = ''; tstep = 40
    workers = True; chain = True; followers = True; gemm = True
    spin = 200000
    cpre = 1; gpre = 0; krot = 1; prio0 = 1; wvtop = 1; b0p = 1; lbar = 3; lwr = -1; uni = 0; uf = 8; solo = 0; wve = 0; nfill = 0; e0 = 5; ow64 = 1; kvall = 0; krot0 = 0; pol = -1; force_slow = 0
    lreg = 1; ereg = 1; echk = 2; lfv = 0; rpre = 0; lchk = 2; kxe = 1; rg = 6; mrpos = 0; rdly = 0; lwait = 0; lspec = 3; qb = 3; qw = 3; kw = 4; vearly = 0; e1 = 0; l1 = 0; ne = 4; vfast = 1; vxg = -1; pubg = '12,13,22,23'; qper = 4; ld1 = 8; lgap = 6; lw = 0; lw2 = 8; lnf = 2; rearly = 0
    ed1 = 4; egap = 7; ew = 0; enf = 1
    rlead = 6; kxlate = 4; sgap = 10; inv = 1; ow = 0; kvsame = 0; kmsame = 0; nokm = 0; vr_gap = 44; vr2 = 0; vper = 4; pk = 0; nk = 4; kslot = -1

def gen_gemm(A, opt):
    SX, SW = 16, 20
    s_rb, s_type, s_stride, s_h, s_out, s_sx, s_sw, s_wstep = 24, 25, 26, 27, 28, 29, 30, 31
    s_it, s_t0, s_t1 = 32, 33, 34
    P0, P1 = 36, 38
    s_m0x, s_m0w = 40, 41
    s_wsz, s_j, s_seg = 42, 43, 44
    vXA = [1, 2, 3, 4]
    vWA = [5, 6, 7, 8]
    vDX = [9, 10, 11, 12]
    vDW = [13, 14, 15, 16]
    vL, vT0, vT1, vT2, vOUT, vXB, vDB = 17, 18, 19, 20, 21, 22, 23
    XF = lambda sg, j: 64 + 32 * sg + 4 * j
    WF = lambda sg, i: 80 + 32 * sg + 4 * i
    ACC = lambda i, j: 16 * (4 * i + j)

    A("s_load_dwordx2 s[36:37], s[0:1], %d" % KA_X)
    A("s_waitcnt lgkmcnt(0)")
    srd(A, SX, 36, 37, 2048 * 1280)
    A(f"v_and_b32 v{vL}, 63, v0")
    A(f"v_and_b32 v{vT0}, 31, v{vL}")
    A(f"v_lshrrev_b32 v{vT1}, 5, v{vL}")
    A(f"v_bfe_u32 v{vT2}, v{vL}, 2, 2")
    A(f"v_xor_b32 v{vT1}, v{vT1}, v{vT2}")
    A(f"v_lshlrev_b32 v{vT1}, 4, v{vT1}")
    A(f"v_lshl_add_u32 v{vXB}, v{vT0}, 6, v{vT1}")
    A(f"v_lshrrev_b32 v{vT0}, 5, v{vL}")
    A(f"v_bfe_u32 v{vT1}, v{vL}, 2, 2")
    A(f"v_lshl_add_u32 v{vT0}, v{vT0}, 3, v{vT1}")
    A(f"v_lshlrev_b32 v{vT0}, 7, v{vT0}")
    A(f"v_bfe_u32 v{vT1}, v{vL}, 3, 1")
    A(f"v_lshl_add_u32 v{vT0}, v{vT1}, 6, v{vT0}")
    A(f"v_bfe_u32 v{vT1}, v{vL}, 4, 1")
    A(f"v_lshl_add_u32 v{vT0}, v{vT1}, 5, v{vT0}")
    A(f"v_and_b32 v{vT1}, 3, v{vL}")
    A(f"v_lshl_add_u32 v{vT0}, v{vT1}, 3, v{vT0}")
    A(f"s_lshr_b32 s{s_t0}, s5, 1")
    A(f"s_lshl_b32 s{s_t0}, s{s_t0}, 13")
    A(f"v_add_u32 v{vWA[0]}, s{s_t0}, v{vT0}")
    A(f"v_xor_b32 v{vWA[1]}, 64, v{vWA[0]}")
    A(f"v_add_u32 v{vWA[2]}, 0x10000, v{vWA[0]}")
    A(f"v_add_u32 v{vWA[3]}, 0x10000, v{vWA[1]}")
    A(f"v_lshrrev_b32 v{vT0}, 2, v{vL}")
    A(f"v_mul_u32_u24 v{vT0}, 1280, v{vT0}")
    A(f"v_and_b32 v{vT1}, 3, v{vL}")
    A(f"v_lshrrev_b32 v{vT2}, 4, v{vL}")
    A(f"v_xor_b32 v{vT1}, v{vT1}, v{vT2}")
    A(f"v_lshl_add_u32 v{vDX[0]}, v{vT1}, 4, v{vT0}")
    for n in range(1, 4):
        A(f"v_add_u32 v{vDX[n]}, {n*(16*1280-1024)}, v{vDX[0]}")
    A(f"s_lshl_b32 s{s_m0w}, s5, 12")
    A(f"s_add_u32 s{s_m0w}, s{s_m0w}, 16384")
    A(f"v_lshlrev_b32 v{vOUT}, 4, v{vL}")
    A("s_lshl_b32 s7, s3, 5")
    A("s_add_u32 s7, s7, s4")
    A("s_mov_b32 s6, 0")
    if opt.gpre:
        A(f"s_load_dwordx4 s[44:47], s[0:1], {KA_WQ}")
        A(f"s_load_dwordx4 s[48:51], s[0:1], {KA_WV}")
        A("s_lshl_b32 s52, s7, 2")
        A("s_add_u32 s52, s52, s5")
        A(f"s_mul_i32 s52, s52, {7*1024}")
        A(f"v_add_u32 v{vT0}, s52, v{vOUT}")
        A(f"v_add_u32 v{vT1}, 4096, v{vT0}")
        A("s_waitcnt lgkmcnt(0)")
        for p in (46, 48, 44, 50)[:opt.gpre]:
            srd(A, SW, p, p + 1, 640 * 8192)
            for n in range(7):
                A(f"buffer_load_dwordx4 v[24:27], v{vT0 if n < 4 else vT1}, s[{SW}:{SW+3}], 0 offen offset:{(n&3)*1024}")

    A.label("G_ROUND")
    A(f"s_mov_b32 s{s_j}, 2")
    A("s_cmp_eq_u32 s6, 1")
    A("s_cbranch_scc1 G_DEC_R1")
    A("s_cmp_eq_u32 s6, 2")
    A("s_cbranch_scc1 G_DEC_R2")
    A(f"s_mov_b32 s{s_j}, 1")
    A("s_cmp_eq_u32 s6, 3")
    A("s_cbranch_scc1 G_DEC_R3")
    A(f"s_mul_i32 s{s_h}, s7, 43691")
    A(f"s_lshr_b32 s{s_h}, s{s_h}, 18")
    A(f"s_mul_i32 s{s_t0}, s{s_h}, 6")
    A(f"s_sub_u32 s{s_rb}, s7, s{s_t0}")
    A("s_branch G_DEC_KV")
    A.label("G_DEC_R1")
    A(f"s_sub_u32 s{s_t0}, s7, 160")
    A("s_cbranch_scc0 G_DEC_Q")
    A(f"s_mul_i32 s{s_h}, s7, 52429")
    A(f"s_lshr_b32 s{s_h}, s{s_h}, 18")
    A(f"s_mul_i32 s{s_t0}, s{s_h}, 5")
    A(f"s_sub_u32 s{s_rb}, s7, s{s_t0}")
    A(f"s_lshl_b32 s{s_rb}, s{s_rb}, 1")
    A(f"s_add_u32 s{s_rb}, s{s_rb}, 6")
    A.label("G_DEC_KV")
    A(f"s_load_dwordx2 s[{P0}:{P0+1}], s[0:1], {KA_WK}")
    A(f"s_load_dwordx2 s[{P1}:{P1+1}], s[0:1], {KA_WV}")
    A("s_waitcnt lgkmcnt(0)")
    A("s_cmp_ge_u32 s5, 2")
    A(f"s_cselect_b32 s{P0}, s{P1}, s{P0}")
    A(f"s_cselect_b32 s{P0+1}, s{P1+1}, s{P0+1}")
    A(f"s_cselect_b32 s{s_type}, 1, 0")
    A(f"s_cselect_b32 s{s_out}, {WS_VO:#x}, {WS_KQ:#x}")
    A(f"s_lshl_b32 s{s_sw}, s{s_h}, 8")
    A(f"s_and_b32 s{s_t0}, s5, 1")
    A(f"s_lshl_b32 s{s_t0}, s{s_t0}, 7")
    A(f"s_add_u32 s{s_sw}, s{s_sw}, s{s_t0}")
    A(f"s_lshl_b32 s{s_t0}, s{s_h}, 14")
    A(f"s_add_u32 s{s_out}, s{s_out}, s{s_t0}")
    A("s_branch G_DEC_QKV")
    A.label("G_DEC_R2")
    A(f"s_sub_u32 s{s_t0}, s7, 96")
    A("s_cbranch_scc0 G_DEC_F4")
    A(f"s_add_u32 s{s_t0}, s7, 32")
    A.label("G_DEC_Q")
    A(f"s_and_b32 s{s_rb}, s{s_t0}, 7")
    A(f"s_lshl_b32 s{s_rb}, s{s_rb}, 1")
    A(f"s_lshr_b32 s{s_h}, s{s_t0}, 3")
    A(f"s_load_dwordx2 s[{P0}:{P0+1}], s[0:1], {KA_WQ}")
    A("s_waitcnt lgkmcnt(0)")
    A(f"s_mov_b32 s{s_type}, 2")
    A(f"s_lshl_b32 s{s_sw}, s{s_h}, 9")
    A(f"s_lshl_b32 s{s_t0}, s5, 7")
    A(f"s_add_u32 s{s_sw}, s{s_sw}, s{s_t0}")
    A(f"s_lshl_b32 s{s_t0}, s{s_h}, 1")
    A(f"s_lshr_b32 s{s_t1}, s5, 1")
    A(f"s_add_u32 s{s_t0}, s{s_t0}, s{s_t1}")
    A(f"s_lshl_b32 s{s_t0}, s{s_t0}, 14")
    A(f"s_add_u32 s{s_out}, s{s_t0}, {WS_KQ + 8192:#x}")
    A.label("G_DEC_QKV")
    A(f"s_mov_b32 s{s_stride}, 8192")
    A(f"s_mov_b32 s{s_wsz}, {640*8192}")
    A(f"s_mov_b32 s{s_it}, {32*16384}")
    A("s_branch G_DEC_DONE")
    A.label("G_DEC_R3")
    A(f"s_sub_u32 s{s_t0}, s4, 26")
    A("s_cbranch_scc1 G_END")
    A(f"s_mul_i32 s{s_t1}, s3, 6")
    A(f"s_add_u32 s{s_t0}, s{s_t0}, s{s_t1}")
    A(f"s_cmp_ge_u32 s{s_t0}, 32")
    A("s_cbranch_scc1 G_END")
    A(f"s_and_b32 s{s_rb}, s{s_t0}, 15")
    A(f"s_lshr_b32 s{s_h}, s{s_t0}, 4")
    A(f"s_add_u32 s{s_h}, s{s_h}, 12")
    A("s_branch G_DEC_FFN")
    A.label("G_DEC_F4")
    A(f"s_and_b32 s{s_rb}, s{s_t0}, 7")
    A(f"s_lshl_b32 s{s_rb}, s{s_rb}, 1")
    A(f"s_lshr_b32 s{s_h}, s{s_t0}, 3")
    A.label("G_DEC_FFN")
    A(f"s_load_dwordx2 s[{P0}:{P0+1}], s[0:1], {KA_WG}")
    A(f"s_load_dwordx2 s[{P1}:{P1+1}], s[0:1], {KA_WU}")
    A("s_waitcnt lgkmcnt(0)")
    A(f"s_bitcmp1_b32 s5, 0")
    A(f"s_cselect_b32 s{P0}, s{P1}, s{P0}")
    A(f"s_cselect_b32 s{P0+1}, s{P1+1}, s{P0+1}")
    A(f"s_mov_b32 s{s_type}, 3")
    A(f"s_lshl_b32 s{s_sw}, s{s_h}, 8")
    A(f"s_lshr_b32 s{s_t0}, s5, 1")
    A(f"s_lshl_b32 s{s_t1}, s{s_t0}, 7")
    A(f"s_add_u32 s{s_sw}, s{s_sw}, s{s_t1}")
    A(f"s_lshl_b32 s{s_t0}, s{s_t0}, 1")
    A(f"s_lshl_b32 s{s_t1}, s{s_h}, 2")
    A(f"s_add_u32 s{s_h}, s{s_t0}, s{s_t1}")
    A(f"s_lshl_b32 s{s_out}, s{s_h}, 11")
    A(f"s_add_u32 s{s_out}, s{s_out}, {WS_H:#x}")
    A(f"s_mov_b32 s{s_stride}, 3456")
    A(f"s_mov_b32 s{s_wsz}, {640*3456}")
    A(f"s_mov_b32 s{s_it}, {54*2048}")
    A.label("G_DEC_DONE")
    A(f"s_and_b32 s{s_t1}, s5, 1")
    A(f"s_lshl_b32 s{s_t1}, s{s_t1}, s{s_j}")
    A(f"s_lshl_b32 s{s_seg}, s{s_rb}, 2")
    A(f"s_add_u32 s{s_seg}, s{s_seg}, s{s_t1}")
    A(f"s_mul_i32 s{s_t0}, s{s_seg}, s{s_it}")
    A(f"s_add_u32 s{s_out}, s{s_out}, s{s_t0}")
    A(f"s_lshl_b32 s{s_t1}, s{s_t1}, 11")
    A(f"v_add_u32 v{vXA[0]}, s{s_t1}, v{vXB}")
    A(f"v_xor_b32 v{vXA[1]}, 32, v{vXA[0]}")
    A(f"v_add_u32 v{vXA[2]}, 0x10000, v{vXA[0]}")
    A(f"v_add_u32 v{vXA[3]}, 0x10000, v{vXA[1]}")
    A(f"s_lshl_b32 s{s_t0}, s5, s{s_j}")
    A(f"s_lshl_b32 s{s_m0x}, s{s_t0}, 10")
    A(f"s_mul_i32 s{s_t0}, s{s_t0}, {16*1280}")
    A(f"s_mul_i32 s{s_sx}, s{s_rb}, {128*1280}")
    A(f"s_add_u32 s{s_sx}, s{s_sx}, s{s_t0}")
    A(f"s_mov_b32 s{SW}, s{P0}")
    A(f"s_and_b32 s{SW+1}, s{P0+1}, 0xffff")
    A(f"s_mov_b32 s{SW+2}, s{s_wsz}")
    A(f"s_mov_b32 s{SW+3}, 0x20000")
    A(f"s_lshl_b32 s{s_wstep}, s{s_stride}, 5")
    A(f"v_lshrrev_b32 v{vT0}, 3, v{vL}")
    A(f"v_mul_lo_u32 v{vT0}, v{vT0}, s{s_stride}")
    A(f"v_bfe_u32 v{vT1}, v{vL}, 4, 1")
    A(f"v_lshlrev_b32 v{vT1}, 2, v{vT1}")
    A(f"v_and_b32 v{vT2}, 7, v{vL}")
    A(f"v_xor_b32 v{vT1}, v{vT1}, v{vT2}")
    A(f"v_lshl_add_u32 v{vDW[0]}, v{vT1}, 4, v{vT0}")
    A(f"s_lshl_b32 s{s_t0}, s{s_stride}, 3")
    A(f"s_sub_u32 s{s_t0}, s{s_t0}, 1024")
    for n in range(1, 4):
        A(f"v_add_u32 v{vDW[n]}, s{s_t0}, v{vDW[n-1]}")
    s_wrap = 45
    if opt.krot:
        A(f"s_mul_i32 s{s_t0}, s{s_rb}, 5")
        A(f"s_lshr_b32 s{s_t0}, s{s_t0}, 2")
        A(f"s_mul_i32 s{s_t1}, s{s_rb}, {opt.krot0}")
        A("s_cmp_eq_u32 s6, 0")
        A(f"s_cselect_b32 s{s_t0}, s{s_t1}, s{s_t0}")
        A(f"s_sub_u32 s{s_wrap}, 20, s{s_t0}")
        A(f"s_lshl_b32 s{s_t1}, s{s_t0}, 6")
        A(f"s_add_u32 s{s_sx}, s{s_sx}, s{s_t1}")
        A(f"s_mul_i32 s{s_t1}, s{s_t0}, s{s_wstep}")
        A(f"s_add_u32 s{s_sw}, s{s_sw}, s{s_t1}")
    stamp(A, opt, 0, (6, 5))
    A(f"s_cmp_eq_u32 s{s_j}, 2")
    A("s_cbranch_scc1 G4_START")

    def tile(J):
        G = f"G{J}"
        ND = J + 4
        def dma_list(slot):
            L = [[f"s_add_u32 m0, s{s_m0x}, {slot*32768}"]]
            for n in range(J):
                L.append([f"buffer_load_dwordx4 v{vDX[n]}, s[{SX}:{SX+3}], s{s_sx} offen offset:{n*1024} lds"])
            L.append([f"s_add_u32 m0, s{s_m0w}, {slot*32768}", f"s_add_u32 s{s_sx}, s{s_sx}, 64"])
            for n in range(4):
                L.append([f"buffer_load_dwordx4 v{vDW[n]}, s[{SW}:{SW+3}], s{s_sw} offen offset:{n*1024} lds"])
            L.append([f"s_add_u32 s{s_sw}, s{s_sw}, s{s_wstep}"] + ([
                f"s_sub_u32 s{s_wrap}, s{s_wrap}, 1", f"s_cmp_eq_u32 s{s_wrap}, 0", f"s_cselect_b32 s{s_t0}, 1280, 0", f"s_cselect_b32 s{s_t1}, s{s_wsz}, 0",
                f"s_sub_u32 s{s_sx}, s{s_sx}, s{s_t0}", f"s_sub_u32 s{s_sw}, s{s_sw}, s{s_t1}"] if opt.krot else []))
            return L
        def read_list(slot, ks, sg):
            hi = slot >> 1; base = (slot & 1) * 32768
            L = []
            order = [('x', 0), ('w', 0)] + [('x', j) for j in range(1, J)] + [('w', 1), ('w', 2), ('w', 3)]
            for t, i in order:
                if t == 'x':
                    L.append(f"ds_read_b128 {v(XF(sg,i),4)}, v{vXA[2*hi+ks]} offset:{base + i*2048}")
                else:
                    for m in range(2):
                        L.append(f"ds_read_b64_tr_b16 {v(WF(sg,i)+2*m,2)}, v{vWA[2*hi+(i&1)]} offset:{base + 16384 + (i>>1)*4096 + ks*2048 + m*512}")
            return L
        def mfmas(sg, vtype, first):
            L = []
            for i in range(4):
                for j in range(J):
                    d = a_(ACC(i, j), 16)
                    c = "0" if first else d
                    if vtype: L.append(f"v_mfma_f32_32x32x16_bf16 {d}, {v(XF(sg,j),4)}, {v(WF(sg,i),4)}, {c}")
                    else:     L.append(f"v_mfma_f32_32x32x16_bf16 {d}, {v(WF(sg,i),4)}, {v(XF(sg,j),4)}, {c}")
            return L
        def interleave(ms, fill):
            n = len(ms); k = 0
            for g, m in enumerate(ms):
                A(m)
                per = -(-(len(fill) - k) // (n - g)) if len(fill) > n else (1 if k < len(fill) else 0)
                for _ in range(per):
                    for t in fill[k]: A(t)
                    k += 1
        A.label(f"{G}_START")
        for st in range(4):
            for g in dma_list(st):
                for t in g: A(t)
        A(f"s_waitcnt vmcnt({3*ND})")
        A("s_barrier")
        for t in read_list(0, 0, 0): A(t)
        A(f"s_cmp_eq_u32 s{s_type}, 1")
        A(f"s_cbranch_scc1 {G}_LOOP_V")
        def body(st_slot, vtype, first, dma, vm, last):
            A("s_waitcnt lgkmcnt(0)")
            rl = read_list(st_slot, 1, 1)
            per = 1 if J == 4 else 2
            interleave(mfmas(0, vtype, first), [rl[k:k+per] for k in range(0, len(rl), per)])
            if last:
                A("s_waitcnt lgkmcnt(0)")
                A("s_barrier")
                interleave(mfmas(1, vtype, False), [])
                return
            A(f"s_waitcnt vmcnt({vm}) lgkmcnt(0)")
            A("s_barrier")
            rl = read_list((st_slot + 1) & 3, 0, 0)
            per = 2 if J == 4 else 3
            fill = [rl[k:k+per] for k in range(0, len(rl), per)]
            if dma:
                dl = dma_list(st_slot)
                grp = [dl[0] + dl[1]] + dl[2:J+1] + [dl[J+1] + dl[J+2]] + dl[J+3:J+5] + [dl[J+5] + dl[J+6]]
                if J == 2: grp = [grp[0] + grp[1], grp[2], grp[3] + grp[4], grp[5]]
                fill += grp
            interleave(mfmas(1, vtype, False), fill)
        for vtype in (0, 1):
            nm = f"{G}_LOOP_" + ("V" if vtype else "K")
            A.label(nm)
            body(0, vtype, True, True, 2 * ND, False)
            A(f"s_mov_b32 s{s_it}, 0")
            A(f"s_branch {nm}_1")
            A.label(f"{nm}_0")
            body(0, vtype, False, True, 2 * ND, False)
            A.label(f"{nm}_1")
            for sl in (1, 2, 3): body(sl, vtype, False, True, 2 * ND, False)
            A(f"s_add_u32 s{s_it}, s{s_it}, 1")
            A(f"s_cmp_lt_u32 s{s_it}, 4")
            A(f"s_cbranch_scc1 {nm}_0")
            body(0, vtype, False, False, 2 * ND, False)
            body(1, vtype, False, False, ND, False)
            body(2, vtype, False, False, 0, False)
            body(3, vtype, False, False, 0, True)
            A("s_branch G_EPI")
    tile(2)
    tile(4)
    A.label("G_EPI")
    stamp(A, opt, 2, (6, 5))
    A(f"s_cmp_eq_u32 s{s_type}, 3")
    A("s_cbranch_scc1 G_EPI_FFN")
    get_pol(A, opt, "G", vT0, s_it)
    A(f"s_lshr_b32 s{s_t0}, s{s_seg}, 2")
    A(f"s_xor_b32 s{s_t0}, s{s_t0}, s{S_POL}")
    A(f"s_and_b32 s{s_t0}, s{s_t0}, 1")
    A(f"s_lshl_b32 s{s_t0}, s{s_t0}, 13")
    A(f"s_xor_b32 s{s_out}, s{s_out}, s{s_t0}")
    A(f"s_cmp_eq_u32 s{s_type}, 2")
    A("s_cbranch_scc1 G_EPI_Q")
    def epi_qkv(scale, done):
        if scale: A(f"s_mov_b32 s{s_t1}, {fbits(CSCALE):#x}")
        k = 0
        for j in range(4):
            if j == 2 and done:
                A(f"s_cmp_eq_u32 s{s_j}, 1")
                A(f"s_cbranch_scc1 {done}")
            for i in range(4):
                for ab in range(2):
                    t = 64 + 12 * (k % 8); k += 1
                    for r in range(8): A(f"v_accvgpr_read_b32 v{t+r}, a{ACC(i,j)+8*ab+r}")
                    if scale:
                        for r in range(8): A(f"v_mul_f32 v{t+r}, s{s_t1}, v{t+r}")
                    for r in range(4): A(f"v_cvt_pk_bf16_f32 v{t+8+r}, v{t+2*r}, v{t+2*r+1}")
                    if i == 2 and ab == 0: A(f"s_add_u32 s{s_out}, s{s_out}, 4096")
                    A(f"buffer_store_dwordx4 {v(t+8,4)}, v{vOUT}, s[{S_WS}:{S_WS+3}], s{s_out} offen offset:{(i&1)*2048+ab*1024} sc1")
            A(f"s_add_u32 s{s_out}, s{s_out}, {32*16384-4096}")
    if opt.prio0:
        A("s_cmp_eq_u32 s6, 0")
        A("s_cbranch_scc0 G_EPI_GO")
        A(f"s_cmp_eq_u32 s{s_rb}, 0")
        A("s_cbranch_scc1 G_EPI_GO")
        A("s_cmp_eq_u32 s5, 0")
        A("s_cbranch_scc0 G_EPI_W")
        A(f"s_mov_b32 s{s_it}, 2000")
        A.label("G_EPI_P")
        A(f"s_lshl_b32 s{s_t1}, s{s_h}, 7")
        A(f"s_add_u32 s{s_t1}, s{s_t1}, {WS_KVF:#x}")
        A(f"buffer_load_dword v{vT0}, off, s[{S_WS}:{S_WS+3}], s{s_t1} sc1")
        A("s_waitcnt vmcnt(0)")
        A(f"v_readfirstlane_b32 s{s_t0}, v{vT0}")
        A(f"s_cmp_lg_u32 s{s_t0}, 0")
        A("s_cbranch_scc1 G_EPI_W")
        A("s_sleep 8")
        A(f"s_sub_u32 s{s_it}, s{s_it}, 1")
        A("s_cbranch_scc0 G_EPI_P")
        A.label("G_EPI_W")
        A("s_barrier")
        A.label("G_EPI_GO")
    epi_qkv(False, "G_EPI_KVD")
    A.label("G_EPI_KVD")
    A("s_waitcnt vmcnt(0)")
    A("s_barrier")
    A("s_cmp_eq_u32 s5, 0")
    A("s_cbranch_scc0 G_NEXT")
    A(f"s_mov_b32 s{s_it}, {opt.spin}")
    A.label("G_KVF_P")
    A(f"buffer_load_dword v{vT0}, off, s[{S_DBG}:{S_DBG+3}], 0 offset:{DBG_CHAIN_CNT*4} sc1")
    A("s_waitcnt vmcnt(0)")
    A(f"v_readfirstlane_b32 s{s_t0}, v{vT0}")
    A(f"s_cmp_ge_u32 s{s_t0}, {64 if opt.chain else 0}")
    A("s_cbranch_scc1 G_KVF_GO")
    A("s_sleep 8")
    A(f"s_sub_u32 s{s_it}, s{s_it}, 1")
    A("s_cbranch_scc0 G_KVF_P")
    A("s_branch G_NEXT")
    A.label("G_KVF_GO")
    A(f"s_lshl_b32 s{s_t0}, s{s_h}, 5")
    A(f"s_add_u32 s{s_t0}, s{s_t0}, s{s_rb}")
    A(f"s_lshl_b32 s{s_t0}, s{s_t0}, 2")
    A(f"s_add_u32 s{s_t0}, s{s_t0}, {WS_KVF:#x}")
    A(f"v_mov_b32 v{vT0}, 1")
    A(f"v_mov_b32 v{vT1}, {OOB:#x}")
    A(f"v_lshlrev_b32 v{vT2}, 2, v{vL}")
    A(f"v_cmp_gt_u32 vcc, s{s_j}, v{vL}")
    A(f"v_cndmask_b32 v{vT1}, v{vT1}, v{vT2}, vcc")
    A(f"buffer_store_dword v{vT0}, v{vT1}, s[{S_WS}:{S_WS+3}], s{s_t0} offen sc1")
    A("s_branch G_NEXT")
    A.label("G_EPI_Q")
    epi_qkv(True, None)
    A("s_branch G_NEXT")
    A.label("G_EPI_FFN")
    A(f"s_cmp_ge_u32 s{s_h}, 54")
    A("s_cbranch_scc1 G_NEXT")
    k = 0
    for j in range(4):
        if j == 2:
            A(f"s_cmp_eq_u32 s{s_j}, 1")
            A("s_cbranch_scc1 G_NEXT")
        for i in range(2):
            for ab in range(2):
                t = 64 + 20 * (k % 8); k += 1
                for r in range(8): A(f"v_accvgpr_read_b32 v{t+r}, a{ACC(i,j)+8*ab+r}")
                for r in range(8): A(f"v_accvgpr_read_b32 v{t+8+r}, a{ACC(i+2,j)+8*ab+r}")
                for r in range(8): A(f"v_mul_f32 v{t+r}, v{t+r}, v{t+8+r}")
                for r in range(4): A(f"v_cvt_pk_bf16_f32 v{t+16+r}, v{t+2*r}, v{t+2*r+1}")
                A(f"buffer_store_dwordx4 {v(t+16,4)}, v{vOUT}, s[{S_WS}:{S_WS+3}], s{s_out} offen offset:{i*2048+ab*1024} sc1")
        A(f"s_add_u32 s{s_out}, s{s_out}, {54*2048}")
    A.label("G_NEXT")
    A("s_waitcnt vmcnt(0)")
    stamp(A, opt, 3, (6, 5))
    A("s_add_u32 s6, s6, 1")
    A("s_cmp_lt_u32 s6, 4")
    A("s_cbranch_scc1 G_ROUND")
    A.label("G_END")
    A("s_cmp_ge_u32 s7, 128")
    A("s_cbranch_scc1 G_GATE_END")
    A(f"s_load_dwordx2 s[{P0}:{P0+1}], s[0:1], {KA_GW}")
    A("s_waitcnt lgkmcnt(0)")
    srd(A, SW, P0, P0 + 1, 1280)
    A(f"v_lshrrev_b32 v{vT0}, 4, v0")
    A(f"s_lshl_b32 s{s_t0}, s7, 4")
    A(f"v_add_u32 v{vT0}, s{s_t0}, v{vT0}")
    A(f"v_and_b32 v{vT1}, 15, v0")
    A(f"v_lshlrev_b32 v{vT1}, 4, v{vT1}")
    A(f"v_mul_u32_u24 v{vT2}, 1280, v{vT0}")
    A(f"v_add_u32 v{vT2}, v{vT2}, v{vT1}")
    for c in range(5):
        A(f"buffer_load_dwordx4 {v(64+4*c,4)}, v{vT2}, s[{SX}:{SX+3}], 0 offen offset:{c*256}")
        A(f"buffer_load_dwordx4 {v(96+4*c,4)}, v{vT1}, s[{SW}:{SW+3}], 0 offen offset:{c*256}")
    A("v_mov_b32 v60, 0")
    A("v_mov_b32 v61, 0")
    A("s_waitcnt vmcnt(0)")
    for c in range(20):
        A(f"v_lshlrev_b32 v56, 16, v{64+c}")
        A(f"v_lshlrev_b32 v57, 16, v{96+c}")
        A(f"v_and_b32 v58, 0xffff0000, v{64+c}")
        A(f"v_and_b32 v59, 0xffff0000, v{96+c}")
        A(f"v_fmac_f32 v60, v56, v57")
        A(f"v_fmac_f32 v61, v58, v59")
    A("v_add_f32 v60, v60, v61")
    for ror in (8, 4, 2, 1):
        A(f"v_mov_b32_dpp v61, v60 row_ror:{ror} row_mask:0xf bank_mask:0xf")
        A("v_add_f32 v60, v60, v61")
    A(f"v_mul_f32 v60, {fbits(-math.log2(math.e)):#x}, v60")
    A("v_exp_f32 v60, v60")
    A("v_add_f32 v60, 1.0, v60")
    A("v_rcp_f32 v60, v60")
    A(f"v_lshlrev_b32 v{vT0}, 2, v{vT0}")
    A(f"v_mov_b32 v{vT2}, {OOB:#x}")
    A(f"v_cmp_eq_u32 vcc, 0, v{vT1}")
    A(f"v_cndmask_b32 v{vT0}, v{vT2}, v{vT0}, vcc")
    A(f"s_mov_b32 s{s_t0}, {WS_G:#x}")
    A(f"buffer_store_dword v60, v{vT0}, s[{S_WS}:{S_WS+3}], s{s_t0} offen sc1")
    A.label("G_GATE_END")

def generate(opt):
    A = Asm()
    A("s_cmp_ge_u32 s2, 256")
    A("s_cbranch_scc1 K_EXIT")
    A(f"s_load_dwordx2 s[36:37], s[0:1], {KA_WS}")
    A(f"s_load_dwordx2 s[38:39], s[0:1], {KA_DBG}")
    A("v_lshrrev_b32 v1, 6, v0")
    A("v_readfirstlane_b32 s5, v1")
    A("s_and_b32 s3, s2, 7")
    A("s_lshr_b32 s4, s2, 3")
    A("s_waitcnt lgkmcnt(0)")
    srd(A, S_WS, 36, 37, WS_SIZE)
    srd(A, S_DBG, 38, 39, 256)
    stamp(A, opt, 20)
    if opt.cpre:
        A("s_getpc_b64 s[40:41]")
        A.label("K_PC")
        A("s_lshl_b32 s6, s4, 2")
        A("s_add_u32 s6, s6, s5")
        A("s_lshl_b32 s6, s6, 10")
        A("s_cmp_lt_u32 s6, K_CODE_END - K_PC - 1024")
        A("s_cbranch_scc0 K_NOCP")
        A("v_and_b32 v1, 63, v0")
        A("v_lshlrev_b32 v1, 4, v1")
        A("v_add_u32 v1, s6, v1")
        A("global_load_dwordx4 v[4:7], v1, s[40:41]")
        A.label("K_NOCP")
    A("s_or_b32 s6, s2, s5")
    A("s_cmp_eq_u32 s6, 0")
    A("s_cbranch_scc0 K_ROTW")
    A("s_getreg_b32 s6, hwreg(HW_REG_XCC_ID, 0, 3)")
    A("s_or_b32 s6, s6, 8")
    A("v_mov_b32 v1, s6")
    A("s_mov_b64 exec, 1")
    A(f"buffer_store_dword v1, off, s[{S_DBG}:{S_DBG+3}], 0 offset:{DBG_ROT*4} sc1")
    A("s_mov_b64 exec, -1")
    A.label("K_ROTW")
    A(f"s_mov_b32 s7, {opt.spin}")
    A.label("K_ROTL")
    A(f"buffer_load_dword v1, off, s[{S_DBG}:{S_DBG+3}], 0 offset:{DBG_ROT*4} sc1")
    A("s_waitcnt vmcnt(0)")
    A("v_readfirstlane_b32 s6, v1")
    A("s_cmp_lg_u32 s6, 0")
    A("s_cbranch_scc1 K_ROTD")
    A("s_sub_u32 s7, s7, 1")
    A("s_cbranch_scc0 K_ROTL")
    A("s_endpgm")
    A.label("K_ROTD")
    A("s_add_u32 s3, s3, s6")
    A("s_and_b32 s3, s3, 7")
    A("s_cmp_lt_u32 s3, 2")
    A("s_cbranch_scc1 K_CHAIN")
    A("s_sub_u32 s3, s3, 2")
    A(f"s_mov_b32 s{S_POL}, {0 if opt.pol < 0 else 2 | opt.pol}")
    if opt.pol < 0:
        A("s_lshl_b32 s6, s3, 5")
        A("s_add_u32 s6, s6, s4")
        A("s_cmp_eq_u32 s6, 5")
        A("s_cbranch_scc0 K_NOPROBE")
        A("s_cmp_eq_u32 s5, 0")
        A("s_cbranch_scc0 K_PROBED")
        A(f"s_mov_b32 s66, {WS_X + 127*16384:#x}")
        A("s_add_u32 s67, s66, 8192")
        A("s_mov_b32 s64, -1")
        A("s_mov_b32 s65, -1")
        A("s_mov_b64 exec, 1")
        A("s_mov_b32 s73, 4")
        A.label("K_PROBE")
        for pl in range(2):
            A("s_memtime s[68:69]")
            A("s_waitcnt lgkmcnt(0)")
            A(f"buffer_store_dword v0, off, s[{S_WS}:{S_WS+3}], s{66+pl} sc1")
            A("s_waitcnt vmcnt(0)")
            A("s_memtime s[70:71]")
            A("s_waitcnt lgkmcnt(0)")
            A("s_sub_u32 s72, s70, s68")
            A(f"s_min_u32 s{64+pl}, s{64+pl}, s72")
        A("s_sub_u32 s73, s73, 1")
        A("s_cbranch_scc0 K_PROBE")
        A("s_cmp_lt_u32 s65, s64")
        A("s_cselect_b32 s72, 3, 2")
        A("v_mov_b32 v1, s72")
        A(f"buffer_store_dword v1, off, s[{S_DBG}:{S_DBG+3}], 0 offset:{DBG_POL*4} sc1")
        A("s_mov_b64 exec, -1")
        A.label("K_PROBED")
        A("s_barrier")
        A.label("K_NOPROBE")
    if opt.gemm: gen_gemm(A, opt)
    if opt.followers:
        from gen_follow import gen_follow
        gen_follow(A, opt)
    A("s_waitcnt vmcnt(0)")
    A("s_endpgm")
    A.label("K_CHAIN")
    if opt.chain:
        from gen_chain import gen_chain
        gen_chain(A, opt)
    A.label("K_EXIT")
    A("s_endpgm")
    A.label("K_CODE_END")
    A.pad()
    hdr = open('gated_mix__memory_aug_recurrent_mem_tr__glu_gated_bilinear__prompt.s.ref').read().split('\n')
    head = [l for l in hdr if l.startswith(';') and '@launch' not in l]
    out = '\n'.join(head) + f"\n; @launch grid=(256,1,1) block=(256,1,1) lds={LDS_BYTES}\n"
    out += f""".amdgcn_target "amdgcn-amd-amdhsa--gfx950"
.text
.globl {KNAME}
.p2align 8
.type {KNAME},@function
{KNAME}:
""" + A.text() + f""".section .rodata,"a"
.p2align 6
.amdhsa_kernel {KNAME}
  .amdhsa_next_free_vgpr 512
  .amdhsa_next_free_sgpr 102
  .amdhsa_accum_offset 256
  .amdhsa_group_segment_fixed_size 0
  .amdhsa_kernarg_size 120
  .amdhsa_user_sgpr_count 2
  .amdhsa_user_sgpr_kernarg_segment_ptr 1
  .amdhsa_system_sgpr_workgroup_id_x 1
.end_amdhsa_kernel
"""
    return out

if __name__ == "__main__":
    opt = Opt()
    outp = sys.argv[1]
    for a in sys.argv[2:]:
        k, val = a.split('=', 1)
        setattr(opt, k, val if k in ('marks', 'drop', 'pubg') else int(val))
    open(outp, 'w').write(generate(opt))
```

```python
import re

def regs_of(tok):
    tok = tok.strip()
    neg = tok.lstrip('-')
    m = re.fullmatch(r'abs\((.*)\)', neg) or re.fullmatch(r'\|(.*)\|', neg)
    if m: neg = m.group(1)
    m = re.fullmatch(r'([vas])(\d+)', neg)
    if m: return [(m.group(1), int(m.group(2)))]
    m = re.fullmatch(r'([vas])\[(\d+):(\d+)\]', neg)
    if m: return [(m.group(1), i) for i in range(int(m.group(2)), int(m.group(3)) + 1)]
    if neg == 'vcc': return [('s', 106), ('s', 107)]
    if neg == 'vcc_lo': return [('s', 106)]
    if neg == 'vcc_hi': return [('s', 107)]
    if neg == 'exec': return [('s', 126), ('s', 127)]
    if neg == 'm0': return [('s', 124)]
    return []

TRANS = ('v_exp_f32', 'v_log_f32', 'v_rcp_f32', 'v_rsq_f32', 'v_sqrt_f32', 'v_sin_f32', 'v_cos_f32')

class Ins:
    __slots__ = ('text', 'op', 'kind', 'wr', 'rd', 'srcC', 'srcAB', 'passes', 'ws', 'dpp', 'stdata', 'lds_dma', 'label')
    def __init__(self, text):
        self.text = text
        self.label = False
        t = text.split(';')[0].strip()
        self.wr = set(); self.rd = set(); self.srcC = set(); self.srcAB = set(); self.stdata = set()
        self.passes = 0; self.ws = 1; self.dpp = False; self.lds_dma = False
        if t.endswith(':') or t.startswith('.') or t == '':
            self.op = ''; self.kind = 'label' if t.endswith(':') else 'none'; self.ws = 0
            return
        parts = t.split(None, 1)
        op = parts[0]; self.op = op
        rest = parts[1] if len(parts) > 1 else ''
        ops = [o.strip() for o in rest.split(',')] if rest else []
        mods = ''
        if ops:
            last = ops[-1].split(None, 1)
            ops[-1] = last[0] if last else ''
            mods = last[1] if len(last) > 1 else ''
        if 'quad_perm' in rest:
            head = rest[:rest.index('quad_perm')]
            ops = [o.strip() for o in head.strip().split(',')]
            mods = rest[rest.index('quad_perm'):]
        R = lambda i: set(regs_of(ops[i])) if i < len(ops) else set()
        if op.startswith('v_mfma') or op.startswith('v_smfmac'):
            self.kind = 'mfma'
            self.wr = R(0); self.srcAB = R(1) | R(2)
            if op.startswith('v_smfmac'):
                self.srcC = R(0); self.srcAB |= R(3)
            else:
                self.srcC = R(3)
            self.rd = self.srcAB | self.srcC
            self.passes = 8 if '32x32' in op else 4
        elif op.startswith('v_'):
            self.kind = 'valu'
            base = op.replace('_e32', '').replace('_e64', '').replace('_dpp', '')
            self.dpp = ('quad_perm' in mods or 'row_' in mods or op.endswith('_dpp'))
            if base.startswith('v_cmp'):
                self.wr = R(0); self.rd = R(1) | R(2)
                if base.startswith('v_cmpx'): self.wr |= set(regs_of('exec'))
            elif base.startswith('v_permlane') and 'swap' in base:
                self.wr = R(0) | R(1); self.rd = R(0) | R(1); self.kind = 'permlane'
            elif base in ('v_readfirstlane_b32', 'v_readlane_b32'):
                self.wr = R(0); self.rd = R(1) | R(2); self.kind = 'readlane'
            elif base in ('v_add_co_u32', 'v_sub_co_u32', 'v_addc_co_u32', 'v_subb_co_u32'):
                self.wr = R(0) | R(1); self.rd = set().union(*[R(i) for i in range(2, len(ops))])
            else:
                self.wr = R(0); self.rd = set().union(*[R(i) for i in range(1, len(ops))]) if len(ops) > 1 else set()
                if base.startswith('v_fmac') or base.startswith('v_pk_fmac') or self.dpp or base == 'v_writelane_b32': self.rd |= R(0)
                if base in TRANS: self.kind = 'trans'
            if op == 'v_nop': self.wr = set(); self.rd = set()
        elif op.startswith('ds_'):
            self.kind = 'ds'
            if op.startswith('ds_read') or op.startswith('ds_bpermute') or op.startswith('ds_swizzle') or op.startswith('ds_permute'):
                self.wr = R(0); self.rd = set().union(*[R(i) for i in range(1, len(ops))])
            else:
                self.rd = set().union(*[R(i) for i in range(len(ops))])
        elif op.startswith('buffer_') or op.startswith('global_'):
            self.kind = 'vmem'
            islds = (' lds' in (' ' + mods)) or '_lds_' in op
            if op.startswith('buffer_wbl2') or op.startswith('buffer_inv'):
                pass
            elif 'load' in op and not islds:
                self.wr = R(0); self.rd = set().union(*[R(i) for i in range(1, len(ops))])
            elif 'load' in op:
                self.lds_dma = True
                self.rd = set().union(*[R(i) for i in range(len(ops))]) | {('s', 124)}
            else:
                self.rd = set().union(*[R(i) for i in range(len(ops))])
                if 'atomic' in op and ('sc0' in mods):
                    self.wr = R(0)
                if op.endswith('x3') or op.endswith('x4'):
                    self.stdata = R(0) if op.startswith('buffer_') else R(1)
        elif op.startswith('s_'):
            self.kind = 'salu'
            if op == 's_nop':
                self.ws = int(ops[0], 0) + 1
            elif op.startswith('s_cmp') or op.startswith('s_cbranch') or op.startswith('s_branch') or op in ('s_barrier', 's_waitcnt', 's_endpgm', 's_sleep', 's_setprio', 's_bitcmp0_b32', 's_bitcmp1_b32'):
                self.rd = set().union(*[R(i) for i in range(len(ops))]) if ops else set()
            else:
                self.wr = R(0); self.rd = set().union(*[R(i) for i in range(1, len(ops))]) if len(ops) > 1 else set()
                if 'saveexec' in op: self.wr |= set(regs_of('exec'))
        else:
            raise ValueError('unknown instruction: ' + text)

VALU_KINDS = ('valu', 'trans', 'permlane', 'readlane')

def need(p, c):
    n = 0
    pv = p.kind in VALU_KINDS
    cv = c.kind in VALU_KINDS
    vw = {r for r in p.wr if r[0] in 'va'}
    sw = {r for r in p.wr if r[0] == 's'}
    if pv:
        if c.kind == 'mfma' and (vw & c.rd): n = max(n, 2)
        if c.kind == 'mfma' and (('s', 126) in sw): n = max(n, 4)
        if c.kind == 'permlane' and (vw & c.rd): n = max(n, 2)
        if c.kind == 'readlane' and (vw & c.rd): n = max(n, 1)
        if cv and c.dpp and (vw & c.rd): n = max(n, 2)
        if cv and c.dpp and (('s', 126) in sw): n = max(n, 5)
        if p.kind == 'trans' and cv and c.kind != 'trans' and (vw & c.rd): n = max(n, 1)
        if p.kind == 'trans' and c.kind == 'trans' and (vw & c.rd): n = max(n, 1)
        if sw:
            if c.kind == 'vmem' and (sw & c.rd): n = max(n, 5)
            if cv and (sw & c.rd): n = max(n, 4 if c.kind == 'readlane' else 2)
            if c.kind == 'salu' and (sw & c.rd): n = max(n, 1)
            if ('s', 126) in sw and c.kind in ('readlane', 'permlane'): n = max(n, 4)
    if p.kind == 'mfma':
        big = 12 if p.passes == 8 else 8
        ovl = 10 if p.passes == 8 else 6
        if c.kind == 'mfma':
            if p.wr & c.srcAB: n = max(n, big)
            if p.wr & (c.srcC | c.wr):
                same = (p.wr == c.srcC and p.op == c.op and c.wr == p.wr)
                if not same: n = max(n, ovl)
        elif cv or c.kind in ('ds', 'vmem'):
            if p.wr & (c.rd | c.wr): n = max(n, big)
            if cv and (p.srcC & c.wr): n = max(n, 7 if p.passes == 8 else 3)
    if p.kind == 'vmem' and p.stdata:
        if (p.stdata & c.wr): n = max(n, 2 if cv else 1)
    if p.kind == 'salu' and ('s', 124) in p.wr and c.kind == 'vmem' and c.lds_dma: n = max(n, 1)
    return n

class Asm:
    def __init__(self):
        self.ins = []
        self.uid = 0
    def __call__(self, text):
        for line in text.split('\n'):
            line = line.strip()
            if line == '' : continue
            if line.startswith(';'):
                self.ins.append(Ins(line.replace(';', ';', 1))); continue
            self.ins.append(Ins(line))
    def label(self, name): self.ins.append(Ins(name + ':'))
    def newlabel(self, p='L'):
        self.uid += 1
        return f'{p}_{self.uid}'
    def pad(self, conservative_labels=True):
        ins = self.ins
        labels = {}
        out = []
        changed = True
        it = 0
        while changed:
            it += 1
            changed = False
            labels = {x.text.split(';')[0].strip()[:-1]: i for i, x in enumerate(ins) if x.kind == 'label'}
            jumps = {}
            for i, x in enumerate(ins):
                if x.kind == 'salu' and (x.op.startswith('s_cbranch') or x.op == 's_branch'):
                    tgt = x.text.split(';')[0].split()[1]
                    jumps.setdefault(labels[tgt], []).append(i)
            def back(i, dist, c, depth):
                miss = 0
                j = i - 1
                while j >= 0 and dist < 20:
                    x = ins[j]
                    if x.kind == 'label':
                        if depth < 3:
                            for src in jumps.get(j, []):
                                miss = max(miss, back(src + 1, dist, c, depth + 1))
                    elif x.kind != 'none':
                        if j != i - 1 or True:
                            if x.op in ('s_branch', 's_endpgm') and not (depth > 0 and j == i - 1):
                                break
                        nn = need(x, c)
                        if nn > dist: miss = max(miss, nn - dist)
                        dist += x.ws
                    j -= 1
                return miss
            out = []
            i = 0
            new = []
            for i, c in enumerate(ins):
                if c.kind not in ('label', 'none'):
                    m = back(i, 0, c, 0)
                    if m > 0:
                        new.append((i, m))
            if new:
                changed = True
                res = []
                last = -100
                todo = dict()
                for i, m in new:
                    if i - last > 24:
                        todo[i] = m; last = i
                for i, c in enumerate(ins):
                    if i in todo:
                        m = todo[i]
                        while m > 0:
                            k = min(m, 16); res.append(Ins(f's_nop {k-1}')); m -= k
                    res.append(c)
                ins = res
            if it > 400: raise RuntimeError('pad did not converge')
        self.ins = ins
    def text(self):
        o = []
        for x in self.ins:
            o.append(x.text if x.kind == 'label' else '    ' + x.text)
        return '\n'.join(o) + '\n'

def v(a, n=1): return f'v{a}' if n == 1 else f'v[{a}:{a+n-1}]'
def a_(a, n=1): return f'a{a}' if n == 1 else f'a[{a}:{a+n-1}]'
def s(a, n=1): return f's{a}' if n == 1 else f's[{a}:{a+n-1}]'
def u(r, n=1):
    assert (r < 256) == (r + n - 1 < 256)
    return v(r, n) if r < 256 else a_(r - 256, n)

def resolve_waits(ins):
    out = []
    lds = []
    vm = []
    def wait_lds(k):
        nonlocal lds
        n = len(lds) - 1 - k
        out.append(Ins(f's_waitcnt lgkmcnt({min(n,15)})'))
        lds = lds[k + 1:] if n <= 15 else lds[len(lds) - 15:]
    for x in ins:
        t = x.text
        if t.startswith('; @WAITVM'):
            tag = t.split()[2]
            idx = [i for i, g in enumerate(vm) if g == tag]
            if idx:
                n = len(vm) - 1 - idx[-1]
                out.append(Ins(f's_waitcnt vmcnt({n})')); vm = vm[idx[-1] + 1:]
            continue
        if t.startswith('; @WAITLDS'):
            idx = [i for i, (d, w) in enumerate(lds) if w]
            if idx: wait_lds(idx[-1])
            continue
        if t.startswith('; @DRAINLDS'):
            out.append(Ins('s_waitcnt lgkmcnt(0)')); lds = []
            continue
        if x.kind not in ('label', 'none'):
            touched = x.rd | x.wr
            idx = [i for i, (d, w) in enumerate(lds) if d & touched]
            if idx: wait_lds(idx[-1])
            if x.op == 's_waitcnt':
                m = re.search(r'lgkmcnt\((\d+)\)', t)
                if m:
                    n = int(m.group(1)); lds = lds[len(lds) - n:] if n < len(lds) else lds
                    if n == 0: lds = []
                m = re.search(r'vmcnt\((\d+)\)', t)
                if m:
                    n = int(m.group(1)); vm = vm[len(vm) - n:] if 0 < n < len(vm) else ([] if n == 0 else vm)
            if x.kind == 'ds': lds.append((set(x.wr), not x.wr))
            if x.kind == 'vmem':
                m = re.search(r'@vm:(\w+)', t)
                vm.append(m.group(1) if m else '-')
        out.append(x)
    return out

import subprocess, tempfile, os
def sizes_of(ins):
    lines = []
    for x in ins:
        if x.kind in ('label', 'none'): continue
        t = x.text.split(';')[0].strip()
        if x.op.startswith('s_cbranch') or x.op == 's_branch': t = x.op + ' 0'
        lines.append(t)
    with tempfile.TemporaryDirectory() as d:
        open(d + '/a.s', 'w').write('\n'.join(lines) + '\n')
        subprocess.run(['clang', '-x', 'assembler', '-target', 'amdgcn-amd-amdhsa', '-mcpu=gfx950', '-c', d + '/a.s', '-o', d + '/a.o'], check=True)
        o = subprocess.run(['llvm-objdump', '-d', '--mcpu=gfx950', d + '/a.o'], capture_output=True, text=True).stdout
    sz = [4 * len(l.split('//')[1].split(':')[1].split()) for l in o.split('\n') if '//' in l]
    assert len(sz) == len(lines), (len(sz), len(lines))
    it = iter(sz)
    return [0 if x.kind in ('label', 'none') else next(it) for x in ins]

WIDEN = ('v_add_f32', 'v_mul_f32', 'v_mov_b32', 'v_mov_b64', 'v_exp_f32', 'v_rcp_f32', 'v_max_i32', 'v_and_b32', 'v_subrev_u32', 'v_cmp_ne_u32', 'v_cmp_le_u32', 'v_xor_b32')
def align8(ins, mode):
    sz = sizes_of(ins)
    out = []; off = 0; cand = None
    for x, n in zip(ins, sz):
        if n == 8 and off % 8 == 4:
            if cand is not None:
                y = out[cand]
                out[cand] = Ins(y.text.replace(y.op, y.op + '_e64', 1)); off += 4
            elif mode == 2:
                out.append(Ins('s_nop 0')); off += 4
        if n == 8: cand = None
        if n == 4 and x.op in WIDEN: cand = len(out)
        out.append(x); off += n
    return out
```

```python
from asmlib import *
from gen import *

L_KX = 0
L_ML = 16384
L_MR = 16384 + 8192
L_X  = 30720
L_O  = 34816
L_RES = 40960
RES_STRIDE = 30720
XSL = 64 * 16384

class VM:
    def __init__(self, A): self.A = A; self.q = []
    def issue(self, text, tag): self.A(text); self.q.append(tag)
    def wait(self, tag, extra=""):
        last = max(i for i, t in enumerate(self.q) if t == tag)
        n = len(self.q) - 1 - last
        assert n <= 63
        self.A(f"s_waitcnt vmcnt({n})" + extra)
        self.q = self.q[last + 1:]
    def drain(self, extra=""):
        self.A("s_waitcnt vmcnt(0)" + extra); self.q = []

def gen_chain(A, opt):
    W = f"s[{S_WS}:{S_WS+3}]"
    D = f"s[{S_DBG}:{S_DBG+3}]"
    SW = 16
    s_step, s_t0, s_t1, s_t2, s_spin = 20, 21, 22, 23, 24
    s_xb = 25
    s_mlb, s_mrw, s_mrr = 26, 27, 28
    s_vxw, s_vxr = 29, 30
    s_pb = 31
    s_pw = 32
    s_isred = 33
    s_susp, s_sent, s_kv = 34, 35, 40
    P0 = 36
    s_al, s_ar, s_pcur, s_poth, s_vw, s_vr, s_vpo, s_mlo, s_mro, s_mlp, s_mrp = range(41, 52)
    s_res, s_kxm, s_csc, s_km, s_prog, s_hbit, s_mode = range(52, 59)
    s_valid = 60
    s_c0 = 62
    n = [1]
    def al(k=1, align=1):
        while n[0] % align: n[0] += 1
        r = n[0]; n[0] += k; return r
    vL = 0; vA16 = al()
    vH = al(2, 2)
    gEL = al(); vSPARE = al()
    vSEL = al(4, 2); vONE = al(4, 2); TG = al(4, 2); vSENT = TG
    vA8 = al()
    aRES = al(); aXW = al(); XW = al(2); aKX = al(); aOW = al(); aOR = al(); aMW = al(); aM4 = al()
    gRED = al(); gMO = al(); gKX = al(); gVX = al(); gPR = vL
    vM = al(); vM2 = al(); vIDX = al(); vA4 = al()
    base = al(0, 4)
    AL = [base + 4 * i for i in range(5)]; AR = [base + 20 + 4 * i for i in range(5)]
    ACC = base + 40
    LAND = base + 64
    SP = LAND + 48
    assert SP + 4 <= 152, LAND
    aV = [ACC, ACC + 4]; aQ = [ACC + 8, ACC + 12]; aK = [ACC + 16, ACC + 20]
    wl = [256 + 8 * i for i in range(32)] + [152 + 8 * i for i in range(13)]
    WQ = lambda T, t: wl[(T * 2 + t) * 2]
    WK = lambda T, t: wl[(T * 2 + t) * 2 + 1]
    WO1 = lambda t: wl[40 + t]
    T0, T1, T2, T3 = LAND, LAND + 1, LAND + 2, LAND + 3

    def bf(dst, src, off, wd): A(f"v_bfe_u32 v{dst}, v{src}, {off}, {wd}")
    def lin(dst, terms, const=None):
        first = True
        for (off, wd, sh) in terms:
            if first:
                bf(dst, vL, off, wd)
                if sh: A(f"v_lshlrev_b32 v{dst}, {sh}, v{dst}")
                first = False
            else:
                bf(T3, vL, off, wd)
                A(f"v_lshl_add_u32 v{dst}, v{T3}, {sh}, v{dst}")
        if const is not None: A(f"v_add_u32 v{dst}, {const}, v{dst}")

    stamp(A, opt, 0, vt=(T0, T1, T2))
    A(f"v_and_b32 v{vL}, 63, v0")
    A(f"v_lshlrev_b32 v{vA16}, 4, v{vL}")
    A(f"v_lshlrev_b32 v{vA8}, 3, v{vL}")
    A(f"v_lshlrev_b32 v{vA4}, 2, v{vL}")
    A(f"s_mul_i32 s{s_res}, s5, {RES_STRIDE}")
    A(f"s_add_u32 s{s_res}, s{s_res}, {L_RES}")
    A(f"s_mov_b32 s{s_xb}, {WS_X:#x}")
    vm = VM(A)
    HB = 81920
    dQ = [AL[0], AL[0] + 1]; dO = AL[0] + 2
    aQK = [AL[1], AL[1] + 1]; aWV = [AL[1] + 2, AL[1] + 3]; aT = [AL[2], AL[2] + 1]; aWO = [AL[3] + i for i in range(5)]
    lin(dQ[0], [(5, 1, 16), (4, 1, 13)])
    A(f"v_bfe_u32 v{T0}, v{vL}, 4, 2")
    A(f"v_lshlrev_b32 v{T0}, 1, v{T0}")
    A(f"v_and_b32 v{T1}, 15, v{vL}")
    A(f"v_xor_b32 v{T0}, v{T0}, v{T1}")
    A(f"v_lshl_add_u32 v{dQ[0]}, v{T0}, 4, v{dQ[0]}")
    A(f"v_xor_b32 v{dQ[1]}, 128, v{dQ[0]}")
    lin(T2, [(4, 1, 5), (5, 1, 4), (3, 1, 0)])
    A(f"v_mul_u32_u24 v{dO}, 1280, v{T2}")
    A(f"v_and_b32 v{T1}, 7, v{vL}")
    A(f"v_bfe_u32 v{T0}, v{vL}, 4, 2")
    A(f"v_lshlrev_b32 v{T0}, 1, v{T0}")
    A(f"v_xor_b32 v{T0}, v{T0}, v{T1}")
    A(f"v_lshl_add_u32 v{dO}, v{T0}, 4, v{dO}")
    SQ, SK, SV, SO = 64, 68, 72, 76
    A(f"s_load_dwordx4 s[80:83], s[0:1], {KA_WQ}")
    A(f"s_load_dwordx4 s[84:87], s[0:1], {KA_WV}")
    s_loc, s_rem, s_oa, s_lw = 89, 90, 91, 88
    A(f"s_lshr_b32 s{s_t0}, s5, 1")
    A(f"s_and_b32 s{s_t1}, s5, 1")
    A(f"s_lshl_b32 s{s_t2}, s{s_t0}, 4")
    A(f"s_add_u32 s{s_t2}, s{s_t2}, s{s_t1}")
    A(f"s_lshl_b32 s{s_t2}, s{s_t2}, 14")
    A(f"s_lshl_b32 s{s_rem}, s4, 8")
    A(f"s_add_u32 s{s_t2}, s{s_t2}, s{s_rem}")
    A(f"s_mul_i32 s{s_loc}, s3, {320*8192}")
    A(f"s_sub_u32 s{s_rem}, {320*8192}, s{s_loc}")
    A(f"s_add_u32 s{s_loc}, s{s_loc}, s{s_t2}")
    A(f"s_add_u32 s{s_rem}, s{s_rem}, s{s_t2}")
    A(f"s_lshl_b32 s{s_t0}, s{s_t0}, 2")
    A(f"s_add_u32 s{s_t0}, s{s_t0}, s{s_t1}")
    A(f"s_mul_i32 s{s_t0}, s{s_t0}, {2*1280}")
    A(f"s_mul_i32 s{s_oa}, s4, {128*1280}")
    A(f"s_add_u32 s{s_oa}, s{s_oa}, s{s_t0}")
    A(f"s_mul_i32 s{s_t0}, s3, 640")
    A(f"s_add_u32 s{s_oa}, s{s_oa}, s{s_t0}")
    A(f"s_lshl_b32 s{s_lw}, s5, 12")
    A("s_waitcnt lgkmcnt(0)")
    srd(A, SQ, 80, 81, 640 * 8192); srd(A, SK, 82, 83, 640 * 8192); srd(A, SV, 84, 85, 640 * 8192); srd(A, SO, 86, 87, 4096 * 1280)
    def dma_batch(kind, half, tag):
        if kind == 'o':
            A(f"s_lshr_b32 s{s_t1}, s{s_lw}, 1")
            for kap in range(2):
                for j in range(5):
                    for gh in range(2):
                        A(f"s_add_u32 m0, s{s_t1}, {half*HB + kap*40960 + j*8192 + gh*1024}")
                        A(f"s_add_u32 s{s_t0}, s{s_oa}, {(64*kap + 4*gh)*1280 + j*128}")
                        vm.issue(f"buffer_load_dwordx4 v{dO}, s[{SO}:{SO+3}], s{s_t0} offen lds", tag)
            return
        srdn, sb = kind
        for t in range(5):
            for i in range(4):
                A(f"s_add_u32 m0, s{s_lw}, {half*HB + t*16384 + i*1024}")
                A(f"s_add_u32 s{s_t0}, s{sb}, {(64*t + 16*(i>>1) + 4*(i&1))*8192}")
                vm.issue(f"buffer_load_dwordx4 v{dQ[i&1]}, s[{srdn}:{srdn+3}], s{s_t0} offen lds", tag)
    batches = [(SQ, s_loc), (SK, s_loc), (SQ, s_rem), (SK, s_rem), 'o', (SV, s_loc)]
    halves = [1, 0, 1, 0, 1, 0]
    dma_batch(batches[0], halves[0], 'b0')
    dma_batch(batches[1], halves[1], 'b1')
    A(f"s_lshl_b32 s{s_t0}, s5, 6")
    lin(aWV[0], [(2, 4, 8), (2, 3, 5), (0, 2, 3)])
    A(f"v_xor_b32 v{aWV[0]}, s{s_t0}, v{aWV[0]}")
    A(f"v_xor_b32 v{aWV[1]}, 32, v{aWV[0]}")
    lin(aQK[0], [(2, 4, 8), (2, 3, 5), (0, 1, 4), (1, 1, 3)])
    A(f"v_xor_b32 v{aQK[0]}, s{s_t0}, v{aQK[0]}")
    A(f"v_xor_b32 v{aQK[1]}, 32, v{aQK[0]}")
    lin(T2, [(2, 4, 7), (3, 2, 5), (0, 2, 3)])
    for t in range(5):
        A(f"s_mul_i32 s{s_t0}, s5, 5")
        A(f"s_add_u32 s{s_t0}, s{s_t0}, {t}")
        A(f"s_and_b32 s{s_t1}, s{s_t0}, 3")
        A(f"s_lshl_b32 s{s_t1}, s{s_t1}, 5")
        A(f"v_xor_b32 v{aWO[t]}, s{s_t1}, v{T2}")
        A(f"s_lshr_b32 s{s_t0}, s{s_t0}, 2")
        A(f"s_lshl_b32 s{s_t0}, s{s_t0}, 13")
        A(f"s_add_u32 s{s_t0}, s{s_t0}, {halves[4]*HB}")
        A(f"v_add_u32 v{aWO[t]}, s{s_t0}, v{aWO[t]}")

    A(f"s_mov_b32 s{s_sent}, {SENT:#x}")
    A(f"s_mov_b32 s{s_csc}, {fbits(CSCALE):#x}")
    A(f"s_mov_b32 s{s_valid}, 0x33333333")
    A(f"s_mov_b32 s{s_valid+1}, 0x33333333")
    for i in range(4):
        A(f"v_mov_b32 v{vONE+i}, 0x3f803f80")
        A(f"v_mov_b32 v{vSENT+i}, s{s_sent}")
    A(f"v_mov_b32 v{vH}, 0x3f803f80")
    A(f"v_mov_b32 v{vH+1}, 0")
    A(f"v_mov_b32 v{vIDX}, 0x4444")
    A(f"v_mov_b32 v{T0}, 0xeeee")
    A(f"v_and_b32 v{T1}, 2, v{vL}")
    A(f"v_cmp_ne_u32 vcc, 0, v{T1}")
    A(f"v_cndmask_b32 v{vIDX}, v{vIDX}, v{T0}, vcc")
    A(f"v_and_b32 v{T1}, 15, v{vL}")
    for t in range(4):
        A(f"v_mov_b32 v{vSEL+t}, 0")
        A(f"v_mov_b32 v{T0}, 0x3f80")
        A(f"v_cmp_eq_u32 vcc, {t}, v{T1}")
        A(f"v_cndmask_b32 v{vSEL+t}, v{vSEL+t}, v{T0}, vcc")
        A(f"v_mov_b32 v{T0}, 0x3f800000")
        A(f"v_cmp_eq_u32 vcc, {4+t}, v{T1}")
        A(f"v_cndmask_b32 v{vSEL+t}, v{vSEL+t}, v{T0}, vcc")
    A(f"s_lshl_b32 s{s_t0}, s5, 10")
    A(f"s_add_u32 s{s_t0}, s{s_t0}, {L_X}")
    lin(aXW, [(2, 1, 9), (3, 1, 7), (0, 2, 5)], f"s{s_t0}")
    A(f"v_bfe_u32 v{T0}, v{vL}, 2, 2")
    A(f"v_bfe_u32 v{T1}, v{vL}, 4, 2")
    A(f"v_xor_b32 v{T0}, v{T0}, v{T1}")
    A(f"v_lshl_add_u32 v{aXW}, v{T0}, 3, v{aXW}")
    A(f"v_add_u32 v{aRES}, s{s_res}, v{vA16}")
    A(f"v_xor_b32 v{aKX}, 8192, v{vA16}")
    A(f"s_lshr_b32 s{s_t0}, s5, 1")
    A(f"s_lshl_b32 s{s_t0}, s{s_t0}, 10")
    A(f"s_and_b32 s{s_t1}, s5, 1")
    A(f"s_lshl_b32 s{s_t1}, s{s_t1}, 7")
    A(f"s_add_u32 s{s_t0}, s{s_t0}, s{s_t1}")
    A(f"s_add_u32 s{s_t0}, s{s_t0}, {L_O}")
    lin(aOW, [(4, 2, 8), (2, 2, 5), (0, 1, 4), (1, 1, 11), (1, 1, 3)], f"s{s_t0}")
    lin(aOR, [(4, 2, 8), (2, 2, 5), (0, 1, 4), (1, 1, 7)], L_O)
    A(f"s_lshl_b32 s{s_t0}, s5, 11")
    lin(gKX, [(4, 2, 9), (3, 1, 8), (0, 3, 4)], f"s{s_t0}")
    lin(gVX, [(4, 2, 9), (0, 4, 4)], f"s{s_t0}")
    A(f"s_lshl_b32 s{s_t0}, s5, 10")
    A(f"v_add_u32 v{aMW}, s{s_t0}, v{vA16}")
    A(f"s_lshl_b32 s{s_t0}, s5, 8")
    A(f"s_add_u32 s{s_t0}, s{s_t0}, 4096")
    A(f"v_add_u32 v{aM4}, s{s_t0}, v{vA4}")
    s_src, s_dst, s_col, s_cst, s_csc2, s_row = 92, 93, 94, 95, 96, 97
    A(f"s_lshl_b32 s{s_t0}, s4, 1")
    A(f"s_add_u32 s{s_t0}, s{s_t0}, s5")
    A(f"s_add_u32 s{s_t1}, s4, 64")
    A("s_cmp_ge_u32 s5, 2")
    A(f"s_cselect_b32 s{s_t0}, s{s_t1}, s{s_t0}")
    A(f"s_cmp_lt_u32 s{s_t0}, 80")
    A(f"s_cselect_b32 s{s_isred}, 1, 0")
    A(f"s_cselect_b32 s{s_t0}, s{s_t0}, 0")
    A("s_cmp_eq_u32 s5, 3")
    A(f"s_cselect_b32 s{s_isred}, 0, s{s_isred}")
    A(f"s_lshl_b32 s{s_src}, s{s_t0}, 6")
    A(f"s_mov_b32 s{s_dst}, s{s_src}")
    A(f"s_and_b32 s{s_row}, s{s_t0}, 3")
    A(f"s_lshr_b32 s{s_col}, s{s_t0}, 2")
    A(f"s_lshl_b32 s{s_col}, s{s_col}, 4")
    A(f"s_mov_b32 s{s_cst}, 1")
    A(f"s_mov_b32 s{s_csc2}, 4")
    lin(gRED, [(4, 2, 11), (0, 4, 2)])
    lin(gEL, [(4, 2, 8), (0, 2, 6), (2, 2, 4)])
    A(f"s_lshl_b32 s48, s{s_src}, 5")
    lin(gMO, [(5, 1, 5), (2, 1, 4), (4, 1, 3), (1, 1, 2)], f"s{s_dst}")
    A(f"v_mov_b32 v{T0}, {OOB:#x}")
    A(f"v_and_b32 v{T1}, 9, v{vL}")
    A(f"v_cmp_eq_u32 vcc, 0, v{T1}")
    A(f"v_cndmask_b32 v{gMO}, v{T0}, v{gMO}, vcc")
    A(f"s_cmp_eq_u32 s{s_isred}, 0")
    A("s_cbranch_scc0 C_RED_K")
    A(f"v_mov_b32 v{gMO}, {OOB:#x}")
    A.label("C_RED_K")
    A(f"v_and_b32 v{T0}, 3, v{vL}")
    A(f"v_mul_lo_u32 v{T0}, v{T0}, s{s_cst}")
    A(f"v_lshrrev_b32 v{T1}, 4, v{vL}")
    A(f"v_mul_lo_u32 v{T1}, v{T1}, s{s_csc2}")
    A(f"v_add3_u32 v{T0}, v{T0}, v{T1}, s{s_col}")
    A(f"v_bfe_u32 v{T1}, v{vL}, 2, 1")
    A(f"s_lshl_b32 s{s_t0}, s{s_row}, 1")
    A(f"v_add_u32 v{T1}, s{s_t0}, v{T1}")
    A(f"v_mul_u32_u24 v{T1}, 640, v{T1}")
    A(f"s_mul_i32 s{s_t0}, s3, 320")
    A(f"v_add3_u32 v{T0}, v{T0}, v{T1}, s{s_t0}")
    A(f"v_lshlrev_b32 v{vM2}, 1, v{T0}")
    A(f"s_load_dwordx2 s[{P0}:{P0+1}], s[0:1], {KA_MEM0}")
    A("s_waitcnt lgkmcnt(0)")
    srd(A, SW, P0, P0 + 1, 8 * 1280)
    vm.issue(f"buffer_load_ushort v{vM2}, v{vM2}, s[{SW}:{SW+3}], 0 offen", 'mem0')
    A(f"s_lshl_b32 s{s_t0}, s3, 15")
    A(f"s_add_u32 s{s_mlb}, s{s_t0}, {WS_ML:#x}")
    A(f"s_lshl_b32 s{s_t0}, s3, 14")
    A(f"s_add_u32 s{s_mrw}, s{s_t0}, {32*16384}")
    A(f"s_xor_b32 s{s_mrr}, s{s_mrw}, 0x4000")
    A(f"s_lshl_b32 s{s_vxw}, s4, 14")
    A(f"s_lshl_b32 s{s_t0}, s3, 12")
    A(f"s_add_u32 s{s_vxw}, s{s_vxw}, s{s_t0}")
    A(f"s_lshl_b32 s{s_t0}, s5, 9")
    A(f"s_add_u32 s{s_vxw}, s{s_vxw}, s{s_t0}")
    A(f"s_xor_b32 s{s_vxr}, s{s_vxw}, 0x1000")
    for r in (s_mrw, s_mrr, s_vxw, s_vxr): A(f"s_add_u32 s{r}, s{r}, s{s_xb}")
    A(f"s_mul_i32 s{s_pb}, s3, {2*32*5120}")
    A(f"s_add_u32 s{s_pb}, s{s_pb}, {WS_P:#x}")
    A(f"s_mul_i32 s{s_pw}, s4, 5120")
    A(f"s_mul_i32 s{s_t0}, s5, 1280")
    A(f"s_add_u32 s{s_pw}, s{s_pw}, s{s_t0}")
    A(f"s_lshl_b32 s{s_kv}, s4, 14")
    A(f"s_lshl_b32 s34, s3, 2")
    A(f"s_add_u32 s34, s34, s5")
    A(f"s_lshl_b32 s34, s34, 9")
    A(f"s_add_u32 s34, s34, {WS_MM:#x}")
    A(f"s_mov_b32 s62, 0x00010001")
    A(f"s_mov_b32 s63, 0x00010001")
    A(f"s_xor_b32 s{s_t0}, s5, 3")
    A(f"v_or_b32 v{T1}, s{s_t0}, v{vL}")
    A(f"v_mov_b32 v{T0}, {OOB:#x}")
    A(f"v_cmp_eq_u32 vcc, 0, v{T1}")
    A(f"v_cndmask_b32 v{gPR}, v{T0}, v{vL}, vcc")
    A(f"s_sub_u32 s{s_prog}, s{s_mrw}, s{s_vxw}")
    A(f"s_add_u32 s{s_prog}, s{s_prog}, s{s_dst}")
    A(f"s_lshl_b32 s{s_hbit}, s4, 7")
    A(f"s_add_u32 s{s_hbit}, s{s_hbit}, {WS_KVF:#x}")
    for sl in range(2):
        A(f"s_add_u32 s{s_t0}, s{s_pb}, s{s_pw}")
        if sl: A(f"s_add_u32 s{s_t0}, s{s_t0}, {32*5120}")
        vm.issue(f"buffer_store_dwordx4 {v(vSENT,4)}, v{vA16}, {W}, s{s_t0} offen sc1", 'poi')
        vm.issue(f"buffer_store_dword v{vSENT}, v{vA4}, {W}, s{s_t0} offen offset:1024 sc1", 'poi')
    for sl in range(2):
        for pol in range(2):
            A(f"s_add_u32 s{s_t0}, s{s_vxw}, {sl*XSL + pol*8192}")
            vm.issue(f"buffer_store_dwordx2 {v(vSENT,2)}, v{vA8}, {W}, s{s_t0} offen sc1", 'poi')
    for sl in range(2):
        A(f"s_add_u32 s{s_t0}, s{s_mlb}, {sl*8192}")
        vm.issue(f"buffer_store_dword v{vSENT}, v{gMO}, {W}, s{s_t0} offen sc1", 'poi')
        for pol in range(2):
            A(f"s_add_u32 s{s_t0}, s{s_mrw}, {sl*XSL + pol*8192}")
            vm.issue(f"buffer_store_dword v{vSENT}, v{gMO}, {W}, s{s_t0} offen sc1", 'poi')
    A(f"v_mov_b32 v{T0}, 0")
    for sl in range(2):
        for pol in range(2):
            A(f"s_add_u32 s{s_t0}, s{s_vxw}, {sl*XSL + pol*8192}")
            vm.issue(f"buffer_store_dword v{T0}, v{gPR}, {W}, s{s_t0} offen offset:512 sc1", 'poi')
    A(f"s_or_b32 s{s_t0}, s3, s5")
    A(f"s_cmp_eq_u32 s{s_t0}, 0")
    A(f"s_cselect_b32 s{s_t0}, 64, 0")
    A(f"v_mov_b32 v{T1}, {OOB:#x}")
    A(f"v_cmp_gt_u32 vcc, s{s_t0}, v{vA4}")
    A(f"v_cndmask_b32 v{T1}, v{T1}, v{vA4}, vcc")
    if opt.kvall: A(f"v_mov_b32 v{T0}, 1")
    vm.issue(f"buffer_store_dword v{T0}, v{T1}, {W}, s{s_hbit} offen sc1", 'poi')
    A(f"s_getreg_b32 s{s_t0}, hwreg(HW_REG_XCC_ID, 0, 4)")
    A(f"s_lshl_b32 s{s_t0}, 1, s{s_t0}")
    A(f"v_mov_b32 v{T1}, s{s_t0}")
    A(f"s_lshl_b32 s{s_t1}, s3, 2")
    vm.issue(f"buffer_atomic_or v{T1}, v{gPR}, {D}, s{s_t1} offen offset:{DBG_XCC0*4} sc1", 'poi')

    def panel_reads(ad, half, t, rot, dst):
        if rot:
            A(f"s_xor_b32 s{s_t0}, s5, {t}")
            A(f"s_lshl_b32 s{s_t0}, s{s_t0}, 14")
            A(f"s_add_u32 s{s_t0}, s{s_t0}, {half*HB}")
        else:
            A(f"s_mov_b32 s{s_t0}, {half*HB + t*16384}")
        for tau in range(2): A(f"v_add_u32 v{aT[tau]}, s{s_t0}, v{ad[tau]}")
        for tau in range(2):
            for m in range(4):
                A(f"ds_read_b64_tr_b16 {u(dst(tau)+2*m,2)}, v{aT[tau]} offset:{m*4096}")
    WO0T = AR[0]
    for bi in range(5):
        vm.wait(f'b{bi}')
        A("s_barrier")
        if bi == 2:
            A(f"v_mov_b32 v{T0}, 1")
            vm.issue(f"buffer_atomic_add v{T0}, v{gPR}, {D}, 0 offen offset:{DBG_CHAIN_CNT*4} sc1", 'arr')
        if bi < 4:
            Wd = WQ if bi % 2 == 0 else WK
            for t in range(5):
                T = t + 5 * (bi // 2)
                panel_reads(aQK, halves[bi], t, bi < 2 and t < 4, lambda tau: Wd(T, tau))
        else:
            for kap in range(2):
                for t in range(5):
                    for m in range(4):
                        d = (WO1(t) if kap else WO0T + 8 * t) + 2 * m
                        A(f"ds_read_b64_tr_b16 {u(d,2)}, v{aWO[t]} offset:{kap*40960 + m*2048}")
        A("s_waitcnt lgkmcnt(0)")
        if bi + 2 < 6:
            A("s_barrier")
            dma_batch(batches[bi + 2], halves[bi + 2], f'b{bi+2}')
    A(f"buffer_load_dwordx4 {v(SP,4)}, off, {D}, 0 sc1")
    vm.drain()
    A("s_barrier")
    for t in (2, 3, 4): panel_reads(aWV, 0, t, False, lambda tau: LAND + 16 * (t - 2) + 8 * tau)
    A("s_waitcnt lgkmcnt(0)")
    A("s_barrier")
    def wv_put(t, src):
        if t < 4:
            A(f"s_xor_b32 s{s_t0}, s5, {t}")
            A(f"s_lshl_b32 s{s_t0}, s{s_t0}, 12")
        else: A(f"s_mov_b32 s{s_t0}, 16384")
        A(f"v_add_u32 v{aT[0]}, s{s_t0}, v{aRES}")
        for q in range(4): A(f"ds_write_b128 v{aT[0]}, {v(src+4*q,4)} offset:{q*1024}")
    for q in range(10): A(f"ds_write_b128 v{aRES}, {v(WO0T+4*q,4)} offset:{20480 + q*1024}")
    A("s_waitcnt lgkmcnt(0)")
    for t in (0, 1): panel_reads(aWV, 0, t, False, lambda tau: WO0T + 16 * t + 8 * tau)
    for t in (2, 3, 4): wv_put(t, LAND + 16 * (t - 2))
    A("s_waitcnt lgkmcnt(0)")
    for t in (0, 1): wv_put(t, WO0T + 16 * t)
    A("s_waitcnt lgkmcnt(0)")
    stamp(A, opt, 1, vt=(T0, T1, T2))

    def spin_fail(lbl):
        A(f"s_sub_u32 s{s_spin}, s{s_spin}, 1")
        A(f"s_cbranch_scc0 {lbl}")
        A("s_branch C_FAIL")
    s_rdy = 47
    def kv_ready():
        A(f"v_and_b32 v{vM2}, 63, v{vA4}")
        A(f"buffer_load_dword v{vM2}, v{vM2}, {W}, s{s_hbit} offen sc1")
        A("s_waitcnt vmcnt(0)")
        A(f"v_cmp_eq_u32 vcc, 0, v{vM2}")
        A(f"s_or_b32 s{s_rdy}, vcc_lo, {1 << NKVB:#x}")
        A(f"s_ff1_i32_b32 s{s_rdy}, s{s_rdy}")
        A(f"s_mul_i32 s{s_rdy}, s{s_rdy}, {KVSEG}")
        A(f"s_cmp_ge_u32 s{s_rdy}, 64")
        A(f"s_cselect_b32 s{s_rdy}, 255, s{s_rdy}")
    A(f"v_lshlrev_b32 v{vM}, 16, v{vM2}")
    A(f"s_mov_b32 s{s_spin}, {opt.spin}")
    A.label("C_TEAM")
    A(f"v_readfirstlane_b32 s{s_t0}, v{SP}")
    if opt.pol < 0:
        A(f"v_readfirstlane_b32 s{s_t1}, v{SP+3}")
        A(f"s_cmp_lg_u32 s{s_t1}, 0")
        A(f"s_cselect_b32 s{s_t0}, s{s_t0}, 0")
    A(f"s_cmp_ge_u32 s{s_t0}, 64")
    A("s_cbranch_scc1 C_TEAM_OK")
    A("s_sleep 8")
    A(f"buffer_load_dwordx4 {v(SP,4)}, off, {D}, 0 sc1")
    A("s_waitcnt vmcnt(0)")
    spin_fail("C_TEAM")
    A.label("C_TEAM_OK")
    A(f"s_mov_b32 s{s_rdy}, 0")
    A(f"v_readfirstlane_b32 s{s_t0}, v{SP+1}")
    A(f"v_readfirstlane_b32 s{s_t1}, v{SP+2}")
    A(f"v_readfirstlane_b32 s{s_t2}, v{SP+3}")
    A("s_cmp_eq_u32 s3, 0")
    A(f"s_cselect_b32 s{s_t0}, s{s_t0}, s{s_t1}")
    A(f"s_bcnt1_i32_b32 s{s_mode}, s{s_t0}")
    if opt.pol >= 0: A(f"s_mov_b32 s{s_t2}, {opt.pol}")
    A(f"s_and_b32 s{s_t2}, s{s_t2}, 1")
    A(f"s_lshl_b32 s{s_t2}, s{s_t2}, 13")
    for r in (s_mrw, s_mrr, s_vxw, s_vxr, s_kv): A(f"s_add_u32 s{r}, s{r}, s{s_t2}")
    A(f"s_add_u32 s59, s{s_kv}, s34")
    A(f"s_lshl_b32 s{s_kxm}, s5, 11")
    def kv_dma(s_src_, tmp):
        L = []
        for m in range(2):
            L.append([f"s_add_u32 m0, s{s_kxm}, {L_KX + m*1024 - m*128}",
                      f"buffer_load_dwordx4 v{gKX}, {W}, s{s_src_} offen offset:{m*128} sc1 lds"])
        return L
    stamp(A, opt, 2, vt=(T0, T1, T2))
    s_tag, s_tagn, s_dm4, s_dm1, s_lo, s_rng = 41, 42, 43, 44, 45, 46
    s_pcur, s_pc2, s_pst, s_vw, s_vr, s_mlo, s_mro, s_ar = range(64, 72)
    XO_ = {r: (r + 8 if r < 70 else r - 22) for r in range(64, 72)}
    s_cp = 50
    ST0 = 78
    s_w3 = 39
    A("s_cmp_eq_u32 s5, 3")
    A(f"s_cselect_b32 s{s_w3}, 0, {OOB:#x}")
    A(f"v_mov_b32 v{T1}, {OOB:#x}")
    A(f"v_lshlrev_b32 v{T0}, 5, v{vA4}")
    A(f"v_cmp_gt_u32 vcc, 16, v{vA4}")
    A(f"v_cndmask_b32 v{gPR}, v{T1}, v{T0}, vcc")
    A(f"s_cmp_eq_u32 s{s_isred}, 0")
    A(f"s_cselect_b32 s{s_prog}, {OOB:#x}, s{s_prog}")
    A(f"v_writelane_b32 v{gPR}, s{s_prog}, 4")
    A("s_cmp_eq_u32 s5, 3")
    A(f"s_cselect_b32 s{s_prog}, 0, {OOB:#x}")
    A(f"s_or_b32 s{s_prog}, s{s_prog}, 512")
    A(f"v_mov_b32 v{vSPARE}, v{T1}")
    A(f"v_writelane_b32 v{vSPARE}, s{s_prog}, 0")
    A(f"v_and_b32 v{T0}, 0x80, v{vA8}")
    A(f"v_lshrrev_b32 v{T0}, 3, v{T0}")
    A(f"v_xor_b32 v{vA8}, v{vA8}, v{T0}")
    A(f"s_mov_b32 s{s_step}, -1")
    A(f"s_mov_b32 s{s_tagn}, 0")
    A(f"s_mov_b32 s35, 1")
    A(f"s_mov_b32 s{s_cp}, s{s_csc}")
    A(f"s_mov_b32 s{s_cp+1}, s{s_csc}")
    A(f"s_add_u32 s{s_pcur}, s{s_pb}, s48")
    A(f"s_mul_i32 s{s_pst}, s5, {20*2048}")
    A(f"s_lshl_b32 s{s_t0}, s4, 6")
    A(f"s_add_u32 s{s_pst}, s{s_pst}, s{s_t0}")
    A(f"s_add_u32 s{s_pst}, s{s_pst}, s{s_pb}")
    A(f"s_mov_b32 s{s_vw}, s{s_vxw}")
    A(f"s_mov_b32 s{s_vr}, s{s_vxr}")
    A(f"s_mov_b32 s{s_mlo}, s{s_mlb}")
    A(f"s_mov_b32 s{s_mro}, s{s_mrw}")
    A(f"s_mov_b32 s{s_ar}, s{s_mrr}")
    for r, d in ((s_pcur, 32*5120), (s_pst, 32*5120), (s_vw, XSL), (s_vr, XSL), (s_mlo, 8192), (s_mro, XSL), (s_ar, XSL)):
        A(f"s_add_u32 s{XO_[r]}, s{r}, {d}")
        A(f"s_xor_b32 s{XO_[r]}, s{XO_[r]}, s{r}")
    for r in (s_pcur, s_pst, s_vw, s_vr, s_ar):
        A(f"s_xor_b32 s{r}, s{r}, s{XO_[r]}")
    A(f"s_lshl_b32 s{s_dm4}, s5, 10")
    A(f"s_lshl_b32 s{s_dm1}, s5, 8")
    A(f"s_add_u32 s{s_dm1}, s{s_dm1}, 4096")
    A(f"s_mov_b32 s{s_lo}, {(127-64) << 23:#x}")
    A(f"s_mov_b32 s{s_rng}, {128 << 23:#x}")
    if opt.stamps:
        for i in range(10): A(f"s_mov_b32 s{ST0+i}, 0")
        A(f"s_memtime s[90:91]")
        A("s_waitcnt lgkmcnt(0)")
        A(f"s_mov_b32 s{ST0+10}, s90")
    if opt.force_slow: A(f"s_mov_b32 s{s_mode}, 2")
    A("s_cmp_eq_u32 s3, 0")
    A("s_cbranch_scc1 C_GO0")
    A(f"s_cmp_eq_u32 s{s_mode}, 1")
    A("s_cbranch_scc1 CF1_ENTRY")
    A("s_branch CS1_ENTRY")
    A.label("C_GO0")
    A(f"s_cmp_eq_u32 s{s_mode}, 1")
    A("s_cbranch_scc0 CS0_ENTRY")

    def smf(acc, a, b): return f"v_smfmac_f32_16x16x64_bf16 {v(acc,4)}, {v(a,4)}, {u(b,8)}, v{vIDX}"
    tr_names = []
    def stampc(i):
        if opt.trace:
            mark(f"c{i}")
            if i == 5: trace_dump()
            return
        if not (opt.stamps and (opt.smask >> i) & 1): return
        A(f"s_memtime s[90:91]")
        A("s_waitcnt lgkmcnt(0)")
        A(f"s_sub_u32 s91, s90, s{ST0+10}")
        A(f"s_add_u32 s{ST0+i}, s{ST0+i}, s91")
        A(f"s_mov_b32 s{ST0+10}, s90")
    sel = opt.marks.split(',')
    def mark(name):
        if opt.trace and name in sel:
            k = sel.index(name)
            A(f"{'s_memrealtime' if opt.trace == 2 else 's_memtime'} s[{78+2*k}:{79+2*k}]")
    def trace_dump():
        L = A.newlabel("TD")
        A(f"s_cmp_eq_u32 s{s_step}, {opt.tstep}")
        A(f"s_cbranch_scc0 {L}")
        A("s_waitcnt lgkmcnt(0)")
        for k in range(10): A(f"v_mov_b32 v{LAND+k}, s{78+2*k}")
        A(f"s_lshl_b32 s{s_t0}, s2, 2")
        A(f"s_add_u32 s{s_t0}, s{s_t0}, s5")
        A(f"s_lshl_b32 s{s_t0}, s{s_t0}, 6")
        A(f"s_add_u32 s{s_t0}, s{s_t0}, {WS_TS + 2*MB:#x}")
        A("s_mov_b64 exec, 1")
        for k in range(3): A(f"buffer_store_dwordx4 {v(LAND+4*k,4)}, off, {W}, s{s_t0} offset:{16*k}")
        A("s_mov_b64 exec, -1")
        A.label(L)
    def weave(mf, fill, nm=None):
        for t in fill.get(-1, []): A(t)
        for i, m in enumerate(mf):
            A(m)
            if nm: mark(f"{nm}{i}")
            for t in fill.get(i, []): A(t)
    def tagchk(regs, tag):
        r = list(regs); L = []; t = []
        while len(r) >= 2:
            d = TG + len(t); t.append(d)
            L.append(f"v_bitop3_b32 v{d}, v{r[0]}, v{r[1]}, s{tag} bitop3:0x7e"); r = r[2:]
        if r: L.append(f"v_bitop3_b32 v{t[0]}, v{t[0]}, v{r[0]}, s{tag} bitop3:0xf6")
        if len(t) == 4:
            L.append(f"v_or3_b32 v{t[0]}, v{t[0]}, v{t[2]}, v{t[3]}")
        L.append(f"v_bitop3_b32 v{t[0]}, v{t[0]}, v{t[1]}, {0 if opt.solo else 1} bitop3:0xa8")
        L.append(f"v_cmp_ne_u32 vcc, 0, v{t[0]}")
        return L

    def loop(P, sc, gam):
        ld = lambda reg, va, so, off=0: f"buffer_load_dwordx4 {v(reg,4)}, v{va}, {W}, s{so} offen offset:{off} sc1"
        ld1 = lambda reg, va, so: f"buffer_load_dword v{reg}, v{va}, {W}, s{so} offen sc1"
        tog = lambda r: f"s_xor_b32 s{r}, s{r}, s{XO_[r]}"
        tagv = lambda L, t: [x + (f" ; @vm:{t}" if x.startswith('buffer') else "") for x in L]
        WVL = [LAND, LAND + 16, LAND + 32, AR[1], LAND]
        def wv_reads(t): return [f"ds_read_b128 {v(WVL[t]+4*q,4)}, v{aRES} offset:{t*4096 + q*1024}" for q in range(4)]
        s_al, s_vo, s_vxa, s_itag, s_vm = 36, 37, 38, 35, 59
        RQ, RQ4 = AR[0], SP
        r_ld = [ld(RQ, aMW, s_ar), ld1(RQ4, aM4, s_ar),
                f"s_add_u32 m0, s{s_dm4}, {L_MR}", f"buffer_load_dwordx4 v{aMW}, {W}, s{s_ar} offen sc1 lds",
                f"s_add_u32 m0, s{s_dm1}, {L_MR}", f"buffer_load_dword v{aM4}, {W}, s{s_ar} offen sc1 lds"]
        r_regs = [RQ + i for i in range(4)] + [RQ4]
        r_reads = [f"ds_read_b128 {v(AR[j],4)}, v{vA16} offset:{L_MR + j*1024}" for j in range(5)]
        late = []
        warm = f"v_max_i32 v{vM2}, v{vA16}, v{vA8}"
        def filler(lst, n):
            for i in range(n): A(lst.pop(0) if lst else warm)
        def cnt(k, inc):
            if opt.stamps and not opt.trace and not opt.nocnt: A(f"s_add_u32 s{ST0+k}, s{ST0+k}, {inc}")
        sv = lambda t: [smf(aV[0], AL[t], WVL[t]), smf(aV[1], AL[t], WVL[t] + 8)]
        sq = lambda R, t, T: [smf(aQ[0], R[t], WQ(T, 0)), smf(aQ[1], R[t], WQ(T, 1))]
        sk = lambda R, t, T: [smf(aK[0], R[t], WK(T, 0)), smf(aK[1], R[t], WK(T, 1))]
        mr_st = f"buffer_store_dword v{vM}, v{gMO}, {W}, s{s_mro} offen sc1"

        wvall = [x for t in range(4) for x in wv_reads(t)]
        T4 = vM
        l_regs = [AL[0] + i for i in range(4)] + [T4]
        lc = tagchk(l_regs, s_tag)
        s_tnn = 16
        pvv = [f"v_mov_b32 v{AL[0]+i}, s{s_itag}" for i in range(4)] + [f"v_mov_b64 {v(ACC+2*i,2)}, 0" for i in range(12)] + \
              [f"v_xor_b32 v{AL[j]}, {j << 10}, v{aMW}" for j in range(1, 4)] + [f"v_xor_b32 v{aKX}, 8192, v{aKX}"]
        sal = [f"s_max_i32 s{s_t2}, s{s_step}, 0", f"s_add_u32 s{s_step}, s{s_step}, 1", f"s_add_u32 s{s_t0}, s{s_step}, 1",
               f"s_bfe_u32 s{s_tnn}, s{s_t0}, 0x10001", f"s_mov_b32 s{s_vo}, s{s_vw}", tog(s_vw), tog(s_vr), tog(s_pst), tog(s_ar),
               f"s_add_u32 s{s_vxa}, s{s_kv}, {WS_VO:#x}", f"s_add_u32 s{s_km}, s{s_vm}, {4096 - 2048*gam}", f"s_add_u32 s{s_vm}, s{s_kv}, s34",
               f"s_add_u32 s{s_kv}, s{s_kv}, {0 if opt.kvsame else 32*16384}", f"s_and_b32 s{s_t1}, s{s_t0}, 3\ns_cselect_b32 s{s_t1}, 0, {0 if opt.kvsame else 8192}",
               f"s_xor_b32 s{s_kv}, s{s_kv}, s{s_t1}", f"s_xor_b32 s{s_kxm}, s{s_kxm}, 8192", r_ld[2]]
        units = []
        for i in range(16): units.append("\n".join([wvall[i]] + pvv[i*20//16:(i+1)*20//16] + sal[i*len(sal)//16:(i+1)*len(sal)//16]))
        ne = max(opt.ne, 4)
        A(".p2align 6, , 63") if False else None
        A(f"s_branch {P}_ENTRY")
        A(".p2align 6")
        for i in range(opt.pad0): A("s_nop 0")
        A.label(f"{P}_ENTRY")
        A(f"s_cmp_eq_u32 s{s_isred}, 0")
        A(f"s_cbranch_scc0 {P}_PUB0")
        if opt.prio: A(f"s_setprio {opt.prio}")
        A.label(f"{P}_TOPN")
        for x in units[:ne]: A(x)
        filler([], opt.nwarm)
        A("s_barrier")
        A.label(f"{P}_TOP2")
        i0 = len(A.ins)
        mark('tp')
        if opt.steps:
            A("s_memrealtime s[90:91]")
            A("s_memtime s[92:93]")
            A(f"s_lshl_b32 s94, s{s_step}, 3")
            A("s_waitcnt lgkmcnt(0)")
            A(f"v_mov_b32 v{TG}, s90")
            A(f"v_mov_b32 v{TG+1}, s92")
            A(f"v_mov_b32 v{TG+2}, s94")
            A(f"ds_write_b64 v{TG+2}, {v(TG,2)} offset:22528")
        A(f"s_mov_b32 s{s_al}, s{s_mlo}")
        A(f"v_mov_b32 v{T4}, s{s_itag}")
        pv = [f"s_mov_b32 s{s_tag}, s{s_tagn}\ns_mov_b32 s{s_tagn}, s{s_tnn}\ns_xor_b32 s{s_itag}, s{s_tnn}, 1\ns_lshl1_add_u32 s{s_t2}, s{s_t2}, s{s_itag}\n" + warm,
              "\n".join([tog(s_mlo), tog(s_mro), tog(s_pcur), warm])] + units[ne:]
        lf = lambda L: [x.replace(" sc1", ("", " nt", " sc0")[opt.ldf] + " sc1" if opt.ldf != 1 else " nt") for x in L]
        l_ld = lf([ld(AL[0], aMW, s_al), ld1(T4, aM4, s_al)])
        if opt.l1:
            filler(pv, opt.ld1)
            for k in range(opt.lnf):
                if k: filler(pv, opt.lgap)
                for x in l_ld: A(x)
            filler(pv, max(opt.lw, len(pv)))
            A(f"s_cmp_ge_u32 s{s_t0}, s{s_rdy}")
            A(f"s_cbranch_scc1 {P}_KVW")
            A.label(f"{P}_KVB")
            mark('lb')
            A("; @DRAINLDS")
            A.label(f"{P}_LC")
            A(f"s_waitcnt vmcnt({2*(opt.lnf-1)})")
            for c in lc: A(c)
            A(f"ds_write_b128 v{aMW}, {v(AL[0],4)} offset:{L_ML}")
            A(f"s_cbranch_vccnz {P}_LS")
            def l_retry():
                A.label(f"{P}_LS")
                A("s_mov_b64 exec, vcc")
                for t in l_ld: A(t)
                A("s_mov_b64 exec, -1")
                cnt(8, 1)
                filler([], opt.lrf)
                spin_fail(f"{P}_LC")
            late.append(l_retry)
        else:
            filler(pv, opt.ld1)
            for k in range(opt.lnf - 1):
                for x in l_ld: A(x)
                filler(pv, opt.lgap)
            filler(pv, len(pv))
            A(f"s_cmp_ge_u32 s{s_t0}, s{s_rdy}")
            A(f"s_cbranch_scc1 {P}_KVW")
            A.label(f"{P}_KVB")
            A("; @DRAINLDS")
            mark('la')
            A.label(f"{P}_LS")
            for x in tagv(l_ld, 'l'): A(x)
            A("s_mov_b64 exec, -1")
            for k in range(opt.lchk):
                for c in lc: A(c)
                if k == 0:
                    cnt(8, 1)
                    A(f"s_sub_u32 s{s_spin}, s{s_spin}, 1")
                    A("s_cbranch_scc1 C_FAIL")
                filler([], opt.lfv)
                if k < opt.lchk - 1: A(f"s_cbranch_vccz {P}_LOK")
            A("s_mov_b64 exec, vcc")
            A(f"s_cbranch_vccnz {P}_LS")
            A("s_mov_b64 exec, -1")
            A.label(f"{P}_LOK")
            A(f"ds_write_b128 v{aMW}, {v(AL[0],4)} offset:{L_ML}")
        if opt.b0p: A("s_barrier")
        stampc(0)
        lr = [f"ds_read_b128 {v(AL[j],4)}, v{AL[j]} offset:{L_ML}" for j in range(1, 4)] + [f"ds_read_b128 {v(AL[4],4)}, v{vA16} offset:{L_ML+4096}"]
        KX, VO, XU, VX = LAND, LAND + 32, LAND + 36, LAND + 40
        XQ = AL[0]; XK = AR[0]; PX = AL[4]; vPM = XU
        kxr = [f"ds_read_b128 {v(KX+8*uu+4*m,4)}, v{aKX} offset:{L_KX+uu*2048+m*1024}" for m in range(2) for uu in range(4)]
        xrd = lambda R: [f"ds_read_b64_tr_b16 {v(R+4*uu+2*m,2)}, v{(vA8, XU + 2)[m]} offset:{L_X + uu*1024 + m*512}" for uu in range(4) for m in range(2)]
        mf = sv(0) + sq(AL, 0, 0) + sk(AL, 0, 0) + sv(1) + sv(2) + sv(3) + sq(AL, 1, 1) + sv(4)
        for t in range(2, 5): mf += sq(AL, t, t)
        for t in range(1, 5): mf += sk(AL, t, t)
        for t in range(5): mf += sq(AR, t, 5 + t)
        for t in range(5): mf += sk(AR, t, 5 + t)
        N = 50
        rl = tagv(r_ld, 'r'); w4 = wv_reads(4)
        dm = [x for gq_ in kv_dma(s_kv, None) for x in gq_]
        vxl = tagv([f"buffer_load_dwordx4 {v(VX+4*m,4)}, v{gVX}, {W}, s{s_vxa} offen offset:{m*256} sc1" for m in range(2)], 'vx')
        st1 = lambda r, va, so, off=0: f"buffer_store_dword v{r}, v{va}, {W}, s{so} offen offset:{off} sc1"
        add2 = lambda a: [f"v_add_f32 v{a+i}, v{a+i}, v{a+2+i}" for i in range(2)]
        vv = [add2(aV[t]) + [f"v_cvt_pk_bf16_f32 v{VO+2*t}, v{aV[t]}, v{aV[t]+1}", f"v_and_or_b32 v{VO+2*t}, v{VO+2*t}, -2, s{s_tag}"] for t in range(2)]
        rc = tagchk(r_regs, s_tag)
        lV = [f"buffer_load_dword v{VO+1+2*i}, v{vA4}, {W}, s{s_vr} offen offset:{256*i} sc1" for i in range(2)]
        w32 = f"ds_write_b32 v{aM4}, v{T4} offset:{L_ML}"
        F = {}
        mvi = f"v_mov_b32 v{SP+2}, s{s_t2}"
        if opt.b0p:
            F.update({0: [w32, rl[0]], 1: [rl[1]], 2: ["; @WAITLDS", "s_barrier", lr[0]], 3: [lr[1], rl[3]], 4: [lr[2], rl[4]],
                      5: [lr[3]], 6: [w4[0], rl[5]]})
        else:
            F.update({0: [w32], 2: ["; @WAITLDS", "s_barrier", lr[0]], 3: [lr[1], rl[0]], 4: [lr[2], rl[1]],
                      5: [lr[3]], 6: [w4[0], rl[3]], 8: [rl[4]], 10: [rl[5]]})
        def put(g, L): F.setdefault(g, []).extend(L)
        put(7, [w4[1]]); put(8, [w4[2]]); put(9, [w4[3]]); put(8, [mvi]); put(11, [f"v_xor_b32 v{XU+2}, 8, v{vA8}"])
        put(13, ["; @DRAINLDS"])
        pubs = [st1(XW + gam, vA4, s_km, 256 * gam), st1(SP + 2, vSPARE, s_vo), st1(VO, vA4, s_vm), st1(VO + 2, vA4, s_vm, 256)]
        put(14, ["s_nop 1"]); put(15, [kxr[0], "s_nop 0"]); put(16, [kxr[1], "s_nop 0"])
        if opt.vfast:
            put(17, vv[0]); put(18, [st1(VO, vA4, s_vw)] + vv[1]); put(19, [st1(VO + 2, vA4, s_vw, 256)]); gs = 20
        else:
            put(17, vv[0][0:2]); put(18, vv[0][2:4]); put(19, [st1(VO, vA4, s_vw)] + vv[1][0:2]); put(20, vv[1][2:4])
            put(21, [st1(VO + 2, vA4, s_vw, 256)]); gs = 22
        if opt.vxg < 0:
            put(gs, [kxr[2], vxl[0]]); put(gs + 1, [kxr[3], vxl[1]])
            if opt.kxlate == 5: put(gs - 1, [dm[0]]); put(26, [dm[1]])
        else:
            F[opt.vxg].insert(0, vxl[0]) if opt.vxg in F else put(opt.vxg, [vxl[0]])
            F[14] = [vxl[1], "s_nop 0"]
            put(gs, [kxr[2]]); put(gs + 1, [kxr[3]])
        pg = [int(x) for x in opt.pubg.split(',')]
        pub_late = list(zip(pg, pubs))
        g = 30 - opt.rlead
        put(g, ["; @WAITVM r"] + rc[0:2]); put(g + 1, rc[2:5])
        gb_ = g + 3
        put(gb_, [f"s_cbranch_vccnz {P}_RS", f"{P}_ROK:", "s_barrier", r_reads[0]])
        for j in range(1, 5): put(gb_ + j, [r_reads[j]])
        for j in range(4): put(gb_ + 5 + j, [kxr[4 + j]])
        g = gb_ + 9
        if opt.inv:
            put(g, [st1(SP + 2, gPR, s_vo)])
        for i, x in enumerate(tagv(lV, 'v0')): put(max(opt.vr_gap, g + 2) + i, [x])
        for g_, x in pub_late:
            L = F.setdefault(g_, []); k = len(L)
            while k > 0 and L[k-1].startswith('v_'): k -= 1
            L.insert(k, x)
        def r_retry():
            A.label(f"{P}_RS")
            cnt(9, 1)
            A("s_mov_b64 exec, vcc")
            for t in r_ld: A(t)
            A("s_mov_b64 exec, -1")
            A("s_waitcnt vmcnt(0)")
            for c in rc: A(c)
            A(f"s_cbranch_vccz {P}_ROK")
            spin_fail(f"{P}_RS")
        late.append(r_retry)
        qd = XU if opt.uni else XW
        mul2 = lambda a: [f"v_mul_f32 v{a+i}, s{s_csc}, v{a+i}" for i in range(2)]
        qq = add2(aQ[0]) + mul2(aQ[0]) + add2(aQ[1]) + mul2(aQ[1]) + [f"v_cvt_pk_bf16_f32 v{qd+t}, v{aQ[t]}, v{aQ[t]+1}" for t in range(2)]
        qwr = f"ds_write2_b32 v{aXW}, v{qd}, v{qd+1} offset0:0 offset1:64"
        for g_ in (38, 39, 40):
            if len(F.get(g_, [])) < 2: put(g_, ["s_nop 1"])
        if opt.uni:
            for i, x in enumerate(qq): put(41 + (i * 7) // 10, [x])
            put(48, [qwr])
        else:
            per = opt.qper
            for i, x in enumerate(qq): put(41 + i // per, [x])
            gw = 41 + (len(qq) - 1) // per
            put(gw, [qwr])
            gb = min(gw + opt.qw, 48)
            xq = xrd(XQ)
            put(gb, ["; @WAITLDS", "s_barrier"] + xq[0:1])
            k = 1
            for g_ in range(gb + 1, 49): put(g_, xq[k:k+2]); k += 2
            put(49, xq[k:])
        weave(mf, F, 'l')
        stampc(2)
        S0, S1, SM, LL, O0, O1 = ACC + 8, ACC + 12, ACC + 16, ACC + 20, ACC, ACC + 4
        if opt.pk: kk = [f"v_pk_add_f32 {v(aK[t],2)}, {v(aK[t],2)}, {v(aK[t]+2,2)}" for t in range(2)]
        else: kk = [f"v_add_f32 v{aK[i>>1]+(i&1)}, v{aK[i>>1]+(i&1)}, v{aK[i>>1]+2+(i&1)}" for i in range(4)]
        kk += [f"v_cvt_pk_bf16_f32 v{XW+t}, v{aK[t]}, v{aK[t]+1}" for t in range(2)]
        mf = []
        for m, Sx in ((0, S0), (1, S1)):
            for uu in range(4):
                mf.append(f"v_mfma_f32_16x16x32_bf16 {v(Sx,4)}, {v(KX+8*uu+4*m,4)}, {v(XQ+4*uu,4)}, {'0' if uu == 0 else v(Sx,4)}")
        xk = xrd(XK)
        E = [SP, SP + 1, SP + 2, SP + 3]
        vchk = [f"v_bitop3_b32 v{TG}, v{VO+1}, v{VO+3}, s{s_tag} bitop3:0x7e", f"v_and_b32 v{TG}, {0 if opt.solo else 1}, v{TG}", f"v_cmp_ne_u32 vcc, 0, v{TG}"]
        wor = [f"ds_read_b128 {v((LAND+4*q) if q < 8 else (AR[0]+4*(q-8)),4)}, v{aRES} offset:{20480 + q*1024}" for q in range(10)]
        WO0 = lambda t: LAND + 8 * t if t < 4 else AR[0]
        if opt.uni:
            for t in range(2):
                for x in kk[(1 if opt.pk else 2)*t:(1 if opt.pk else 2)*(t+1)]: A(x)
                A(f"v_cvt_pk_bf16_f32 v{XW+t}, v{aK[t]}, v{aK[t]+1}")
            A(f"ds_write2_b32 v{aXW}, v{XW}, v{XW+1} offset0:1 offset1:65")
            for x in tagv(lV, 'v1'): A(x)
            A(f"s_cmp_eq_u32 s{s_step}, 63")
            filler([], opt.uf)
            A("; @WAITLDS")
            A("s_barrier")
            for x in xrd(XQ): A(x)
            A(f"s_cbranch_scc1 C_LAST{gam}")
            mf += [f"v_mfma_f32_16x16x32_bf16 {v(SM,4)}, {v(XQ+4*uu,4)}, {v(XQ+4*uu,4)}, {'0' if uu == 0 else v(SM,4)}" for uu in range(4)]
            fill = {5: ["s_nop 3"], 6: [f"v_exp_f32 v{E[0]}, v{S0}"], 7: [f"v_exp_f32 v{E[1]}, v{S0+1}"], 8: [f"v_exp_f32 v{E[2]}, v{S0+2}"],
                    9: [f"v_exp_f32 v{E[3]}, v{S0+3}", f"v_cvt_pk_bf16_f32 v{PX}, v{E[0]}, v{E[1]}"],
                    10: [f"v_cvt_pk_bf16_f32 v{PX+1}, v{E[2]}, v{E[3]}", f"v_exp_f32 v{E[0]}, v{S1}"],
                    11: [f"v_exp_f32 v{E[i]}, v{S1+i}" for i in range(1, 4)]}
            weave(mf, fill, 's')
        else:
            ks = opt.kslot
            fill = {}
            fill.setdefault(ks, []).extend(kk + [f"ds_write2_b32 v{aXW}, v{XW}, v{XW+1} offset0:1 offset1:65"])
            v1 = tagv(lV, 'v1')
            fill.setdefault(opt.vr2, []).extend(v1[0:1]); fill.setdefault(opt.vr2 + 1, []).extend(v1[1:2])
            if opt.kxlate == 3:
                fill[opt.vr2 + 1].append(dm[0]); fill.setdefault(opt.vr2 + 2, []).extend(dm[1:3]); fill.setdefault(opt.vr2 + 3, []).append(dm[3])
            kb = min(ks + opt.kw, 7)
            fill.setdefault(kb - 1, []).extend([f"s_cmp_eq_u32 s{s_step}, 63"])
            fill.setdefault(kb, []).extend(["; @WAITLDS", "s_barrier"] + xk[0:2] + [f"s_cbranch_scc1 C_LAST{gam}"])
            ex0 = [f"v_exp_f32 v{E[i]}, v{S0+i}" for i in range(4)]
            for i in range(2, 8, 2): fill.setdefault(min(kb + i // 2, 7), []).extend(xk[i:i+2])
            for g_ in range(opt.e0, 8): fill.setdefault(g_, []).append(ex0.pop(0))
            weave(mf, fill, 's')
            stampc(3)
            for x in ex0: A(x)
            A(f"v_cvt_pk_bf16_f32 v{PX}, v{E[0]}, v{E[1]}")
            A(f"v_cvt_pk_bf16_f32 v{PX+1}, v{E[2]}, v{E[3]}")
            mf = [f"v_mfma_f32_16x16x32_bf16 {v(SM,4)}, {v(XK+4*uu,4)}, {v(XQ+4*uu,4)}, {'0' if uu == 0 else v(SM,4)}" for uu in range(4)]
            fill = {i: [f"v_exp_f32 v{E[i]}, v{S1+i}"] for i in range(4)}
            if opt.vearly:
                fill[-1] = ["; @WAITVM v0"] + vchk + [dm[0]]
                fill[1] = [f"s_cbranch_vccnz {P}_RV", f"{P}_BV:"] + fill[1]
                fill[2] = [dm[1], dm[2]] + fill[2]
                fill[3] = [dm[3]] + fill[3]
            if opt.kxlate == 4:
                fill[-1] = [dm[0]]; fill[0].insert(0, dm[1]); fill[1].insert(0, dm[2]); fill[2].insert(0, dm[3])
            weave(mf, fill, 'm')
        pvx = [f"v_mfma_f32_16x16x32_bf16 {v(LL,4)}, {v(vONE,4)}, {v(PX,4)}, 0",
               f"v_mfma_f32_16x16x32_bf16 {v(O0,4)}, {v(VX,4)}, {v(PX,4)}, 0",
               f"v_mfma_f32_16x16x32_bf16 {v(O1,4)}, {v(VX+4,4)}, {v(PX,4)}, 0"]
        pvm = [f"v_mfma_f32_16x16x16_bf16 {v(LL,4)}, {v(vH,2)}, {v(vPM,2)}, {v(LL,4)}",
               f"v_mfma_f32_16x16x16_bf16 {v(O0,4)}, {v(VO,2)}, {v(vPM,2)}, {v(O0,4)}",
               f"v_mfma_f32_16x16x16_bf16 {v(O1,4)}, {v(VO+2,2)}, {v(vPM,2)}, {v(O1,4)}"]
        A(f"v_cvt_pk_bf16_f32 v{PX+2}, v{E[0]}, v{E[1]}")
        A(f"v_cvt_pk_bf16_f32 v{PX+3}, v{E[2]}, v{E[3]}")
        if not opt.vearly:
            A("; @WAITVM v0")
            A(vchk[0]); A(vchk[1])
        else: A(wor[0]); A(wor[1])
        A(pvx[0])
        if not opt.vearly: A(vchk[2])
        A(f"v_exp_f32 v{E[0]}, v{SM+2}")
        A(pvx[1])
        A(f"v_exp_f32 v{E[1]}, v{SM+3}")
        A(pvx[2])
        A(f"v_cvt_pk_bf16_f32 v{vPM}, v{E[0]}, v{E[1]}")
        A(f"v_cvt_pk_bf16_f32 v{vPM+1}, v{E[0]}, v{E[1]}")
        A(pvm[0])
        if not opt.vearly:
            A(f"s_cbranch_vccnz {P}_RV")
            A.label(f"{P}_BV")
        mark('bv')
        A(pvm[1])
        A(wor[3 if opt.vearly else 0])
        if opt.kxlate in (1, 2): A(dm[0])
        if opt.kxlate == 5: A(dm[2])
        A(pvm[2])
        A(wor[4 if opt.vearly else 1])
        if opt.kxlate == 1: A(dm[1]); A(dm[2])
        if opt.kxlate == 5: A(dm[3])
        mark('pv')
        CA = AL[0]
        zr = [f"v_mov_b64 {v(CA+2*i,2)}, 0" for i in range(10)]
        A(wor[2])
        if opt.kxlate == 1: A(dm[3])
        A(f"v_rcp_f32 v{vM}, v{LL}")
        A(f"v_subrev_u32 v{vM2}, s{s_lo}, v{LL}")
        A(f"v_cmp_le_u32 vcc, s{s_rng}, v{vM2}")
        OW = AR[2]
        def onorm():
            for tau in range(2):
                for i in range(4): A(f"v_mul_f32 v{E[i]}, v{O0+4*tau+i}, v{vM}")
                for i in range(2): A(f"v_cvt_pk_bf16_f32 v{OW+2*tau+i}, v{E[2*i]}, v{E[2*i+1]}")
                if opt.ow64 and tau == 0: A(f"ds_write_b64 v{aOW}, {v(OW,2)}")
        onorm()
        A(f"s_and_b64 vcc, vcc, {0 if opt.solo else f's[{s_valid}:{s_valid+1}]'}")
        A(f"s_cbranch_scc1 {P}_FB")
        A.label(f"{P}_BF")
        mark('bf')
        if opt.ow64:
            A(f"ds_write_b64 v{aOW}, {v(OW+2,2)} offset:8")
        else:
            A(f"ds_write_b128 v{aOW}, {v(OW,4)}")
        if opt.kxlate == 2: A(dm[1]); A(dm[2])
        for x in zr[:5]: A(x)
        if opt.kxlate == 2: A(dm[3])
        for x in zr[5:]: A(x)
        A("; @WAITLDS")
        A("s_barrier")
        stampc(4)
        OA = ACC + 8
        A(f"ds_read_b128 {v(OA+4,4)}, v{aOR} offset:1024")
        A(f"ds_read_b128 {v(OA,4)}, v{aOR}")
        for x in (wor[5:6] if opt.vearly else wor[3:6]): A(x)
        filler([], opt.ow)
        PO = AR[2]
        mf = []
        for t in range(5): mf += [smf(CA + 4 * t, OA + 4, WO1(t)), smf(CA + 4 * t, OA, WO0(t))]
        def cepi(t):
            c = CA + 4 * t
            if opt.pk: L = [f"v_pk_add_f32 {v(c,2)}, {v(c,2)}, {v(c+2,2)}"]
            else: L = [f"v_add_f32 v{c}, v{c}, v{c+2}", f"v_add_f32 v{c+1}, v{c+1}, v{c+3}"]
            return L + [f"v_cvt_pk_bf16_f32 v{PO+t}, v{c}, v{c+1}", f"v_and_or_b32 v{PO+t}, v{PO+t}, -2, s{s_tag}",
                        f"buffer_store_dword v{PO+t}, v{gRED}, {W}, s{(s_pst, 17, 18, 19, s_pc2)[t]} offen{sc}"]
        fill = {i: [wor[6 + i], f"s_add_u32 s{(17, 18, 19, s_pc2)[i]}, s{s_pst}, {(i+1)*8192}"] for i in range(4)}
        for t in range(3):
            e = cepi(t)
            fill.setdefault(4 + 2 * t, []).extend(e[:2]); fill.setdefault(5 + 2 * t, []).extend(e[2:-1])
            fill.setdefault(min(6 + 2 * t, 9), []).insert(0 if t < 2 else 99, e[-1])
        weave(mf, fill, 'o')
        for t in (3, 4):
            for x in cepi(t): A(x)
        stampc(5)
        A("; @WAITVM v1")
        A(f"s_cmp_eq_u32 s{s_isred}, 0")
        A(f"s_cbranch_scc1 {P}_TOPN")
        RD = AL[4]
        RS = [AR[0], SP]
        eld = lf([ld(RS[0], gEL if opt.inl else vA16, s_pcur, 0), ld(RS[1], gEL if opt.inl else vA16, s_pcur, 1024)])
        e_regs = [RS[0] + i for i in range(4)] + [RS[1] + i for i in range(4)]
        ec = tagchk(e_regs, s_tag)
        if opt.e1:
            un = list(units[:ne])
            filler(un, opt.ed1)
            for k in range(opt.enf):
                if k: filler(un, opt.egap)
                for t in eld: A(t)
            filler(un, max(opt.ew, len(un)))
            mark('eb')
            A.label(f"{P}_EC")
            A(f"s_waitcnt vmcnt({2*(opt.enf-1)})")
            for c in ec[:4]: A(c)
            A(f"v_mfma_f32_16x16x32_bf16 {v(RD,4)}, {v(RS[0],4)}, {v(vSEL,4)}, 0")
            A(f"v_mfma_f32_16x16x32_bf16 {v(RD,4)}, {v(RS[1],4)}, {v(vSEL,4)}, {v(RD,4)}")
            for c in ec[4:]: A(c)
            def e_retry():
                A.label(f"{P}_ES")
                A("s_mov_b64 exec, vcc")
                for t in eld: A(t)
                A("s_mov_b64 exec, -1")
                cnt(8, 0x10000)
                filler([], opt.erf)
                spin_fail(f"{P}_EC")
            late.append(e_retry)
        else:
            A(f"s_xor_b32 s{s_t1}, s{s_tag}, 1")
            for r in e_regs: A(f"v_mov_b32 v{r}, s{s_t1}")
            un = list(units[:ne])
            filler(un, opt.ed1)
            for k in range(opt.enf - 1):
                for t in eld: A(t)
                filler(un, opt.egap)
            filler(un, len(un))
            mark('ea')
            A.label(f"{P}_ES")
            for t in eld: A(t)
            A("s_mov_b64 exec, -1")
            for k in range(opt.echk):
                for c in ec[:4]: A(c)
                A(f"v_mfma_f32_16x16x32_bf16 {v(RD,4)}, {v(RS[0],4)}, {v(vSEL,4)}, 0")
                A(f"v_mfma_f32_16x16x32_bf16 {v(RD,4)}, {v(RS[1],4)}, {v(vSEL,4)}, {v(RD,4)}")
                for c in ec[4:]: A(c)
                if k == 0:
                    cnt(8, 0x10000)
                    A(f"s_sub_u32 s{s_spin}, s{s_spin}, 1")
                    A("s_cbranch_scc1 C_FAIL")
                if k < opt.echk - 1: A(f"s_cbranch_vccz {P}_EOK")
            A("s_mov_b64 exec, vcc")
            A(f"s_cbranch_vccnz {P}_ES")
            A("s_mov_b64 exec, -1")
            A.label(f"{P}_EOK")
        stampc(6)
        if not opt.inl:
            A(f"v_permlane32_swap_b32 v{RD}, v{RD+2}")
            A(f"v_permlane32_swap_b32 v{RD+1}, v{RD+3}")
        A(f"v_add_f32 v{RD}, v{RD}, v{RD+2}")
        A(f"v_add_f32 v{RD+1}, v{RD+1}, v{RD+3}")
        if not opt.inl: A(f"v_permlane16_swap_b32 v{RD}, v{RD+1}")
        if opt.e1: A(f"s_cbranch_vccnz {P}_ES")
        A(f"v_add_f32 v{vM}, v{RD}, v{RD+1}")
        A.label(f"{P}_PUB")
        A(f"v_mov_b32_dpp v{vM2}, v{vM} quad_perm:[1,1,3,3] row_mask:0xf bank_mask:0xf")
        A(f"v_cvt_pk_bf16_f32 v{vM}, v{vM}, v{vM2}")
        A(f"v_and_or_b32 v{vM}, v{vM}, -2, s{s_tagn}")
        A(f"buffer_store_dword v{vM}, v{gMO}, {W}, s{s_mlo} offen{sc}")
        if opt.mrpos < 0: A(mr_st)
        stampc(7)
        A("s_barrier")
        if opt.mrpos == 0: A(mr_st)
        A(f"s_branch {P}_TOP2")
        if opt.drop:
            import re as _re
            A.ins[i0:] = [x for x in A.ins[i0:] if not _re.search(opt.drop.replace('~', ' '), x.text)]
        A.ins[i0:] = resolve_waits(A.ins[i0:])
        A.label(f"{P}_PUB0")
        for x in units[:ne]: A(x)
        A(f"s_branch {P}_PUB")
        for f in late: f()
        A.label(f"{P}_KVW")
        A.label(f"{P}_KVL")
        kv_ready()
        A(f"s_cmp_lt_u32 s{s_t0}, s{s_rdy}")
        A(f"s_cbranch_scc1 {P}_KVD")
        A("s_sleep 1")
        spin_fail(f"{P}_KVL")
        A.label(f"{P}_KVD")
        A(f"s_cmp_eq_u32 s{s_step}, 0")
        A(f"s_cbranch_scc0 {P}_KVB")
        A(f"s_sub_u32 s{s_t1}, s{s_vxa}, {WS_VO:#x}")
        A(f"s_xor_b32 s{s_kxm}, s{s_kxm}, 8192")
        for g_ in kv_dma(s_t1, None):
            for t in g_: A(t)
        A(f"s_xor_b32 s{s_kxm}, s{s_kxm}, 8192")
        A(r_ld[2])
        A("s_waitcnt vmcnt(0)")
        A(f"s_branch {P}_KVB")
        A.label(f"{P}_RV")
        A("s_mov_b64 exec, vcc")
        for x in lV: A(x)
        A("s_mov_b64 exec, -1")
        cnt(9, 0x10000)
        for k in range(2):
            for c in vchk: A(c)
            filler([], 2)
            A(f"s_cbranch_vccz {P}_BV")
        spin_fail(f"{P}_RV")
        A.label(f"{P}_FB")
        sc10 = [S0, S0 + 1, S0 + 2, S0 + 3, S1, S1 + 1, S1 + 2, S1 + 3, SM + 2, SM + 3]
        A(f"v_max3_f32 v{vM}, v{sc10[0]}, v{sc10[1]}, v{sc10[2]}")
        for i in range(3, 9, 2): A(f"v_max3_f32 v{vM}, v{vM}, v{sc10[i]}, v{sc10[i+1]}")
        A(f"v_max_f32 v{vM}, v{vM}, v{sc10[9]}")
        A(f"v_mov_b32 v{vM2}, v{vM}")
        A(f"v_permlane32_swap_b32 v{vM}, v{vM2}")
        A(f"v_max_f32 v{vM}, v{vM}, v{vM2}")
        A(f"v_mov_b32 v{vM2}, v{vM}")
        A(f"v_permlane16_swap_b32 v{vM}, v{vM2}")
        A(f"v_max_f32 v{vM}, v{vM}, v{vM2}")
        for r in sc10: A(f"v_sub_f32 v{r}, v{r}, v{vM}")
        for r in sc10: A(f"v_exp_f32 v{r}, v{r}")
        for i in range(4): A(f"v_cvt_pk_bf16_f32 v{PX+i}, v{sc10[2*i]}, v{sc10[2*i+1]}")
        A(f"v_cvt_pk_bf16_f32 v{vPM}, v{SM+2}, v{SM+3}")
        A(f"v_cvt_pk_bf16_f32 v{vPM+1}, v{SM+2}, v{SM+3}")
        for x in pvx + pvm: A(x)
        A(f"v_rcp_f32 v{vM}, v{LL}")
        onorm()
        A(f"s_branch {P}_BF")

    for gam in range(2):
        loop(f"CF{gam}", ("", " sc0", " nt", " sc0 nt")[opt.stf], gam)
        if opt.fastonly:
            A.label(f"CS{gam}_ENTRY"); A("s_endpgm")
        else: loop(f"CS{gam}", " sc1", gam)
    A.label("C_LAST0")
    A(f"s_add_u32 s{s_km}, s59, 4096")
    A(f"buffer_store_dword v{XW}, v{vA4}, {W}, s{s_km} offen sc1")
    A("s_branch C_LAST")
    A.label("C_LAST1")
    A(f"s_add_u32 s{s_km}, s59, 2048")
    A(f"buffer_store_dword v{XW+1}, v{vA4}, {W}, s{s_km} offen offset:256 sc1")
    A.label("C_LAST")
    A("s_waitcnt vmcnt(0)")
    A("s_barrier")
    A(f"s_or_b32 s{s_t0}, s35, 128")
    A(f"v_mov_b32 v{vM}, s{s_t0}")
    A(f"buffer_store_dword v{vM}, v{vSPARE}, {W}, s37 offen sc1")
    A.label("C_DONE")
    if opt.steps:
        A(f"v_lshlrev_b32 v{T2}, 1, v{vA4}")
        A(f"ds_read_b64 {v(T0,2)}, v{T2} offset:22528")
        A("s_lshl_b32 s90, s2, 9")
        A(f"s_add_u32 s90, s90, {WS_TS + 3*MB:#x}")
        A("s_waitcnt lgkmcnt(0)")
        A(f"buffer_store_dwordx2 {v(T0,2)}, v{T2}, {W}, s90 offen")
        A("s_waitcnt vmcnt(0)")
    stamp(A, opt, 3, vt=(T0, T1, T2))
    if opt.stamps:
        for k in range(12): A(f"v_mov_b32 v{LAND+k}, s{ST0+k}")
        A(f"s_lshl_b32 s90, s2, 2")
        A(f"s_add_u32 s90, s90, s5")
        A(f"s_lshl_b32 s90, s90, 6")
        A(f"s_add_u32 s90, s90, {WS_TS + MB:#x}")
        A("s_mov_b64 exec, 1")
        for k in range(3): A(f"buffer_store_dwordx4 {v(LAND+4*k,4)}, off, {W}, s90 offset:{16*k}")
    A("s_waitcnt vmcnt(0)")
    A("s_endpgm")
    A.label("C_FAIL")
    A(f"v_mov_b32 v{vM}, s{s_step}")
    A(f"v_add_u32 v{vM}, 0x1000, v{vM}")
    A("s_mov_b64 exec, 1")
    A(f"buffer_store_dword v{vM}, off, {D}, 0 offset:{DBG_ERR*4} sc1")
    A("s_waitcnt vmcnt(0)")
    A("s_endpgm")
```

```python
from asmlib import *
from gen import *
from gen_chain import VM

def gen_follow(A, opt):
    W = f"s[{S_WS}:{S_WS+3}]"
    D = f"s[{S_DBG}:{S_DBG+3}]"
    s_t0, s_t1, s_t2, s_spin, s_seg, s_flag = 24, 25, 26, 27, 28, 29
    vL, vA16, vT0, vT1, vT2 = 1, 2, 3, 4, 5
    def spin_fail(lbl, sleep=1):
        A(f"s_sleep {sleep}")
        A(f"s_sub_u32 s{s_spin}, s{s_spin}, 1")
        A(f"s_cbranch_scc0 {lbl}")
        A("s_branch F_FAIL")
    def near(r):
        A(f"s_lshr_b32 s{s_t0}, s{s_seg}, 2")
        A(f"s_xor_b32 s{s_t0}, s{s_t0}, s{S_POL}")
        A(f"s_and_b32 s{s_t0}, s{s_t0}, 1")
        A(f"s_lshl_b32 s{s_t0}, s{s_t0}, 13")
        A(f"s_xor_b32 s{r}, s{r}, s{s_t0}")
    get_pol(A, opt, "F", vT0, s_spin)
    A(f"s_mov_b32 s{s_spin}, {opt.spin}")
    A(f"v_and_b32 v{vL}, 63, v0")
    A(f"v_lshlrev_b32 v{vA16}, 4, v{vL}")
    A(f"s_lshl_b32 s{s_flag}, s3, 10")
    A(f"s_add_u32 s{s_flag}, s{s_flag}, {WS_OFLAG:#x}")
    A("s_cmp_lt_u32 s4, 20")
    A("s_cbranch_scc1 F_ARRIVE")
    A("s_cmp_ge_u32 s4, 28")
    A("s_cbranch_scc1 F_ARRIVE")
    A(f"s_sub_u32 s{s_t0}, s4, 20")
    A(f"s_lshl_b32 s{s_t0}, s{s_t0}, 7")
    A(f"s_add_u32 s{s_flag}, s{s_flag}, s{s_t0}")
    A(f"v_mov_b32 v{vT0}, 0")
    A("s_mov_b64 exec, 1")
    A(f"buffer_store_dword v{vT0}, off, {W}, s{s_flag} sc1")
    A("s_mov_b64 exec, -1")
    A.label("F_ARRIVE")
    A("s_waitcnt vmcnt(0)")
    A("s_barrier")
    A("s_cmp_eq_u32 s5, 0")
    A("s_cbranch_scc0 F_ARRIVED")
    A(f"v_mov_b32 v{vT0}, 1")
    A("s_mov_b64 exec, 1")
    A(f"buffer_atomic_add v{vT0}, off, {D}, 0 offset:{DBG_WBAR*4} sc1")
    A("s_mov_b64 exec, -1")
    A.label("F_ARRIVED")
    stamp(A, opt, 24)
    A("s_cmp_ge_u32 s4, 28")
    A("s_cbranch_scc1 F_END")
    A("s_cmp_ge_u32 s4, 20")
    A("s_cbranch_scc1 F_AT")

    def wait_bar(name):
        A.label(name)
        A(f"buffer_load_dword v{vT0}, off, {D}, 0 offset:{DBG_CHAIN_CNT*4} sc1")
        A(f"buffer_load_dword v{vT1}, off, {D}, 0 offset:{DBG_WBAR*4} sc1")
        A("s_waitcnt vmcnt(0)")
        A(f"v_readfirstlane_b32 s{s_t0}, v{vT0}")
        A(f"v_readfirstlane_b32 s{s_t1}, v{vT1}")
        A(f"s_cmp_ge_u32 s{s_t0}, 64")
        A(f"s_cselect_b32 s{s_t1}, s{s_t1}, 0")
        A(f"s_cmp_ge_u32 s{s_t1}, 192")
        A(f"s_cbranch_scc1 {name}_OK")
        spin_fail(name, 8)
        A.label(name + "_OK")

    SO, SD, SOUT = 32, 36, 40
    A(f"s_load_dwordx2 s[44:45], s[0:1], {KA_WO}")
    A(f"s_load_dwordx2 s[46:47], s[0:1], {KA_WD}")
    A(f"s_load_dwordx2 s[48:49], s[0:1], {KA_OUT}")
    A("s_waitcnt lgkmcnt(0)")
    srd(A, SO, 44, 45, 4096 * 1280); srd(A, SD, 46, 47, 1728 * 1280); srd(A, SOUT, 48, 49, 2048 * 1280)
    vD, aT, gOUT, gG, aRW, aRR, vG, vG1 = 6, 7, 8, 9, 10, 11, 12, 13
    ACA, ACB, RING = 16, 32, 48
    NR = 25
    WR = lambda k: 256 + 4 * k if k < 64 else 148 + 4 * (k - 64)
    s_lds, s_o, s_d, s_par = 50, 51, 52, 53
    A(f"v_lshrrev_b32 v{vT0}, 2, v{vL}")
    A(f"v_mul_u32_u24 v{vT0}, 1280, v{vT0}")
    A(f"v_and_b32 v{vT1}, 3, v{vL}")
    A(f"v_lshl_add_u32 v{vD}, v{vT1}, 4, v{vT0}")
    A(f"s_mul_i32 s{s_lds}, s5, 40960")
    A(f"v_lshrrev_b32 v{vT0}, 5, v{vL}")
    A(f"v_bfe_u32 v{vT1}, v{vL}, 2, 2")
    A(f"v_lshl_add_u32 v{vT0}, v{vT0}, 2, v{vT1}")
    A(f"v_lshlrev_b32 v{vT0}, 6, v{vT0}")
    A(f"v_bfe_u32 v{vT1}, v{vL}, 4, 1")
    A(f"v_lshl_add_u32 v{vT0}, v{vT1}, 5, v{vT0}")
    A(f"v_and_b32 v{vT1}, 3, v{vL}")
    A(f"v_lshl_add_u32 v{vT0}, v{vT1}, 3, v{vT0}")
    A(f"v_add_u32 v{aT}, s{s_lds}, v{vT0}")
    A(f"s_lshl_b32 s{s_t0}, s4, 6")
    A(f"s_mul_i32 s{s_o}, s5, {1024*1280}")
    A(f"s_add_u32 s{s_o}, s{s_o}, s{s_t0}")
    A(f"s_mul_i32 s{s_d}, s5, {432*1280}")
    A(f"s_add_u32 s{s_d}, s{s_d}, s{s_t0}")
    vm = VM(A)
    def dma(k):
        A(f"s_add_u32 m0, s{s_lds}, {(k % 40)*1024}")
        if k < 64:
            vm.issue(f"buffer_load_dwordx4 v{vD}, s[{SO}:{SO+3}], s{s_o} offen lds", k)
            A(f"s_add_u32 s{s_o}, s{s_o}, {16*1280}")
        else:
            vm.issue(f"buffer_load_dwordx4 v{vD}, s[{SD}:{SD+3}], s{s_d} offen lds", k)
            A(f"s_add_u32 s{s_d}, s{s_d}, {16*1280}")
    for k in range(40): dma(k)
    for k0 in range(0, 91, 4):
        ks = [k for k in range(k0, min(k0 + 4, 91))]
        vm.wait(ks[-1])
        for k in ks:
            for m in range(2):
                A(f"ds_read_b64_tr_b16 {u(WR(k)+2*m,2)}, v{aT} offset:{(k%40)*1024 + m*512}")
        A("s_waitcnt lgkmcnt(0)")
        for k in ks:
            if k + 40 < 91: dma(k + 40)
    A(f"v_and_b32 v{vT0}, 31, v{vL}")
    A(f"v_lshlrev_b32 v{gG}, 2, v{vT0}")
    A(f"v_mul_u32_u24 v{vT0}, 1280, v{vT0}")
    A(f"v_lshrrev_b32 v{vT1}, 5, v{vL}")
    A(f"v_lshl_add_u32 v{vT0}, v{vT1}, 3, v{vT0}")
    A(f"s_lshl_b32 s{s_t0}, s4, 6")
    A(f"s_lshl_b32 s{s_t1}, s5, 4")
    A(f"s_add_u32 s{s_t0}, s{s_t0}, s{s_t1}")
    A(f"v_add_u32 v{gOUT}, s{s_t0}, v{vT0}")
    A(f"s_lshl_b32 s{s_t0}, s5, 12")
    A(f"v_add_u32 v{aRW}, s{s_t0}, v{vA16}")
    A(f"s_lshl_b32 s{s_t0}, s5, 10")
    A(f"v_add_u32 v{aRR}, s{s_t0}, v{vA16}")
    A(f"s_lshl_b32 s{s_t0}, s5, 8")
    A(f"s_add_u32 s{s_flag}, s{s_flag}, s{s_t0}")
    A("s_barrier")
    stamp(A, opt, 25, vt=(16, 17, 18))
    wait_bar("F_OPW")
    stamp(A, opt, 26, vt=(16, 17, 18))
    NRG, LA = 23, 22
    s_nx = 54
    vF = [vT0, vT1]
    RG = lambda k: RING + 4 * (k % NRG)
    def addr_next():
        A(f"s_cmp_lt_u32 s{s_nx}, 64")
        A(f"s_cselect_b32 s{s_t1}, s{s_nx}, s{s_seg}")
        A(f"s_mul_i32 s{s_d}, s{s_t1}, {54*2048}")
        A(f"s_mul_i32 s{s_t0}, s5, {27*1024}")
        A(f"s_add_u32 s{s_d}, s{s_d}, s{s_t0}")
        A(f"s_add_u32 s{s_d}, s{s_d}, {WS_H:#x}")
        A(f"s_lshl_b32 s{s_t2}, s{s_t1}, 7")
        A(f"s_add_u32 s{s_t2}, s{s_t2}, {WS_G:#x}")
    def addr_o():
        A(f"s_lshl_b32 s{s_o}, s{s_seg}, 19")
        A(f"s_lshl_b32 s{s_t0}, s5, 17")
        A(f"s_add_u32 s{s_o}, s{s_o}, s{s_t0}")
        A(f"s_add_u32 s{s_o}, s{s_o}, {WS_VO + 8192:#x}")
        near(s_o)
    def issue(k):
        k %= 92
        if k == 0:
            addr_next()
            A(f"buffer_load_dword v{RG(0)}, v{gG}, {W}, s{s_t2} offen sc1")
        elif k <= 27:
            j = k - 1
            A(f"buffer_load_dwordx4 {v(RG(k),4)}, v{vA16}, {W}, s{s_d} offen offset:{(j%4)*1024} sc1")
            if j % 4 == 3: A(f"s_add_u32 s{s_d}, s{s_d}, 4096")
        else:
            j = k - 28
            A(f"buffer_load_dwordx4 {v(RG(k),4)}, v{vA16}, {W}, s{s_o} offen offset:{(j%4)*1024} sc1")
            if j % 4 == 3: A(f"s_add_u32 s{s_o}, s{s_o}, {4096 + (8192 if j % 8 == 7 else 0)}")
    def flags_ld():
        A(f"buffer_load_dword v{vF[0]}, off, {W}, s{s_flag} sc1")
        A(f"buffer_load_dword v{vF[1]}, off, {W}, s{s_flag} offset:128 sc1")
    def flags_ok():
        A(f"v_min_u32 v{vF[0]}, v{vF[0]}, v{vF[1]}")
        A(f"v_readfirstlane_b32 s{s_t0}, v{vF[0]}")
        A(f"s_cmp_gt_u32 s{s_t0}, s{s_seg}")
    def use(k):
        if k == 0: A(f"v_mov_b32 v{vG}, v{RG(0)}")
        elif k <= 27: A(f"v_mfma_f32_32x32x16_bf16 {v(ACB,16)}, {u(WR(64+k-1),4)}, {v(RG(k),4)}, {'0' if k == 1 else v(ACB,16)}")
        else: A(f"v_mfma_f32_32x32x16_bf16 {v(ACA,16)}, {u(WR(k-28),4)}, {v(RG(k),4)}, {'0' if k == 28 else v(ACA,16)}")
    A(f"s_mov_b32 s{s_seg}, s3")
    A(f"s_mov_b32 s{s_nx}, s3")
    flags_ld()
    for k in range(LA): issue(k)
    A(f"buffer_load_dword v14, off, {W}, s{s_flag} sc1")
    A.label("F_OP_LOOP")
    addr_o()
    KG = 28 - LA
    for k in range(KG):
        A(f"s_waitcnt vmcnt({LA})")
        use(k)
        issue(k + LA)
    flags_ok()
    A("s_cbranch_scc1 F_OP_FAST")
    for k in range(KG, 28):
        A(f"s_waitcnt vmcnt({27 - k + (1 if k < LA else 0)})")
        use(k)
    A.label("F_OP_POLL")
    flags_ld()
    A("s_waitcnt vmcnt(0)")
    flags_ok()
    A("s_cbranch_scc1 F_OP_GO")
    spin_fail("F_OP_POLL", 1)
    A.label("F_OP_GO")
    for k in range(28, 28 + LA): issue(k)
    A("s_branch F_OP_O")
    A.label("F_OP_FAST")
    for k in range(KG, 28):
        A(f"s_waitcnt vmcnt({LA if k < LA else LA - 1})")
        use(k)
        issue(k + LA)
    A.label("F_OP_O")
    for k in range(28, 92):
        d = LA - 1 + (2 if k + LA > 92 else 0)
        A(f"s_waitcnt vmcnt({d})")
        use(k)
        if k + LA == 92:
            A(f"s_add_u32 s{s_nx}, s{s_nx}, 6")
            flags_ld()
        issue(k + LA)
    A(f"v_sub_f32 v{vG1}, 1.0, v{vG}")
    for i in range(16): A(f"v_mul_f32 v{ACB+i}, v{ACB+i}, v{vG1}")
    for i in range(16): A(f"v_fmac_f32 v{ACB+i}, v{ACA+i}, v{vG}")
    for q in range(4): A(f"ds_write_b128 v{aRW}, {v(ACB+4*q,4)} offset:{q*1024}")
    A("s_waitcnt lgkmcnt(0)")
    A("s_barrier")
    for q in range(4): A(f"ds_read_b128 {v(ACA+4*q,4)}, v{aRR} offset:{q*4096}")
    A(f"v_xor_b32 v{aRW}, 0x4000, v{aRW}")
    A(f"v_xor_b32 v{aRR}, 0x4000, v{aRR}")
    A(f"s_mul_i32 s{s_t0}, s{s_seg}, {32*1280}")
    A("s_waitcnt lgkmcnt(0)")
    for i in range(4):
        A(f"v_add_f32 v{ACA+i}, v{ACA+i}, v{ACA+4+i}")
        A(f"v_add_f32 v{ACA+8+i}, v{ACA+8+i}, v{ACA+12+i}")
    for i in range(4): A(f"v_add_f32 v{ACA+i}, v{ACA+i}, v{ACA+8+i}")
    A(f"v_cvt_pk_bf16_f32 v14, v{ACA}, v{ACA+1}")
    A(f"v_cvt_pk_bf16_f32 v15, v{ACA+2}, v{ACA+3}")
    A(f"buffer_store_dwordx2 v[14:15], v{gOUT}, s[{SOUT}:{SOUT+3}], s{s_t0} offen")
    A(f"s_mov_b32 s{s_seg}, s{s_nx}")
    A(f"s_cmp_lt_u32 s{s_seg}, 64")
    A("s_cbranch_scc1 F_OP_LOOP")
    stamp(A, opt, 27, vt=(16, 17, 18))
    A("s_branch F_END")

    A.label("F_AT")
    QF, KF, VF, KM, VMm, MSK, SX, SM, PX, PM = 16, 48, 80, 112, 200, 152, 168, 184, 6, 144
    gKM, gVM, vMX, vMY, vSEL = 250, 251, 252, 253, 254
    KR = lambda k: (KF + 8 * k) if k < 4 else (216 + 8 * (k - 4))
    s_h, s_qkv, s_m, s_prog = 30, 31, 32, 33
    A(f"s_sub_u32 s{s_h}, s4, 20")
    A(f"s_lshl_b32 s{s_h}, s{s_h}, 2")
    A(f"s_add_u32 s{s_h}, s{s_h}, s5")
    A(f"s_lshl_b32 s{s_prog}, s{s_h}, 14")
    A(f"s_add_u32 s{s_prog}, s{s_prog}, {WS_X + 2048:#x}")
    A(f"v_and_b32 v{vT0}, 1, v{vL}")
    A(f"v_bfe_u32 v{vT1}, v{vL}, 1, 1")
    A(f"v_lshlrev_b32 v{vT0}, 20, v{vT0}")
    A(f"v_lshl_add_u32 v255, v{vT1}, 12, v{vT0}")
    A(f"s_and_b32 s{s_t0}, s{S_POL}, 1")
    A(f"s_lshl_b32 s{s_t0}, s{s_t0}, 13")
    A(f"s_add_u32 s{s_prog}, s{s_prog}, s{s_t0}")
    A(f"v_and_b32 v{vT0}, 31, v{vL}")
    A(f"v_lshrrev_b32 v{vT1}, 5, v{vL}")
    A(f"v_lshlrev_b32 v{vT2}, 4, v{vT0}")
    A(f"v_and_b32 v{gVM}, 15, v{vL}")
    A(f"v_lshlrev_b32 v{gVM}, 2, v{gVM}")
    A(f"v_lshl_add_u32 v{gVM}, v{vT1}, 7, v{gVM}")
    A(f"v_bfe_u32 v{gKM}, v{vL}, 4, 1")
    A(f"v_lshl_add_u32 v{gVM}, v{gKM}, 8, v{gVM}")
    A(f"v_lshrrev_b32 v{gKM}, 1, v{vT0}")
    A(f"v_lshlrev_b32 v{gKM}, 6, v{gKM}")
    A(f"v_lshl_add_u32 v{gKM}, v{vT1}, 5, v{gKM}")
    A(f"v_mov_b32 v{vSEL}, 0x05040100")
    A(f"v_mov_b32 v{vT2}, 0x07060302")
    A(f"v_and_b32 v{vMX}, 1, v{vL}")
    A(f"v_cmp_eq_u32 vcc, 1, v{vMX}")
    A(f"v_cndmask_b32 v{vSEL}, v{vSEL}, v{vT2}, vcc")
    A(f"v_mov_b32 v{vT2}, {OOB:#x}")
    A(f"v_cmp_gt_u32 vcc, 8, v{vT0}")
    A(f"v_cndmask_b32 v{gKM}, v{vT2}, v{gKM}, vcc")
    A(f"v_lshlrev_b32 v{vT1}, 2, v{vT1}")
    A(f"v_sub_u32 v{vT0}, v{vT0}, v{vT1}")
    A(f"v_mov_b32 v{vT1}, {fbits(-1e30):#x}")
    A(f"v_mov_b32 v{vT2}, 0")
    for R in range(16):
        A(f"v_cmp_gt_i32 vcc, {8*(R>>2)+(R&3)}, v{vT0}")
        A(f"v_cndmask_b32 v{MSK+R}, v{vT2}, v{vT1}, vcc")
    wait_bar("F_ATW")
    A(f"s_mov_b32 s{s_seg}, s3")
    A.label("F_AT_LOOP")
    A(f"s_lshl_b32 s{s_t0}, s{s_seg}, 5")
    A(f"s_add_u32 s{s_t0}, s{s_t0}, s{s_h}")
    A(f"s_lshl_b32 s{s_qkv}, s{s_t0}, 14")
    near(s_qkv)
    A(f"s_xor_b32 s34, s{s_qkv}, 8192")
    A(f"s_add_u32 s{s_m}, s{s_qkv}, {WS_MM + 4096:#x}")
    vm = VM(A)
    for reg, base, tag in ((KF, WS_KQ, 'k'), (QF, WS_KQ, 'q'), (VF, WS_VO, 'v')):
        for hf in range(2):
            A(f"s_add_u32 s{s_t0}, s{34 if tag == 'q' else s_qkv}, {base + hf*4096:#x}")
            for k in range(4):
                vm.issue(f"buffer_load_dwordx4 {v(reg+16*hf+4*k,4)}, v{vA16}, {W}, s{s_t0} offen offset:{k*1024} sc1", tag)
    vm.wait('q')
    for k in range(8):
        c = v(MSK, 16) if k == 0 else v(SX, 16)
        A(f"v_mfma_f32_32x32x16_bf16 {v(SX,16)}, {v(KF+4*k,4)}, {v(QF+4*k,4)}, {c}")
    A.label("F_AT_POLL")
    A("s_mov_b64 exec, 15")
    A(f"buffer_load_dword v{vT0}, v255, {W}, s{s_prog} offen sc1")
    A("s_mov_b64 exec, -1")
    A("s_waitcnt vmcnt(0)")
    for i in range(4): A(f"v_readlane_b32 s{36+i}, v{vT0}, {i}")
    A("s_max_u32 s36, s36, s37")
    A("s_max_u32 s38, s38, s39")
    A(f"s_min_u32 s{s_t0}, s36, s38")
    A(f"s_lshr_b32 s{s_t0}, s{s_t0}, 1")
    A(f"s_cmp_gt_u32 s{s_t0}, s{s_seg}")
    A("s_cbranch_scc1 F_AT_GO")
    spin_fail("F_AT_POLL", 2)
    A.label("F_AT_GO")
    vm = VM(A)
    for k in range(8):
        for j in range(2):
            vm.issue(f"buffer_load_dwordx4 {v(KR(k)+4*j,4)}, v{gKM}, {W}, s{s_m} offen offset:{k*256+j*16} sc1", k)
    A(f"s_add_u32 s{s_t0}, s{s_qkv}, {WS_MM:#x}")
    for et in range(4):
        for gm in range(2):
            for j in range(2):
                vm.issue(f"buffer_load_dword v{VMm+4*et+2*gm+j}, v{gVM}, {W}, s{s_t0} offen offset:{gm*2048 + et*512 + j*64} sc1", 'vm')
    A(f"v_max3_f32 v{vMX}, v{SX}, v{SX+1}, v{SX+2}")
    for i in range(3, 15, 2): A(f"v_max3_f32 v{vMX}, v{vMX}, v{SX+i}, v{SX+i+1}")
    A(f"v_max_f32 v{vMX}, v{vMX}, v{SX+15}")
    for k in range(8):
        vm.wait(k)
        for j in range(4): A(f"v_perm_b32 v{KM+4*k+j}, v{KR(k)+2*j+1}, v{KR(k)+2*j}, v{vSEL}")
        c = "0" if k == 0 else v(SM, 16)
        A(f"v_mfma_f32_32x32x16_bf16 {v(SM,16)}, {v(KM+4*k,4)}, {v(QF+4*k,4)}, {c}")
    A(f"v_max3_f32 v{vMX}, v{vMX}, v{SM}, v{SM+1}")
    A(f"v_max3_f32 v{vMX}, v{vMX}, v{SM+2}, v{SM+3}")
    A(f"v_mov_b32 v{vMY}, v{vMX}")
    A(f"v_permlane32_swap_b32 v{vMX}, v{vMY}")
    A(f"v_max_f32 v{vMX}, v{vMX}, v{vMY}")
    sc = [SX + i for i in range(16)] + [SM + i for i in range(4)]
    for r in sc: A(f"v_sub_f32 v{r}, v{r}, v{vMX}")
    for r in sc: A(f"v_exp_f32 v{r}, v{r}")
    for i in range(8): A(f"v_cvt_pk_bf16_f32 v{PX+i}, v{SX+2*i}, v{SX+2*i+1}")
    for i in range(4): A(f"v_cvt_pk_bf16_f32 v{PM+i}, v{SM+2*(i&1)}, v{SM+2*(i&1)+1}")
    vm.wait('vm')
    OT = lambda et: QF + 16 * et
    for et in range(4):
        A(f"v_mfma_f32_32x32x16_bf16 {v(OT(et),16)}, {v(VF+8*et,4)}, {v(PX,4)}, 0")
    A(f"v_add_f32 v{vMX}, v{sc[0]}, v{sc[1]}")
    for et in range(4):
        A(f"v_mfma_f32_32x32x16_bf16 {v(OT(et),16)}, {v(VF+8*et+4,4)}, {v(PX+4,4)}, {v(OT(et),16)}")
        for r in sc[2+4*et:6+4*et]: A(f"v_add_f32 v{vMX}, v{vMX}, v{r}")
    for et in range(4):
        A(f"v_mfma_f32_32x32x16_bf16 {v(OT(et),16)}, {v(VMm+4*et,4)}, {v(PM,4)}, {v(OT(et),16)}")
        if et == 0:
            for r in sc[18:20]: A(f"v_add_f32 v{vMX}, v{vMX}, v{r}")
            A(f"v_mov_b32 v{vMY}, v{vMX}")
        if et == 1:
            A(f"v_permlane32_swap_b32 v{vMX}, v{vMY}")
            A(f"v_add_f32 v{vMX}, v{vMX}, v{vMY}")
            A(f"v_rcp_f32 v{vMX}, v{vMX}")
    A(f"s_add_u32 s{s_t0}, s34, {WS_VO:#x}")
    for et in range(4):
        for i in range(16): A(f"v_mul_f32 v{OT(et)+i}, v{OT(et)+i}, v{vMX}")
        for i in range(8): A(f"v_cvt_pk_bf16_f32 v{KM+8*et+i}, v{OT(et)+2*i}, v{OT(et)+2*i+1}")
        if et == 2: A(f"s_add_u32 s{s_t0}, s{s_t0}, 4096")
        for ab in range(2):
            A(f"buffer_store_dwordx4 {v(KM+8*et+4*ab,4)}, v{vA16}, {W}, s{s_t0} offen offset:{(et&1)*2048+ab*1024} sc1")
    A("s_waitcnt vmcnt(0)")
    A("s_barrier")
    A("s_cmp_eq_u32 s5, 0")
    A("s_cbranch_scc0 F_AT_NF")
    A(f"s_add_u32 s{s_t0}, s{s_seg}, 1")
    A(f"v_mov_b32 v{vT0}, s{s_t0}")
    A("s_mov_b64 exec, 1")
    A(f"buffer_store_dword v{vT0}, off, {W}, s{s_flag} sc1")
    A("s_mov_b64 exec, -1")
    A.label("F_AT_NF")
    A(f"s_add_u32 s{s_seg}, s{s_seg}, 6")
    A(f"s_cmp_lt_u32 s{s_seg}, 64")
    A("s_cbranch_scc1 F_AT_LOOP")
    stamp(A, opt, 27, vt=(16, 17, 18))
    A("s_branch F_END")
    A.label("F_FAIL")
    A(f"v_mov_b32 v{vT0}, 0x2000")
    A("s_mov_b64 exec, 1")
    A(f"buffer_store_dword v{vT0}, off, {D}, 0 offset:{(DBG_ERR+1)*4} sc1")
    A.label("F_END")
```

```python
import sys, math, struct
from asmlib import *

KNAME = "gated_mix__memory_aug_recurrent_mem_tr__glu_gated_bilinear__prompt_kernel"
MB = 1 << 20
WS_KQ, WS_VO, WS_MM = 0, 32 * MB, 96 * MB
WS_H = 64 * MB
WS_G = 80 * MB
WS_PROG = 80 * MB + 0x10000
WS_KVF = 80 * MB + 0x30000
WS_OFLAG = 80 * MB + 0x20000
WS_P = 81 * MB
WS_ML = 82 * MB
WS_X = 84 * MB
WS_SIZE = 256 * MB
OOB = 0x80000000
SENT = 0x7F817F81
SUSP = 0x7F810000
CSCALE = math.log2(math.e) / math.sqrt(128.0)
def fbits(x): return struct.unpack('<I', struct.pack('<f', x))[0]
KA_X, KA_MEM0, KA_WQ, KA_WK, KA_WV, KA_WO, KA_WG, KA_WU, KA_WD, KA_GW, KA_OUT, KA_DBG, KA_WS = 0, 8, 16, 24, 32, 40, 64, 72, 80, 88, 96, 104, 112
DBG_CHAIN_CNT, DBG_XCC0, DBG_POL, DBG_WBAR, DBG_ERR, DBG_ROT, DBG_KV, DBG_TICKET = 0, 1, 3, 4, 5, 7, 8, 32

S_WS, S_DBG = 8, 12
LDS_BYTES = 163840
NKVB, KVSEG = 16, 4

def srd(A, d, lo, hi, nbytes):
    A(f"s_mov_b32 s{d}, s{lo}")
    A(f"s_and_b32 s{d+1}, s{hi}, 0xffff")
    A(f"s_mov_b32 s{d+2}, {nbytes:#x}")
    A(f"s_mov_b32 s{d+3}, 0x20000")

WS_TS = 90 * MB
def stamp(A, opt, idx, sidx=None, vt=(250, 251, 252), st=(96, 97, 98)):
    if not opt.stamps: return
    L = A.newlabel("ST")
    A("s_cmp_eq_u32 s5, 0")
    A(f"s_cbranch_scc0 {L}")
    A(f"s_memrealtime s[{st[0]}:{st[1]}]")
    A(f"s_memtime s[100:101]")
    A(f"s_lshl_b32 s{st[2]}, s2, 10")
    A(f"s_add_u32 s{st[2]}, s{st[2]}, {WS_TS + idx*8:#x}")
    if sidx is not None:
        A(f"s_lshl_b32 s99, s{sidx[0]}, {sidx[1]}")
        A(f"s_add_u32 s{st[2]}, s{st[2]}, s99")
    A("s_waitcnt lgkmcnt(0)")
    A(f"v_mov_b32 v{vt[0]}, s{st[0]}")
    A(f"v_mov_b32 v{vt[1]}, s100")
    A(f"v_mov_b32 v{vt[2]}, 0")
    A(f"buffer_store_dwordx2 v[{vt[0]}:{vt[1]}], v{vt[2]}, s[{S_WS}:{S_WS+3}], s{st[2]} offen")
    A("s_waitcnt vmcnt(0)")
    A.label(L)

S_POL = 60
def get_pol(A, opt, nm, vt, st):
    A(f"s_cmp_lg_u32 s{S_POL}, 0")
    A(f"s_cbranch_scc1 {nm}_POLD")
    A(f"s_mov_b32 s{st}, {opt.spin}")
    A.label(f"{nm}_POLL")
    A(f"buffer_load_dword v{vt}, off, s[{S_DBG}:{S_DBG+3}], 0 offset:{DBG_POL*4} sc1")
    A(f"buffer_load_dword v{vt+1}, off, s[{S_DBG}:{S_DBG+3}], 0 offset:{DBG_CHAIN_CNT*4} sc1")
    A("s_waitcnt vmcnt(0)")
    A(f"v_readfirstlane_b32 s{S_POL}, v{vt}")
    A(f"v_readfirstlane_b32 s{S_POL+1}, v{vt+1}")
    A(f"s_cmp_ge_u32 s{S_POL+1}, {64 if opt.chain else 0}")
    A(f"s_cselect_b32 s{S_POL}, s{S_POL}, 0")
    A(f"s_cmp_lg_u32 s{S_POL}, 0")
    A(f"s_cbranch_scc1 {nm}_POLD")
    A(f"s_sub_u32 s{st}, s{st}, 1")
    A(f"s_cbranch_scc0 {nm}_POLL")
    A("s_endpgm")
    A.label(f"{nm}_POLD")

class Opt:
    steps = 0; stamps = 0; trace = 0; smask = 0; marks = ''; drop = ''; tstep = 40
    workers = True; chain = True; followers = True; gemm = True
    spin = 200000
    cpre = 1; gpre = 0; mmt = 0; mix = 1; snt = 0; stf = 0; ldf = 0; prio = 0; al8 = 0; pad0 = 0; eps = 0; nimm = 99; epw = 0; epq = 0; krot = 1; prio0 = 1; wvtop = 1; b0p = 1; lbar = 3; lwr = -1; uni = 0; uf = 8; solo = 0; wve = 0; nfill = 0; e0 = 5; ow64 = 1; kvall = 0; krot0 = 0; pol = -1; force_slow = 0
    lreg = 1; ereg = 1; echk = 2; lfv = 0; rpre = 0; lchk = 2; kxe = 1; rg = 6; mrpos = 0; rdly = 0; lwait = 0; lspec = 3; qb = 3; qw = 3; kw = 4; vearly = 0; fastonly = 0; nocnt = 0; erf = 0; lrf = 0; nwarm = 0; e1 = 1; l1 = 1; ne = 8; vfast = 1; vxg = -1; inl = 1; pubg = '12,11,22,23'; qper = 4; ld1 = 10; lgap = 25; lw = 25; lw2 = 8; lnf = 2; rearly = 0
    ed1 = 8; egap = 6; ew = 30; enf = 2
    rlead = 6; kxlate = 4; sgap = 10; inv = 1; ow = 0; kvsame = 0; kmsame = 0; nokm = 0; vr_gap = 44; vr2 = 0; vper = 4; pk = 0; nk = 4; kslot = -1

def gen_gemm(A, opt):
    SX, SW = 16, 20
    s_rb, s_type, s_stride, s_h, s_out, s_sx, s_sw, s_wstep = 24, 25, 26, 27, 28, 29, 30, 31
    s_it, s_t0, s_t1 = 32, 33, 34
    P0, P1 = 36, 38
    s_m0x, s_m0w = 40, 41
    s_wsz, s_j, s_seg = 42, 43, 44
    vXA = [1, 2, 3, 4]
    vWA = [5, 6, 7, 8]
    vDX = [9, 10, 11, 12]
    vDW = [13, 14, 15, 16]
    vL, vT0, vT1, vT2, vOUT, vXB, vDB = 17, 18, 19, 20, 21, 22, 23
    XF = lambda sg, j: 64 + 32 * sg + 4 * j
    WF = lambda sg, i: 80 + 32 * sg + 4 * i
    ACC = lambda i, j: 16 * (4 * i + j)

    A("s_load_dwordx2 s[36:37], s[0:1], %d" % KA_X)
    A("s_waitcnt lgkmcnt(0)")
    srd(A, SX, 36, 37, 2048 * 1280)
    A(f"v_and_b32 v{vL}, 63, v0")
    A(f"v_and_b32 v{vT0}, 31, v{vL}")
    A(f"v_lshrrev_b32 v{vT1}, 5, v{vL}")
    A(f"v_bfe_u32 v{vT2}, v{vL}, 2, 2")
    A(f"v_xor_b32 v{vT1}, v{vT1}, v{vT2}")
    A(f"v_lshlrev_b32 v{vT1}, 4, v{vT1}")
    A(f"v_lshl_add_u32 v{vXB}, v{vT0}, 6, v{vT1}")
    A(f"v_lshrrev_b32 v{vT0}, 5, v{vL}")
    A(f"v_bfe_u32 v{vT1}, v{vL}, 2, 2")
    A(f"v_lshl_add_u32 v{vT0}, v{vT0}, 3, v{vT1}")
    A(f"v_lshlrev_b32 v{vT0}, 7, v{vT0}")
    A(f"v_bfe_u32 v{vT1}, v{vL}, 3, 1")
    A(f"v_lshl_add_u32 v{vT0}, v{vT1}, 6, v{vT0}")
    A(f"v_bfe_u32 v{vT1}, v{vL}, 4, 1")
    A(f"v_lshl_add_u32 v{vT0}, v{vT1}, 5, v{vT0}")
    A(f"v_and_b32 v{vT1}, 3, v{vL}")
    A(f"v_lshl_add_u32 v{vT0}, v{vT1}, 3, v{vT0}")
    A(f"s_lshr_b32 s{s_t0}, s5, 1")
    A(f"s_lshl_b32 s{s_t0}, s{s_t0}, 13")
    A(f"v_add_u32 v{vWA[0]}, s{s_t0}, v{vT0}")
    A(f"v_xor_b32 v{vWA[1]}, 64, v{vWA[0]}")
    A(f"v_add_u32 v{vWA[2]}, 0x10000, v{vWA[0]}")
    A(f"v_add_u32 v{vWA[3]}, 0x10000, v{vWA[1]}")
    A(f"v_lshrrev_b32 v{vT0}, 2, v{vL}")
    A(f"v_mul_u32_u24 v{vT0}, 1280, v{vT0}")
    A(f"v_and_b32 v{vT1}, 3, v{vL}")
    A(f"v_lshrrev_b32 v{vT2}, 4, v{vL}")
    A(f"v_xor_b32 v{vT1}, v{vT1}, v{vT2}")
    A(f"v_lshl_add_u32 v{vDX[0]}, v{vT1}, 4, v{vT0}")
    for n in range(1, 4):
        A(f"v_add_u32 v{vDX[n]}, {n*(16*1280-1024)}, v{vDX[0]}")
    A(f"s_lshl_b32 s{s_m0w}, s5, 12")
    A(f"s_add_u32 s{s_m0w}, s{s_m0w}, 16384")
    A(f"v_lshlrev_b32 v{vOUT}, 4, v{vL}")
    A("s_lshl_b32 s7, s3, 5")
    A("s_add_u32 s7, s7, s4")
    A("s_mov_b32 s6, 0")
    s_pn, s_pout, s_pflag, s_pw = 46, 47, 48, 49
    vFLG, vONEI, PK = 24, 25, 128
    A(f"s_mov_b32 s{s_pn}, 0")
    A(f"s_mov_b32 s{s_pflag}, 0")
    A(f"s_mov_b32 s{s_pout}, 0")
    A(f"v_mov_b32 v{vONEI}, 1")
    A(f"v_mov_b32 v{vFLG}, {OOB:#x}")
    def pub_flag(skip):
        A(f"s_cmp_eq_u32 s{s_pflag}, 0")
        A(f"s_cbranch_scc1 {skip}")
        A(f"buffer_store_dword v{vONEI}, v{vFLG}, s[{S_WS}:{S_WS+3}], s{s_pflag} offen sc1")
        A(f"s_mov_b32 s{s_pflag}, 0")
    if opt.gpre:
        A(f"s_load_dwordx4 s[44:47], s[0:1], {KA_WQ}")
        A(f"s_load_dwordx4 s[48:51], s[0:1], {KA_WV}")
        A("s_lshl_b32 s52, s7, 2")
        A("s_add_u32 s52, s52, s5")
        A(f"s_mul_i32 s52, s52, {7*1024}")
        A(f"v_add_u32 v{vT0}, s52, v{vOUT}")
        A(f"v_add_u32 v{vT1}, 4096, v{vT0}")
        A("s_waitcnt lgkmcnt(0)")
        for p in (46, 48, 44, 50)[:opt.gpre]:
            srd(A, SW, p, p + 1, 640 * 8192)
            for n in range(7):
                A(f"buffer_load_dwordx4 v[24:27], v{vT0 if n < 4 else vT1}, s[{SW}:{SW+3}], 0 offen offset:{(n&3)*1024}")

    A.label("G_ROUND")
    A(f"s_mov_b32 s{s_j}, 2")
    A("s_cmp_eq_u32 s6, 1")
    A("s_cbranch_scc1 G_DEC_R1")
    A("s_cmp_eq_u32 s6, 2")
    A("s_cbranch_scc1 G_DEC_R2")
    A(f"s_mov_b32 s{s_j}, 1")
    A("s_cmp_eq_u32 s6, 3")
    A("s_cbranch_scc1 G_DEC_R3")
    A(f"s_mul_i32 s{s_h}, s7, 43691")
    A(f"s_lshr_b32 s{s_h}, s{s_h}, 18")
    A(f"s_mul_i32 s{s_t0}, s{s_h}, 6")
    A(f"s_sub_u32 s{s_rb}, s7, s{s_t0}")
    A("s_branch G_DEC_KV")
    A.label("G_DEC_R1")
    if opt.mix:
        A(f"s_sub_u32 s{s_t0}, s7, 64")
        A("s_cbranch_scc0 G_DEC_Q")
        A(f"s_lshr_b32 s{s_h}, s7, 1")
        A(f"s_and_b32 s{s_rb}, s7, 1")
        A(f"s_lshl_b32 s{s_rb}, s{s_rb}, 1")
        A(f"s_add_u32 s{s_rb}, s{s_rb}, 6")
        A("s_branch G_DEC_KV")
        A.label("G_DEC_R2")
        A(f"s_sub_u32 s{s_t0}, s7, 96")
        A("s_cbranch_scc0 G_DEC_F4")
        A(f"s_mul_i32 s{s_h}, s7, 43691")
        A(f"s_lshr_b32 s{s_h}, s{s_h}, 17")
        A(f"s_mul_i32 s{s_t0}, s{s_h}, 3")
        A(f"s_sub_u32 s{s_rb}, s7, s{s_t0}")
        A(f"s_lshl_b32 s{s_rb}, s{s_rb}, 1")
        A(f"s_add_u32 s{s_rb}, s{s_rb}, 10")
    else:
        A(f"s_sub_u32 s{s_t0}, s7, 160")
        A("s_cbranch_scc0 G_DEC_Q")
        A(f"s_mul_i32 s{s_h}, s7, 52429")
        A(f"s_lshr_b32 s{s_h}, s{s_h}, 18")
        A(f"s_mul_i32 s{s_t0}, s{s_h}, 5")
        A(f"s_sub_u32 s{s_rb}, s7, s{s_t0}")
        A(f"s_lshl_b32 s{s_rb}, s{s_rb}, 1")
        A(f"s_add_u32 s{s_rb}, s{s_rb}, 6")
    A.label("G_DEC_KV")
    A(f"s_load_dwordx2 s[{P0}:{P0+1}], s[0:1], {KA_WK}")
    A(f"s_load_dwordx2 s[{P1}:{P1+1}], s[0:1], {KA_WV}")
    A("s_waitcnt lgkmcnt(0)")
    A("s_cmp_ge_u32 s5, 2")
    A(f"s_cselect_b32 s{P0}, s{P1}, s{P0}")
    A(f"s_cselect_b32 s{P0+1}, s{P1+1}, s{P0+1}")
    A(f"s_cselect_b32 s{s_type}, 1, 0")
    A(f"s_cselect_b32 s{s_out}, {WS_VO:#x}, {WS_KQ:#x}")
    A(f"s_lshl_b32 s{s_sw}, s{s_h}, 8")
    A(f"s_and_b32 s{s_t0}, s5, 1")
    A(f"s_lshl_b32 s{s_t0}, s{s_t0}, 7")
    A(f"s_add_u32 s{s_sw}, s{s_sw}, s{s_t0}")
    A(f"s_lshl_b32 s{s_t0}, s{s_h}, 14")
    A(f"s_add_u32 s{s_out}, s{s_out}, s{s_t0}")
    A("s_branch G_DEC_QKV")
    if not opt.mix:
        A.label("G_DEC_R2")
        A(f"s_sub_u32 s{s_t0}, s7, 96")
        A("s_cbranch_scc0 G_DEC_F4")
        A(f"s_add_u32 s{s_t0}, s7, 32")
    A.label("G_DEC_Q")
    A(f"s_and_b32 s{s_rb}, s{s_t0}, 7")
    A(f"s_lshl_b32 s{s_rb}, s{s_rb}, 1")
    A(f"s_lshr_b32 s{s_h}, s{s_t0}, 3")
    A(f"s_load_dwordx2 s[{P0}:{P0+1}], s[0:1], {KA_WQ}")
    A("s_waitcnt lgkmcnt(0)")
    A(f"s_mov_b32 s{s_type}, 2")
    A(f"s_lshl_b32 s{s_sw}, s{s_h}, 9")
    A(f"s_lshl_b32 s{s_t0}, s5, 7")
    A(f"s_add_u32 s{s_sw}, s{s_sw}, s{s_t0}")
    A(f"s_lshl_b32 s{s_t0}, s{s_h}, 1")
    A(f"s_lshr_b32 s{s_t1}, s5, 1")
    A(f"s_add_u32 s{s_t0}, s{s_t0}, s{s_t1}")
    A(f"s_lshl_b32 s{s_t0}, s{s_t0}, 14")
    A(f"s_add_u32 s{s_out}, s{s_t0}, {WS_KQ + 8192:#x}")
    A.label("G_DEC_QKV")
    A(f"s_mov_b32 s{s_stride}, 8192")
    A(f"s_mov_b32 s{s_wsz}, {640*8192}")
    A(f"s_mov_b32 s{s_it}, {32*16384}")
    A("s_branch G_DEC_DONE")
    A.label("G_DEC_R3")
    A(f"s_sub_u32 s{s_t0}, s4, 26")
    A("s_cbranch_scc1 G_END")
    A(f"s_mul_i32 s{s_t1}, s3, 6")
    A(f"s_add_u32 s{s_t0}, s{s_t0}, s{s_t1}")
    A(f"s_cmp_ge_u32 s{s_t0}, 32")
    A("s_cbranch_scc1 G_END")
    A(f"s_and_b32 s{s_rb}, s{s_t0}, 15")
    A(f"s_lshr_b32 s{s_h}, s{s_t0}, 4")
    A(f"s_add_u32 s{s_h}, s{s_h}, 12")
    A("s_branch G_DEC_FFN")
    A.label("G_DEC_F4")
    A(f"s_and_b32 s{s_rb}, s{s_t0}, 7")
    A(f"s_lshl_b32 s{s_rb}, s{s_rb}, 1")
    A(f"s_lshr_b32 s{s_h}, s{s_t0}, 3")
    A.label("G_DEC_FFN")
    A(f"s_load_dwordx2 s[{P0}:{P0+1}], s[0:1], {KA_WG}")
    A(f"s_load_dwordx2 s[{P1}:{P1+1}], s[0:1], {KA_WU}")
    A("s_waitcnt lgkmcnt(0)")
    A(f"s_bitcmp1_b32 s5, 0")
    A(f"s_cselect_b32 s{P0}, s{P1}, s{P0}")
    A(f"s_cselect_b32 s{P0+1}, s{P1+1}, s{P0+1}")
    A(f"s_mov_b32 s{s_type}, 3")
    A(f"s_lshl_b32 s{s_sw}, s{s_h}, 8")
    A(f"s_lshr_b32 s{s_t0}, s5, 1")
    A(f"s_lshl_b32 s{s_t1}, s{s_t0}, 7")
    A(f"s_add_u32 s{s_sw}, s{s_sw}, s{s_t1}")
    A(f"s_lshl_b32 s{s_t0}, s{s_t0}, 1")
    A(f"s_lshl_b32 s{s_t1}, s{s_h}, 2")
    A(f"s_add_u32 s{s_h}, s{s_t0}, s{s_t1}")
    A(f"s_lshl_b32 s{s_out}, s{s_h}, 11")
    A(f"s_add_u32 s{s_out}, s{s_out}, {WS_H:#x}")
    A(f"s_mov_b32 s{s_stride}, 3456")
    A(f"s_mov_b32 s{s_wsz}, {640*3456}")
    A(f"s_mov_b32 s{s_it}, {54*2048}")
    A.label("G_DEC_DONE")
    A(f"s_and_b32 s{s_t1}, s5, 1")
    A(f"s_lshl_b32 s{s_t1}, s{s_t1}, s{s_j}")
    A(f"s_lshl_b32 s{s_seg}, s{s_rb}, 2")
    A(f"s_add_u32 s{s_seg}, s{s_seg}, s{s_t1}")
    A(f"s_mul_i32 s{s_t0}, s{s_seg}, s{s_it}")
    A(f"s_add_u32 s{s_out}, s{s_out}, s{s_t0}")
    A(f"s_lshl_b32 s{s_t1}, s{s_t1}, 11")
    A(f"v_add_u32 v{vXA[0]}, s{s_t1}, v{vXB}")
    A(f"v_xor_b32 v{vXA[1]}, 32, v{vXA[0]}")
    A(f"v_add_u32 v{vXA[2]}, 0x10000, v{vXA[0]}")
    A(f"v_add_u32 v{vXA[3]}, 0x10000, v{vXA[1]}")
    A(f"s_lshl_b32 s{s_t0}, s5, s{s_j}")
    A(f"s_lshl_b32 s{s_m0x}, s{s_t0}, 10")
    A(f"s_mul_i32 s{s_t0}, s{s_t0}, {16*1280}")
    A(f"s_mul_i32 s{s_sx}, s{s_rb}, {128*1280}")
    A(f"s_add_u32 s{s_sx}, s{s_sx}, s{s_t0}")
    A(f"s_mov_b32 s{SW}, s{P0}")
    A(f"s_and_b32 s{SW+1}, s{P0+1}, 0xffff")
    A(f"s_mov_b32 s{SW+2}, s{s_wsz}")
    A(f"s_mov_b32 s{SW+3}, 0x20000")
    A(f"s_lshl_b32 s{s_wstep}, s{s_stride}, 5")
    A(f"v_lshrrev_b32 v{vT0}, 3, v{vL}")
    A(f"v_mul_lo_u32 v{vT0}, v{vT0}, s{s_stride}")
    A(f"v_bfe_u32 v{vT1}, v{vL}, 4, 1")
    A(f"v_lshlrev_b32 v{vT1}, 2, v{vT1}")
    A(f"v_and_b32 v{vT2}, 7, v{vL}")
    A(f"v_xor_b32 v{vT1}, v{vT1}, v{vT2}")
    A(f"v_lshl_add_u32 v{vDW[0]}, v{vT1}, 4, v{vT0}")
    A(f"s_lshl_b32 s{s_t0}, s{s_stride}, 3")
    A(f"s_sub_u32 s{s_t0}, s{s_t0}, 1024")
    for n in range(1, 4):
        A(f"v_add_u32 v{vDW[n]}, s{s_t0}, v{vDW[n-1]}")
    s_wrap = 45
    if opt.krot:
        A(f"s_mul_i32 s{s_t0}, s{s_rb}, 5")
        A(f"s_lshr_b32 s{s_t0}, s{s_t0}, 2")
        A(f"s_mul_i32 s{s_t1}, s{s_rb}, {opt.krot0}")
        A("s_cmp_eq_u32 s6, 0")
        A(f"s_cselect_b32 s{s_t0}, s{s_t1}, s{s_t0}")
        A(f"s_sub_u32 s{s_wrap}, 20, s{s_t0}")
        A(f"s_lshl_b32 s{s_t1}, s{s_t0}, 6")
        A(f"s_add_u32 s{s_sx}, s{s_sx}, s{s_t1}")
        A(f"s_mul_i32 s{s_t1}, s{s_t0}, s{s_wstep}")
        A(f"s_add_u32 s{s_sw}, s{s_sw}, s{s_t1}")
    stamp(A, opt, 0, (6, 5), vt=(30, 31, 32))
    A(f"s_cmp_eq_u32 s{s_j}, 2")
    A("s_cbranch_scc1 G4_START")

    def tile(J):
        G = f"G{J}"
        ND = J + 4
        def dma_list(slot):
            L = [[f"s_add_u32 m0, s{s_m0x}, {slot*32768}"]]
            for n in range(J):
                L.append([f"buffer_load_dwordx4 v{vDX[n]}, s[{SX}:{SX+3}], s{s_sx} offen offset:{n*1024} lds"])
            L.append([f"s_add_u32 m0, s{s_m0w}, {slot*32768}", f"s_add_u32 s{s_sx}, s{s_sx}, 64"])
            for n in range(4):
                L.append([f"buffer_load_dwordx4 v{vDW[n]}, s[{SW}:{SW+3}], s{s_sw} offen offset:{n*1024} lds"])
            L.append([f"s_add_u32 s{s_sw}, s{s_sw}, s{s_wstep}"] + ([
                f"s_sub_u32 s{s_wrap}, s{s_wrap}, 1", f"s_cmp_eq_u32 s{s_wrap}, 0", f"s_cselect_b32 s{s_t0}, 1280, 0", f"s_cselect_b32 s{s_t1}, s{s_wsz}, 0",
                f"s_sub_u32 s{s_sx}, s{s_sx}, s{s_t0}", f"s_sub_u32 s{s_sw}, s{s_sw}, s{s_t1}"] if opt.krot else []))
            return L
        def read_list(slot, ks, sg):
            hi = slot >> 1; base = (slot & 1) * 32768
            L = []
            order = [('x', 0), ('w', 0)] + [('x', j) for j in range(1, J)] + [('w', 1), ('w', 2), ('w', 3)]
            for t, i in order:
                if t == 'x':
                    L.append(f"ds_read_b128 {v(XF(sg,i),4)}, v{vXA[2*hi+ks]} offset:{base + i*2048}")
                else:
                    for m in range(2):
                        L.append(f"ds_read_b64_tr_b16 {v(WF(sg,i)+2*m,2)}, v{vWA[2*hi+(i&1)]} offset:{base + 16384 + (i>>1)*4096 + ks*2048 + m*512}")
            return L
        def mfmas(sg, vtype, first):
            L = []
            for i in range(4):
                for j in range(J):
                    d = a_(ACC(i, j), 16)
                    c = "0" if first else d
                    if vtype: L.append(f"v_mfma_f32_32x32x16_bf16 {d}, {v(XF(sg,j),4)}, {v(WF(sg,i),4)}, {c}")
                    else:     L.append(f"v_mfma_f32_32x32x16_bf16 {d}, {v(WF(sg,i),4)}, {v(XF(sg,j),4)}, {c}")
            return L
        def interleave(ms, fill):
            n = len(ms); k = 0
            for g, m in enumerate(ms):
                A(m)
                per = -(-(len(fill) - k) // (n - g)) if len(fill) > n else (1 if k < len(fill) else 0)
                for _ in range(per):
                    for t in fill[k]: A(t)
                    k += 1
        A.label(f"{G}_START")
        for st in range(4):
            for g in dma_list(st):
                for t in g: A(t)
        A(f"s_waitcnt vmcnt({3*ND})")
        A("s_barrier")
        for t in read_list(0, 0, 0): A(t)
        A(f"s_cmp_eq_u32 s{s_type}, 1")
        A(f"s_cbranch_scc1 {G}_LOOP_V")
        def body(st_slot, vtype, first, dma, vm, last):
            A("s_waitcnt lgkmcnt(0)")
            rl = read_list(st_slot, 1, 1)
            per = 1 if J == 4 else 2
            fl = [rl[k:k+per] for k in range(0, len(rl), per)]
            def dst(ab, wv):
                L = A.newlabel("DS")
                return [f"s_cmp_eq_u32 s{s_pw}, {wv}", f"s_cbranch_scc0 {L}",
                        f"buffer_store_dwordx4 {v(PK+8*st_slot+4*ab,4)}, v{vOUT}, s[{S_WS}:{S_WS+3}], s{s_pout} offen offset:{ab*1024} sc1", f"{L}:"]
            if J == 4 and dma:
                while len(fl) < 16: fl.append([])
                fl[0] = fl[0] + [f"s_cmp_eq_u32 s{s_pn}, 0", f"s_cselect_b32 s{s_pw}, 9, s5"]
                for wv in range(4): fl[1 + 4 * wv] = fl[1 + 4 * wv] + dst(0, wv)
            interleave(mfmas(0, vtype, first), fl)
            if last:
                A("s_waitcnt lgkmcnt(0)")
                A("s_barrier")
                interleave(mfmas(1, vtype, False), [])
                return
            A(f"s_waitcnt vmcnt({vm}) lgkmcnt(0)")
            A("s_barrier")
            rl = read_list((st_slot + 1) & 3, 0, 0)
            per = 2 if J == 4 else 3
            fill = [rl[k:k+per] for k in range(0, len(rl), per)]
            if dma:
                dl = dma_list(st_slot)
                grp = [dl[0] + dl[1]] + dl[2:J+1] + [dl[J+1] + dl[J+2]] + dl[J+3:J+5] + [dl[J+5] + dl[J+6]]
                if J == 2: grp = [grp[0] + grp[1], grp[2], grp[3] + grp[4], grp[5]]
                fill += grp
                if J == 4:
                    while len(fill) < 16: fill.append([])
                    mv = [f"v_mov_b64 {v(PK+32*q+8*st_slot+2*r,2)}, {v(PK+32*(q+1)+8*st_slot+2*r,2)}" for q in range(3) for r in range(4)]
                    for wv in range(4): fill[4 * wv] = fill[4 * wv] + dst(1, wv)
                    for i_, x in enumerate(mv): fill[13 + i_ // 4] = fill[13 + i_ // 4] + [x]
                    fill[15] = fill[15] + [f"s_add_u32 s{s_pout}, s{s_pout}, {2048 if st_slot < 3 else 32*16384 - 6144}"]
            interleave(mfmas(1, vtype, False), fill)
        for vtype in (0, 1):
            nm = f"{G}_LOOP_" + ("V" if vtype else "K")
            A.label(nm)
            body(0, vtype, True, True, 2 * ND, False)
            A(f"s_mov_b32 s{s_it}, 0")
            A(f"s_branch {nm}_1")
            A.label(f"{nm}_0")
            body(0, vtype, False, True, 2 * ND, False)
            A.label(f"{nm}_1")
            for sl in (1, 2, 3): body(sl, vtype, False, True, 2 * ND, False)
            if J == 4:
                A(f"s_sub_u32 s{s_pn}, s{s_pn}, 1")
                A(f"s_cbranch_scc0 {nm}_2")
                A(f"s_mov_b32 s{s_pn}, 0")
                pub_flag(f"{nm}_2")
                A.label(f"{nm}_2")
            A(f"s_add_u32 s{s_it}, s{s_it}, 1")
            A(f"s_cmp_lt_u32 s{s_it}, 4")
            A(f"s_cbranch_scc1 {nm}_0")
            body(0, vtype, False, False, 2 * ND, False)
            body(1, vtype, False, False, ND, False)
            body(2, vtype, False, False, 0, False)
            body(3, vtype, False, False, 0, True)
            A("s_branch G_EPI")
    tile(2)
    tile(4)
    A.label("G_EPI")
    pub_flag("G_EPI1")
    A.label("G_EPI1")
    stamp(A, opt, 2, (6, 5), vt=(30, 31, 32))
    A(f"s_cmp_eq_u32 s{s_type}, 3")
    A("s_cbranch_scc1 G_EPI_FFN")
    get_pol(A, opt, "G", vT0, s_it)
    A(f"s_lshr_b32 s{s_t0}, s{s_seg}, 2")
    A(f"s_xor_b32 s{s_t0}, s{s_t0}, s{S_POL}")
    A(f"s_and_b32 s{s_t0}, s{s_t0}, 1")
    A(f"s_lshl_b32 s{s_t0}, s{s_t0}, 13")
    A(f"s_xor_b32 s{s_out}, s{s_out}, s{s_t0}")
    A(f"s_mov_b32 s{s_pout}, s{s_out}")
    A(f"s_lshl_b32 s{s_pn}, 1, s{s_j}")
    A(f"s_cmp_eq_u32 s{s_type}, 2")
    A("s_cbranch_scc1 G_EPI_Q")
    def conv(scale):
        if scale: A(f"s_mov_b32 s{s_t1}, {fbits(CSCALE):#x}")
        k = 0
        for j in range(4):
            if j == 2 and not scale:
                A(f"s_cmp_eq_u32 s{s_j}, 1")
                A("s_cbranch_scc1 G_EPI_CD")
            for i in range(4):
                for ab in range(2):
                    t = 64 + 8 * (k % 4)
                    for r in range(8): A(f"v_accvgpr_read_b32 v{t+r}, a{ACC(i,j)+8*ab+r}")
                    if scale:
                        for r in range(8): A(f"v_mul_f32 v{t+r}, s{s_t1}, v{t+r}")
                    for r in range(4): A(f"v_cvt_pk_bf16_f32 v{PK+4*k+r}, v{t+2*r}, v{t+2*r+1}")
                    k += 1
    if opt.mmt:
        A(f"s_and_b32 s{s_t0}, s{s_out}, {32*MB - 1:#x}")
        A(f"s_mul_i32 s{s_t1}, s{s_type}, 3072")
        A(f"s_add_u32 s{s_t0}, s{s_t0}, s{s_t1}")
        A(f"s_add_u32 s{s_t0}, s{s_t0}, {WS_MM:#x}")
        A(f"v_lshlrev_b32 v{vT0}, 6, v{vL}")
        for j in range(4):
            if j == 2:
                A(f"s_cmp_eq_u32 s{s_j}, 1")
                A("s_cbranch_scc1 G_MMT")
            if opt.mmt == 1: A(f"buffer_load_dword v{vDB}, v{vT0}, s[{S_WS}:{S_WS+3}], s{s_t0} offen nt")
            else:
                for q in range(3): A(f"buffer_store_dwordx4 v[64:67], v{vOUT}, s[{S_WS}:{S_WS+3}], s{s_t0} offen offset:{q*1024} sc1")
            A(f"s_add_u32 s{s_t0}, s{s_t0}, {32*16384}")
        A.label("G_MMT")
    A(f"s_lshl_b32 s{s_pflag}, s{s_h}, 5")
    A(f"s_add_u32 s{s_pflag}, s{s_pflag}, s{s_rb}")
    A(f"s_lshl_b32 s{s_pflag}, s{s_pflag}, 2")
    A(f"s_add_u32 s{s_pflag}, s{s_pflag}, {WS_KVF:#x}")
    A("s_cmp_eq_u32 s5, 0")
    A(f"s_cselect_b32 s{s_pflag}, s{s_pflag}, 0")
    A(f"v_mov_b32 v{vT1}, {OOB:#x}")
    A(f"v_lshlrev_b32 v{vT2}, 2, v{vL}")
    A(f"v_cmp_gt_u32 vcc, s{s_j}, v{vL}")
    A(f"v_cndmask_b32 v{vFLG}, v{vT1}, v{vT2}, vcc")
    conv(False)
    A("s_branch G_EPI_CD")
    A.label("G_EPI_Q")
    conv(True)
    A.label("G_EPI_CD")
    A("s_cmp_eq_u32 s6, 2")
    A("s_cbranch_scc1 G_EPI_NOW")
    A(f"s_lshl_b32 s{s_t0}, s6, 4")
    A(f"s_add_u32 s{s_t0}, s{s_t0}, s{s_rb}")
    A(f"s_cmp_ge_u32 s{s_t0}, {opt.nimm}")
    A("s_cbranch_scc1 G_NEXT")
    A.label("G_EPI_NOW")
    A(f"s_or_b32 vcc_lo, s{s_rb}, s6")
    A("s_mov_b32 vcc_hi, 0")
    for j in range(4):
        if j == 2:
            A(f"s_cmp_eq_u32 s{s_j}, 1")
            A("s_cbranch_scc1 G_EPI_ND")
        for i in range(4):
            for ab in range(2):
                A(f"buffer_store_dwordx4 {v(PK+32*j+8*i+4*ab,4)}, v{vOUT}, s[{S_WS}:{S_WS+3}], s{s_pout} offen offset:{ab*1024} sc1{' nt' if opt.snt else ''}")
                L = A.newlabel("EW")
                A(f"s_cbranch_vccz {L}")
                A(f"s_waitcnt vmcnt({opt.epq})")
                if opt.eps: A(f"s_sleep {opt.eps}")
                A.label(L)
            A(f"s_add_u32 s{s_pout}, s{s_pout}, {2048 if i < 3 else 32*16384 - 6144}")
    A.label("G_EPI_ND")
    A(f"s_mov_b32 s{s_pn}, 0")
    A("s_waitcnt vmcnt(0)")
    A("s_barrier")
    pub_flag("G_NEXT")
    A("s_branch G_NEXT")
    A.label("G_EPI_FFN")
    A(f"s_cmp_ge_u32 s{s_h}, 54")
    A("s_cbranch_scc1 G_NEXT")
    k = 0
    for j in range(4):
        if j == 2:
            A(f"s_cmp_eq_u32 s{s_j}, 1")
            A("s_cbranch_scc1 G_NEXT")
        for i in range(2):
            for ab in range(2):
                t = 64 + 20 * (k % 8); k += 1
                for r in range(8): A(f"v_accvgpr_read_b32 v{t+r}, a{ACC(i,j)+8*ab+r}")
                for r in range(8): A(f"v_accvgpr_read_b32 v{t+8+r}, a{ACC(i+2,j)+8*ab+r}")
                for r in range(8): A(f"v_mul_f32 v{t+r}, v{t+r}, v{t+8+r}")
                for r in range(4): A(f"v_cvt_pk_bf16_f32 v{t+16+r}, v{t+2*r}, v{t+2*r+1}")
                A(f"buffer_store_dwordx4 {v(t+16,4)}, v{vOUT}, s[{S_WS}:{S_WS+3}], s{s_out} offen offset:{i*2048+ab*1024} sc1")
                if opt.epw >= 0: A(f"s_waitcnt vmcnt({opt.epq})")
        A(f"s_add_u32 s{s_out}, s{s_out}, {54*2048}")
    A.label("G_NEXT")
    A("s_waitcnt vmcnt(0)")
    stamp(A, opt, 3, (6, 5), vt=(30, 31, 32))
    A("s_add_u32 s6, s6, 1")
    A("s_cmp_lt_u32 s6, 4")
    A("s_cbranch_scc1 G_ROUND")
    A.label("G_END")
    A("s_cmp_ge_u32 s7, 128")
    A("s_cbranch_scc1 G_GATE_END")
    A(f"s_load_dwordx2 s[{P0}:{P0+1}], s[0:1], {KA_GW}")
    A("s_waitcnt lgkmcnt(0)")
    srd(A, SW, P0, P0 + 1, 1280)
    A(f"v_lshrrev_b32 v{vT0}, 4, v0")
    A(f"s_lshl_b32 s{s_t0}, s7, 4")
    A(f"v_add_u32 v{vT0}, s{s_t0}, v{vT0}")
    A(f"v_and_b32 v{vT1}, 15, v0")
    A(f"v_lshlrev_b32 v{vT1}, 4, v{vT1}")
    A(f"v_mul_u32_u24 v{vT2}, 1280, v{vT0}")
    A(f"v_add_u32 v{vT2}, v{vT2}, v{vT1}")
    for c in range(5):
        A(f"buffer_load_dwordx4 {v(64+4*c,4)}, v{vT2}, s[{SX}:{SX+3}], 0 offen offset:{c*256}")
        A(f"buffer_load_dwordx4 {v(96+4*c,4)}, v{vT1}, s[{SW}:{SW+3}], 0 offen offset:{c*256}")
    A("v_mov_b32 v60, 0")
    A("v_mov_b32 v61, 0")
    A("s_waitcnt vmcnt(0)")
    for c in range(20):
        A(f"v_lshlrev_b32 v56, 16, v{64+c}")
        A(f"v_lshlrev_b32 v57, 16, v{96+c}")
        A(f"v_and_b32 v58, 0xffff0000, v{64+c}")
        A(f"v_and_b32 v59, 0xffff0000, v{96+c}")
        A(f"v_fmac_f32 v60, v56, v57")
        A(f"v_fmac_f32 v61, v58, v59")
    A("v_add_f32 v60, v60, v61")
    for ror in (8, 4, 2, 1):
        A(f"v_mov_b32_dpp v61, v60 row_ror:{ror} row_mask:0xf bank_mask:0xf")
        A("v_add_f32 v60, v60, v61")
    A(f"v_mul_f32 v60, {fbits(-math.log2(math.e)):#x}, v60")
    A("v_exp_f32 v60, v60")
    A("v_add_f32 v60, 1.0, v60")
    A("v_rcp_f32 v60, v60")
    A(f"v_lshlrev_b32 v{vT0}, 2, v{vT0}")
    A(f"v_mov_b32 v{vT2}, {OOB:#x}")
    A(f"v_cmp_eq_u32 vcc, 0, v{vT1}")
    A(f"v_cndmask_b32 v{vT0}, v{vT2}, v{vT0}, vcc")
    A(f"s_mov_b32 s{s_t0}, {WS_G:#x}")
    A(f"buffer_store_dword v60, v{vT0}, s[{S_WS}:{S_WS+3}], s{s_t0} offen sc1")
    A.label("G_GATE_END")

def generate(opt):
    A = Asm()
    A("s_cmp_ge_u32 s2, 256")
    A("s_cbranch_scc1 K_EXIT")
    A(f"s_load_dwordx2 s[36:37], s[0:1], {KA_WS}")
    A(f"s_load_dwordx2 s[38:39], s[0:1], {KA_DBG}")
    A("v_lshrrev_b32 v1, 6, v0")
    A("v_readfirstlane_b32 s5, v1")
    A("s_and_b32 s3, s2, 7")
    A("s_lshr_b32 s4, s2, 3")
    A("s_waitcnt lgkmcnt(0)")
    srd(A, S_WS, 36, 37, WS_SIZE)
    srd(A, S_DBG, 38, 39, 256)
    stamp(A, opt, 20)
    if opt.cpre:
        A("s_getpc_b64 s[40:41]")
        A.label("K_PC")
        A("s_lshl_b32 s6, s4, 2")
        A("s_add_u32 s6, s6, s5")
        A("s_lshl_b32 s6, s6, 10")
        A("s_cmp_lt_u32 s6, K_CODE_END - K_PC - 1024")
        A("s_cbranch_scc0 K_NOCP")
        A("v_and_b32 v1, 63, v0")
        A("v_lshlrev_b32 v1, 4, v1")
        A("v_add_u32 v1, s6, v1")
        A("global_load_dwordx4 v[4:7], v1, s[40:41]")
        A.label("K_NOCP")
    A("s_or_b32 s6, s2, s5")
    A("s_cmp_eq_u32 s6, 0")
    A("s_cbranch_scc0 K_ROTW")
    A("s_getreg_b32 s6, hwreg(HW_REG_XCC_ID, 0, 3)")
    A("s_or_b32 s6, s6, 8")
    A("v_mov_b32 v1, s6")
    A("s_mov_b64 exec, 1")
    A(f"buffer_store_dword v1, off, s[{S_DBG}:{S_DBG+3}], 0 offset:{DBG_ROT*4} sc1")
    A("s_mov_b64 exec, -1")
    A.label("K_ROTW")
    A(f"s_mov_b32 s7, {opt.spin}")
    A.label("K_ROTL")
    A(f"buffer_load_dword v1, off, s[{S_DBG}:{S_DBG+3}], 0 offset:{DBG_ROT*4} sc1")
    A("s_waitcnt vmcnt(0)")
    A("v_readfirstlane_b32 s6, v1")
    A("s_cmp_lg_u32 s6, 0")
    A("s_cbranch_scc1 K_ROTD")
    A("s_sub_u32 s7, s7, 1")
    A("s_cbranch_scc0 K_ROTL")
    A("s_endpgm")
    A.label("K_ROTD")
    A("s_add_u32 s3, s3, s6")
    A("s_and_b32 s3, s3, 7")
    A("s_cmp_lt_u32 s3, 2")
    A("s_cbranch_scc1 K_CHAIN")
    A("s_sub_u32 s3, s3, 2")
    A(f"s_mov_b32 s{S_POL}, {0 if opt.pol < 0 else 2 | opt.pol}")
    if opt.pol < 0:
        A("s_lshl_b32 s6, s3, 5")
        A("s_add_u32 s6, s6, s4")
        A("s_cmp_eq_u32 s6, 5")
        A("s_cbranch_scc0 K_NOPROBE")
        A("s_cmp_eq_u32 s5, 0")
        A("s_cbranch_scc0 K_PROBED")
        A(f"s_mov_b32 s66, {WS_X + 127*16384:#x}")
        A("s_add_u32 s67, s66, 8192")
        A("s_mov_b32 s64, -1")
        A("s_mov_b32 s65, -1")
        A("s_mov_b64 exec, 1")
        A("s_mov_b32 s73, 4")
        A.label("K_PROBE")
        for pl in range(2):
            A("s_memtime s[68:69]")
            A("s_waitcnt lgkmcnt(0)")
            A(f"buffer_store_dword v0, off, s[{S_WS}:{S_WS+3}], s{66+pl} sc1")
            A("s_waitcnt vmcnt(0)")
            A("s_memtime s[70:71]")
            A("s_waitcnt lgkmcnt(0)")
            A("s_sub_u32 s72, s70, s68")
            A(f"s_min_u32 s{64+pl}, s{64+pl}, s72")
        A("s_sub_u32 s73, s73, 1")
        A("s_cbranch_scc0 K_PROBE")
        A("s_cmp_lt_u32 s65, s64")
        A("s_cselect_b32 s72, 3, 2")
        A("v_mov_b32 v1, s72")
        A(f"buffer_store_dword v1, off, s[{S_DBG}:{S_DBG+3}], 0 offset:{DBG_POL*4} sc1")
        A("s_mov_b64 exec, -1")
        A.label("K_PROBED")
        A("s_barrier")
        A.label("K_NOPROBE")
    if opt.gemm: gen_gemm(A, opt)
    if opt.followers:
        from gen_follow import gen_follow
        gen_follow(A, opt)
    A("s_waitcnt vmcnt(0)")
    A("s_endpgm")
    A.label("K_CHAIN")
    if opt.chain:
        from gen_chain import gen_chain
        gen_chain(A, opt)
    A.label("K_EXIT")
    A("s_endpgm")
    A.label("K_CODE_END")
    A.pad()
    if opt.al8:
        names = [x.text for x in A.ins]
        for P in ("CF0", "CF1"):
            if f"{P}_ENTRY:" not in names: continue
            names = [x.text for x in A.ins]
            a, b = names.index(f"{P}_ENTRY:"), names.index(f"{P}_PUB0:")
            A.ins[a:b] = align8(A.ins[a:b], opt.al8)
    hdr = open('gated_mix__memory_aug_recurrent_mem_tr__glu_gated_bilinear__prompt.s.ref').read().split('\n')
    head = [l for l in hdr if l.startswith(';') and '@launch' not in l]
    out = '\n'.join(head) + f"\n; @launch grid=(256,1,1) block=(256,1,1) lds={LDS_BYTES}\n"
    out += f""".amdgcn_target "amdgcn-amd-amdhsa--gfx950"
.text
.globl {KNAME}
.p2align 8
.type {KNAME},@function
{KNAME}:
""" + A.text() + f""".section .rodata,"a"
.p2align 6
.amdhsa_kernel {KNAME}
  .amdhsa_next_free_vgpr 512
  .amdhsa_next_free_sgpr 102
  .amdhsa_accum_offset 256
  .amdhsa_group_segment_fixed_size 0
  .amdhsa_kernarg_size 120
  .amdhsa_user_sgpr_count 2
  .amdhsa_user_sgpr_kernarg_segment_ptr 1
  .amdhsa_system_sgpr_workgroup_id_x 1
.end_amdhsa_kernel
"""
    return out

if __name__ == "__main__":
    opt = Opt()
    outp = sys.argv[1]
    for a in sys.argv[2:]:
        k, val = a.split('=', 1)
        setattr(opt, k, val if k in ('marks', 'drop', 'pubg') else int(val))
    open(outp, 'w').write(generate(opt))
```

```python
import sys, math, struct
from asmlib import *

KNAME = "gated_mix__memory_aug_recurrent_mem_tr__glu_gated_bilinear__prompt_kernel"
MB = 1 << 20
WS_KQ, WS_VO, WS_MM = 0, 32 * MB, 96 * MB
WS_H = 64 * MB
WS_G = 80 * MB
WS_PROG = 80 * MB + 0x10000
WS_KVF = 80 * MB + 0x30000
WS_OFLAG = 80 * MB + 0x20000
WS_P = 81 * MB
WS_ML = 82 * MB
WS_X = 84 * MB
WS_SIZE = 256 * MB
OOB = 0x80000000
SENT = 0x7F817F81
SUSP = 0x7F810000
CSCALE = math.log2(math.e) / math.sqrt(128.0)
def fbits(x): return struct.unpack('<I', struct.pack('<f', x))[0]
KA_X, KA_MEM0, KA_WQ, KA_WK, KA_WV, KA_WO, KA_WG, KA_WU, KA_WD, KA_GW, KA_OUT, KA_DBG, KA_WS = 0, 8, 16, 24, 32, 40, 64, 72, 80, 88, 96, 104, 112
DBG_CHAIN_CNT, DBG_XCC0, DBG_POL, DBG_WBAR, DBG_ERR, DBG_ROT, DBG_KV, DBG_TICKET = 0, 1, 3, 4, 5, 7, 8, 32

S_WS, S_DBG = 8, 12
LDS_BYTES = 163840
NKVB, KVSEG = 16, 4

def srd(A, d, lo, hi, nbytes):
    A(f"s_mov_b32 s{d}, s{lo}")
    A(f"s_and_b32 s{d+1}, s{hi}, 0xffff")
    A(f"s_mov_b32 s{d+2}, {nbytes:#x}")
    A(f"s_mov_b32 s{d+3}, 0x20000")

WS_TS = 90 * MB
def stamp(A, opt, idx, sidx=None, vt=(250, 251, 252), st=(96, 97, 98)):
    if opt.dbgts:
        mp = {20: 8, 1: 9, 3 if sidx is None else -1: 10, 24: 11, 26: 12, 27: 13}
        word = mp.get(idx) if sidx is None else None
        if sidx is not None and idx == 3: word = 14
        if word is None: return
        L = A.newlabel("ST")
        A("s_cmp_eq_u32 s5, 0")
        A(f"s_cbranch_scc0 {L}")
        if sidx is not None:
            A("s_cmp_gt_u32 s6, 1")
            A(f"s_cbranch_scc1 {L}")
        A(f"s_memrealtime s[{st[0]}:{st[1]}]")
        A(f"s_lshl_b32 s{st[2]}, s6, 2" if sidx is not None else f"s_mov_b32 s{st[2]}, 0")
        A("s_waitcnt lgkmcnt(0)")
        A(f"v_mov_b32 v{vt[0]}, s{st[0]}")
        A("s_mov_b64 exec, 1")
        A(f"buffer_atomic_umax v{vt[0]}, off, s[{S_DBG}:{S_DBG+3}], s{st[2]} offset:{word*4} sc1")
        A("s_mov_b64 exec, -1")
        A.label(L)
        return
    if not opt.stamps: return
    L = A.newlabel("ST")
    A("s_cmp_eq_u32 s5, 0")
    A(f"s_cbranch_scc0 {L}")
    A(f"s_memrealtime s[{st[0]}:{st[1]}]")
    A(f"s_memtime s[100:101]")
    A(f"s_lshl_b32 s{st[2]}, s2, 10")
    A(f"s_add_u32 s{st[2]}, s{st[2]}, {WS_TS + idx*8:#x}")
    if sidx is not None:
        A(f"s_lshl_b32 s99, s{sidx[0]}, {sidx[1]}")
        A(f"s_add_u32 s{st[2]}, s{st[2]}, s99")
    A("s_waitcnt lgkmcnt(0)")
    A(f"v_mov_b32 v{vt[0]}, s{st[0]}")
    A(f"v_mov_b32 v{vt[1]}, s100")
    A(f"v_mov_b32 v{vt[2]}, 0")
    A(f"buffer_store_dwordx2 v[{vt[0]}:{vt[1]}], v{vt[2]}, s[{S_WS}:{S_WS+3}], s{st[2]} offen")
    A("s_waitcnt vmcnt(0)")
    A.label(L)

S_POL = 60
def get_pol(A, opt, nm, vt, st):
    A(f"s_cmp_lg_u32 s{S_POL}, 0")
    A(f"s_cbranch_scc1 {nm}_POLD")
    A(f"s_mov_b32 s{st}, {opt.spin}")
    A.label(f"{nm}_POLL")
    A(f"buffer_load_dword v{vt}, off, s[{S_DBG}:{S_DBG+3}], 0 offset:{DBG_POL*4} sc1")
    A(f"buffer_load_dword v{vt+1}, off, s[{S_DBG}:{S_DBG+3}], 0 offset:{DBG_CHAIN_CNT*4} sc1")
    A("s_waitcnt vmcnt(0)")
    A(f"v_readfirstlane_b32 s{S_POL}, v{vt}")
    A(f"v_readfirstlane_b32 s{S_POL+1}, v{vt+1}")
    A(f"s_cmp_ge_u32 s{S_POL+1}, {64 if opt.chain else 0}")
    A(f"s_cselect_b32 s{S_POL}, s{S_POL}, 0")
    A(f"s_cmp_lg_u32 s{S_POL}, 0")
    A(f"s_cbranch_scc1 {nm}_POLD")
    A(f"s_sub_u32 s{st}, s{st}, 1")
    A(f"s_cbranch_scc0 {nm}_POLL")
    A("s_endpgm")
    A.label(f"{nm}_POLD")

class Opt:
    dbgts = 0; steps = 0; stamps = 0; trace = 0; smask = 0; marks = ''; drop = ''; tstep = 40
    workers = True; chain = True; followers = True; gemm = True
    spin = 200000
    cpre = 1; gpre = 0; mmt = 0; mix = 1; snt = 0; stf = 0; ldf = 0; prio = 0; al8 = 0; pad0 = 0; eps = 0; nimm = 6; epw = 0; epq = 0; krot = 1; prio0 = 1; wvtop = 1; b0p = 1; lbar = 3; lwr = -1; uni = 0; uf = 8; solo = 0; wve = 0; nfill = 0; e0 = 5; ow64 = 1; kvall = 0; krot0 = 0; pol = -1; force_slow = 0
    lreg = 1; ereg = 1; echk = 2; lfv = 0; rpre = 0; lchk = 2; kxe = 1; rg = 6; mrpos = 0; rdly = 0; lwait = 0; lspec = 3; qb = 3; qw = 3; kw = 4; vearly = 0; fastonly = 0; nocnt = 0; erf = 0; lrf = 0; nwarm = 0; e1 = 1; l1 = 1; ne = 8; vfast = 1; vxg = -1; inl = 1; pubg = '12,11,22,23'; qper = 4; ld1 = 10; lgap = 25; lw = 25; lw2 = 8; lnf = 2; rearly = 0
    ed1 = 8; egap = 6; ew = 30; enf = 2
    rlead = 6; kxlate = 4; sgap = 10; inv = 1; ow = 0; kvsame = 0; kmsame = 0; nokm = 0; vr_gap = 44; vr2 = 0; vper = 4; pk = 0; nk = 4; kslot = -1

def gen_gemm(A, opt):
    SX, SW = 16, 20
    s_rb, s_type, s_stride, s_h, s_out, s_sx, s_sw, s_wstep = 24, 25, 26, 27, 28, 29, 30, 31
    s_it, s_t0, s_t1 = 32, 33, 34
    P0, P1 = 36, 38
    s_m0x, s_m0w = 40, 41
    s_wsz, s_j, s_seg = 42, 43, 44
    vXA = [1, 2, 3, 4]
    vWA = [5, 6, 7, 8]
    vDX = [9, 10, 11, 12]
    vDW = [13, 14, 15, 16]
    vL, vT0, vT1, vT2, vOUT, vXB, vDB = 17, 18, 19, 20, 21, 22, 23
    XF = lambda sg, j: 64 + 32 * sg + 4 * j
    WF = lambda sg, i: 80 + 32 * sg + 4 * i
    ACC = lambda i, j: 16 * (4 * i + j)

    A("s_load_dwordx2 s[36:37], s[0:1], %d" % KA_X)
    A("s_waitcnt lgkmcnt(0)")
    srd(A, SX, 36, 37, 2048 * 1280)
    A(f"v_and_b32 v{vL}, 63, v0")
    A(f"v_and_b32 v{vT0}, 31, v{vL}")
    A(f"v_lshrrev_b32 v{vT1}, 5, v{vL}")
    A(f"v_bfe_u32 v{vT2}, v{vL}, 2, 2")
    A(f"v_xor_b32 v{vT1}, v{vT1}, v{vT2}")
    A(f"v_lshlrev_b32 v{vT1}, 4, v{vT1}")
    A(f"v_lshl_add_u32 v{vXB}, v{vT0}, 6, v{vT1}")
    A(f"v_lshrrev_b32 v{vT0}, 5, v{vL}")
    A(f"v_bfe_u32 v{vT1}, v{vL}, 2, 2")
    A(f"v_lshl_add_u32 v{vT0}, v{vT0}, 3, v{vT1}")
    A(f"v_lshlrev_b32 v{vT0}, 7, v{vT0}")
    A(f"v_bfe_u32 v{vT1}, v{vL}, 3, 1")
    A(f"v_lshl_add_u32 v{vT0}, v{vT1}, 6, v{vT0}")
    A(f"v_bfe_u32 v{vT1}, v{vL}, 4, 1")
    A(f"v_lshl_add_u32 v{vT0}, v{vT1}, 5, v{vT0}")
    A(f"v_and_b32 v{vT1}, 3, v{vL}")
    A(f"v_lshl_add_u32 v{vT0}, v{vT1}, 3, v{vT0}")
    A(f"s_lshr_b32 s{s_t0}, s5, 1")
    A(f"s_lshl_b32 s{s_t0}, s{s_t0}, 13")
    A(f"v_add_u32 v{vWA[0]}, s{s_t0}, v{vT0}")
    A(f"v_xor_b32 v{vWA[1]}, 64, v{vWA[0]}")
    A(f"v_add_u32 v{vWA[2]}, 0x10000, v{vWA[0]}")
    A(f"v_add_u32 v{vWA[3]}, 0x10000, v{vWA[1]}")
    A(f"v_lshrrev_b32 v{vT0}, 2, v{vL}")
    A(f"v_mul_u32_u24 v{vT0}, 1280, v{vT0}")
    A(f"v_and_b32 v{vT1}, 3, v{vL}")
    A(f"v_lshrrev_b32 v{vT2}, 4, v{vL}")
    A(f"v_xor_b32 v{vT1}, v{vT1}, v{vT2}")
    A(f"v_lshl_add_u32 v{vDX[0]}, v{vT1}, 4, v{vT0}")
    for n in range(1, 4):
        A(f"v_add_u32 v{vDX[n]}, {n*(16*1280-1024)}, v{vDX[0]}")
    A(f"s_lshl_b32 s{s_m0w}, s5, 12")
    A(f"s_add_u32 s{s_m0w}, s{s_m0w}, 16384")
    A(f"v_lshlrev_b32 v{vOUT}, 4, v{vL}")
    A("s_lshl_b32 s7, s3, 5")
    A("s_add_u32 s7, s7, s4")
    A("s_mov_b32 s6, 0")
    s_pn, s_pout, s_pflag, s_pw = 46, 47, 48, 49
    vFLG, vONEI, PK = 24, 25, 128
    A(f"s_mov_b32 s{s_pn}, 0")
    A(f"s_mov_b32 s{s_pflag}, 0")
    A(f"s_mov_b32 s{s_pout}, 0")
    A(f"v_mov_b32 v{vONEI}, 1")
    A(f"v_mov_b32 v{vFLG}, {OOB:#x}")
    def pub_flag(skip):
        A(f"s_cmp_eq_u32 s{s_pflag}, 0")
        A(f"s_cbranch_scc1 {skip}")
        A(f"buffer_store_dword v{vONEI}, v{vFLG}, s[{S_WS}:{S_WS+3}], s{s_pflag} offen sc1")
        A(f"s_mov_b32 s{s_pflag}, 0")
    if opt.gpre:
        A(f"s_load_dwordx4 s[44:47], s[0:1], {KA_WQ}")
        A(f"s_load_dwordx4 s[48:51], s[0:1], {KA_WV}")
        A("s_lshl_b32 s52, s7, 2")
        A("s_add_u32 s52, s52, s5")
        A(f"s_mul_i32 s52, s52, {7*1024}")
        A(f"v_add_u32 v{vT0}, s52, v{vOUT}")
        A(f"v_add_u32 v{vT1}, 4096, v{vT0}")
        A("s_waitcnt lgkmcnt(0)")
        for p in (46, 48, 44, 50)[:opt.gpre]:
            srd(A, SW, p, p + 1, 640 * 8192)
            for n in range(7):
                A(f"buffer_load_dwordx4 v[24:27], v{vT0 if n < 4 else vT1}, s[{SW}:{SW+3}], 0 offen offset:{(n&3)*1024}")

    A.label("G_ROUND")
    A(f"s_mov_b32 s{s_j}, 2")
    A("s_cmp_eq_u32 s6, 1")
    A("s_cbranch_scc1 G_DEC_R1")
    A("s_cmp_eq_u32 s6, 2")
    A("s_cbranch_scc1 G_DEC_R2")
    A(f"s_mov_b32 s{s_j}, 1")
    A("s_cmp_eq_u32 s6, 3")
    A("s_cbranch_scc1 G_DEC_R3")
    A(f"s_mul_i32 s{s_h}, s7, 43691")
    A(f"s_lshr_b32 s{s_h}, s{s_h}, 18")
    A(f"s_mul_i32 s{s_t0}, s{s_h}, 6")
    A(f"s_sub_u32 s{s_rb}, s7, s{s_t0}")
    A("s_branch G_DEC_KV")
    A.label("G_DEC_R1")
    if opt.mix:
        A(f"s_sub_u32 s{s_t0}, s7, 64")
        A("s_cbranch_scc0 G_DEC_Q")
        A(f"s_lshr_b32 s{s_h}, s7, 1")
        A(f"s_and_b32 s{s_rb}, s7, 1")
        A(f"s_lshl_b32 s{s_rb}, s{s_rb}, 1")
        A(f"s_add_u32 s{s_rb}, s{s_rb}, 6")
        A("s_branch G_DEC_KV")
        A.label("G_DEC_R2")
        A(f"s_sub_u32 s{s_t0}, s7, 96")
        A("s_cbranch_scc0 G_DEC_F4")
        A(f"s_mul_i32 s{s_h}, s7, 43691")
        A(f"s_lshr_b32 s{s_h}, s{s_h}, 17")
        A(f"s_mul_i32 s{s_t0}, s{s_h}, 3")
        A(f"s_sub_u32 s{s_rb}, s7, s{s_t0}")
        A(f"s_lshl_b32 s{s_rb}, s{s_rb}, 1")
        A(f"s_add_u32 s{s_rb}, s{s_rb}, 10")
    else:
        A(f"s_sub_u32 s{s_t0}, s7, 160")
        A("s_cbranch_scc0 G_DEC_Q")
        A(f"s_mul_i32 s{s_h}, s7, 52429")
        A(f"s_lshr_b32 s{s_h}, s{s_h}, 18")
        A(f"s_mul_i32 s{s_t0}, s{s_h}, 5")
        A(f"s_sub_u32 s{s_rb}, s7, s{s_t0}")
        A(f"s_lshl_b32 s{s_rb}, s{s_rb}, 1")
        A(f"s_add_u32 s{s_rb}, s{s_rb}, 6")
    A.label("G_DEC_KV")
    A(f"s_load_dwordx2 s[{P0}:{P0+1}], s[0:1], {KA_WK}")
    A(f"s_load_dwordx2 s[{P1}:{P1+1}], s[0:1], {KA_WV}")
    A("s_waitcnt lgkmcnt(0)")
    A("s_cmp_ge_u32 s5, 2")
    A(f"s_cselect_b32 s{P0}, s{P1}, s{P0}")
    A(f"s_cselect_b32 s{P0+1}, s{P1+1}, s{P0+1}")
    A(f"s_cselect_b32 s{s_type}, 1, 0")
    A(f"s_cselect_b32 s{s_out}, {WS_VO:#x}, {WS_KQ:#x}")
    A(f"s_lshl_b32 s{s_sw}, s{s_h}, 8")
    A(f"s_and_b32 s{s_t0}, s5, 1")
    A(f"s_lshl_b32 s{s_t0}, s{s_t0}, 7")
    A(f"s_add_u32 s{s_sw}, s{s_sw}, s{s_t0}")
    A(f"s_lshl_b32 s{s_t0}, s{s_h}, 14")
    A(f"s_add_u32 s{s_out}, s{s_out}, s{s_t0}")
    A("s_branch G_DEC_QKV")
    if not opt.mix:
        A.label("G_DEC_R2")
        A(f"s_sub_u32 s{s_t0}, s7, 96")
        A("s_cbranch_scc0 G_DEC_F4")
        A(f"s_add_u32 s{s_t0}, s7, 32")
    A.label("G_DEC_Q")
    A(f"s_and_b32 s{s_rb}, s{s_t0}, 7")
    A(f"s_lshl_b32 s{s_rb}, s{s_rb}, 1")
    A(f"s_lshr_b32 s{s_h}, s{s_t0}, 3")
    A(f"s_load_dwordx2 s[{P0}:{P0+1}], s[0:1], {KA_WQ}")
    A("s_waitcnt lgkmcnt(0)")
    A(f"s_mov_b32 s{s_type}, 2")
    A(f"s_lshl_b32 s{s_sw}, s{s_h}, 9")
    A(f"s_lshl_b32 s{s_t0}, s5, 7")
    A(f"s_add_u32 s{s_sw}, s{s_sw}, s{s_t0}")
    A(f"s_lshl_b32 s{s_t0}, s{s_h}, 1")
    A(f"s_lshr_b32 s{s_t1}, s5, 1")
    A(f"s_add_u32 s{s_t0}, s{s_t0}, s{s_t1}")
    A(f"s_lshl_b32 s{s_t0}, s{s_t0}, 14")
    A(f"s_add_u32 s{s_out}, s{s_t0}, {WS_KQ + 8192:#x}")
    A.label("G_DEC_QKV")
    A(f"s_mov_b32 s{s_stride}, 8192")
    A(f"s_mov_b32 s{s_wsz}, {640*8192}")
    A(f"s_mov_b32 s{s_it}, {32*16384}")
    A("s_branch G_DEC_DONE")
    A.label("G_DEC_R3")
    A(f"s_sub_u32 s{s_t0}, s4, 26")
    A("s_cbranch_scc1 G_END")
    A(f"s_mul_i32 s{s_t1}, s3, 6")
    A(f"s_add_u32 s{s_t0}, s{s_t0}, s{s_t1}")
    A(f"s_cmp_ge_u32 s{s_t0}, 32")
    A("s_cbranch_scc1 G_END")
    A(f"s_and_b32 s{s_rb}, s{s_t0}, 15")
    A(f"s_lshr_b32 s{s_h}, s{s_t0}, 4")
    A(f"s_add_u32 s{s_h}, s{s_h}, 12")
    A("s_branch G_DEC_FFN")
    A.label("G_DEC_F4")
    A(f"s_and_b32 s{s_rb}, s{s_t0}, 7")
    A(f"s_lshl_b32 s{s_rb}, s{s_rb}, 1")
    A(f"s_lshr_b32 s{s_h}, s{s_t0}, 3")
    A.label("G_DEC_FFN")
    A(f"s_load_dwordx2 s[{P0}:{P0+1}], s[0:1], {KA_WG}")
    A(f"s_load_dwordx2 s[{P1}:{P1+1}], s[0:1], {KA_WU}")
    A("s_waitcnt lgkmcnt(0)")
    A(f"s_bitcmp1_b32 s5, 0")
    A(f"s_cselect_b32 s{P0}, s{P1}, s{P0}")
    A(f"s_cselect_b32 s{P0+1}, s{P1+1}, s{P0+1}")
    A(f"s_mov_b32 s{s_type}, 3")
    A(f"s_lshl_b32 s{s_sw}, s{s_h}, 8")
    A(f"s_lshr_b32 s{s_t0}, s5, 1")
    A(f"s_lshl_b32 s{s_t1}, s{s_t0}, 7")
    A(f"s_add_u32 s{s_sw}, s{s_sw}, s{s_t1}")
    A(f"s_lshl_b32 s{s_t0}, s{s_t0}, 1")
    A(f"s_lshl_b32 s{s_t1}, s{s_h}, 2")
    A(f"s_add_u32 s{s_h}, s{s_t0}, s{s_t1}")
    A(f"s_lshl_b32 s{s_out}, s{s_h}, 11")
    A(f"s_add_u32 s{s_out}, s{s_out}, {WS_H:#x}")
    A(f"s_mov_b32 s{s_stride}, 3456")
    A(f"s_mov_b32 s{s_wsz}, {640*3456}")
    A(f"s_mov_b32 s{s_it}, {54*2048}")
    A.label("G_DEC_DONE")
    A(f"s_and_b32 s{s_t1}, s5, 1")
    A(f"s_lshl_b32 s{s_t1}, s{s_t1}, s{s_j}")
    A(f"s_lshl_b32 s{s_seg}, s{s_rb}, 2")
    A(f"s_add_u32 s{s_seg}, s{s_seg}, s{s_t1}")
    A(f"s_mul_i32 s{s_t0}, s{s_seg}, s{s_it}")
    A(f"s_add_u32 s{s_out}, s{s_out}, s{s_t0}")
    A(f"s_lshl_b32 s{s_t1}, s{s_t1}, 11")
    A(f"v_add_u32 v{vXA[0]}, s{s_t1}, v{vXB}")
    A(f"v_xor_b32 v{vXA[1]}, 32, v{vXA[0]}")
    A(f"v_add_u32 v{vXA[2]}, 0x10000, v{vXA[0]}")
    A(f"v_add_u32 v{vXA[3]}, 0x10000, v{vXA[1]}")
    A(f"s_lshl_b32 s{s_t0}, s5, s{s_j}")
    A(f"s_lshl_b32 s{s_m0x}, s{s_t0}, 10")
    A(f"s_mul_i32 s{s_t0}, s{s_t0}, {16*1280}")
    A(f"s_mul_i32 s{s_sx}, s{s_rb}, {128*1280}")
    A(f"s_add_u32 s{s_sx}, s{s_sx}, s{s_t0}")
    A(f"s_mov_b32 s{SW}, s{P0}")
    A(f"s_and_b32 s{SW+1}, s{P0+1}, 0xffff")
    A(f"s_mov_b32 s{SW+2}, s{s_wsz}")
    A(f"s_mov_b32 s{SW+3}, 0x20000")
    A(f"s_lshl_b32 s{s_wstep}, s{s_stride}, 5")
    A(f"v_lshrrev_b32 v{vT0}, 3, v{vL}")
    A(f"v_mul_lo_u32 v{vT0}, v{vT0}, s{s_stride}")
    A(f"v_bfe_u32 v{vT1}, v{vL}, 4, 1")
    A(f"v_lshlrev_b32 v{vT1}, 2, v{vT1}")
    A(f"v_and_b32 v{vT2}, 7, v{vL}")
    A(f"v_xor_b32 v{vT1}, v{vT1}, v{vT2}")
    A(f"v_lshl_add_u32 v{vDW[0]}, v{vT1}, 4, v{vT0}")
    A(f"s_lshl_b32 s{s_t0}, s{s_stride}, 3")
    A(f"s_sub_u32 s{s_t0}, s{s_t0}, 1024")
    for n in range(1, 4):
        A(f"v_add_u32 v{vDW[n]}, s{s_t0}, v{vDW[n-1]}")
    s_wrap = 45
    if opt.krot:
        A(f"s_mul_i32 s{s_t0}, s{s_rb}, 5")
        A(f"s_lshr_b32 s{s_t0}, s{s_t0}, 2")
        A(f"s_mul_i32 s{s_t1}, s{s_rb}, {opt.krot0}")
        A("s_cmp_eq_u32 s6, 0")
        A(f"s_cselect_b32 s{s_t0}, s{s_t1}, s{s_t0}")
        A(f"s_sub_u32 s{s_wrap}, 20, s{s_t0}")
        A(f"s_lshl_b32 s{s_t1}, s{s_t0}, 6")
        A(f"s_add_u32 s{s_sx}, s{s_sx}, s{s_t1}")
        A(f"s_mul_i32 s{s_t1}, s{s_t0}, s{s_wstep}")
        A(f"s_add_u32 s{s_sw}, s{s_sw}, s{s_t1}")
    stamp(A, opt, 0, (6, 5), vt=(30, 31, 32))
    A(f"s_cmp_eq_u32 s{s_j}, 2")
    A("s_cbranch_scc1 G4_START")

    def tile(J):
        G = f"G{J}"
        ND = J + 4
        def dma_list(slot):
            L = [[f"s_add_u32 m0, s{s_m0x}, {slot*32768}"]]
            for n in range(J):
                L.append([f"buffer_load_dwordx4 v{vDX[n]}, s[{SX}:{SX+3}], s{s_sx} offen offset:{n*1024} lds"])
            L.append([f"s_add_u32 m0, s{s_m0w}, {slot*32768}", f"s_add_u32 s{s_sx}, s{s_sx}, 64"])
            for n in range(4):
                L.append([f"buffer_load_dwordx4 v{vDW[n]}, s[{SW}:{SW+3}], s{s_sw} offen offset:{n*1024} lds"])
            L.append([f"s_add_u32 s{s_sw}, s{s_sw}, s{s_wstep}"] + ([
                f"s_sub_u32 s{s_wrap}, s{s_wrap}, 1", f"s_cmp_eq_u32 s{s_wrap}, 0", f"s_cselect_b32 s{s_t0}, 1280, 0", f"s_cselect_b32 s{s_t1}, s{s_wsz}, 0",
                f"s_sub_u32 s{s_sx}, s{s_sx}, s{s_t0}", f"s_sub_u32 s{s_sw}, s{s_sw}, s{s_t1}"] if opt.krot else []))
            return L
        def read_list(slot, ks, sg):
            hi = slot >> 1; base = (slot & 1) * 32768
            L = []
            order = [('x', 0), ('w', 0)] + [('x', j) for j in range(1, J)] + [('w', 1), ('w', 2), ('w', 3)]
            for t, i in order:
                if t == 'x':
                    L.append(f"ds_read_b128 {v(XF(sg,i),4)}, v{vXA[2*hi+ks]} offset:{base + i*2048}")
                else:
                    for m in range(2):
                        L.append(f"ds_read_b64_tr_b16 {v(WF(sg,i)+2*m,2)}, v{vWA[2*hi+(i&1)]} offset:{base + 16384 + (i>>1)*4096 + ks*2048 + m*512}")
            return L
        def mfmas(sg, vtype, first):
            L = []
            for i in range(4):
                for j in range(J):
                    d = a_(ACC(i, j), 16)
                    c = "0" if first else d
                    if vtype: L.append(f"v_mfma_f32_32x32x16_bf16 {d}, {v(XF(sg,j),4)}, {v(WF(sg,i),4)}, {c}")
                    else:     L.append(f"v_mfma_f32_32x32x16_bf16 {d}, {v(WF(sg,i),4)}, {v(XF(sg,j),4)}, {c}")
            return L
        def interleave(ms, fill):
            n = len(ms); k = 0
            for g, m in enumerate(ms):
                A(m)
                per = -(-(len(fill) - k) // (n - g)) if len(fill) > n else (1 if k < len(fill) else 0)
                for _ in range(per):
                    for t in fill[k]: A(t)
                    k += 1
        A.label(f"{G}_START")
        for st in range(4):
            for g in dma_list(st):
                for t in g: A(t)
        A(f"s_waitcnt vmcnt({3*ND})")
        A("s_barrier")
        for t in read_list(0, 0, 0): A(t)
        A(f"s_cmp_eq_u32 s{s_type}, 1")
        A(f"s_cbranch_scc1 {G}_LOOP_V")
        def body(st_slot, vtype, first, dma, vm, last):
            A("s_waitcnt lgkmcnt(0)")
            rl = read_list(st_slot, 1, 1)
            per = 1 if J == 4 else 2
            fl = [rl[k:k+per] for k in range(0, len(rl), per)]
            def dst(ab, wv):
                L = A.newlabel("DS")
                return [f"s_cmp_eq_u32 s{s_pw}, {wv}", f"s_cbranch_scc0 {L}",
                        f"buffer_store_dwordx4 {v(PK+8*st_slot+4*ab,4)}, v{vOUT}, s[{S_WS}:{S_WS+3}], s{s_pout} offen offset:{ab*1024} sc1", f"{L}:"]
            if J == 4 and dma:
                while len(fl) < 16: fl.append([])
                fl[0] = fl[0] + [f"s_cmp_eq_u32 s{s_pn}, 0", f"s_cselect_b32 s{s_pw}, 9, s5"]
                for wv in range(4): fl[1 + 4 * wv] = fl[1 + 4 * wv] + dst(0, wv)
            interleave(mfmas(0, vtype, first), fl)
            if last:
                A("s_waitcnt lgkmcnt(0)")
                A("s_barrier")
                interleave(mfmas(1, vtype, False), [])
                return
            A(f"s_waitcnt vmcnt({vm}) lgkmcnt(0)")
            A("s_barrier")
            rl = read_list((st_slot + 1) & 3, 0, 0)
            per = 2 if J == 4 else 3
            fill = [rl[k:k+per] for k in range(0, len(rl), per)]
            if dma:
                dl = dma_list(st_slot)
                grp = [dl[0] + dl[1]] + dl[2:J+1] + [dl[J+1] + dl[J+2]] + dl[J+3:J+5] + [dl[J+5] + dl[J+6]]
                if J == 2: grp = [grp[0] + grp[1], grp[2], grp[3] + grp[4], grp[5]]
                fill += grp
                if J == 4:
                    while len(fill) < 16: fill.append([])
                    mv = [f"v_mov_b64 {v(PK+32*q+8*st_slot+2*r,2)}, {v(PK+32*(q+1)+8*st_slot+2*r,2)}" for q in range(3) for r in range(4)]
                    for wv in range(4): fill[4 * wv] = fill[4 * wv] + dst(1, wv)
                    for i_, x in enumerate(mv): fill[13 + i_ // 4] = fill[13 + i_ // 4] + [x]
                    fill[15] = fill[15] + [f"s_add_u32 s{s_pout}, s{s_pout}, {2048 if st_slot < 3 else 32*16384 - 6144}"]
            interleave(mfmas(1, vtype, False), fill)
        for vtype in (0, 1):
            nm = f"{G}_LOOP_" + ("V" if vtype else "K")
            A.label(nm)
            body(0, vtype, True, True, 2 * ND, False)
            A(f"s_mov_b32 s{s_it}, 0")
            A(f"s_branch {nm}_1")
            A.label(f"{nm}_0")
            body(0, vtype, False, True, 2 * ND, False)
            A.label(f"{nm}_1")
            for sl in (1, 2, 3): body(sl, vtype, False, True, 2 * ND, False)
            if J == 4:
                A(f"s_sub_u32 s{s_pn}, s{s_pn}, 1")
                A(f"s_cbranch_scc0 {nm}_2")
                A(f"s_mov_b32 s{s_pn}, 0")
                pub_flag(f"{nm}_2")
                A.label(f"{nm}_2")
            A(f"s_add_u32 s{s_it}, s{s_it}, 1")
            A(f"s_cmp_lt_u32 s{s_it}, 4")
            A(f"s_cbranch_scc1 {nm}_0")
            body(0, vtype, False, False, 2 * ND, False)
            body(1, vtype, False, False, ND, False)
            body(2, vtype, False, False, 0, False)
            body(3, vtype, False, False, 0, True)
            A("s_branch G_EPI")
    tile(2)
    tile(4)
    A.label("G_EPI")
    pub_flag("G_EPI1")
    A.label("G_EPI1")
    stamp(A, opt, 2, (6, 5), vt=(30, 31, 32))
    A(f"s_cmp_eq_u32 s{s_type}, 3")
    A("s_cbranch_scc1 G_EPI_FFN")
    get_pol(A, opt, "G", vT0, s_it)
    A(f"s_lshr_b32 s{s_t0}, s{s_seg}, 2")
    A(f"s_xor_b32 s{s_t0}, s{s_t0}, s{S_POL}")
    A(f"s_and_b32 s{s_t0}, s{s_t0}, 1")
    A(f"s_lshl_b32 s{s_t0}, s{s_t0}, 13")
    A(f"s_xor_b32 s{s_out}, s{s_out}, s{s_t0}")
    A(f"s_mov_b32 s{s_pout}, s{s_out}")
    A(f"s_lshl_b32 s{s_pn}, 1, s{s_j}")
    A(f"s_cmp_eq_u32 s{s_type}, 2")
    A("s_cbranch_scc1 G_EPI_Q")
    def conv(scale):
        if scale: A(f"s_mov_b32 s{s_t1}, {fbits(CSCALE):#x}")
        k = 0
        for j in range(4):
            if j == 2 and not scale:
                A(f"s_cmp_eq_u32 s{s_j}, 1")
                A("s_cbranch_scc1 G_EPI_CD")
            for i in range(4):
                for ab in range(2):
                    t = 64 + 8 * (k % 4)
                    for r in range(8): A(f"v_accvgpr_read_b32 v{t+r}, a{ACC(i,j)+8*ab+r}")
                    if scale:
                        for r in range(8): A(f"v_mul_f32 v{t+r}, s{s_t1}, v{t+r}")
                    for r in range(4): A(f"v_cvt_pk_bf16_f32 v{PK+4*k+r}, v{t+2*r}, v{t+2*r+1}")
                    k += 1
    if opt.mmt:
        A(f"s_and_b32 s{s_t0}, s{s_out}, {32*MB - 1:#x}")
        A(f"s_mul_i32 s{s_t1}, s{s_type}, 3072")
        A(f"s_add_u32 s{s_t0}, s{s_t0}, s{s_t1}")
        A(f"s_add_u32 s{s_t0}, s{s_t0}, {WS_MM:#x}")
        A(f"v_lshlrev_b32 v{vT0}, 6, v{vL}")
        for j in range(4):
            if j == 2:
                A(f"s_cmp_eq_u32 s{s_j}, 1")
                A("s_cbranch_scc1 G_MMT")
            if opt.mmt == 1: A(f"buffer_load_dword v{vDB}, v{vT0}, s[{S_WS}:{S_WS+3}], s{s_t0} offen nt")
            else:
                for q in range(3): A(f"buffer_store_dwordx4 v[64:67], v{vOUT}, s[{S_WS}:{S_WS+3}], s{s_t0} offen offset:{q*1024} sc1")
            A(f"s_add_u32 s{s_t0}, s{s_t0}, {32*16384}")
        A.label("G_MMT")
    A(f"s_lshl_b32 s{s_pflag}, s{s_h}, 5")
    A(f"s_add_u32 s{s_pflag}, s{s_pflag}, s{s_rb}")
    A(f"s_lshl_b32 s{s_pflag}, s{s_pflag}, 2")
    A(f"s_add_u32 s{s_pflag}, s{s_pflag}, {WS_KVF:#x}")
    A("s_cmp_eq_u32 s5, 0")
    A(f"s_cselect_b32 s{s_pflag}, s{s_pflag}, 0")
    A(f"v_mov_b32 v{vT1}, {OOB:#x}")
    A(f"v_lshlrev_b32 v{vT2}, 2, v{vL}")
    A(f"v_cmp_gt_u32 vcc, s{s_j}, v{vL}")
    A(f"v_cndmask_b32 v{vFLG}, v{vT1}, v{vT2}, vcc")
    conv(False)
    A("s_branch G_EPI_CD")
    A.label("G_EPI_Q")
    conv(True)
    A.label("G_EPI_CD")
    A("s_cmp_eq_u32 s6, 2")
    A("s_cbranch_scc1 G_EPI_NOW")
    A(f"s_lshl_b32 s{s_t0}, s6, 4")
    A(f"s_add_u32 s{s_t0}, s{s_t0}, s{s_rb}")
    A(f"s_cmp_ge_u32 s{s_t0}, {opt.nimm}")
    A("s_cbranch_scc1 G_NEXT")
    A.label("G_EPI_NOW")
    A(f"s_or_b32 vcc_lo, s{s_rb}, s6")
    A("s_mov_b32 vcc_hi, 0")
    for j in range(4):
        if j == 2:
            A(f"s_cmp_eq_u32 s{s_j}, 1")
            A("s_cbranch_scc1 G_EPI_ND")
        for i in range(4):
            for ab in range(2):
                A(f"buffer_store_dwordx4 {v(PK+32*j+8*i+4*ab,4)}, v{vOUT}, s[{S_WS}:{S_WS+3}], s{s_pout} offen offset:{ab*1024} sc1{' nt' if opt.snt else ''}")
                L = A.newlabel("EW")
                A(f"s_cbranch_vccz {L}")
                A(f"s_waitcnt vmcnt({opt.epq})")
                if opt.eps: A(f"s_sleep {opt.eps}")
                A.label(L)
            A(f"s_add_u32 s{s_pout}, s{s_pout}, {2048 if i < 3 else 32*16384 - 6144}")
    A.label("G_EPI_ND")
    A(f"s_mov_b32 s{s_pn}, 0")
    A("s_waitcnt vmcnt(0)")
    A("s_barrier")
    pub_flag("G_NEXT")
    A("s_branch G_NEXT")
    A.label("G_EPI_FFN")
    A(f"s_cmp_ge_u32 s{s_h}, 54")
    A("s_cbranch_scc1 G_NEXT")
    k = 0
    for j in range(4):
        if j == 2:
            A(f"s_cmp_eq_u32 s{s_j}, 1")
            A("s_cbranch_scc1 G_NEXT")
        for i in range(2):
            for ab in range(2):
                t = 64 + 20 * (k % 8); k += 1
                for r in range(8): A(f"v_accvgpr_read_b32 v{t+r}, a{ACC(i,j)+8*ab+r}")
                for r in range(8): A(f"v_accvgpr_read_b32 v{t+8+r}, a{ACC(i+2,j)+8*ab+r}")
                for r in range(8): A(f"v_mul_f32 v{t+r}, v{t+r}, v{t+8+r}")
                for r in range(4): A(f"v_cvt_pk_bf16_f32 v{t+16+r}, v{t+2*r}, v{t+2*r+1}")
                A(f"buffer_store_dwordx4 {v(t+16,4)}, v{vOUT}, s[{S_WS}:{S_WS+3}], s{s_out} offen offset:{i*2048+ab*1024} sc1")
                if opt.epw >= 0: A(f"s_waitcnt vmcnt({opt.epq})")
        A(f"s_add_u32 s{s_out}, s{s_out}, {54*2048}")
    A.label("G_NEXT")
    A("s_waitcnt vmcnt(0)")
    stamp(A, opt, 3, (6, 5), vt=(30, 31, 32))
    A("s_add_u32 s6, s6, 1")
    A("s_cmp_lt_u32 s6, 4")
    A("s_cbranch_scc1 G_ROUND")
    A.label("G_END")
    A("s_cmp_ge_u32 s7, 128")
    A("s_cbranch_scc1 G_GATE_END")
    A(f"s_load_dwordx2 s[{P0}:{P0+1}], s[0:1], {KA_GW}")
    A("s_waitcnt lgkmcnt(0)")
    srd(A, SW, P0, P0 + 1, 1280)
    A(f"v_lshrrev_b32 v{vT0}, 4, v0")
    A(f"s_lshl_b32 s{s_t0}, s7, 4")
    A(f"v_add_u32 v{vT0}, s{s_t0}, v{vT0}")
    A(f"v_and_b32 v{vT1}, 15, v0")
    A(f"v_lshlrev_b32 v{vT1}, 4, v{vT1}")
    A(f"v_mul_u32_u24 v{vT2}, 1280, v{vT0}")
    A(f"v_add_u32 v{vT2}, v{vT2}, v{vT1}")
    for c in range(5):
        A(f"buffer_load_dwordx4 {v(64+4*c,4)}, v{vT2}, s[{SX}:{SX+3}], 0 offen offset:{c*256}")
        A(f"buffer_load_dwordx4 {v(96+4*c,4)}, v{vT1}, s[{SW}:{SW+3}], 0 offen offset:{c*256}")
    A("v_mov_b32 v60, 0")
    A("v_mov_b32 v61, 0")
    A("s_waitcnt vmcnt(0)")
    for c in range(20):
        A(f"v_lshlrev_b32 v56, 16, v{64+c}")
        A(f"v_lshlrev_b32 v57, 16, v{96+c}")
        A(f"v_and_b32 v58, 0xffff0000, v{64+c}")
        A(f"v_and_b32 v59, 0xffff0000, v{96+c}")
        A(f"v_fmac_f32 v60, v56, v57")
        A(f"v_fmac_f32 v61, v58, v59")
    A("v_add_f32 v60, v60, v61")
    for ror in (8, 4, 2, 1):
        A(f"v_mov_b32_dpp v61, v60 row_ror:{ror} row_mask:0xf bank_mask:0xf")
        A("v_add_f32 v60, v60, v61")
    A(f"v_mul_f32 v60, {fbits(-math.log2(math.e)):#x}, v60")
    A("v_exp_f32 v60, v60")
    A("v_add_f32 v60, 1.0, v60")
    A("v_rcp_f32 v60, v60")
    A(f"v_lshlrev_b32 v{vT0}, 2, v{vT0}")
    A(f"v_mov_b32 v{vT2}, {OOB:#x}")
    A(f"v_cmp_eq_u32 vcc, 0, v{vT1}")
    A(f"v_cndmask_b32 v{vT0}, v{vT2}, v{vT0}, vcc")
    A(f"s_mov_b32 s{s_t0}, {WS_G:#x}")
    A(f"buffer_store_dword v60, v{vT0}, s[{S_WS}:{S_WS+3}], s{s_t0} offen sc1")
    A.label("G_GATE_END")

def generate(opt):
    A = Asm()
    A("s_cmp_ge_u32 s2, 256")
    A("s_cbranch_scc1 K_EXIT")
    A(f"s_load_dwordx2 s[36:37], s[0:1], {KA_WS}")
    A(f"s_load_dwordx2 s[38:39], s[0:1], {KA_DBG}")
    A("v_lshrrev_b32 v1, 6, v0")
    A("v_readfirstlane_b32 s5, v1")
    A("s_and_b32 s3, s2, 7")
    A("s_lshr_b32 s4, s2, 3")
    A("s_waitcnt lgkmcnt(0)")
    srd(A, S_WS, 36, 37, WS_SIZE)
    srd(A, S_DBG, 38, 39, 256)
    stamp(A, opt, 20)
    if opt.cpre:
        A("s_getpc_b64 s[40:41]")
        A.label("K_PC")
        A("s_lshl_b32 s6, s4, 2")
        A("s_add_u32 s6, s6, s5")
        A("s_lshl_b32 s6, s6, 10")
        A("s_cmp_lt_u32 s6, K_CODE_END - K_PC - 1024")
        A("s_cbranch_scc0 K_NOCP")
        A("v_and_b32 v1, 63, v0")
        A("v_lshlrev_b32 v1, 4, v1")
        A("v_add_u32 v1, s6, v1")
        A("global_load_dwordx4 v[4:7], v1, s[40:41]")
        A.label("K_NOCP")
    A("s_or_b32 s6, s2, s5")
    A("s_cmp_eq_u32 s6, 0")
    A("s_cbranch_scc0 K_ROTW")
    A("s_getreg_b32 s6, hwreg(HW_REG_XCC_ID, 0, 3)")
    A("s_or_b32 s6, s6, 8")
    A("v_mov_b32 v1, s6")
    A("s_mov_b64 exec, 1")
    A(f"buffer_store_dword v1, off, s[{S_DBG}:{S_DBG+3}], 0 offset:{DBG_ROT*4} sc1")
    A("s_mov_b64 exec, -1")
    A.label("K_ROTW")
    A(f"s_mov_b32 s7, {opt.spin}")
    A.label("K_ROTL")
    A(f"buffer_load_dword v1, off, s[{S_DBG}:{S_DBG+3}], 0 offset:{DBG_ROT*4} sc1")
    A("s_waitcnt vmcnt(0)")
    A("v_readfirstlane_b32 s6, v1")
    A("s_cmp_lg_u32 s6, 0")
    A("s_cbranch_scc1 K_ROTD")
    A("s_sub_u32 s7, s7, 1")
    A("s_cbranch_scc0 K_ROTL")
    A("s_endpgm")
    A.label("K_ROTD")
    A("s_add_u32 s3, s3, s6")
    A("s_and_b32 s3, s3, 7")
    A("s_cmp_lt_u32 s3, 2")
    A("s_cbranch_scc1 K_CHAIN")
    A("s_sub_u32 s3, s3, 2")
    A(f"s_mov_b32 s{S_POL}, {0 if opt.pol < 0 else 2 | opt.pol}")
    if opt.pol < 0:
        A("s_lshl_b32 s6, s3, 5")
        A("s_add_u32 s6, s6, s4")
        A("s_cmp_eq_u32 s6, 5")
        A("s_cbranch_scc0 K_NOPROBE")
        A("s_cmp_eq_u32 s5, 0")
        A("s_cbranch_scc0 K_PROBED")
        A(f"s_mov_b32 s66, {WS_X + 127*16384:#x}")
        A("s_add_u32 s67, s66, 8192")
        A("s_mov_b32 s64, -1")
        A("s_mov_b32 s65, -1")
        A("s_mov_b64 exec, 1")
        A("s_mov_b32 s73, 4")
        A.label("K_PROBE")
        for pl in range(2):
            A("s_memtime s[68:69]")
            A("s_waitcnt lgkmcnt(0)")
            A(f"buffer_store_dword v0, off, s[{S_WS}:{S_WS+3}], s{66+pl} sc1")
            A("s_waitcnt vmcnt(0)")
            A("s_memtime s[70:71]")
            A("s_waitcnt lgkmcnt(0)")
            A("s_sub_u32 s72, s70, s68")
            A(f"s_min_u32 s{64+pl}, s{64+pl}, s72")
        A("s_sub_u32 s73, s73, 1")
        A("s_cbranch_scc0 K_PROBE")
        A("s_cmp_lt_u32 s65, s64")
        A("s_cselect_b32 s72, 3, 2")
        A("v_mov_b32 v1, s72")
        A(f"buffer_store_dword v1, off, s[{S_DBG}:{S_DBG+3}], 0 offset:{DBG_POL*4} sc1")
        A("s_mov_b64 exec, -1")
        A.label("K_PROBED")
        A("s_barrier")
        A.label("K_NOPROBE")
    if opt.gemm: gen_gemm(A, opt)
    if opt.followers:
        from gen_follow import gen_follow
        gen_follow(A, opt)
    A("s_waitcnt vmcnt(0)")
    A("s_endpgm")
    A.label("K_CHAIN")
    if opt.chain:
        from gen_chain import gen_chain
        gen_chain(A, opt)
    A.label("K_EXIT")
    A("s_endpgm")
    A.label("K_CODE_END")
    A.pad()
    if opt.al8:
        names = [x.text for x in A.ins]
        for P in ("CF0", "CF1"):
            if f"{P}_ENTRY:" not in names: continue
            names = [x.text for x in A.ins]
            a, b = names.index(f"{P}_ENTRY:"), names.index(f"{P}_PUB0:")
            A.ins[a:b] = align8(A.ins[a:b], opt.al8)
    hdr = open('gated_mix__memory_aug_recurrent_mem_tr__glu_gated_bilinear__prompt.s.ref').read().split('\n')
    head = [l for l in hdr if l.startswith(';') and '@launch' not in l]
    out = '\n'.join(head) + f"\n; @launch grid=(256,1,1) block=(256,1,1) lds={LDS_BYTES}\n"
    out += f""".amdgcn_target "amdgcn-amd-amdhsa--gfx950"
.text
.globl {KNAME}
.p2align 8
.type {KNAME},@function
{KNAME}:
""" + A.text() + f""".section .rodata,"a"
.p2align 6
.amdhsa_kernel {KNAME}
  .amdhsa_next_free_vgpr 512
  .amdhsa_next_free_sgpr 102
  .amdhsa_accum_offset 256
  .amdhsa_group_segment_fixed_size 0
  .amdhsa_kernarg_size 120
  .amdhsa_user_sgpr_count 2
  .amdhsa_user_sgpr_kernarg_segment_ptr 1
  .amdhsa_system_sgpr_workgroup_id_x 1
.end_amdhsa_kernel
"""
    return out

if __name__ == "__main__":
    opt = Opt()
    outp = sys.argv[1]
    for a in sys.argv[2:]:
        k, val = a.split('=', 1)
        setattr(opt, k, val if k in ('marks', 'drop', 'pubg') else int(val))
    open(outp, 'w').write(generate(opt))
```

```python
import sys, math, struct
from asmlib import *

KNAME = "gated_mix__memory_aug_recurrent_mem_tr__glu_gated_bilinear__prompt_kernel"
MB = 1 << 20
WS_KQ, WS_VO, WS_MM = 0, 32 * MB, 96 * MB
WS_H = 64 * MB
WS_G = 80 * MB
WS_PROG = 80 * MB + 0x10000
WS_KVF = 80 * MB + 0x30000
WS_OFLAG = 80 * MB + 0x20000
WS_P = 81 * MB
WS_ML = 82 * MB
WS_X = 84 * MB
WS_SIZE = 256 * MB
OOB = 0x80000000
SENT = 0x7F817F81
SUSP = 0x7F810000
CSCALE = math.log2(math.e) / math.sqrt(128.0)
def fbits(x): return struct.unpack('<I', struct.pack('<f', x))[0]
KA_X, KA_MEM0, KA_WQ, KA_WK, KA_WV, KA_WO, KA_WG, KA_WU, KA_WD, KA_GW, KA_OUT, KA_DBG, KA_WS = 0, 8, 16, 24, 32, 40, 64, 72, 80, 88, 96, 104, 112
DBG_CHAIN_CNT, DBG_XCC0, DBG_POL, DBG_WBAR, DBG_ERR, DBG_ROT, DBG_KV, DBG_TICKET = 0, 1, 3, 4, 5, 7, 8, 32

S_WS, S_DBG = 8, 12
LDS_BYTES = 163840
NKVB, KVSEG = 16, 4

def srd(A, d, lo, hi, nbytes):
    A(f"s_mov_b32 s{d}, s{lo}")
    A(f"s_and_b32 s{d+1}, s{hi}, 0xffff")
    A(f"s_mov_b32 s{d+2}, {nbytes:#x}")
    A(f"s_mov_b32 s{d+3}, 0x20000")

WS_TS = 90 * MB
def stamp(A, opt, idx, sidx=None, vt=(250, 251, 252), st=(96, 97, 98)):
    if opt.dbgts:
        mp = {20: 8, 1: 9, 3 if sidx is None else -1: 10, 24: 11, 26: 12, 27: 13}
        word = mp.get(idx) if sidx is None else None
        if sidx is not None and idx == 3: word = 14
        if word is None: return
        L = A.newlabel("ST")
        A("s_cmp_eq_u32 s5, 0")
        A(f"s_cbranch_scc0 {L}")
        if sidx is not None:
            A("s_cmp_gt_u32 s6, 1")
            A(f"s_cbranch_scc1 {L}")
        A(f"s_memrealtime s[{st[0]}:{st[1]}]")
        A(f"s_lshl_b32 s{st[2]}, s6, 2" if sidx is not None else f"s_mov_b32 s{st[2]}, 0")
        A("s_waitcnt lgkmcnt(0)")
        A(f"v_mov_b32 v{vt[0]}, s{st[0]}")
        A("s_mov_b64 exec, 1")
        A(f"buffer_atomic_umax v{vt[0]}, off, s[{S_DBG}:{S_DBG+3}], s{st[2]} offset:{word*4} sc1")
        A("s_mov_b64 exec, -1")
        A.label(L)
        return
    if not opt.stamps: return
    L = A.newlabel("ST")
    A("s_cmp_eq_u32 s5, 0")
    A(f"s_cbranch_scc0 {L}")
    A(f"s_memrealtime s[{st[0]}:{st[1]}]")
    A(f"s_memtime s[100:101]")
    A(f"s_lshl_b32 s{st[2]}, s2, 10")
    A(f"s_add_u32 s{st[2]}, s{st[2]}, {WS_TS + idx*8:#x}")
    if sidx is not None:
        A(f"s_lshl_b32 s99, s{sidx[0]}, {sidx[1]}")
        A(f"s_add_u32 s{st[2]}, s{st[2]}, s99")
    A("s_waitcnt lgkmcnt(0)")
    A(f"v_mov_b32 v{vt[0]}, s{st[0]}")
    A(f"v_mov_b32 v{vt[1]}, s100")
    A(f"v_mov_b32 v{vt[2]}, 0")
    A(f"buffer_store_dwordx2 v[{vt[0]}:{vt[1]}], v{vt[2]}, s[{S_WS}:{S_WS+3}], s{st[2]} offen")
    A("s_waitcnt vmcnt(0)")
    A.label(L)

S_POL = 60
def get_pol(A, opt, nm, vt, st):
    A(f"s_cmp_lg_u32 s{S_POL}, 0")
    A(f"s_cbranch_scc1 {nm}_POLD")
    A(f"s_mov_b32 s{st}, {opt.spin}")
    A.label(f"{nm}_POLL")
    A(f"buffer_load_dword v{vt}, off, s[{S_DBG}:{S_DBG+3}], 0 offset:{DBG_POL*4} sc1")
    A(f"buffer_load_dword v{vt+1}, off, s[{S_DBG}:{S_DBG+3}], 0 offset:{DBG_CHAIN_CNT*4} sc1")
    A("s_waitcnt vmcnt(0)")
    A(f"v_readfirstlane_b32 s{S_POL}, v{vt}")
    A(f"v_readfirstlane_b32 s{S_POL+1}, v{vt+1}")
    A(f"s_cmp_ge_u32 s{S_POL+1}, {64 if opt.chain else 0}")
    A(f"s_cselect_b32 s{S_POL}, s{S_POL}, 0")
    A(f"s_cmp_lg_u32 s{S_POL}, 0")
    A(f"s_cbranch_scc1 {nm}_POLD")
    A(f"s_sub_u32 s{st}, s{st}, 1")
    A(f"s_cbranch_scc0 {nm}_POLL")
    A("s_endpgm")
    A.label(f"{nm}_POLD")

class Opt:
    tlb = 0; dbgts = 0; steps = 0; stamps = 0; trace = 0; smask = 0; marks = ''; drop = ''; tstep = 40
    workers = True; chain = True; followers = True; gemm = True
    spin = 200000
    cpre = 1; gpre = 0; mmt = 0; mix = 1; snt = 0; stf = 0; ldf = 0; prio = 0; al8 = 0; pad0 = 0; eps = 0; nimm = 6; epw = 0; epq = 0; krot = 1; prio0 = 1; wvtop = 1; b0p = 1; lbar = 3; lwr = -1; uni = 0; uf = 8; solo = 0; wve = 0; nfill = 0; e0 = 5; ow64 = 1; kvall = 0; krot0 = 0; pol = -1; force_slow = 0
    lreg = 1; ereg = 1; echk = 2; lfv = 0; rpre = 0; lchk = 2; kxe = 1; rg = 6; mrpos = 0; rdly = 0; lwait = 0; lspec = 3; qb = 3; qw = 3; kw = 4; vearly = 0; fastonly = 0; nocnt = 0; erf = 0; lrf = 0; nwarm = 0; e1 = 1; l1 = 1; ne = 8; vfast = 1; vxg = -1; inl = 1; pubg = '12,11,22,23'; qper = 4; ld1 = 10; lgap = 25; lw = 25; lw2 = 8; lnf = 2; rearly = 0
    ed1 = 8; egap = 6; ew = 30; enf = 2
    rlead = 6; kxlate = 4; sgap = 10; inv = 1; ow = 0; kvsame = 0; kmsame = 0; nokm = 0; vr_gap = 44; vr2 = 0; vper = 4; pk = 0; nk = 4; kslot = -1

def gen_gemm(A, opt):
    SX, SW = 16, 20
    s_rb, s_type, s_stride, s_h, s_out, s_sx, s_sw, s_wstep = 24, 25, 26, 27, 28, 29, 30, 31
    s_it, s_t0, s_t1 = 32, 33, 34
    P0, P1 = 36, 38
    s_m0x, s_m0w = 40, 41
    s_wsz, s_j, s_seg = 42, 43, 44
    vXA = [1, 2, 3, 4]
    vWA = [5, 6, 7, 8]
    vDX = [9, 10, 11, 12]
    vDW = [13, 14, 15, 16]
    vL, vT0, vT1, vT2, vOUT, vXB, vDB = 17, 18, 19, 20, 21, 22, 23
    XF = lambda sg, j: 64 + 32 * sg + 4 * j
    WF = lambda sg, i: 80 + 32 * sg + 4 * i
    ACC = lambda i, j: 16 * (4 * i + j)

    A("s_load_dwordx2 s[36:37], s[0:1], %d" % KA_X)
    A("s_waitcnt lgkmcnt(0)")
    srd(A, SX, 36, 37, 2048 * 1280)
    A(f"v_and_b32 v{vL}, 63, v0")
    A(f"v_and_b32 v{vT0}, 31, v{vL}")
    A(f"v_lshrrev_b32 v{vT1}, 5, v{vL}")
    A(f"v_bfe_u32 v{vT2}, v{vL}, 2, 2")
    A(f"v_xor_b32 v{vT1}, v{vT1}, v{vT2}")
    A(f"v_lshlrev_b32 v{vT1}, 4, v{vT1}")
    A(f"v_lshl_add_u32 v{vXB}, v{vT0}, 6, v{vT1}")
    A(f"v_lshrrev_b32 v{vT0}, 5, v{vL}")
    A(f"v_bfe_u32 v{vT1}, v{vL}, 2, 2")
    A(f"v_lshl_add_u32 v{vT0}, v{vT0}, 3, v{vT1}")
    A(f"v_lshlrev_b32 v{vT0}, 7, v{vT0}")
    A(f"v_bfe_u32 v{vT1}, v{vL}, 3, 1")
    A(f"v_lshl_add_u32 v{vT0}, v{vT1}, 6, v{vT0}")
    A(f"v_bfe_u32 v{vT1}, v{vL}, 4, 1")
    A(f"v_lshl_add_u32 v{vT0}, v{vT1}, 5, v{vT0}")
    A(f"v_and_b32 v{vT1}, 3, v{vL}")
    A(f"v_lshl_add_u32 v{vT0}, v{vT1}, 3, v{vT0}")
    A(f"s_lshr_b32 s{s_t0}, s5, 1")
    A(f"s_lshl_b32 s{s_t0}, s{s_t0}, 13")
    A(f"v_add_u32 v{vWA[0]}, s{s_t0}, v{vT0}")
    A(f"v_xor_b32 v{vWA[1]}, 64, v{vWA[0]}")
    A(f"v_add_u32 v{vWA[2]}, 0x10000, v{vWA[0]}")
    A(f"v_add_u32 v{vWA[3]}, 0x10000, v{vWA[1]}")
    A(f"v_lshrrev_b32 v{vT0}, 2, v{vL}")
    A(f"v_mul_u32_u24 v{vT0}, 1280, v{vT0}")
    A(f"v_and_b32 v{vT1}, 3, v{vL}")
    A(f"v_lshrrev_b32 v{vT2}, 4, v{vL}")
    A(f"v_xor_b32 v{vT1}, v{vT1}, v{vT2}")
    A(f"v_lshl_add_u32 v{vDX[0]}, v{vT1}, 4, v{vT0}")
    for n in range(1, 4):
        A(f"v_add_u32 v{vDX[n]}, {n*(16*1280-1024)}, v{vDX[0]}")
    A(f"s_lshl_b32 s{s_m0w}, s5, 12")
    A(f"s_add_u32 s{s_m0w}, s{s_m0w}, 16384")
    A(f"v_lshlrev_b32 v{vOUT}, 4, v{vL}")
    A("s_lshl_b32 s7, s3, 5")
    A("s_add_u32 s7, s7, s4")
    A("s_mov_b32 s6, 0")
    s_pn, s_pout, s_pflag, s_pw = 46, 47, 48, 49
    vFLG, vONEI, PK = 24, 25, 128
    A(f"s_mov_b32 s{s_pn}, 0")
    A(f"s_mov_b32 s{s_pflag}, 0")
    A(f"s_mov_b32 s{s_pout}, 0")
    A(f"v_mov_b32 v{vONEI}, 1")
    A(f"v_mov_b32 v{vFLG}, {OOB:#x}")
    def pub_flag(skip):
        A(f"s_cmp_eq_u32 s{s_pflag}, 0")
        A(f"s_cbranch_scc1 {skip}")
        A(f"buffer_store_dword v{vONEI}, v{vFLG}, s[{S_WS}:{S_WS+3}], s{s_pflag} offen sc1")
        A(f"s_mov_b32 s{s_pflag}, 0")
    if opt.gpre:
        A(f"s_load_dwordx4 s[44:47], s[0:1], {KA_WQ}")
        A(f"s_load_dwordx4 s[48:51], s[0:1], {KA_WV}")
        A("s_lshl_b32 s52, s7, 2")
        A("s_add_u32 s52, s52, s5")
        A(f"s_mul_i32 s52, s52, {7*1024}")
        A(f"v_add_u32 v{vT0}, s52, v{vOUT}")
        A(f"v_add_u32 v{vT1}, 4096, v{vT0}")
        A("s_waitcnt lgkmcnt(0)")
        for p in (46, 48, 44, 50)[:opt.gpre]:
            srd(A, SW, p, p + 1, 640 * 8192)
            for n in range(7):
                A(f"buffer_load_dwordx4 v[24:27], v{vT0 if n < 4 else vT1}, s[{SW}:{SW+3}], 0 offen offset:{(n&3)*1024}")

    A.label("G_ROUND")
    A(f"s_mov_b32 s{s_j}, 2")
    A("s_cmp_eq_u32 s6, 1")
    A("s_cbranch_scc1 G_DEC_R1")
    A("s_cmp_eq_u32 s6, 2")
    A("s_cbranch_scc1 G_DEC_R2")
    A(f"s_mov_b32 s{s_j}, 1")
    A("s_cmp_eq_u32 s6, 3")
    A("s_cbranch_scc1 G_DEC_R3")
    A(f"s_mul_i32 s{s_h}, s7, 43691")
    A(f"s_lshr_b32 s{s_h}, s{s_h}, 18")
    A(f"s_mul_i32 s{s_t0}, s{s_h}, 6")
    A(f"s_sub_u32 s{s_rb}, s7, s{s_t0}")
    A("s_branch G_DEC_KV")
    A.label("G_DEC_R1")
    if opt.mix:
        A(f"s_sub_u32 s{s_t0}, s7, 64")
        A("s_cbranch_scc0 G_DEC_Q")
        A(f"s_lshr_b32 s{s_h}, s7, 1")
        A(f"s_and_b32 s{s_rb}, s7, 1")
        A(f"s_lshl_b32 s{s_rb}, s{s_rb}, 1")
        A(f"s_add_u32 s{s_rb}, s{s_rb}, 6")
        A("s_branch G_DEC_KV")
        A.label("G_DEC_R2")
        A(f"s_sub_u32 s{s_t0}, s7, 96")
        A("s_cbranch_scc0 G_DEC_F4")
        A(f"s_mul_i32 s{s_h}, s7, 43691")
        A(f"s_lshr_b32 s{s_h}, s{s_h}, 17")
        A(f"s_mul_i32 s{s_t0}, s{s_h}, 3")
        A(f"s_sub_u32 s{s_rb}, s7, s{s_t0}")
        A(f"s_lshl_b32 s{s_rb}, s{s_rb}, 1")
        A(f"s_add_u32 s{s_rb}, s{s_rb}, 10")
    else:
        A(f"s_sub_u32 s{s_t0}, s7, 160")
        A("s_cbranch_scc0 G_DEC_Q")
        A(f"s_mul_i32 s{s_h}, s7, 52429")
        A(f"s_lshr_b32 s{s_h}, s{s_h}, 18")
        A(f"s_mul_i32 s{s_t0}, s{s_h}, 5")
        A(f"s_sub_u32 s{s_rb}, s7, s{s_t0}")
        A(f"s_lshl_b32 s{s_rb}, s{s_rb}, 1")
        A(f"s_add_u32 s{s_rb}, s{s_rb}, 6")
    A.label("G_DEC_KV")
    A(f"s_load_dwordx2 s[{P0}:{P0+1}], s[0:1], {KA_WK}")
    A(f"s_load_dwordx2 s[{P1}:{P1+1}], s[0:1], {KA_WV}")
    A("s_waitcnt lgkmcnt(0)")
    A("s_cmp_ge_u32 s5, 2")
    A(f"s_cselect_b32 s{P0}, s{P1}, s{P0}")
    A(f"s_cselect_b32 s{P0+1}, s{P1+1}, s{P0+1}")
    A(f"s_cselect_b32 s{s_type}, 1, 0")
    A(f"s_cselect_b32 s{s_out}, {WS_VO:#x}, {WS_KQ:#x}")
    A(f"s_lshl_b32 s{s_sw}, s{s_h}, 8")
    A(f"s_and_b32 s{s_t0}, s5, 1")
    A(f"s_lshl_b32 s{s_t0}, s{s_t0}, 7")
    A(f"s_add_u32 s{s_sw}, s{s_sw}, s{s_t0}")
    A(f"s_lshl_b32 s{s_t0}, s{s_h}, 14")
    A(f"s_add_u32 s{s_out}, s{s_out}, s{s_t0}")
    A("s_branch G_DEC_QKV")
    if not opt.mix:
        A.label("G_DEC_R2")
        A(f"s_sub_u32 s{s_t0}, s7, 96")
        A("s_cbranch_scc0 G_DEC_F4")
        A(f"s_add_u32 s{s_t0}, s7, 32")
    A.label("G_DEC_Q")
    A(f"s_and_b32 s{s_rb}, s{s_t0}, 7")
    A(f"s_lshl_b32 s{s_rb}, s{s_rb}, 1")
    A(f"s_lshr_b32 s{s_h}, s{s_t0}, 3")
    A(f"s_load_dwordx2 s[{P0}:{P0+1}], s[0:1], {KA_WQ}")
    A("s_waitcnt lgkmcnt(0)")
    A(f"s_mov_b32 s{s_type}, 2")
    A(f"s_lshl_b32 s{s_sw}, s{s_h}, 9")
    A(f"s_lshl_b32 s{s_t0}, s5, 7")
    A(f"s_add_u32 s{s_sw}, s{s_sw}, s{s_t0}")
    A(f"s_lshl_b32 s{s_t0}, s{s_h}, 1")
    A(f"s_lshr_b32 s{s_t1}, s5, 1")
    A(f"s_add_u32 s{s_t0}, s{s_t0}, s{s_t1}")
    A(f"s_lshl_b32 s{s_t0}, s{s_t0}, 14")
    A(f"s_add_u32 s{s_out}, s{s_t0}, {WS_KQ + 8192:#x}")
    A.label("G_DEC_QKV")
    A(f"s_mov_b32 s{s_stride}, 8192")
    A(f"s_mov_b32 s{s_wsz}, {640*8192}")
    A(f"s_mov_b32 s{s_it}, {32*16384}")
    A("s_branch G_DEC_DONE")
    A.label("G_DEC_R3")
    A(f"s_sub_u32 s{s_t0}, s4, 26")
    A("s_cbranch_scc1 G_END")
    A(f"s_mul_i32 s{s_t1}, s3, 6")
    A(f"s_add_u32 s{s_t0}, s{s_t0}, s{s_t1}")
    A(f"s_cmp_ge_u32 s{s_t0}, 32")
    A("s_cbranch_scc1 G_END")
    A(f"s_and_b32 s{s_rb}, s{s_t0}, 15")
    A(f"s_lshr_b32 s{s_h}, s{s_t0}, 4")
    A(f"s_add_u32 s{s_h}, s{s_h}, 12")
    A("s_branch G_DEC_FFN")
    A.label("G_DEC_F4")
    A(f"s_and_b32 s{s_rb}, s{s_t0}, 7")
    A(f"s_lshl_b32 s{s_rb}, s{s_rb}, 1")
    A(f"s_lshr_b32 s{s_h}, s{s_t0}, 3")
    A.label("G_DEC_FFN")
    A(f"s_load_dwordx2 s[{P0}:{P0+1}], s[0:1], {KA_WG}")
    A(f"s_load_dwordx2 s[{P1}:{P1+1}], s[0:1], {KA_WU}")
    A("s_waitcnt lgkmcnt(0)")
    A(f"s_bitcmp1_b32 s5, 0")
    A(f"s_cselect_b32 s{P0}, s{P1}, s{P0}")
    A(f"s_cselect_b32 s{P0+1}, s{P1+1}, s{P0+1}")
    A(f"s_mov_b32 s{s_type}, 3")
    A(f"s_lshl_b32 s{s_sw}, s{s_h}, 8")
    A(f"s_lshr_b32 s{s_t0}, s5, 1")
    A(f"s_lshl_b32 s{s_t1}, s{s_t0}, 7")
    A(f"s_add_u32 s{s_sw}, s{s_sw}, s{s_t1}")
    A(f"s_lshl_b32 s{s_t0}, s{s_t0}, 1")
    A(f"s_lshl_b32 s{s_t1}, s{s_h}, 2")
    A(f"s_add_u32 s{s_h}, s{s_t0}, s{s_t1}")
    A(f"s_lshl_b32 s{s_out}, s{s_h}, 11")
    A(f"s_add_u32 s{s_out}, s{s_out}, {WS_H:#x}")
    A(f"s_mov_b32 s{s_stride}, 3456")
    A(f"s_mov_b32 s{s_wsz}, {640*3456}")
    A(f"s_mov_b32 s{s_it}, {54*2048}")
    A.label("G_DEC_DONE")
    A(f"s_and_b32 s{s_t1}, s5, 1")
    A(f"s_lshl_b32 s{s_t1}, s{s_t1}, s{s_j}")
    A(f"s_lshl_b32 s{s_seg}, s{s_rb}, 2")
    A(f"s_add_u32 s{s_seg}, s{s_seg}, s{s_t1}")
    A(f"s_mul_i32 s{s_t0}, s{s_seg}, s{s_it}")
    A(f"s_add_u32 s{s_out}, s{s_out}, s{s_t0}")
    A(f"s_lshl_b32 s{s_t1}, s{s_t1}, 11")
    A(f"v_add_u32 v{vXA[0]}, s{s_t1}, v{vXB}")
    A(f"v_xor_b32 v{vXA[1]}, 32, v{vXA[0]}")
    A(f"v_add_u32 v{vXA[2]}, 0x10000, v{vXA[0]}")
    A(f"v_add_u32 v{vXA[3]}, 0x10000, v{vXA[1]}")
    A(f"s_lshl_b32 s{s_t0}, s5, s{s_j}")
    A(f"s_lshl_b32 s{s_m0x}, s{s_t0}, 10")
    A(f"s_mul_i32 s{s_t0}, s{s_t0}, {16*1280}")
    A(f"s_mul_i32 s{s_sx}, s{s_rb}, {128*1280}")
    A(f"s_add_u32 s{s_sx}, s{s_sx}, s{s_t0}")
    A(f"s_mov_b32 s{SW}, s{P0}")
    A(f"s_and_b32 s{SW+1}, s{P0+1}, 0xffff")
    A(f"s_mov_b32 s{SW+2}, s{s_wsz}")
    A(f"s_mov_b32 s{SW+3}, 0x20000")
    A(f"s_lshl_b32 s{s_wstep}, s{s_stride}, 5")
    A(f"v_lshrrev_b32 v{vT0}, 3, v{vL}")
    A(f"v_mul_lo_u32 v{vT0}, v{vT0}, s{s_stride}")
    A(f"v_bfe_u32 v{vT1}, v{vL}, 4, 1")
    A(f"v_lshlrev_b32 v{vT1}, 2, v{vT1}")
    A(f"v_and_b32 v{vT2}, 7, v{vL}")
    A(f"v_xor_b32 v{vT1}, v{vT1}, v{vT2}")
    A(f"v_lshl_add_u32 v{vDW[0]}, v{vT1}, 4, v{vT0}")
    A(f"s_lshl_b32 s{s_t0}, s{s_stride}, 3")
    A(f"s_sub_u32 s{s_t0}, s{s_t0}, 1024")
    for n in range(1, 4):
        A(f"v_add_u32 v{vDW[n]}, s{s_t0}, v{vDW[n-1]}")
    s_wrap = 45
    if opt.krot:
        A(f"s_mul_i32 s{s_t0}, s{s_rb}, 5")
        A(f"s_lshr_b32 s{s_t0}, s{s_t0}, 2")
        A(f"s_mul_i32 s{s_t1}, s{s_rb}, {opt.krot0}")
        A("s_cmp_eq_u32 s6, 0")
        A(f"s_cselect_b32 s{s_t0}, s{s_t1}, s{s_t0}")
        A(f"s_sub_u32 s{s_wrap}, 20, s{s_t0}")
        A(f"s_lshl_b32 s{s_t1}, s{s_t0}, 6")
        A(f"s_add_u32 s{s_sx}, s{s_sx}, s{s_t1}")
        A(f"s_mul_i32 s{s_t1}, s{s_t0}, s{s_wstep}")
        A(f"s_add_u32 s{s_sw}, s{s_sw}, s{s_t1}")
    stamp(A, opt, 0, (6, 5), vt=(30, 31, 32))
    A(f"s_cmp_eq_u32 s{s_j}, 2")
    A("s_cbranch_scc1 G4_START")

    def tile(J):
        G = f"G{J}"
        ND = J + 4
        def dma_list(slot):
            L = [[f"s_add_u32 m0, s{s_m0x}, {slot*32768}"]]
            for n in range(J):
                L.append([f"buffer_load_dwordx4 v{vDX[n]}, s[{SX}:{SX+3}], s{s_sx} offen offset:{n*1024} lds"])
            L.append([f"s_add_u32 m0, s{s_m0w}, {slot*32768}", f"s_add_u32 s{s_sx}, s{s_sx}, 64"])
            for n in range(4):
                L.append([f"buffer_load_dwordx4 v{vDW[n]}, s[{SW}:{SW+3}], s{s_sw} offen offset:{n*1024} lds"])
            L.append([f"s_add_u32 s{s_sw}, s{s_sw}, s{s_wstep}"] + ([
                f"s_sub_u32 s{s_wrap}, s{s_wrap}, 1", f"s_cmp_eq_u32 s{s_wrap}, 0", f"s_cselect_b32 s{s_t0}, 1280, 0", f"s_cselect_b32 s{s_t1}, s{s_wsz}, 0",
                f"s_sub_u32 s{s_sx}, s{s_sx}, s{s_t0}", f"s_sub_u32 s{s_sw}, s{s_sw}, s{s_t1}"] if opt.krot else []))
            return L
        def read_list(slot, ks, sg):
            hi = slot >> 1; base = (slot & 1) * 32768
            L = []
            order = [('x', 0), ('w', 0)] + [('x', j) for j in range(1, J)] + [('w', 1), ('w', 2), ('w', 3)]
            for t, i in order:
                if t == 'x':
                    L.append(f"ds_read_b128 {v(XF(sg,i),4)}, v{vXA[2*hi+ks]} offset:{base + i*2048}")
                else:
                    for m in range(2):
                        L.append(f"ds_read_b64_tr_b16 {v(WF(sg,i)+2*m,2)}, v{vWA[2*hi+(i&1)]} offset:{base + 16384 + (i>>1)*4096 + ks*2048 + m*512}")
            return L
        def mfmas(sg, vtype, first):
            L = []
            for i in range(4):
                for j in range(J):
                    d = a_(ACC(i, j), 16)
                    c = "0" if first else d
                    if vtype: L.append(f"v_mfma_f32_32x32x16_bf16 {d}, {v(XF(sg,j),4)}, {v(WF(sg,i),4)}, {c}")
                    else:     L.append(f"v_mfma_f32_32x32x16_bf16 {d}, {v(WF(sg,i),4)}, {v(XF(sg,j),4)}, {c}")
            return L
        def interleave(ms, fill):
            n = len(ms); k = 0
            for g, m in enumerate(ms):
                A(m)
                per = -(-(len(fill) - k) // (n - g)) if len(fill) > n else (1 if k < len(fill) else 0)
                for _ in range(per):
                    for t in fill[k]: A(t)
                    k += 1
        A.label(f"{G}_START")
        for st in range(4):
            for g in dma_list(st):
                for t in g: A(t)
        A(f"s_waitcnt vmcnt({3*ND})")
        A("s_barrier")
        for t in read_list(0, 0, 0): A(t)
        A(f"s_cmp_eq_u32 s{s_type}, 1")
        A(f"s_cbranch_scc1 {G}_LOOP_V")
        def body(st_slot, vtype, first, dma, vm, last):
            A("s_waitcnt lgkmcnt(0)")
            rl = read_list(st_slot, 1, 1)
            per = 1 if J == 4 else 2
            fl = [rl[k:k+per] for k in range(0, len(rl), per)]
            def dst(ab, wv):
                L = A.newlabel("DS")
                return [f"s_cmp_eq_u32 s{s_pw}, {wv}", f"s_cbranch_scc0 {L}",
                        f"buffer_store_dwordx4 {v(PK+8*st_slot+4*ab,4)}, v{vOUT}, s[{S_WS}:{S_WS+3}], s{s_pout} offen offset:{ab*1024} sc1", f"{L}:"]
            if J == 4 and dma:
                while len(fl) < 16: fl.append([])
                fl[0] = fl[0] + [f"s_cmp_eq_u32 s{s_pn}, 0", f"s_cselect_b32 s{s_pw}, 9, s5"]
                for wv in range(4): fl[1 + 4 * wv] = fl[1 + 4 * wv] + dst(0, wv)
            interleave(mfmas(0, vtype, first), fl)
            if last:
                A("s_waitcnt lgkmcnt(0)")
                A("s_barrier")
                interleave(mfmas(1, vtype, False), [])
                return
            A(f"s_waitcnt vmcnt({vm}) lgkmcnt(0)")
            A("s_barrier")
            rl = read_list((st_slot + 1) & 3, 0, 0)
            per = 2 if J == 4 else 3
            fill = [rl[k:k+per] for k in range(0, len(rl), per)]
            if dma:
                dl = dma_list(st_slot)
                grp = [dl[0] + dl[1]] + dl[2:J+1] + [dl[J+1] + dl[J+2]] + dl[J+3:J+5] + [dl[J+5] + dl[J+6]]
                if J == 2: grp = [grp[0] + grp[1], grp[2], grp[3] + grp[4], grp[5]]
                fill += grp
                if J == 4:
                    while len(fill) < 16: fill.append([])
                    mv = [f"v_mov_b64 {v(PK+32*q+8*st_slot+2*r,2)}, {v(PK+32*(q+1)+8*st_slot+2*r,2)}" for q in range(3) for r in range(4)]
                    for wv in range(4): fill[4 * wv] = fill[4 * wv] + dst(1, wv)
                    for i_, x in enumerate(mv): fill[13 + i_ // 4] = fill[13 + i_ // 4] + [x]
                    fill[15] = fill[15] + [f"s_add_u32 s{s_pout}, s{s_pout}, {2048 if st_slot < 3 else 32*16384 - 6144}"]
            interleave(mfmas(1, vtype, False), fill)
        for vtype in (0, 1):
            nm = f"{G}_LOOP_" + ("V" if vtype else "K")
            A.label(nm)
            body(0, vtype, True, True, 2 * ND, False)
            A(f"s_mov_b32 s{s_it}, 0")
            A(f"s_branch {nm}_1")
            A.label(f"{nm}_0")
            body(0, vtype, False, True, 2 * ND, False)
            A.label(f"{nm}_1")
            for sl in (1, 2, 3): body(sl, vtype, False, True, 2 * ND, False)
            if J == 4:
                A(f"s_sub_u32 s{s_pn}, s{s_pn}, 1")
                A(f"s_cbranch_scc0 {nm}_2")
                A(f"s_mov_b32 s{s_pn}, 0")
                pub_flag(f"{nm}_2")
                A.label(f"{nm}_2")
            A(f"s_add_u32 s{s_it}, s{s_it}, 1")
            A(f"s_cmp_lt_u32 s{s_it}, 4")
            A(f"s_cbranch_scc1 {nm}_0")
            body(0, vtype, False, False, 2 * ND, False)
            body(1, vtype, False, False, ND, False)
            body(2, vtype, False, False, 0, False)
            body(3, vtype, False, False, 0, True)
            A("s_branch G_EPI")
    tile(2)
    tile(4)
    A.label("G_EPI")
    pub_flag("G_EPI1")
    A.label("G_EPI1")
    stamp(A, opt, 2, (6, 5), vt=(30, 31, 32))
    A(f"s_cmp_eq_u32 s{s_type}, 3")
    A("s_cbranch_scc1 G_EPI_FFN")
    get_pol(A, opt, "G", vT0, s_it)
    A(f"s_lshr_b32 s{s_t0}, s{s_seg}, 2")
    A(f"s_xor_b32 s{s_t0}, s{s_t0}, s{S_POL}")
    A(f"s_and_b32 s{s_t0}, s{s_t0}, 1")
    A(f"s_lshl_b32 s{s_t0}, s{s_t0}, 13")
    A(f"s_xor_b32 s{s_out}, s{s_out}, s{s_t0}")
    A(f"s_mov_b32 s{s_pout}, s{s_out}")
    A(f"s_lshl_b32 s{s_pn}, 1, s{s_j}")
    A(f"s_cmp_eq_u32 s{s_type}, 2")
    A("s_cbranch_scc1 G_EPI_Q")
    def conv(scale):
        if scale: A(f"s_mov_b32 s{s_t1}, {fbits(CSCALE):#x}")
        k = 0
        for j in range(4):
            if j == 2 and not scale:
                A(f"s_cmp_eq_u32 s{s_j}, 1")
                A("s_cbranch_scc1 G_EPI_CD")
            for i in range(4):
                for ab in range(2):
                    t = 64 + 8 * (k % 4)
                    for r in range(8): A(f"v_accvgpr_read_b32 v{t+r}, a{ACC(i,j)+8*ab+r}")
                    if scale:
                        for r in range(8): A(f"v_mul_f32 v{t+r}, s{s_t1}, v{t+r}")
                    for r in range(4): A(f"v_cvt_pk_bf16_f32 v{PK+4*k+r}, v{t+2*r}, v{t+2*r+1}")
                    k += 1
    if opt.mmt:
        A(f"s_and_b32 s{s_t0}, s{s_out}, {32*MB - 1:#x}")
        A(f"s_mul_i32 s{s_t1}, s{s_type}, 3072")
        A(f"s_add_u32 s{s_t0}, s{s_t0}, s{s_t1}")
        A(f"s_add_u32 s{s_t0}, s{s_t0}, {WS_MM:#x}")
        A(f"v_lshlrev_b32 v{vT0}, 6, v{vL}")
        for j in range(4):
            if j == 2:
                A(f"s_cmp_eq_u32 s{s_j}, 1")
                A("s_cbranch_scc1 G_MMT")
            if opt.mmt == 1: A(f"buffer_load_dword v{vDB}, v{vT0}, s[{S_WS}:{S_WS+3}], s{s_t0} offen nt")
            else:
                for q in range(3): A(f"buffer_store_dwordx4 v[64:67], v{vOUT}, s[{S_WS}:{S_WS+3}], s{s_t0} offen offset:{q*1024} sc1")
            A(f"s_add_u32 s{s_t0}, s{s_t0}, {32*16384}")
        A.label("G_MMT")
    A(f"s_lshl_b32 s{s_pflag}, s{s_h}, 5")
    A(f"s_add_u32 s{s_pflag}, s{s_pflag}, s{s_rb}")
    A(f"s_lshl_b32 s{s_pflag}, s{s_pflag}, 2")
    A(f"s_add_u32 s{s_pflag}, s{s_pflag}, {WS_KVF:#x}")
    A("s_cmp_eq_u32 s5, 0")
    A(f"s_cselect_b32 s{s_pflag}, s{s_pflag}, 0")
    A(f"v_mov_b32 v{vT1}, {OOB:#x}")
    A(f"v_lshlrev_b32 v{vT2}, 2, v{vL}")
    A(f"v_cmp_gt_u32 vcc, s{s_j}, v{vL}")
    A(f"v_cndmask_b32 v{vFLG}, v{vT1}, v{vT2}, vcc")
    conv(False)
    A("s_branch G_EPI_CD")
    A.label("G_EPI_Q")
    conv(True)
    A.label("G_EPI_CD")
    A("s_cmp_eq_u32 s6, 2")
    A("s_cbranch_scc1 G_EPI_NOW")
    A(f"s_lshl_b32 s{s_t0}, s6, 4")
    A(f"s_add_u32 s{s_t0}, s{s_t0}, s{s_rb}")
    A(f"s_cmp_ge_u32 s{s_t0}, {opt.nimm}")
    A("s_cbranch_scc1 G_NEXT")
    A.label("G_EPI_NOW")
    A(f"s_or_b32 vcc_lo, s{s_rb}, s6")
    A("s_mov_b32 vcc_hi, 0")
    for j in range(4):
        if j == 2:
            A(f"s_cmp_eq_u32 s{s_j}, 1")
            A("s_cbranch_scc1 G_EPI_ND")
        for i in range(4):
            for ab in range(2):
                A(f"buffer_store_dwordx4 {v(PK+32*j+8*i+4*ab,4)}, v{vOUT}, s[{S_WS}:{S_WS+3}], s{s_pout} offen offset:{ab*1024} sc1{' nt' if opt.snt else ''}")
                L = A.newlabel("EW")
                A(f"s_cbranch_vccz {L}")
                A(f"s_waitcnt vmcnt({opt.epq})")
                if opt.eps: A(f"s_sleep {opt.eps}")
                A.label(L)
            A(f"s_add_u32 s{s_pout}, s{s_pout}, {2048 if i < 3 else 32*16384 - 6144}")
    A.label("G_EPI_ND")
    A(f"s_mov_b32 s{s_pn}, 0")
    A("s_waitcnt vmcnt(0)")
    A("s_barrier")
    pub_flag("G_NEXT")
    A("s_branch G_NEXT")
    A.label("G_EPI_FFN")
    A(f"s_cmp_ge_u32 s{s_h}, 54")
    A("s_cbranch_scc1 G_NEXT")
    k = 0
    for j in range(4):
        if j == 2:
            A(f"s_cmp_eq_u32 s{s_j}, 1")
            A("s_cbranch_scc1 G_NEXT")
        for i in range(2):
            for ab in range(2):
                t = 64 + 20 * (k % 8); k += 1
                for r in range(8): A(f"v_accvgpr_read_b32 v{t+r}, a{ACC(i,j)+8*ab+r}")
                for r in range(8): A(f"v_accvgpr_read_b32 v{t+8+r}, a{ACC(i+2,j)+8*ab+r}")
                for r in range(8): A(f"v_mul_f32 v{t+r}, v{t+r}, v{t+8+r}")
                for r in range(4): A(f"v_cvt_pk_bf16_f32 v{t+16+r}, v{t+2*r}, v{t+2*r+1}")
                A(f"buffer_store_dwordx4 {v(t+16,4)}, v{vOUT}, s[{S_WS}:{S_WS+3}], s{s_out} offen offset:{i*2048+ab*1024} sc1")
                if opt.epw >= 0: A(f"s_waitcnt vmcnt({opt.epq})")
        A(f"s_add_u32 s{s_out}, s{s_out}, {54*2048}")
    A.label("G_NEXT")
    A("s_waitcnt vmcnt(0)")
    stamp(A, opt, 3, (6, 5), vt=(30, 31, 32))
    A("s_add_u32 s6, s6, 1")
    A("s_cmp_lt_u32 s6, 4")
    A("s_cbranch_scc1 G_ROUND")
    A.label("G_END")
    A("s_cmp_ge_u32 s7, 128")
    A("s_cbranch_scc1 G_GATE_END")
    A(f"s_load_dwordx2 s[{P0}:{P0+1}], s[0:1], {KA_GW}")
    A("s_waitcnt lgkmcnt(0)")
    srd(A, SW, P0, P0 + 1, 1280)
    A(f"v_lshrrev_b32 v{vT0}, 4, v0")
    A(f"s_lshl_b32 s{s_t0}, s7, 4")
    A(f"v_add_u32 v{vT0}, s{s_t0}, v{vT0}")
    A(f"v_and_b32 v{vT1}, 15, v0")
    A(f"v_lshlrev_b32 v{vT1}, 4, v{vT1}")
    A(f"v_mul_u32_u24 v{vT2}, 1280, v{vT0}")
    A(f"v_add_u32 v{vT2}, v{vT2}, v{vT1}")
    for c in range(5):
        A(f"buffer_load_dwordx4 {v(64+4*c,4)}, v{vT2}, s[{SX}:{SX+3}], 0 offen offset:{c*256}")
        A(f"buffer_load_dwordx4 {v(96+4*c,4)}, v{vT1}, s[{SW}:{SW+3}], 0 offen offset:{c*256}")
    A("v_mov_b32 v60, 0")
    A("v_mov_b32 v61, 0")
    A("s_waitcnt vmcnt(0)")
    for c in range(20):
        A(f"v_lshlrev_b32 v56, 16, v{64+c}")
        A(f"v_lshlrev_b32 v57, 16, v{96+c}")
        A(f"v_and_b32 v58, 0xffff0000, v{64+c}")
        A(f"v_and_b32 v59, 0xffff0000, v{96+c}")
        A(f"v_fmac_f32 v60, v56, v57")
        A(f"v_fmac_f32 v61, v58, v59")
    A("v_add_f32 v60, v60, v61")
    for ror in (8, 4, 2, 1):
        A(f"v_mov_b32_dpp v61, v60 row_ror:{ror} row_mask:0xf bank_mask:0xf")
        A("v_add_f32 v60, v60, v61")
    A(f"v_mul_f32 v60, {fbits(-math.log2(math.e)):#x}, v60")
    A("v_exp_f32 v60, v60")
    A("v_add_f32 v60, 1.0, v60")
    A("v_rcp_f32 v60, v60")
    A(f"v_lshlrev_b32 v{vT0}, 2, v{vT0}")
    A(f"v_mov_b32 v{vT2}, {OOB:#x}")
    A(f"v_cmp_eq_u32 vcc, 0, v{vT1}")
    A(f"v_cndmask_b32 v{vT0}, v{vT2}, v{vT0}, vcc")
    A(f"s_mov_b32 s{s_t0}, {WS_G:#x}")
    A(f"buffer_store_dword v60, v{vT0}, s[{S_WS}:{S_WS+3}], s{s_t0} offen sc1")
    A.label("G_GATE_END")

def generate(opt):
    A = Asm()
    A("s_cmp_ge_u32 s2, 256")
    A("s_cbranch_scc1 K_EXIT")
    A(f"s_load_dwordx2 s[36:37], s[0:1], {KA_WS}")
    A(f"s_load_dwordx2 s[38:39], s[0:1], {KA_DBG}")
    A("v_lshrrev_b32 v1, 6, v0")
    A("v_readfirstlane_b32 s5, v1")
    A("s_and_b32 s3, s2, 7")
    A("s_lshr_b32 s4, s2, 3")
    A("s_waitcnt lgkmcnt(0)")
    srd(A, S_WS, 36, 37, WS_SIZE)
    srd(A, S_DBG, 38, 39, 256)
    stamp(A, opt, 20)
    if opt.cpre:
        A("s_getpc_b64 s[40:41]")
        A.label("K_PC")
        A("s_lshl_b32 s6, s4, 2")
        A("s_add_u32 s6, s6, s5")
        A("s_lshl_b32 s6, s6, 10")
        A("s_cmp_lt_u32 s6, K_CODE_END - K_PC - 1024")
        A("s_cbranch_scc0 K_NOCP")
        A("v_and_b32 v1, 63, v0")
        A("v_lshlrev_b32 v1, 4, v1")
        A("v_add_u32 v1, s6, v1")
        A("global_load_dwordx4 v[4:7], v1, s[40:41]")
        A.label("K_NOCP")
    A("s_or_b32 s6, s2, s5")
    A("s_cmp_eq_u32 s6, 0")
    A("s_cbranch_scc0 K_ROTW")
    A("s_getreg_b32 s6, hwreg(HW_REG_XCC_ID, 0, 3)")
    A("s_or_b32 s6, s6, 8")
    A("v_mov_b32 v1, s6")
    A("s_mov_b64 exec, 1")
    A(f"buffer_store_dword v1, off, s[{S_DBG}:{S_DBG+3}], 0 offset:{DBG_ROT*4} sc1")
    A("s_mov_b64 exec, -1")
    A.label("K_ROTW")
    A(f"s_mov_b32 s7, {opt.spin}")
    A.label("K_ROTL")
    A(f"buffer_load_dword v1, off, s[{S_DBG}:{S_DBG+3}], 0 offset:{DBG_ROT*4} sc1")
    A("s_waitcnt vmcnt(0)")
    A("v_readfirstlane_b32 s6, v1")
    A("s_cmp_lg_u32 s6, 0")
    A("s_cbranch_scc1 K_ROTD")
    A("s_sub_u32 s7, s7, 1")
    A("s_cbranch_scc0 K_ROTL")
    A("s_endpgm")
    A.label("K_ROTD")
    if opt.tlb:
        A("s_cmp_eq_u32 s5, 3")
        A("s_cbranch_scc0 K_NOTLB")
        A("v_and_b32 v1, 63, v0")
        A("v_lshlrev_b32 v1, 21, v1")
        A(f"buffer_load_dword v2, v1, s[{S_WS}:{S_WS+3}], 0 offen")
        if opt.tlb == 2: A("s_waitcnt vmcnt(0)")
        A.label("K_NOTLB")
    A("s_add_u32 s3, s3, s6")
    A("s_and_b32 s3, s3, 7")
    A("s_cmp_lt_u32 s3, 2")
    A("s_cbranch_scc1 K_CHAIN")
    A("s_sub_u32 s3, s3, 2")
    A(f"s_mov_b32 s{S_POL}, {0 if opt.pol < 0 else 2 | opt.pol}")
    if opt.pol < 0:
        A("s_lshl_b32 s6, s3, 5")
        A("s_add_u32 s6, s6, s4")
        A("s_cmp_eq_u32 s6, 5")
        A("s_cbranch_scc0 K_NOPROBE")
        A("s_cmp_eq_u32 s5, 0")
        A("s_cbranch_scc0 K_PROBED")
        A(f"s_mov_b32 s66, {WS_X + 127*16384:#x}")
        A("s_add_u32 s67, s66, 8192")
        A("s_mov_b32 s64, -1")
        A("s_mov_b32 s65, -1")
        A("s_mov_b64 exec, 1")
        A("s_mov_b32 s73, 4")
        A.label("K_PROBE")
        for pl in range(2):
            A("s_memtime s[68:69]")
            A("s_waitcnt lgkmcnt(0)")
            A(f"buffer_store_dword v0, off, s[{S_WS}:{S_WS+3}], s{66+pl} sc1")
            A("s_waitcnt vmcnt(0)")
            A("s_memtime s[70:71]")
            A("s_waitcnt lgkmcnt(0)")
            A("s_sub_u32 s72, s70, s68")
            A(f"s_min_u32 s{64+pl}, s{64+pl}, s72")
        A("s_sub_u32 s73, s73, 1")
        A("s_cbranch_scc0 K_PROBE")
        A("s_cmp_lt_u32 s65, s64")
        A("s_cselect_b32 s72, 3, 2")
        A("v_mov_b32 v1, s72")
        A(f"buffer_store_dword v1, off, s[{S_DBG}:{S_DBG+3}], 0 offset:{DBG_POL*4} sc1")
        A("s_mov_b64 exec, -1")
        A.label("K_PROBED")
        A("s_barrier")
        A.label("K_NOPROBE")
    if opt.gemm: gen_gemm(A, opt)
    if opt.followers:
        from gen_follow import gen_follow
        gen_follow(A, opt)
    A("s_waitcnt vmcnt(0)")
    A("s_endpgm")
    A.label("K_CHAIN")
    if opt.chain:
        from gen_chain import gen_chain
        gen_chain(A, opt)
    A.label("K_EXIT")
    A("s_endpgm")
    A.label("K_CODE_END")
    A.pad()
    if opt.al8:
        names = [x.text for x in A.ins]
        for P in ("CF0", "CF1"):
            if f"{P}_ENTRY:" not in names: continue
            names = [x.text for x in A.ins]
            a, b = names.index(f"{P}_ENTRY:"), names.index(f"{P}_PUB0:")
            A.ins[a:b] = align8(A.ins[a:b], opt.al8)
    hdr = open('gated_mix__memory_aug_recurrent_mem_tr__glu_gated_bilinear__prompt.s.ref').read().split('\n')
    head = [l for l in hdr if l.startswith(';') and '@launch' not in l]
    out = '\n'.join(head) + f"\n; @launch grid=(256,1,1) block=(256,1,1) lds={LDS_BYTES}\n"
    out += f""".amdgcn_target "amdgcn-amd-amdhsa--gfx950"
.text
.globl {KNAME}
.p2align 8
.type {KNAME},@function
{KNAME}:
""" + A.text() + f""".section .rodata,"a"
.p2align 6
.amdhsa_kernel {KNAME}
  .amdhsa_next_free_vgpr 512
  .amdhsa_next_free_sgpr 102
  .amdhsa_accum_offset 256
  .amdhsa_group_segment_fixed_size 0
  .amdhsa_kernarg_size 120
  .amdhsa_user_sgpr_count 2
  .amdhsa_user_sgpr_kernarg_segment_ptr 1
  .amdhsa_system_sgpr_workgroup_id_x 1
.end_amdhsa_kernel
"""
    return out

if __name__ == "__main__":
    opt = Opt()
    outp = sys.argv[1]
    for a in sys.argv[2:]:
        k, val = a.split('=', 1)
        setattr(opt, k, val if k in ('marks', 'drop', 'pubg') else int(val))
    open(outp, 'w').write(generate(opt))
```

```python
from asmlib import *
from gen import *

L_KX = 0
L_ML = 16384
L_MR = 16384 + 8192
L_X  = 30720
L_O  = 34816
L_RES = 40960
RES_STRIDE = 30720
XSL = 64 * 16384

class VM:
    def __init__(self, A): self.A = A; self.q = []
    def issue(self, text, tag): self.A(text); self.q.append(tag)
    def wait(self, tag, extra=""):
        last = max(i for i, t in enumerate(self.q) if t == tag)
        n = len(self.q) - 1 - last
        assert n <= 63
        self.A(f"s_waitcnt vmcnt({n})" + extra)
        self.q = self.q[last + 1:]
    def drain(self, extra=""):
        self.A("s_waitcnt vmcnt(0)" + extra); self.q = []

def gen_chain(A, opt):
    W = f"s[{S_WS}:{S_WS+3}]"
    D = f"s[{S_DBG}:{S_DBG+3}]"
    SW = 16
    s_step, s_t0, s_t1, s_t2, s_spin = 20, 21, 22, 23, 24
    s_xb = 25
    s_mlb, s_mrw, s_mrr = 26, 27, 28
    s_vxw, s_vxr = 29, 30
    s_pb = 31
    s_pw = 32
    s_isred = 33
    s_susp, s_sent, s_kv = 34, 35, 40
    P0 = 36
    s_al, s_ar, s_pcur, s_poth, s_vw, s_vr, s_vpo, s_mlo, s_mro, s_mlp, s_mrp = range(41, 52)
    s_res, s_kxm, s_csc, s_km, s_prog, s_hbit, s_mode = range(52, 59)
    s_valid = 60
    s_c0 = 62
    n = [1]
    def al(k=1, align=1):
        while n[0] % align: n[0] += 1
        r = n[0]; n[0] += k; return r
    vL = 0; vA16 = al()
    vH = al(2, 2)
    gEL = al(); vSPARE = al()
    vSEL = al(4, 2); vONE = al(4, 2); TG = al(4, 2); vSENT = TG
    vA8 = al()
    aRES = al(); aXW = al(); XW = al(2); aKX = al(); aOW = al(); aOR = al(); aMW = al(); aM4 = al()
    gRED = al(); gMO = al(); gKX = al(); gVX = al(); gPR = vL
    vM = al(); vM2 = al(); vIDX = al(); vA4 = al()
    base = al(0, 4)
    AL = [base + 4 * i for i in range(5)]; AR = [base + 20 + 4 * i for i in range(5)]
    ACC = base + 40
    LAND = base + 64
    SP = LAND + 48
    assert SP + 4 <= 152, LAND
    aV = [ACC, ACC + 4]; aQ = [ACC + 8, ACC + 12]; aK = [ACC + 16, ACC + 20]
    wl = [256 + 8 * i for i in range(32)] + [152 + 8 * i for i in range(13)]
    WQ = lambda T, t: wl[(T * 2 + t) * 2]
    WK = lambda T, t: wl[(T * 2 + t) * 2 + 1]
    WO1 = lambda t: wl[40 + t]
    T0, T1, T2, T3 = LAND, LAND + 1, LAND + 2, LAND + 3

    def bf(dst, src, off, wd): A(f"v_bfe_u32 v{dst}, v{src}, {off}, {wd}")
    def lin(dst, terms, const=None):
        first = True
        for (off, wd, sh) in terms:
            if first:
                bf(dst, vL, off, wd)
                if sh: A(f"v_lshlrev_b32 v{dst}, {sh}, v{dst}")
                first = False
            else:
                bf(T3, vL, off, wd)
                A(f"v_lshl_add_u32 v{dst}, v{T3}, {sh}, v{dst}")
        if const is not None: A(f"v_add_u32 v{dst}, {const}, v{dst}")

    stamp(A, opt, 0, vt=(T0, T1, T2))
    A(f"v_and_b32 v{vL}, 63, v0")
    A(f"v_lshlrev_b32 v{vA16}, 4, v{vL}")
    A(f"v_lshlrev_b32 v{vA8}, 3, v{vL}")
    A(f"v_lshlrev_b32 v{vA4}, 2, v{vL}")
    A(f"s_mul_i32 s{s_res}, s5, {RES_STRIDE}")
    A(f"s_add_u32 s{s_res}, s{s_res}, {L_RES}")
    A(f"s_mov_b32 s{s_xb}, {WS_X:#x}")
    vm = VM(A)
    HB = 81920
    dQ = [AL[0], AL[0] + 1]; dO = AL[0] + 2
    aQK = [AL[1], AL[1] + 1]; aWV = [AL[1] + 2, AL[1] + 3]; aT = [AL[2], AL[2] + 1]; aWO = [AL[3] + i for i in range(5)]
    lin(dQ[0], [(5, 1, 16), (4, 1, 13)])
    A(f"v_bfe_u32 v{T0}, v{vL}, 4, 2")
    A(f"v_lshlrev_b32 v{T0}, 1, v{T0}")
    A(f"v_and_b32 v{T1}, 15, v{vL}")
    A(f"v_xor_b32 v{T0}, v{T0}, v{T1}")
    A(f"v_lshl_add_u32 v{dQ[0]}, v{T0}, 4, v{dQ[0]}")
    A(f"v_xor_b32 v{dQ[1]}, 128, v{dQ[0]}")
    lin(T2, [(4, 1, 5), (5, 1, 4), (3, 1, 0)])
    A(f"v_mul_u32_u24 v{dO}, 1280, v{T2}")
    A(f"v_and_b32 v{T1}, 7, v{vL}")
    A(f"v_bfe_u32 v{T0}, v{vL}, 4, 2")
    A(f"v_lshlrev_b32 v{T0}, 1, v{T0}")
    A(f"v_xor_b32 v{T0}, v{T0}, v{T1}")
    A(f"v_lshl_add_u32 v{dO}, v{T0}, 4, v{dO}")
    SQ, SK, SV, SO = 64, 68, 72, 76
    A(f"s_load_dwordx4 s[80:83], s[0:1], {KA_WQ}")
    A(f"s_load_dwordx4 s[84:87], s[0:1], {KA_WV}")
    s_loc, s_rem, s_oa, s_lw = 89, 90, 91, 88
    A(f"s_lshr_b32 s{s_t0}, s5, 1")
    A(f"s_and_b32 s{s_t1}, s5, 1")
    A(f"s_lshl_b32 s{s_t2}, s{s_t0}, 4")
    A(f"s_add_u32 s{s_t2}, s{s_t2}, s{s_t1}")
    A(f"s_lshl_b32 s{s_t2}, s{s_t2}, 14")
    A(f"s_lshl_b32 s{s_rem}, s4, 8")
    A(f"s_add_u32 s{s_t2}, s{s_t2}, s{s_rem}")
    A(f"s_mul_i32 s{s_loc}, s3, {320*8192}")
    A(f"s_sub_u32 s{s_rem}, {320*8192}, s{s_loc}")
    A(f"s_add_u32 s{s_loc}, s{s_loc}, s{s_t2}")
    A(f"s_add_u32 s{s_rem}, s{s_rem}, s{s_t2}")
    A(f"s_lshl_b32 s{s_t0}, s{s_t0}, 2")
    A(f"s_add_u32 s{s_t0}, s{s_t0}, s{s_t1}")
    A(f"s_mul_i32 s{s_t0}, s{s_t0}, {2*1280}")
    A(f"s_mul_i32 s{s_oa}, s4, {128*1280}")
    A(f"s_add_u32 s{s_oa}, s{s_oa}, s{s_t0}")
    A(f"s_mul_i32 s{s_t0}, s3, 640")
    A(f"s_add_u32 s{s_oa}, s{s_oa}, s{s_t0}")
    A(f"s_lshl_b32 s{s_lw}, s5, 12")
    A("s_waitcnt lgkmcnt(0)")
    srd(A, SQ, 80, 81, 640 * 8192); srd(A, SK, 82, 83, 640 * 8192); srd(A, SV, 84, 85, 640 * 8192); srd(A, SO, 86, 87, 4096 * 1280)
    def dma_batch(kind, half, tag):
        if kind == 'o':
            A(f"s_lshr_b32 s{s_t1}, s{s_lw}, 1")
            for kap in range(2):
                for j in range(5):
                    for gh in range(2):
                        A(f"s_add_u32 m0, s{s_t1}, {half*HB + kap*40960 + j*8192 + gh*1024}")
                        A(f"s_add_u32 s{s_t0}, s{s_oa}, {(64*kap + 4*gh)*1280 + j*128}")
                        vm.issue(f"buffer_load_dwordx4 v{dO}, s[{SO}:{SO+3}], s{s_t0} offen lds", tag)
            return
        srdn, sb = kind
        for t in range(5):
            for i in range(4):
                A(f"s_add_u32 m0, s{s_lw}, {half*HB + t*16384 + i*1024}")
                A(f"s_add_u32 s{s_t0}, s{sb}, {(64*t + 16*(i>>1) + 4*(i&1))*8192}")
                vm.issue(f"buffer_load_dwordx4 v{dQ[i&1]}, s[{srdn}:{srdn+3}], s{s_t0} offen lds", tag)
    batches = [(SQ, s_loc), (SK, s_loc), (SQ, s_rem), (SK, s_rem), 'o', (SV, s_loc)]
    halves = [1, 0, 1, 0, 1, 0]
    dma_batch(batches[0], halves[0], 'b0')
    vm.issue(f"buffer_load_dword v{vM}, off, {D}, 0 offset:{DBG_ROT*4} sc1", 'b0')
    dma_batch(batches[1], halves[1], 'b1')
    A(f"s_lshl_b32 s{s_t0}, s5, 6")
    lin(aWV[0], [(2, 4, 8), (2, 3, 5), (0, 2, 3)])
    A(f"v_xor_b32 v{aWV[0]}, s{s_t0}, v{aWV[0]}")
    A(f"v_xor_b32 v{aWV[1]}, 32, v{aWV[0]}")
    lin(aQK[0], [(2, 4, 8), (2, 3, 5), (0, 1, 4), (1, 1, 3)])
    A(f"v_xor_b32 v{aQK[0]}, s{s_t0}, v{aQK[0]}")
    A(f"v_xor_b32 v{aQK[1]}, 32, v{aQK[0]}")
    lin(T2, [(2, 4, 7), (3, 2, 5), (0, 2, 3)])
    for t in range(5):
        A(f"s_mul_i32 s{s_t0}, s5, 5")
        A(f"s_add_u32 s{s_t0}, s{s_t0}, {t}")
        A(f"s_and_b32 s{s_t1}, s{s_t0}, 3")
        A(f"s_lshl_b32 s{s_t1}, s{s_t1}, 5")
        A(f"v_xor_b32 v{aWO[t]}, s{s_t1}, v{T2}")
        A(f"s_lshr_b32 s{s_t0}, s{s_t0}, 2")
        A(f"s_lshl_b32 s{s_t0}, s{s_t0}, 13")
        A(f"s_add_u32 s{s_t0}, s{s_t0}, {halves[4]*HB}")
        A(f"v_add_u32 v{aWO[t]}, s{s_t0}, v{aWO[t]}")

    A(f"s_mov_b32 s{s_sent}, {SENT:#x}")
    A(f"s_mov_b32 s{s_csc}, {fbits(CSCALE):#x}")
    A(f"s_mov_b32 s{s_valid}, 0x33333333")
    A(f"s_mov_b32 s{s_valid+1}, 0x33333333")
    for i in range(4):
        A(f"v_mov_b32 v{vONE+i}, 0x3f803f80")
        A(f"v_mov_b32 v{vSENT+i}, s{s_sent}")
    A(f"v_mov_b32 v{vH}, 0x3f803f80")
    A(f"v_mov_b32 v{vH+1}, 0")
    A(f"v_mov_b32 v{vIDX}, 0x4444")
    A(f"v_mov_b32 v{T0}, 0xeeee")
    A(f"v_and_b32 v{T1}, 2, v{vL}")
    A(f"v_cmp_ne_u32 vcc, 0, v{T1}")
    A(f"v_cndmask_b32 v{vIDX}, v{vIDX}, v{T0}, vcc")
    A(f"v_and_b32 v{T1}, 15, v{vL}")
    for t in range(4):
        A(f"v_mov_b32 v{vSEL+t}, 0")
        A(f"v_mov_b32 v{T0}, 0x3f80")
        A(f"v_cmp_eq_u32 vcc, {t}, v{T1}")
        A(f"v_cndmask_b32 v{vSEL+t}, v{vSEL+t}, v{T0}, vcc")
        A(f"v_mov_b32 v{T0}, 0x3f800000")
        A(f"v_cmp_eq_u32 vcc, {4+t}, v{T1}")
        A(f"v_cndmask_b32 v{vSEL+t}, v{vSEL+t}, v{T0}, vcc")
    A(f"s_lshl_b32 s{s_t0}, s5, 10")
    A(f"s_add_u32 s{s_t0}, s{s_t0}, {L_X}")
    lin(aXW, [(2, 1, 9), (3, 1, 7), (0, 2, 5)], f"s{s_t0}")
    A(f"v_bfe_u32 v{T0}, v{vL}, 2, 2")
    A(f"v_bfe_u32 v{T1}, v{vL}, 4, 2")
    A(f"v_xor_b32 v{T0}, v{T0}, v{T1}")
    A(f"v_lshl_add_u32 v{aXW}, v{T0}, 3, v{aXW}")
    A(f"v_add_u32 v{aRES}, s{s_res}, v{vA16}")
    A(f"v_xor_b32 v{aKX}, 8192, v{vA16}")
    if opt.kvn:
        A(f"s_lshl_b32 s{s_t0}, s5, 11")
        A(f"v_add_u32 v{aKX}, s{s_t0}, v{aKX}")
    A(f"s_lshr_b32 s{s_t0}, s5, 1")
    A(f"s_lshl_b32 s{s_t0}, s{s_t0}, 10")
    A(f"s_and_b32 s{s_t1}, s5, 1")
    A(f"s_lshl_b32 s{s_t1}, s{s_t1}, 7")
    A(f"s_add_u32 s{s_t0}, s{s_t0}, s{s_t1}")
    A(f"s_add_u32 s{s_t0}, s{s_t0}, {L_O}")
    lin(aOW, [(4, 2, 8), (2, 2, 5), (0, 1, 4), (1, 1, 11), (1, 1, 3)], f"s{s_t0}")
    lin(aOR, [(4, 2, 8), (2, 2, 5), (0, 1, 4), (1, 1, 7)], L_O)
    A(f"s_lshl_b32 s{s_t0}, s5, 11")
    lin(gKX, [(4, 2, 9), (3, 1, 8), (0, 3, 4)], f"s{s_t0}")
    lin(gVX, [(4, 2, 9), (0, 4, 4)], f"s{s_t0}")
    A(f"s_lshl_b32 s{s_t0}, s5, 10")
    A(f"v_add_u32 v{aMW}, s{s_t0}, v{vA16}")
    A(f"s_lshl_b32 s{s_t0}, s5, 8")
    A(f"s_add_u32 s{s_t0}, s{s_t0}, 4096")
    A(f"v_add_u32 v{aM4}, s{s_t0}, v{vA4}")
    s_src, s_dst, s_col, s_cst, s_csc2, s_row = 92, 93, 94, 95, 96, 97
    A(f"s_lshl_b32 s{s_t0}, s4, 1")
    A(f"s_add_u32 s{s_t0}, s{s_t0}, s5")
    A(f"s_add_u32 s{s_t1}, s4, 64")
    A("s_cmp_ge_u32 s5, 2")
    A(f"s_cselect_b32 s{s_t0}, s{s_t1}, s{s_t0}")
    A(f"s_cmp_lt_u32 s{s_t0}, 80")
    A(f"s_cselect_b32 s{s_isred}, 1, 0")
    A(f"s_cselect_b32 s{s_t0}, s{s_t0}, 0")
    A("s_cmp_eq_u32 s5, 3")
    A(f"s_cselect_b32 s{s_isred}, 0, s{s_isred}")
    A(f"s_lshl_b32 s{s_src}, s{s_t0}, 6")
    A(f"s_mov_b32 s{s_dst}, s{s_src}")
    A(f"s_and_b32 s{s_row}, s{s_t0}, 3")
    A(f"s_lshr_b32 s{s_col}, s{s_t0}, 2")
    A(f"s_lshl_b32 s{s_col}, s{s_col}, 4")
    A(f"s_mov_b32 s{s_cst}, 1")
    A(f"s_mov_b32 s{s_csc2}, 4")
    lin(gRED, [(4, 2, 11), (0, 4, 2)])
    lin(gEL, [(4, 2, 8), (0, 2, 6), (2, 2, 4)])
    A(f"s_lshl_b32 s48, s{s_src}, 5")
    lin(gMO, [(5, 1, 5), (2, 1, 4), (4, 1, 3), (1, 1, 2)], f"s{s_dst}")
    A(f"v_mov_b32 v{T0}, {OOB:#x}")
    A(f"v_and_b32 v{T1}, 9, v{vL}")
    A(f"v_cmp_eq_u32 vcc, 0, v{T1}")
    A(f"v_cndmask_b32 v{gMO}, v{T0}, v{gMO}, vcc")
    A(f"s_cmp_eq_u32 s{s_isred}, 0")
    A("s_cbranch_scc0 C_RED_K")
    A(f"v_mov_b32 v{gMO}, {OOB:#x}")
    A.label("C_RED_K")
    A(f"v_and_b32 v{T0}, 3, v{vL}")
    A(f"v_mul_lo_u32 v{T0}, v{T0}, s{s_cst}")
    A(f"v_lshrrev_b32 v{T1}, 4, v{vL}")
    A(f"v_mul_lo_u32 v{T1}, v{T1}, s{s_csc2}")
    A(f"v_add3_u32 v{T0}, v{T0}, v{T1}, s{s_col}")
    A(f"v_bfe_u32 v{T1}, v{vL}, 2, 1")
    A(f"s_lshl_b32 s{s_t0}, s{s_row}, 1")
    A(f"v_add_u32 v{T1}, s{s_t0}, v{T1}")
    A(f"v_mul_u32_u24 v{T1}, 640, v{T1}")
    A(f"s_mul_i32 s{s_t0}, s3, 320")
    A(f"v_add3_u32 v{T0}, v{T0}, v{T1}, s{s_t0}")
    A(f"v_lshlrev_b32 v{vM2}, 1, v{T0}")
    A(f"s_load_dwordx2 s[{P0}:{P0+1}], s[0:1], {KA_MEM0}")
    A("s_waitcnt lgkmcnt(0)")
    srd(A, SW, P0, P0 + 1, 8 * 1280)
    vm.issue(f"buffer_load_ushort v{vM2}, v{vM2}, s[{SW}:{SW+3}], 0 offen", 'mem0')
    A(f"s_lshl_b32 s{s_t0}, s3, 15")
    A(f"s_add_u32 s{s_mlb}, s{s_t0}, {WS_ML:#x}")
    A(f"s_lshl_b32 s{s_t0}, s3, 14")
    A(f"s_add_u32 s{s_mrw}, s{s_t0}, {32*16384}")
    A(f"s_xor_b32 s{s_mrr}, s{s_mrw}, 0x4000")
    A(f"s_lshl_b32 s{s_vxw}, s4, 14")
    A(f"s_lshl_b32 s{s_t0}, s3, 12")
    A(f"s_add_u32 s{s_vxw}, s{s_vxw}, s{s_t0}")
    A(f"s_lshl_b32 s{s_t0}, s5, 9")
    A(f"s_add_u32 s{s_vxw}, s{s_vxw}, s{s_t0}")
    A(f"s_xor_b32 s{s_vxr}, s{s_vxw}, 0x1000")
    for r in (s_mrw, s_mrr, s_vxw, s_vxr): A(f"s_add_u32 s{r}, s{r}, s{s_xb}")
    A(f"s_mul_i32 s{s_pb}, s3, {2*32*5120}")
    A(f"s_add_u32 s{s_pb}, s{s_pb}, {WS_P:#x}")
    A(f"s_mul_i32 s{s_pw}, s4, 5120")
    A(f"s_mul_i32 s{s_t0}, s5, 1280")
    A(f"s_add_u32 s{s_pw}, s{s_pw}, s{s_t0}")
    A(f"s_lshl_b32 s{s_kv}, s4, 14")
    A(f"s_lshl_b32 s34, s3, 2")
    A(f"s_add_u32 s34, s34, s5")
    A(f"s_lshl_b32 s34, s34, 9")
    A(f"s_add_u32 s34, s34, {WS_MM:#x}")
    A(f"s_xor_b32 s{s_t0}, s5, 3")
    A(f"v_or_b32 v{T1}, s{s_t0}, v{vL}")
    A(f"v_mov_b32 v{T0}, {OOB:#x}")
    A(f"v_cmp_eq_u32 vcc, 0, v{T1}")
    A(f"v_cndmask_b32 v{gPR}, v{T0}, v{vL}, vcc")
    A(f"s_sub_u32 s{s_prog}, s{s_mrw}, s{s_vxw}")
    A(f"s_add_u32 s{s_prog}, s{s_prog}, s{s_dst}")
    A(f"s_lshl_b32 s{s_hbit}, s4, 7")
    A(f"s_add_u32 s{s_hbit}, s{s_hbit}, {WS_KVF:#x}")
    def initial_stores():
        for sl in range(2):
            A(f"s_add_u32 s{s_t0}, s{s_pb}, s{s_pw}")
            if sl: A(f"s_add_u32 s{s_t0}, s{s_t0}, {32*5120}")
            vm.issue(f"buffer_store_dwordx4 {v(vSENT,4)}, v{vA16}, {W}, s{s_t0} offen sc1", 'poi')
            vm.issue(f"buffer_store_dword v{vSENT}, v{vA4}, {W}, s{s_t0} offen offset:1024 sc1", 'poi')
        for sl in range(2):
            for pol in range(2):
                A(f"s_add_u32 s{s_t0}, s{s_vxw}, {sl*XSL + pol*8192}")
                vm.issue(f"buffer_store_dwordx2 {v(vSENT,2)}, v{vA8}, {W}, s{s_t0} offen sc1", 'poi')
        for sl in range(2):
            A(f"s_add_u32 s{s_t0}, s{s_mlb}, {sl*8192}")
            vm.issue(f"buffer_store_dword v{vSENT}, v{gMO}, {W}, s{s_t0} offen sc1", 'poi')
            for pol in range(2):
                A(f"s_add_u32 s{s_t0}, s{s_mrw}, {sl*XSL + pol*8192}")
                vm.issue(f"buffer_store_dword v{vSENT}, v{gMO}, {W}, s{s_t0} offen sc1", 'poi')
        A(f"v_mov_b32 v{T0}, 0")
        for sl in range(2):
            for pol in range(2):
                A(f"s_add_u32 s{s_t0}, s{s_vxw}, {sl*XSL + pol*8192}")
                vm.issue(f"buffer_store_dword v{T0}, v{gPR}, {W}, s{s_t0} offen offset:512 sc1", 'poi')
        A(f"s_or_b32 s{s_t0}, s3, s5")
        A(f"s_cmp_eq_u32 s{s_t0}, 0")
        A(f"s_cselect_b32 s{s_t0}, 64, 0")
        A(f"v_mov_b32 v{T1}, {OOB:#x}")
        A(f"v_cmp_gt_u32 vcc, s{s_t0}, v{vA4}")
        A(f"v_cndmask_b32 v{T1}, v{T1}, v{vA4}, vcc")
        if opt.kvall: A(f"v_mov_b32 v{T0}, 1")
        vm.issue(f"buffer_store_dword v{T0}, v{T1}, {W}, s{s_hbit} offen sc1", 'poi')
        A(f"s_getreg_b32 s{s_t0}, hwreg(HW_REG_XCC_ID, 0, 4)")
        A(f"s_lshl_b32 s{s_t0}, 1, s{s_t0}")
        A(f"v_mov_b32 v{T1}, s{s_t0}")
        A(f"s_lshl_b32 s{s_t1}, s3, 2")
        vm.issue(f"buffer_atomic_or v{T1}, v{gPR}, {D}, s{s_t1} offen offset:{DBG_XCC0*4} sc1", 'poi')


    def panel_reads(ad, half, t, rot, dst):
        if rot:
            A(f"s_xor_b32 s{s_t0}, s5, {t}")
            A(f"s_lshl_b32 s{s_t0}, s{s_t0}, 14")
            A(f"s_add_u32 s{s_t0}, s{s_t0}, {half*HB}")
        else:
            A(f"s_mov_b32 s{s_t0}, {half*HB + t*16384}")
        for tau in range(2): A(f"v_add_u32 v{aT[tau]}, s{s_t0}, v{ad[tau]}")
        for tau in range(2):
            for m in range(4):
                A(f"ds_read_b64_tr_b16 {u(dst(tau)+2*m,2)}, v{aT[tau]} offset:{m*4096}")
    WO0T = AR[0]
    for bi in range(5):
        vm.wait(f'b{bi}')
        if bi == 0:
            A(f"v_readfirstlane_b32 s{s_t0}, v{vM}")
            A(f"s_cmp_eq_u32 s{s_t0}, s{S_C}")
            A("s_cbranch_scc1 C_ROTOK")
            verify_rot(A, opt, "C", vM, s_t0)
            A.label("C_ROTOK")
            initial_stores()
        A("s_barrier")
        if bi == 2:
            A(f"v_mov_b32 v{T0}, 1")
            vm.issue(f"buffer_atomic_add v{T0}, v{gPR}, {D}, 0 offen offset:{DBG_CHAIN_CNT*4} sc1", 'arr')
        if bi < 4:
            Wd = WQ if bi % 2 == 0 else WK
            for t in range(5):
                T = t + 5 * (bi // 2)
                panel_reads(aQK, halves[bi], t, bi < 2 and t < 4, lambda tau: Wd(T, tau))
        else:
            for kap in range(2):
                for t in range(5):
                    for m in range(4):
                        d = (WO1(t) if kap else WO0T + 8 * t) + 2 * m
                        A(f"ds_read_b64_tr_b16 {u(d,2)}, v{aWO[t]} offset:{kap*40960 + m*2048}")
        A("s_waitcnt lgkmcnt(0)")
        if bi + 2 < 6:
            A("s_barrier")
            dma_batch(batches[bi + 2], halves[bi + 2], f'b{bi+2}')
    A(f"buffer_load_dwordx4 {v(SP,4)}, off, {D}, 0 sc1")
    vm.drain()
    A("s_barrier")
    for t in (2, 3, 4): panel_reads(aWV, 0, t, False, lambda tau: LAND + 16 * (t - 2) + 8 * tau)
    A("s_waitcnt lgkmcnt(0)")
    A("s_barrier")
    def wv_put(t, src):
        if t < 4:
            A(f"s_xor_b32 s{s_t0}, s5, {t}")
            A(f"s_lshl_b32 s{s_t0}, s{s_t0}, 12")
        else: A(f"s_mov_b32 s{s_t0}, 16384")
        A(f"v_add_u32 v{aT[0]}, s{s_t0}, v{aRES}")
        for q in range(4): A(f"ds_write_b128 v{aT[0]}, {v(src+4*q,4)} offset:{q*1024}")
    for q in range(10): A(f"ds_write_b128 v{aRES}, {v(WO0T+4*q,4)} offset:{20480 + q*1024}")
    A("s_waitcnt lgkmcnt(0)")
    for t in (0, 1): panel_reads(aWV, 0, t, False, lambda tau: WO0T + 16 * t + 8 * tau)
    for t in (2, 3, 4): wv_put(t, LAND + 16 * (t - 2))
    A("s_waitcnt lgkmcnt(0)")
    for t in (0, 1): wv_put(t, WO0T + 16 * t)
    A("s_waitcnt lgkmcnt(0)")
    stamp(A, opt, 1, vt=(T0, T1, T2))

    def spin_fail(lbl):
        A(f"s_sub_u32 s{s_spin}, s{s_spin}, 1")
        A(f"s_cbranch_scc0 {lbl}")
        A("s_branch C_FAIL")
    s_rdy = 47
    def kv_ready():
        A(f"v_and_b32 v{vM2}, 63, v{vA4}")
        A(f"buffer_load_dword v{vM2}, v{vM2}, {W}, s{s_hbit} offen sc1")
        A("s_waitcnt vmcnt(0)")
        A(f"v_cmp_eq_u32 vcc, 0, v{vM2}")
        A(f"s_or_b32 s{s_rdy}, vcc_lo, {1 << NKVB:#x}")
        A(f"s_ff1_i32_b32 s{s_rdy}, s{s_rdy}")
        A(f"s_mul_i32 s{s_rdy}, s{s_rdy}, {KVSEG}")
        A(f"s_cmp_ge_u32 s{s_rdy}, 64")
        A(f"s_cselect_b32 s{s_rdy}, 255, s{s_rdy}")
    A(f"v_lshlrev_b32 v{vM}, 16, v{vM2}")
    A(f"s_mov_b32 s{s_spin}, {opt.spin}")
    A.label("C_TEAM")
    A(f"v_readfirstlane_b32 s{s_t0}, v{SP}")
    if opt.pol < 0:
        A(f"v_readfirstlane_b32 s{s_t1}, v{SP+3}")
        A(f"s_cmp_lg_u32 s{s_t1}, 0")
        A(f"s_cselect_b32 s{s_t0}, s{s_t0}, 0")
    A(f"s_cmp_ge_u32 s{s_t0}, 64")
    A("s_cbranch_scc1 C_TEAM_OK")
    A("s_sleep 8")
    A(f"buffer_load_dwordx4 {v(SP,4)}, off, {D}, 0 sc1")
    A("s_waitcnt vmcnt(0)")
    spin_fail("C_TEAM")
    A.label("C_TEAM_OK")
    A(f"s_mov_b32 s{s_rdy}, 0")
    A(f"v_readfirstlane_b32 s{s_t0}, v{SP+1}")
    A(f"v_readfirstlane_b32 s{s_t1}, v{SP+2}")
    A(f"v_readfirstlane_b32 s{s_t2}, v{SP+3}")
    A("s_cmp_eq_u32 s3, 0")
    A(f"s_cselect_b32 s{s_t0}, s{s_t0}, s{s_t1}")
    A(f"s_bcnt1_i32_b32 s{s_mode}, s{s_t0}")
    if opt.pol >= 0: A(f"s_mov_b32 s{s_t2}, {opt.pol}")
    A(f"s_and_b32 s{s_t2}, s{s_t2}, 1")
    A(f"s_lshl_b32 s{s_t2}, s{s_t2}, 13")
    for r in (s_mrw, s_mrr, s_vxw, s_vxr, s_kv): A(f"s_add_u32 s{r}, s{r}, s{s_t2}")
    A(f"s_add_u32 s59, s{s_kv}, s34")
    A(f"s_lshl_b32 s{s_kxm}, s5, 11")
    def kv_dma(s_src_, tmp):
        L = []
        for m in range(2):
            L.append([f"s_add_u32 m0, s{s_kxm}, {L_KX + m*1024 - m*128}",
                      f"buffer_load_dwordx4 v{gKX}, {W}, s{s_src_} offen offset:{m*128} sc1 lds"])
        return L
    stamp(A, opt, 2, vt=(T0, T1, T2))
    s_tag, s_tagn, s_dm4, s_dm1, s_lo, s_rng = 41, 42, 43, 44, 45, 46
    s_pcur, s_pc2, s_pst, s_vw, s_vr, s_mlo, s_mro, s_ar = range(64, 72)
    XO_ = {r: (r + 8 if r < 70 else r - 22) for r in range(64, 72)}
    s_cp = 50
    ST0 = 78
    s_w3 = 39
    A("s_cmp_eq_u32 s5, 3")
    A(f"s_cselect_b32 s{s_w3}, 0, {OOB:#x}")
    A(f"v_mov_b32 v{T1}, {OOB:#x}")
    A(f"v_lshlrev_b32 v{T0}, 5, v{vA4}")
    A(f"v_cmp_gt_u32 vcc, 16, v{vA4}")
    A(f"v_cndmask_b32 v{gPR}, v{T1}, v{T0}, vcc")
    A(f"s_cmp_eq_u32 s{s_isred}, 0")
    A(f"s_cselect_b32 s{s_prog}, {OOB:#x}, s{s_prog}")
    A(f"v_writelane_b32 v{gPR}, s{s_prog}, 4")
    A("s_cmp_eq_u32 s5, 3")
    A(f"s_cselect_b32 s{s_prog}, 0, {OOB:#x}")
    A(f"s_or_b32 s{s_prog}, s{s_prog}, 512")
    A(f"v_mov_b32 v{vSPARE}, v{T1}")
    A(f"v_writelane_b32 v{vSPARE}, s{s_prog}, 0")
    A(f"v_and_b32 v{T0}, 0x80, v{vA8}")
    A(f"v_lshrrev_b32 v{T0}, 3, v{T0}")
    A(f"v_xor_b32 v{vA8}, v{vA8}, v{T0}")
    A(f"s_mov_b32 s{s_step}, -1")
    A(f"s_mov_b32 s{s_tagn}, 0")
    A(f"s_mov_b32 s35, 1")
    A(f"s_mov_b32 s{s_cp}, s{s_csc}")
    A(f"s_mov_b32 s{s_cp+1}, s{s_csc}")
    A(f"s_add_u32 s{s_pcur}, s{s_pb}, s48")
    A(f"s_mul_i32 s{s_pst}, s5, {20*2048}")
    A(f"s_lshl_b32 s{s_t0}, s4, 6")
    A(f"s_add_u32 s{s_pst}, s{s_pst}, s{s_t0}")
    A(f"s_add_u32 s{s_pst}, s{s_pst}, s{s_pb}")
    A(f"s_mov_b32 s{s_vw}, s{s_vxw}")
    A(f"s_mov_b32 s{s_vr}, s{s_vxr}")
    A(f"s_mov_b32 s{s_mlo}, s{s_mlb}")
    A(f"s_mov_b32 s{s_mro}, s{s_mrw}")
    A(f"s_mov_b32 s{s_ar}, s{s_mrr}")
    for r, d in ((s_pcur, 32*5120), (s_pst, 32*5120), (s_vw, XSL), (s_vr, XSL), (s_mlo, 8192), (s_mro, XSL), (s_ar, XSL)):
        A(f"s_add_u32 s{XO_[r]}, s{r}, {d}")
        A(f"s_xor_b32 s{XO_[r]}, s{XO_[r]}, s{r}")
    for r in (s_pcur, s_pst, s_vw, s_vr, s_ar):
        A(f"s_xor_b32 s{r}, s{r}, s{XO_[r]}")
    A(f"s_lshl_b32 s{s_dm4}, s5, 10")
    A(f"s_lshl_b32 s{s_dm1}, s5, 8")
    A(f"s_add_u32 s{s_dm1}, s{s_dm1}, 4096")
    A(f"s_mov_b32 s{s_lo}, {(127-64) << 23:#x}")
    A(f"s_mov_b32 s{s_rng}, {128 << 23:#x}")
    if opt.stamps:
        for i in range(10): A(f"s_mov_b32 s{ST0+i}, 0")
        A(f"s_memtime s[90:91]")
        A("s_waitcnt lgkmcnt(0)")
        A(f"s_mov_b32 s{ST0+10}, s90")
    if opt.force_slow: A(f"s_mov_b32 s{s_mode}, 2")
    A("s_cmp_eq_u32 s3, 0")
    A("s_cbranch_scc1 C_GO0")
    A(f"s_cmp_eq_u32 s{s_mode}, 1")
    A("s_cbranch_scc1 CF1_ENTRY")
    A("s_branch CS1_ENTRY")
    A.label("C_GO0")
    A(f"s_cmp_eq_u32 s{s_mode}, 1")
    A("s_cbranch_scc0 CS0_ENTRY")

    def smf(acc, a, b): return f"v_smfmac_f32_16x16x64_bf16 {v(acc,4)}, {v(a,4)}, {u(b,8)}, v{vIDX}"
    tr_names = []
    def stampc(i):
        if opt.trace:
            mark(f"c{i}")
            if i == 5: trace_dump()
            return
        if not (opt.stamps and (opt.smask >> i) & 1): return
        A(f"s_memtime s[90:91]")
        A("s_waitcnt lgkmcnt(0)")
        A(f"s_sub_u32 s91, s90, s{ST0+10}")
        A(f"s_add_u32 s{ST0+i}, s{ST0+i}, s91")
        A(f"s_mov_b32 s{ST0+10}, s90")
    sel = opt.marks.split(',')
    def mark(name):
        if opt.trace and name in sel:
            k = sel.index(name)
            A(f"{'s_memrealtime' if opt.trace == 2 else 's_memtime'} s[{78+2*k}:{79+2*k}]")
    def trace_dump():
        L = A.newlabel("TD")
        A(f"s_cmp_eq_u32 s{s_step}, {opt.tstep}")
        A(f"s_cbranch_scc0 {L}")
        A("s_waitcnt lgkmcnt(0)")
        for k in range(10): A(f"v_mov_b32 v{LAND+k}, s{78+2*k}")
        A(f"s_lshl_b32 s{s_t0}, s2, 2")
        A(f"s_add_u32 s{s_t0}, s{s_t0}, s5")
        A(f"s_lshl_b32 s{s_t0}, s{s_t0}, 6")
        A(f"s_add_u32 s{s_t0}, s{s_t0}, {WS_TS + 2*MB:#x}")
        A("s_mov_b64 exec, 1")
        for k in range(3): A(f"buffer_store_dwordx4 {v(LAND+4*k,4)}, off, {W}, s{s_t0} offset:{16*k}")
        A("s_mov_b64 exec, -1")
        A.label(L)
    def weave(mf, fill, nm=None):
        for t in fill.get(-1, []): A(t)
        for i, m in enumerate(mf):
            A(m)
            if nm: mark(f"{nm}{i}")
            for t in fill.get(i, []): A(t)
    def tagchk(regs, tag):
        r = list(regs); L = []; t = []
        while len(r) >= 2:
            d = TG + len(t); t.append(d)
            L.append(f"v_bitop3_b32 v{d}, v{r[0]}, v{r[1]}, s{tag} bitop3:0x7e"); r = r[2:]
        if r: L.append(f"v_bitop3_b32 v{t[0]}, v{t[0]}, v{r[0]}, s{tag} bitop3:0xf6")
        if len(t) == 4:
            L.append(f"v_or3_b32 v{t[0]}, v{t[0]}, v{t[2]}, v{t[3]}")
        L.append(f"v_bitop3_b32 v{t[0]}, v{t[0]}, v{t[1]}, {0 if opt.solo else 1} bitop3:0xa8")
        L.append(f"v_cmp_ne_u32 vcc, 0, v{t[0]}")
        return L

    def loop(P, sc, gam):
        ld = lambda reg, va, so, off=0: f"buffer_load_dwordx4 {v(reg,4)}, v{va}, {W}, s{so} offen offset:{off} sc1"
        ld1 = lambda reg, va, so: f"buffer_load_dword v{reg}, v{va}, {W}, s{so} offen sc1"
        tog = lambda r: f"s_xor_b32 s{r}, s{r}, s{XO_[r]}"
        tagv = lambda L, t: [x + (f" ; @vm:{t}" if x.startswith('buffer') else "") for x in L]
        WVL = [LAND, LAND + 16, LAND + 32, AR[1], LAND]
        def wv_reads(t): return [f"ds_read_b128 {v(WVL[t]+4*q,4)}, v{aRES} offset:{t*4096 + q*1024}" for q in range(4)]
        s_al, s_vo, s_vxa, s_itag, s_vm = 36, 37, 38, 35, 59
        RQ, RQ4 = AR[0], SP
        r_ld = [ld(RQ, aMW, s_ar), ld1(RQ4, aM4, s_ar),
                f"s_add_u32 m0, s{s_dm4}, {L_MR}", f"buffer_load_dwordx4 v{aMW}, {W}, s{s_ar} offen sc1 lds",
                f"s_add_u32 m0, s{s_dm1}, {L_MR}", f"buffer_load_dword v{aM4}, {W}, s{s_ar} offen sc1 lds"]
        r_regs = [RQ + i for i in range(4)] + [RQ4]
        r_reads = [f"ds_read_b128 {v(AR[j],4)}, v{vA16} offset:{L_MR + j*1024}" for j in range(5)]
        late = []
        warm = f"v_max_i32 v{vM2}, v{vA16}, v{vA8}"
        def filler(lst, n):
            for i in range(n): A(lst.pop(0) if lst else warm)
        def cnt(k, inc):
            if opt.stamps and not opt.trace and not opt.nocnt: A(f"s_add_u32 s{ST0+k}, s{ST0+k}, {inc}")
        sv = lambda t: [smf(aV[0], AL[t], WVL[t]), smf(aV[1], AL[t], WVL[t] + 8)]
        sq = lambda R, t, T: [smf(aQ[0], R[t], WQ(T, 0)), smf(aQ[1], R[t], WQ(T, 1))]
        sk = lambda R, t, T: [smf(aK[0], R[t], WK(T, 0)), smf(aK[1], R[t], WK(T, 1))]
        mr_st = f"buffer_store_dword v{vM}, v{gMO}, {W}, s{s_mro} offen sc1"

        wvall = [x for t in range(4) for x in wv_reads(t)]
        T4 = vM
        l_regs = [AL[0] + i for i in range(4)] + [T4]
        lc = tagchk(l_regs, s_tag)
        s_tnn = 16
        pvv = [f"v_mov_b32 v{AL[0]+i}, s{s_itag}" for i in range(4)] + [f"v_mov_b64 {v(ACC+2*i,2)}, 0" for i in range(12)] + \
              [f"v_xor_b32 v{AL[j]}, {j << 10}, v{aMW}" for j in range(1, 4)] + [warm if opt.kvn else f"v_xor_b32 v{aKX}, 8192, v{aKX}"]
        sal = [f"s_max_i32 s{s_t2}, s{s_step}, 0", f"s_add_u32 s{s_step}, s{s_step}, 1", f"s_add_u32 s{s_t0}, s{s_step}, 1",
               f"s_bfe_u32 s{s_tnn}, s{s_t0}, 0x10001", f"s_mov_b32 s{s_vo}, s{s_vw}", tog(s_vw), tog(s_vr), tog(s_pst), tog(s_ar),
               f"s_add_u32 s{s_vxa}, s{s_kv}, {WS_VO:#x}", f"s_add_u32 s{s_km}, s{s_vm}, {4096 - 2048*gam}", f"s_add_u32 s{s_vm}, s{s_kv}, s34",
               f"s_add_u32 s{s_kv}, s{s_kv}, {0 if opt.kvsame else 32*16384}", f"s_and_b32 s{s_t1}, s{s_t0}, 3\ns_cselect_b32 s{s_t1}, 0, {0 if opt.kvsame else 8192}",
               f"s_xor_b32 s{s_kv}, s{s_kv}, s{s_t1}", (f"s_add_u32 s{s_vxa}, s{s_kv}, {WS_VO:#x}" if opt.kvn else f"s_xor_b32 s{s_kxm}, s{s_kxm}, 8192"), r_ld[2]]
        units = []
        for i in range(16): units.append("\n".join([wvall[i]] + pvv[i*20//16:(i+1)*20//16] + sal[i*len(sal)//16:(i+1)*len(sal)//16]))
        ne = max(opt.ne, 4)
        A(".p2align 6, , 63") if False else None
        A(f"s_branch {P}_ENTRY")
        A(".p2align 6")
        for i in range(opt.pad0): A("s_nop 0")
        A.label(f"{P}_ENTRY")
        A(f"s_cmp_eq_u32 s{s_isred}, 0")
        A(f"s_cbranch_scc0 {P}_PUB0")
        if opt.prio: A(f"s_setprio {opt.prio}")
        A.label(f"{P}_TOPN")
        for x in units[:ne]: A(x)
        filler([], opt.nwarm)
        A("s_barrier")
        A.label(f"{P}_TOP2")
        i0 = len(A.ins)
        mark('tp')
        if opt.steps:
            A("s_memrealtime s[90:91]")
            A("s_memtime s[92:93]")
            A(f"s_lshl_b32 s94, s{s_step}, 3")
            A("s_waitcnt lgkmcnt(0)")
            A(f"v_mov_b32 v{TG}, s90")
            A(f"v_mov_b32 v{TG+1}, s92")
            A(f"v_mov_b32 v{TG+2}, s94")
            A(f"ds_write_b64 v{TG+2}, {v(TG,2)} offset:22528")
        A(f"s_mov_b32 s{s_al}, s{s_mlo}")
        A(f"v_mov_b32 v{T4}, s{s_itag}")
        pv = [f"s_mov_b32 s{s_tag}, s{s_tagn}\ns_mov_b32 s{s_tagn}, s{s_tnn}\ns_xor_b32 s{s_itag}, s{s_tnn}, 1\ns_lshl1_add_u32 s{s_t2}, s{s_t2}, s{s_itag}\n" + warm,
              "\n".join([tog(s_mlo), tog(s_mro), tog(s_pcur), warm])] + units[ne:]
        lf = lambda L: [x.replace(" sc1", ("", " nt", " sc0")[opt.ldf] + " sc1" if opt.ldf != 1 else " nt") for x in L]
        l_ld = lf([ld(AL[0], aMW, s_al), ld1(T4, aM4, s_al)])
        if opt.l1:
            filler(pv, opt.ld1)
            for k in range(opt.lnf):
                if k: filler(pv, opt.lgap)
                for x in l_ld: A(x)
            filler(pv, max(opt.lw, len(pv)))
            A(f"s_cmp_ge_u32 s{s_t0}, s{s_rdy}")
            A(f"s_cbranch_scc1 {P}_KVW")
            A.label(f"{P}_KVB")
            mark('lb')
            A("; @DRAINLDS")
            A.label(f"{P}_LC")
            A(f"s_waitcnt vmcnt({2*(opt.lnf-1)})")
            for c in lc: A(c)
            A(f"ds_write_b128 v{aMW}, {v(AL[0],4)} offset:{L_ML}")
            A(f"s_cbranch_vccnz {P}_LS")
            def l_retry():
                A.label(f"{P}_LS")
                A("s_mov_b64 exec, vcc")
                for t in l_ld: A(t)
                A("s_mov_b64 exec, -1")
                cnt(8, 1)
                filler([], opt.lrf)
                spin_fail(f"{P}_LC")
            late.append(l_retry)
        else:
            filler(pv, opt.ld1)
            for k in range(opt.lnf - 1):
                for x in l_ld: A(x)
                filler(pv, opt.lgap)
            filler(pv, len(pv))
            A(f"s_cmp_ge_u32 s{s_t0}, s{s_rdy}")
            A(f"s_cbranch_scc1 {P}_KVW")
            A.label(f"{P}_KVB")
            A("; @DRAINLDS")
            mark('la')
            A.label(f"{P}_LS")
            for x in tagv(l_ld, 'l'): A(x)
            A("s_mov_b64 exec, -1")
            for k in range(opt.lchk):
                for c in lc: A(c)
                if k == 0:
                    cnt(8, 1)
                    A(f"s_sub_u32 s{s_spin}, s{s_spin}, 1")
                    A("s_cbranch_scc1 C_FAIL")
                filler([], opt.lfv)
                if k < opt.lchk - 1: A(f"s_cbranch_vccz {P}_LOK")
            A("s_mov_b64 exec, vcc")
            A(f"s_cbranch_vccnz {P}_LS")
            A("s_mov_b64 exec, -1")
            A.label(f"{P}_LOK")
            A(f"ds_write_b128 v{aMW}, {v(AL[0],4)} offset:{L_ML}")
        if opt.b0p: A("s_barrier")
        stampc(0)
        lr = [f"ds_read_b128 {v(AL[j],4)}, v{AL[j]} offset:{L_ML}" for j in range(1, 4)] + [f"ds_read_b128 {v(AL[4],4)}, v{vA16} offset:{L_ML+4096}"]
        KX, VO, XU, VX = LAND, LAND + 32, LAND + 36, LAND + 40
        XQ = AL[0]; XK = AR[0]; PX = AL[4]; vPM = XU
        kxr = [f"ds_read_b128 {v(KX+8*uu+4*m,4)}, v{vA16 if opt.kvn else aKX} offset:{L_KX+uu*2048+m*1024}" for m in range(2) for uu in range(4)]
        xrd = lambda R: [f"ds_read_b64_tr_b16 {v(R+4*uu+2*m,2)}, v{(vA8, XU + 2)[m]} offset:{L_X + uu*1024 + m*512}" for uu in range(4) for m in range(2)]
        mf = sv(0) + sq(AL, 0, 0) + sk(AL, 0, 0) + sv(1) + sv(2) + sv(3) + sq(AL, 1, 1) + sv(4)
        for t in range(2, 5): mf += sq(AL, t, t)
        for t in range(1, 5): mf += sk(AL, t, t)
        for t in range(5): mf += sq(AR, t, 5 + t)
        for t in range(5): mf += sk(AR, t, 5 + t)
        N = 50
        rl = tagv(r_ld, 'r'); w4 = wv_reads(4)
        dm = [x for gq_ in kv_dma(s_kv, None) for x in gq_]
        vxl = tagv([f"buffer_load_dwordx4 {v(VX+4*m,4)}, v{gVX}, {W}, s{s_vxa} offen offset:{m*256} sc1" for m in range(2)], 'vx')
        vdm = []
        for m in range(2):
            vdm += [f"s_add_u32 m0, s{s_kxm}, {8192 + m*1024 - m*256}", f"buffer_load_dwordx4 v{gVX}, {W}, s{s_vxa} offen offset:{m*256} sc1 lds"]
        if opt.kvn: vxl = [f"ds_read_b128 {v(VX+4*m,4)}, v{aKX} offset:{m*1024}" for m in range(2)]
        st1 = lambda r, va, so, off=0: f"buffer_store_dword v{r}, v{va}, {W}, s{so} offen offset:{off} sc1"
        add2 = lambda a: [f"v_add_f32 v{a+i}, v{a+i}, v{a+2+i}" for i in range(2)]
        vv = [add2(aV[t]) + [f"v_cvt_pk_bf16_f32 v{VO+2*t}, v{aV[t]}, v{aV[t]+1}", f"v_and_or_b32 v{VO+2*t}, v{VO+2*t}, -2, s{s_tag}"] for t in range(2)]
        rc = tagchk(r_regs, s_tag)
        lV = [f"buffer_load_dword v{VO+1+2*i}, v{vA4}, {W}, s{s_vr} offen offset:{256*i} sc1" for i in range(2)]
        w32 = f"ds_write_b32 v{aM4}, v{T4} offset:{L_ML}"
        F = {}
        mvi = f"v_mov_b32 v{SP+2}, s{s_t2}"
        if opt.b0p:
            F.update({0: [w32, rl[0]], 1: [rl[1]], 2: ["; @WAITLDS", "s_barrier", lr[0]], 3: [lr[1], rl[3]], 4: [lr[2], rl[4]],
                      5: [lr[3]], 6: [w4[0], rl[5]]})
        else:
            F.update({0: [w32], 2: ["; @WAITLDS", "s_barrier", lr[0]], 3: [lr[1], rl[0]], 4: [lr[2], rl[1]],
                      5: [lr[3]], 6: [w4[0], rl[3]], 8: [rl[4]], 10: [rl[5]]})
        def put(g, L): F.setdefault(g, []).extend(L)
        put(7, [w4[1]]); put(8, [w4[2]]); put(9, [w4[3]]); put(8, [mvi]); put(11, [f"v_xor_b32 v{XU+2}, 8, v{vA8}"])
        put(13, ["; @DRAINLDS"])
        pubs = [st1(XW + gam, vA4, s_km, 256 * gam), st1(SP + 2, vSPARE, s_vo), st1(VO, vA4, s_vm), st1(VO + 2, vA4, s_vm, 256)]
        put(14, ["s_nop 1"]); put(15, [kxr[0], "s_nop 0"]); put(16, [kxr[1], "s_nop 0"])
        if opt.vfast:
            put(17, vv[0]); put(18, [st1(VO, vA4, s_vw)] + vv[1]); put(19, [st1(VO + 2, vA4, s_vw, 256)]); gs = 20
        else:
            put(17, vv[0][0:2]); put(18, vv[0][2:4]); put(19, [st1(VO, vA4, s_vw)] + vv[1][0:2]); put(20, vv[1][2:4])
            put(21, [st1(VO + 2, vA4, s_vw, 256)]); gs = 22
        if opt.kvn:
            put(gs, [kxr[2]]); put(gs + 1, [kxr[3]]); put(gs + 2, [vxl[0]]); put(gs + 3, [vxl[1]])
        elif opt.vxg >= 20:
            put(gs, [kxr[2]]); put(gs + 1, [kxr[3]])
            pubs = pubs + vxl
        elif opt.vxg < 0:
            put(gs, [kxr[2], vxl[0]]); put(gs + 1, [kxr[3], vxl[1]])
            if opt.kxlate == 5: put(gs - 1, [dm[0]]); put(26, [dm[1]])
        else:
            F[opt.vxg].insert(0, vxl[0]) if opt.vxg in F else put(opt.vxg, [vxl[0]])
            F[14] = [vxl[1], "s_nop 0"]
            put(gs, [kxr[2]]); put(gs + 1, [kxr[3]])
        pg = [int(x) for x in opt.pubg.split(',')] + ([opt.vxg, opt.vxg + 2] if opt.vxg >= 20 else [])
        pub_late = list(zip(pg, pubs))
        g = 30 - opt.rlead
        put(g, ["; @WAITVM r"] + rc[0:2]); put(g + 1, rc[2:5])
        gb_ = g + 3
        put(gb_, [f"s_cbranch_vccnz {P}_RS", f"{P}_ROK:", "s_barrier", r_reads[0]])
        for j in range(1, 5): put(gb_ + j, [r_reads[j]])
        for j in range(4): put(gb_ + 5 + j, [kxr[4 + j]])
        g = gb_ + 9
        if opt.inv:
            put(g, [st1(SP + 2, gPR, s_vo)])
        for i, x in enumerate(tagv(lV, 'v0')): put(max(opt.vr_gap, g + 1) + i, [x])
        for g_, x in pub_late:
            L = F.setdefault(g_, []); k = len(L)
            while k > 0 and L[k-1].startswith('v_'): k -= 1
            L.insert(k, x)
        if opt.kvn:
            for i, x in enumerate(tagv(lV, 'v1')): put(opt.vr3 + i, [x])
        def r_retry():
            A.label(f"{P}_RS")
            cnt(9, 1)
            A("s_mov_b64 exec, vcc")
            for t in r_ld: A(t)
            A("s_mov_b64 exec, -1")
            A("s_waitcnt vmcnt(0)")
            for c in rc: A(c)
            A(f"s_cbranch_vccz {P}_ROK")
            spin_fail(f"{P}_RS")
        late.append(r_retry)
        qd = XU if opt.uni else XW
        mul2 = lambda a: [f"v_mul_f32 v{a+i}, s{s_csc}, v{a+i}" for i in range(2)]
        qq = add2(aQ[0]) + mul2(aQ[0]) + add2(aQ[1]) + mul2(aQ[1]) + [f"v_cvt_pk_bf16_f32 v{qd+t}, v{aQ[t]}, v{aQ[t]+1}" for t in range(2)]
        qwr = f"ds_write2_b32 v{aXW}, v{qd}, v{qd+1} offset0:0 offset1:64"
        for g_ in (38, 39, 40):
            if len(F.get(g_, [])) < 2: put(g_, ["s_nop 1"])
        if opt.uni:
            for i, x in enumerate(qq): put(41 + (i * 7) // 10, [x])
            put(48, [qwr])
        else:
            per = opt.qper
            for i, x in enumerate(qq): put(41 + i // per, [x])
            gw = 41 + (len(qq) - 1) // per
            put(gw, [qwr])
            gb = min(gw + opt.qw, 48)
            xq = xrd(XQ)
            put(gb, ["; @DRAINLDS", "s_barrier"] + xq[0:1])
            k = 1
            for g_ in range(gb + 1, 49): put(g_, xq[k:k+2]); k += 2
            put(49, xq[k:])
        weave(mf, F, 'l')
        stampc(2)
        S0, S1, SM, LL, O0, O1 = ACC + 8, ACC + 12, ACC + 16, ACC + 20, ACC, ACC + 4
        if opt.pk: kk = [f"v_pk_add_f32 {v(aK[t],2)}, {v(aK[t],2)}, {v(aK[t]+2,2)}" for t in range(2)]
        else: kk = [f"v_add_f32 v{aK[i>>1]+(i&1)}, v{aK[i>>1]+(i&1)}, v{aK[i>>1]+2+(i&1)}" for i in range(4)]
        kk += [f"v_cvt_pk_bf16_f32 v{XW+t}, v{aK[t]}, v{aK[t]+1}" for t in range(2)]
        mf = []
        for m, Sx in ((0, S0), (1, S1)):
            for uu in range(4):
                mf.append(f"v_mfma_f32_16x16x32_bf16 {v(Sx,4)}, {v(KX+8*uu+4*m,4)}, {v(XQ+4*uu,4)}, {'0' if uu == 0 else v(Sx,4)}")
        xk = xrd(XK)
        E = [SP, SP + 1, SP + 2, SP + 3]
        vchk = [f"v_bitop3_b32 v{TG}, v{VO+1}, v{VO+3}, s{s_tag} bitop3:0x7e", f"v_and_b32 v{TG}, {0 if opt.solo else 1}, v{TG}", f"v_cmp_ne_u32 vcc, 0, v{TG}"]
        wor = [f"ds_read_b128 {v((LAND+4*q) if q < 8 else (AR[0]+4*(q-8)),4)}, v{aRES} offset:{20480 + q*1024}" for q in range(10)]
        WO0 = lambda t: LAND + 8 * t if t < 4 else AR[0]
        if opt.uni:
            for t in range(2):
                for x in kk[(1 if opt.pk else 2)*t:(1 if opt.pk else 2)*(t+1)]: A(x)
                A(f"v_cvt_pk_bf16_f32 v{XW+t}, v{aK[t]}, v{aK[t]+1}")
            A(f"ds_write2_b32 v{aXW}, v{XW}, v{XW+1} offset0:1 offset1:65")
            for x in tagv(lV, 'v1'): A(x)
            A(f"s_cmp_eq_u32 s{s_step}, 63")
            filler([], opt.uf)
            A("; @WAITLDS")
            A("s_barrier")
            for x in xrd(XQ): A(x)
            A(f"s_cbranch_scc1 C_LAST{gam}")
            mf += [f"v_mfma_f32_16x16x32_bf16 {v(SM,4)}, {v(XQ+4*uu,4)}, {v(XQ+4*uu,4)}, {'0' if uu == 0 else v(SM,4)}" for uu in range(4)]
            fill = {5: ["s_nop 3"], 6: [f"v_exp_f32 v{E[0]}, v{S0}"], 7: [f"v_exp_f32 v{E[1]}, v{S0+1}"], 8: [f"v_exp_f32 v{E[2]}, v{S0+2}"],
                    9: [f"v_exp_f32 v{E[3]}, v{S0+3}", f"v_cvt_pk_bf16_f32 v{PX}, v{E[0]}, v{E[1]}"],
                    10: [f"v_cvt_pk_bf16_f32 v{PX+1}, v{E[2]}, v{E[3]}", f"v_exp_f32 v{E[0]}, v{S1}"],
                    11: [f"v_exp_f32 v{E[i]}, v{S1+i}" for i in range(1, 4)]}
            weave(mf, fill, 's')
        else:
            ks = opt.kslot
            fill = {}
            fill.setdefault(ks, []).extend(kk + [f"ds_write2_b32 v{aXW}, v{XW}, v{XW+1} offset0:1 offset1:65"])
            v1 = tagv(lV, 'v1')
            if opt.kvn:
                al = dm + vdm
                fill.setdefault(-1, []).append(al[0])
                for i in range(3): fill.setdefault(i, []).extend(al[1+2*i:3+2*i])
                fill.setdefault(3, []).append(al[7])
            else:
                fill.setdefault(opt.vr2, []).extend(v1[0:1]); fill.setdefault(opt.vr2 + 1, []).extend(v1[1:2])
            if opt.kxlate == 3:
                fill[opt.vr2 + 1].append(dm[0]); fill.setdefault(opt.vr2 + 2, []).extend(dm[1:3]); fill.setdefault(opt.vr2 + 3, []).append(dm[3])
            kb = min(ks + opt.kw, 7)
            fill.setdefault(kb - 1, []).extend([f"s_cmp_eq_u32 s{s_step}, 63"])
            fill.setdefault(kb, []).extend(["; @WAITLDS", "s_barrier"] + xk[0:2] + [f"s_cbranch_scc1 C_LAST{gam}"])
            ex0 = [f"v_exp_f32 v{E[i]}, v{S0+i}" for i in range(4)]
            for i in range(2, 8, 2): fill.setdefault(min(kb + i // 2, 7), []).extend(xk[i:i+2])
            for g_ in range(opt.e0, 8): fill.setdefault(g_, []).append(ex0.pop(0))
            weave(mf, fill, 's')
            stampc(3)
            for x in ex0: A(x)
            A(f"v_cvt_pk_bf16_f32 v{PX}, v{E[0]}, v{E[1]}")
            A(f"v_cvt_pk_bf16_f32 v{PX+1}, v{E[2]}, v{E[3]}")
            mf = [f"v_mfma_f32_16x16x32_bf16 {v(SM,4)}, {v(XK+4*uu,4)}, {v(XQ+4*uu,4)}, {'0' if uu == 0 else v(SM,4)}" for uu in range(4)]
            fill = {i: [f"v_exp_f32 v{E[i]}, v{S1+i}"] for i in range(4)}
            if opt.vearly:
                fill[-1] = ["; @WAITVM v0"] + vchk + [dm[0]]
                fill[1] = [f"s_cbranch_vccnz {P}_RV", f"{P}_BV:"] + fill[1]
                fill[2] = [dm[1], dm[2]] + fill[2]
                fill[3] = [dm[3]] + fill[3]
            if opt.kxlate == 4:
                fill[-1] = [dm[0]]; fill[0].insert(0, dm[1]); fill[1].insert(0, dm[2]); fill[2].insert(0, dm[3])
            weave(mf, fill, 'm')
        pvx = [f"v_mfma_f32_16x16x32_bf16 {v(LL,4)}, {v(vONE,4)}, {v(PX,4)}, 0",
               f"v_mfma_f32_16x16x32_bf16 {v(O0,4)}, {v(VX,4)}, {v(PX,4)}, 0",
               f"v_mfma_f32_16x16x32_bf16 {v(O1,4)}, {v(VX+4,4)}, {v(PX,4)}, 0"]
        pvm = [f"v_mfma_f32_16x16x16_bf16 {v(LL,4)}, {v(vH,2)}, {v(vPM,2)}, {v(LL,4)}",
               f"v_mfma_f32_16x16x16_bf16 {v(O0,4)}, {v(VO,2)}, {v(vPM,2)}, {v(O0,4)}",
               f"v_mfma_f32_16x16x16_bf16 {v(O1,4)}, {v(VO+2,2)}, {v(vPM,2)}, {v(O1,4)}"]
        A(f"v_cvt_pk_bf16_f32 v{PX+2}, v{E[0]}, v{E[1]}")
        A(f"v_cvt_pk_bf16_f32 v{PX+3}, v{E[2]}, v{E[3]}")
        if not opt.vearly:
            A("; @WAITVM v0")
            A(vchk[0]); A(vchk[1])
        else: A(wor[0]); A(wor[1])
        A(pvx[0])
        if not opt.vearly: A(vchk[2])
        A(f"v_exp_f32 v{E[0]}, v{SM+2}")
        A(pvx[1])
        A(f"v_exp_f32 v{E[1]}, v{SM+3}")
        A(pvx[2])
        A(f"v_cvt_pk_bf16_f32 v{vPM}, v{E[0]}, v{E[1]}")
        A(f"v_cvt_pk_bf16_f32 v{vPM+1}, v{E[0]}, v{E[1]}")
        A(pvm[0])
        if not opt.vearly:
            A(f"s_cbranch_vccnz {P}_RV")
            A.label(f"{P}_BV")
        mark('bv')
        A(pvm[1])
        A(wor[3 if opt.vearly else 0])
        if opt.kxlate in (1, 2): A(dm[0])
        if opt.kxlate == 5: A(dm[2])
        A(pvm[2])
        A(wor[4 if opt.vearly else 1])
        if opt.kxlate == 1: A(dm[1]); A(dm[2])
        if opt.kxlate == 5: A(dm[3])
        mark('pv')
        CA = AL[0]
        zr = [f"v_mov_b64 {v(CA+2*i,2)}, 0" for i in range(10)]
        A(wor[2])
        if opt.kxlate == 1: A(dm[3])
        A(f"v_rcp_f32 v{vM}, v{LL}")
        A(f"v_subrev_u32 v{vM2}, s{s_lo}, v{LL}")
        A(f"v_cmp_le_u32 vcc, s{s_rng}, v{vM2}")
        OW = AR[2]
        def onorm():
            for tau in range(2):
                for i in range(4): A(f"v_mul_f32 v{E[i]}, v{O0+4*tau+i}, v{vM}")
                for i in range(2): A(f"v_cvt_pk_bf16_f32 v{OW+2*tau+i}, v{E[2*i]}, v{E[2*i+1]}")
                if opt.ow64 and tau == 0: A(f"ds_write_b64 v{aOW}, {v(OW,2)}")
        onorm()
        A(f"s_and_b64 vcc, vcc, {0 if opt.solo else f's[{s_valid}:{s_valid+1}]'}")
        A(f"s_cbranch_scc1 {P}_FB")
        A.label(f"{P}_BF")
        mark('bf')
        if opt.ow64:
            A(f"ds_write_b64 v{aOW}, {v(OW+2,2)} offset:8")
        else:
            A(f"ds_write_b128 v{aOW}, {v(OW,4)}")
        if opt.kxlate == 2: A(dm[1]); A(dm[2])
        for x in zr[:5]: A(x)
        if opt.kxlate == 2: A(dm[3])
        for x in zr[5:]: A(x)
        A("; @WAITLDS")
        A("s_barrier")
        stampc(4)
        OA = ACC + 8
        A(f"ds_read_b128 {v(OA+4,4)}, v{aOR} offset:1024")
        A(f"ds_read_b128 {v(OA,4)}, v{aOR}")
        for x in (wor[5:6] if opt.vearly else wor[3:6]): A(x)
        filler([], opt.ow)
        PO = AR[2]
        mf = []
        for t in range(5): mf += [smf(CA + 4 * t, OA + 4, WO1(t)), smf(CA + 4 * t, OA, WO0(t))]
        def cepi(t):
            c = CA + 4 * t
            if opt.pk: L = [f"v_pk_add_f32 {v(c,2)}, {v(c,2)}, {v(c+2,2)}"]
            else: L = [f"v_add_f32 v{c}, v{c}, v{c+2}", f"v_add_f32 v{c+1}, v{c+1}, v{c+3}"]
            return L + [f"v_cvt_pk_bf16_f32 v{PO+t}, v{c}, v{c+1}", f"v_and_or_b32 v{PO+t}, v{PO+t}, -2, s{s_tag}",
                        f"buffer_store_dword v{PO+t}, v{gRED}, {W}, s{(s_pst, 17, 18, 19, s_pc2)[t]} offen{sc}"]
        fill = {i: [wor[6 + i], f"s_add_u32 s{(17, 18, 19, s_pc2)[i]}, s{s_pst}, {(i+1)*8192}"] for i in range(4)}
        for t in range(3):
            e = cepi(t)
            fill.setdefault(4 + 2 * t, []).extend(e[:2]); fill.setdefault(5 + 2 * t, []).extend(e[2:-1])
            fill.setdefault(min(6 + 2 * t, 9), []).insert(0 if t < 2 else 99, e[-1])
        weave(mf, fill, 'o')
        for t in (3, 4):
            for x in cepi(t): A(x)
        stampc(5)
        A("; @WAITVM v1")
        A(f"s_cmp_eq_u32 s{s_isred}, 0")
        A(f"s_cbranch_scc1 {P}_TOPN")
        RD = AL[4]
        RS = [AR[0], SP]
        eld = lf([ld(RS[0], gEL if opt.inl else vA16, s_pcur, 0), ld(RS[1], gEL if opt.inl else vA16, s_pcur, 1024)])
        e_regs = [RS[0] + i for i in range(4)] + [RS[1] + i for i in range(4)]
        ec = tagchk(e_regs, s_tag)
        if opt.e1:
            un = list(units[:ne])
            filler(un, opt.ed1)
            for k in range(opt.enf):
                if k: filler(un, opt.egap)
                for t in eld: A(t)
            filler(un, max(opt.ew, len(un)))
            mark('eb')
            A.label(f"{P}_EC")
            A(f"s_waitcnt vmcnt({2*(opt.enf-1)})")
            for c in ec[:4]: A(c)
            A(f"v_mfma_f32_16x16x32_bf16 {v(RD,4)}, {v(RS[0],4)}, {v(vSEL,4)}, 0")
            A(f"v_mfma_f32_16x16x32_bf16 {v(RD,4)}, {v(RS[1],4)}, {v(vSEL,4)}, {v(RD,4)}")
            for c in ec[4:]: A(c)
            def e_retry():
                A.label(f"{P}_ES")
                A("s_mov_b64 exec, vcc")
                for t in eld: A(t)
                A("s_mov_b64 exec, -1")
                cnt(8, 0x10000)
                filler([], opt.erf)
                spin_fail(f"{P}_EC")
            late.append(e_retry)
        else:
            A(f"s_xor_b32 s{s_t1}, s{s_tag}, 1")
            for r in e_regs: A(f"v_mov_b32 v{r}, s{s_t1}")
            un = list(units[:ne])
            filler(un, opt.ed1)
            for k in range(opt.enf - 1):
                for t in eld: A(t)
                filler(un, opt.egap)
            filler(un, len(un))
            mark('ea')
            A.label(f"{P}_ES")
            for t in eld: A(t)
            A("s_mov_b64 exec, -1")
            for k in range(opt.echk):
                for c in ec[:4]: A(c)
                A(f"v_mfma_f32_16x16x32_bf16 {v(RD,4)}, {v(RS[0],4)}, {v(vSEL,4)}, 0")
                A(f"v_mfma_f32_16x16x32_bf16 {v(RD,4)}, {v(RS[1],4)}, {v(vSEL,4)}, {v(RD,4)}")
                for c in ec[4:]: A(c)
                if k == 0:
                    cnt(8, 0x10000)
                    A(f"s_sub_u32 s{s_spin}, s{s_spin}, 1")
                    A("s_cbranch_scc1 C_FAIL")
                if k < opt.echk - 1: A(f"s_cbranch_vccz {P}_EOK")
            A("s_mov_b64 exec, vcc")
            A(f"s_cbranch_vccnz {P}_ES")
            A("s_mov_b64 exec, -1")
            A.label(f"{P}_EOK")
        stampc(6)
        if not opt.inl:
            A(f"v_permlane32_swap_b32 v{RD}, v{RD+2}")
            A(f"v_permlane32_swap_b32 v{RD+1}, v{RD+3}")
        A(f"v_add_f32 v{RD}, v{RD}, v{RD+2}")
        A(f"v_add_f32 v{RD+1}, v{RD+1}, v{RD+3}")
        if not opt.inl: A(f"v_permlane16_swap_b32 v{RD}, v{RD+1}")
        if opt.e1: A(f"s_cbranch_vccnz {P}_ES")
        A(f"v_add_f32 v{vM}, v{RD}, v{RD+1}")
        A.label(f"{P}_PUB")
        A(f"v_mov_b32_dpp v{vM2}, v{vM} quad_perm:[1,1,3,3] row_mask:0xf bank_mask:0xf")
        A(f"v_cvt_pk_bf16_f32 v{vM}, v{vM}, v{vM2}")
        A(f"v_and_or_b32 v{vM}, v{vM}, -2, s{s_tagn}")
        A(f"buffer_store_dword v{vM}, v{gMO}, {W}, s{s_mlo} offen{sc}")
        if opt.mrpos < 0: A(mr_st)
        stampc(7)
        A("s_barrier")
        if opt.mrpos == 0: A(mr_st)
        A(f"s_branch {P}_TOP2")
        if opt.drop:
            import re as _re
            A.ins[i0:] = [x for x in A.ins[i0:] if not _re.search(opt.drop.replace('~', ' '), x.text)]
        A.ins[i0:] = resolve_waits(A.ins[i0:])
        A.label(f"{P}_PUB0")
        for x in units[:ne]: A(x)
        A(f"s_branch {P}_PUB")
        for f in late: f()
        A.label(f"{P}_KVW")
        A.label(f"{P}_KVL")
        kv_ready()
        A(f"s_cmp_lt_u32 s{s_t0}, s{s_rdy}")
        A(f"s_cbranch_scc1 {P}_KVD")
        A("s_sleep 1")
        spin_fail(f"{P}_KVL")
        A.label(f"{P}_KVD")
        A(f"s_cmp_eq_u32 s{s_step}, 0")
        A(f"s_cbranch_scc0 {P}_KVB")
        if opt.kvn:
            A(f"s_sub_u32 s{s_kv}, s{s_kv}, {32*16384}")
            A(f"s_sub_u32 s{s_vxa}, s{s_vxa}, {32*16384}")
            for t in dm + vdm: A(t)
            A(f"s_add_u32 s{s_kv}, s{s_kv}, {32*16384}")
            A(f"s_add_u32 s{s_vxa}, s{s_vxa}, {32*16384}")
        else:
            A(f"s_sub_u32 s{s_t1}, s{s_vxa}, {WS_VO:#x}")
            A(f"s_xor_b32 s{s_kxm}, s{s_kxm}, 8192")
            for g_ in kv_dma(s_t1, None):
                for t in g_: A(t)
            A(f"s_xor_b32 s{s_kxm}, s{s_kxm}, 8192")
        A(r_ld[2])
        A("s_waitcnt vmcnt(0)")
        A(f"s_branch {P}_KVB")
        A.label(f"{P}_RV")
        A("s_mov_b64 exec, vcc")
        for x in lV: A(x)
        A("s_mov_b64 exec, -1")
        cnt(9, 0x10000)
        for k in range(2):
            for c in vchk: A(c)
            filler([], 2)
            A(f"s_cbranch_vccz {P}_BV")
        spin_fail(f"{P}_RV")
        A.label(f"{P}_FB")
        sc10 = [S0, S0 + 1, S0 + 2, S0 + 3, S1, S1 + 1, S1 + 2, S1 + 3, SM + 2, SM + 3]
        A(f"v_max3_f32 v{vM}, v{sc10[0]}, v{sc10[1]}, v{sc10[2]}")
        for i in range(3, 9, 2): A(f"v_max3_f32 v{vM}, v{vM}, v{sc10[i]}, v{sc10[i+1]}")
        A(f"v_max_f32 v{vM}, v{vM}, v{sc10[9]}")
        A(f"v_mov_b32 v{vM2}, v{vM}")
        A(f"v_permlane32_swap_b32 v{vM}, v{vM2}")
        A(f"v_max_f32 v{vM}, v{vM}, v{vM2}")
        A(f"v_mov_b32 v{vM2}, v{vM}")
        A(f"v_permlane16_swap_b32 v{vM}, v{vM2}")
        A(f"v_max_f32 v{vM}, v{vM}, v{vM2}")
        for r in sc10: A(f"v_sub_f32 v{r}, v{r}, v{vM}")
        for r in sc10: A(f"v_exp_f32 v{r}, v{r}")
        for i in range(4): A(f"v_cvt_pk_bf16_f32 v{PX+i}, v{sc10[2*i]}, v{sc10[2*i+1]}")
        A(f"v_cvt_pk_bf16_f32 v{vPM}, v{SM+2}, v{SM+3}")
        A(f"v_cvt_pk_bf16_f32 v{vPM+1}, v{SM+2}, v{SM+3}")
        for x in pvx + pvm: A(x)
        A(f"v_rcp_f32 v{vM}, v{LL}")
        onorm()
        A(f"s_branch {P}_BF")

    for gam in range(2):
        loop(f"CF{gam}", ("", " sc0", " nt", " sc0 nt")[opt.stf], gam)
        if opt.fastonly:
            A.label(f"CS{gam}_ENTRY"); A("s_endpgm")
        else: loop(f"CS{gam}", " sc1", gam)
    A.label("C_LAST0")
    A(f"s_add_u32 s{s_km}, s59, 4096")
    A(f"buffer_store_dword v{XW}, v{vA4}, {W}, s{s_km} offen sc1")
    A("s_branch C_LAST")
    A.label("C_LAST1")
    A(f"s_add_u32 s{s_km}, s59, 2048")
    A(f"buffer_store_dword v{XW+1}, v{vA4}, {W}, s{s_km} offen offset:256 sc1")
    A.label("C_LAST")
    A("s_waitcnt vmcnt(0)")
    A("s_barrier")
    A(f"s_or_b32 s{s_t0}, s35, 128")
    A(f"v_mov_b32 v{vM}, s{s_t0}")
    A(f"buffer_store_dword v{vM}, v{vSPARE}, {W}, s37 offen sc1")
    A.label("C_DONE")
    if opt.steps:
        A(f"v_lshlrev_b32 v{T2}, 1, v{vA4}")
        A(f"ds_read_b64 {v(T0,2)}, v{T2} offset:22528")
        A("s_lshl_b32 s90, s2, 9")
        A(f"s_add_u32 s90, s90, {WS_TS + 3*MB:#x}")
        A("s_waitcnt lgkmcnt(0)")
        A(f"buffer_store_dwordx2 {v(T0,2)}, v{T2}, {W}, s90 offen")
        A("s_waitcnt vmcnt(0)")
    stamp(A, opt, 3, vt=(T0, T1, T2))
    if opt.stamps:
        for k in range(12): A(f"v_mov_b32 v{LAND+k}, s{ST0+k}")
        A(f"s_lshl_b32 s90, s2, 2")
        A(f"s_add_u32 s90, s90, s5")
        A(f"s_lshl_b32 s90, s90, 6")
        A(f"s_add_u32 s90, s90, {WS_TS + MB:#x}")
        A("s_mov_b64 exec, 1")
        for k in range(3): A(f"buffer_store_dwordx4 {v(LAND+4*k,4)}, off, {W}, s90 offset:{16*k}")
    A("s_waitcnt vmcnt(0)")
    A("s_endpgm")
    A.label("C_FAIL")
    A(f"v_mov_b32 v{vM}, s{s_step}")
    A(f"v_add_u32 v{vM}, 0x1000, v{vM}")
    A("s_mov_b64 exec, 1")
    A(f"buffer_store_dword v{vM}, off, {D}, 0 offset:{DBG_ERR*4} sc1")
    A("s_waitcnt vmcnt(0)")
    A("s_endpgm")
```

```python
from asmlib import *
from gen import *
from gen_chain import VM

def gen_follow(A, opt):
    W = f"s[{S_WS}:{S_WS+3}]"
    D = f"s[{S_DBG}:{S_DBG+3}]"
    s_t0, s_t1, s_t2, s_spin, s_seg, s_flag = 24, 25, 26, 27, 28, 29
    vL, vA16, vT0, vT1, vT2 = 1, 2, 3, 4, 5
    def spin_fail(lbl, sleep=1):
        if sleep: A(f"s_sleep {sleep}")
        A(f"s_sub_u32 s{s_spin}, s{s_spin}, 1")
        A(f"s_cbranch_scc0 {lbl}")
        A("s_branch F_FAIL")
    def near(r):
        A(f"s_lshr_b32 s{s_t0}, s{s_seg}, 2")
        A(f"s_xor_b32 s{s_t0}, s{s_t0}, s{S_POL}")
        A(f"s_and_b32 s{s_t0}, s{s_t0}, 1")
        A(f"s_lshl_b32 s{s_t0}, s{s_t0}, 13")
        A(f"s_xor_b32 s{r}, s{r}, s{s_t0}")
    get_pol(A, opt, "F", vT0, s_spin)
    A(f"s_mov_b32 s{s_spin}, {opt.spin}")
    A(f"v_and_b32 v{vL}, 63, v0")
    A(f"v_lshlrev_b32 v{vA16}, 4, v{vL}")
    A(f"s_lshl_b32 s{s_flag}, s3, 10")
    A(f"s_add_u32 s{s_flag}, s{s_flag}, {WS_OFLAG:#x}")
    A("s_cmp_lt_u32 s4, 20")
    A("s_cbranch_scc1 F_ARRIVE")
    A("s_cmp_ge_u32 s4, 28")
    A("s_cbranch_scc1 F_ARRIVE")
    A(f"s_sub_u32 s{s_t0}, s4, 20")
    A(f"s_lshl_b32 s{s_t0}, s{s_t0}, 7")
    A(f"s_add_u32 s{s_flag}, s{s_flag}, s{s_t0}")
    A(f"v_mov_b32 v{vT0}, 0")
    A("s_mov_b64 exec, 1")
    A(f"buffer_store_dword v{vT0}, off, {W}, s{s_flag} sc1")
    A("s_mov_b64 exec, -1")
    A.label("F_ARRIVE")
    A("s_waitcnt vmcnt(0)")
    A("s_barrier")
    A("s_cmp_eq_u32 s5, 0")
    A("s_cbranch_scc0 F_ARRIVED")
    A(f"v_mov_b32 v{vT0}, 1")
    A("s_mov_b64 exec, 1")
    A(f"buffer_atomic_add v{vT0}, off, {D}, 0 offset:{DBG_WBAR*4} sc1")
    A("s_mov_b64 exec, -1")
    A.label("F_ARRIVED")
    stamp(A, opt, 24)
    A("s_cmp_ge_u32 s4, 28")
    A("s_cbranch_scc1 F_END")
    A("s_cmp_ge_u32 s4, 20")
    A("s_cbranch_scc1 F_AT")

    def wait_bar(name):
        A.label(name)
        A(f"buffer_load_dword v{vT0}, off, {D}, 0 offset:{DBG_CHAIN_CNT*4} sc1")
        A(f"buffer_load_dword v{vT1}, off, {D}, 0 offset:{DBG_WBAR*4} sc1")
        A("s_waitcnt vmcnt(0)")
        A(f"v_readfirstlane_b32 s{s_t0}, v{vT0}")
        A(f"v_readfirstlane_b32 s{s_t1}, v{vT1}")
        A(f"s_cmp_ge_u32 s{s_t0}, 64")
        A(f"s_cselect_b32 s{s_t1}, s{s_t1}, 0")
        A(f"s_cmp_ge_u32 s{s_t1}, 192")
        A(f"s_cbranch_scc1 {name}_OK")
        spin_fail(name, 8)
        A.label(name + "_OK")

    SO, SD, SOUT = 32, 36, 40
    A(f"s_load_dwordx2 s[44:45], s[0:1], {KA_WO}")
    A(f"s_load_dwordx2 s[46:47], s[0:1], {KA_WD}")
    A(f"s_load_dwordx2 s[48:49], s[0:1], {KA_OUT}")
    A("s_waitcnt lgkmcnt(0)")
    srd(A, SO, 44, 45, 4096 * 1280); srd(A, SD, 46, 47, 1728 * 1280); srd(A, SOUT, 48, 49, 2048 * 1280)
    vD, aT, gOUT, gG, aRW, aRR, vG, vG1 = 6, 7, 8, 9, 10, 11, 12, 13
    ACA, ACB, RING = 16, 32, 48
    NR = 25
    WR = lambda k: 256 + 4 * k if k < 64 else 148 + 4 * (k - 64)
    s_lds, s_o, s_d, s_par = 50, 51, 52, 53
    A(f"v_lshrrev_b32 v{vT0}, 2, v{vL}")
    A(f"v_mul_u32_u24 v{vT0}, 1280, v{vT0}")
    A(f"v_and_b32 v{vT1}, 3, v{vL}")
    A(f"v_lshl_add_u32 v{vD}, v{vT1}, 4, v{vT0}")
    A(f"s_mul_i32 s{s_lds}, s5, 40960")
    A(f"v_lshrrev_b32 v{vT0}, 5, v{vL}")
    A(f"v_bfe_u32 v{vT1}, v{vL}, 2, 2")
    A(f"v_lshl_add_u32 v{vT0}, v{vT0}, 2, v{vT1}")
    A(f"v_lshlrev_b32 v{vT0}, 6, v{vT0}")
    A(f"v_bfe_u32 v{vT1}, v{vL}, 4, 1")
    A(f"v_lshl_add_u32 v{vT0}, v{vT1}, 5, v{vT0}")
    A(f"v_and_b32 v{vT1}, 3, v{vL}")
    A(f"v_lshl_add_u32 v{vT0}, v{vT1}, 3, v{vT0}")
    A(f"v_add_u32 v{aT}, s{s_lds}, v{vT0}")
    A(f"s_lshl_b32 s{s_t0}, s4, 6")
    A(f"s_mul_i32 s{s_o}, s5, {1024*1280}")
    A(f"s_add_u32 s{s_o}, s{s_o}, s{s_t0}")
    A(f"s_mul_i32 s{s_d}, s5, {432*1280}")
    A(f"s_add_u32 s{s_d}, s{s_d}, s{s_t0}")
    vm = VM(A)
    def dma(k):
        A(f"s_add_u32 m0, s{s_lds}, {(k % 40)*1024}")
        if k < 64:
            vm.issue(f"buffer_load_dwordx4 v{vD}, s[{SO}:{SO+3}], s{s_o} offen lds", k)
            A(f"s_add_u32 s{s_o}, s{s_o}, {16*1280}")
        else:
            vm.issue(f"buffer_load_dwordx4 v{vD}, s[{SD}:{SD+3}], s{s_d} offen lds", k)
            A(f"s_add_u32 s{s_d}, s{s_d}, {16*1280}")
    for k in range(40): dma(k)
    for k0 in range(0, 91, 4):
        ks = [k for k in range(k0, min(k0 + 4, 91))]
        vm.wait(ks[-1])
        for k in ks:
            for m in range(2):
                A(f"ds_read_b64_tr_b16 {u(WR(k)+2*m,2)}, v{aT} offset:{(k%40)*1024 + m*512}")
        A("s_waitcnt lgkmcnt(0)")
        for k in ks:
            if k + 40 < 91: dma(k + 40)
    A(f"v_and_b32 v{vT0}, 31, v{vL}")
    A(f"v_lshlrev_b32 v{gG}, 2, v{vT0}")
    A(f"v_mul_u32_u24 v{vT0}, 1280, v{vT0}")
    A(f"v_lshrrev_b32 v{vT1}, 5, v{vL}")
    A(f"v_lshl_add_u32 v{vT0}, v{vT1}, 3, v{vT0}")
    A(f"s_lshl_b32 s{s_t0}, s4, 6")
    A(f"s_lshl_b32 s{s_t1}, s5, 4")
    A(f"s_add_u32 s{s_t0}, s{s_t0}, s{s_t1}")
    A(f"v_add_u32 v{gOUT}, s{s_t0}, v{vT0}")
    A(f"s_lshl_b32 s{s_t0}, s5, 12")
    A(f"v_add_u32 v{aRW}, s{s_t0}, v{vA16}")
    A(f"s_lshl_b32 s{s_t0}, s5, 10")
    A(f"v_add_u32 v{aRR}, s{s_t0}, v{vA16}")
    A(f"s_lshl_b32 s{s_t0}, s5, 8")
    A(f"s_add_u32 s{s_flag}, s{s_flag}, s{s_t0}")
    A("s_barrier")
    stamp(A, opt, 25, vt=(16, 17, 18))
    wait_bar("F_OPW")
    stamp(A, opt, 26, vt=(16, 17, 18))
    NRG, LA = 23, 22
    s_nx = 54
    vF = [vT0, vT1]
    RG = lambda k: RING + 4 * (k % NRG)
    def addr_next():
        A(f"s_cmp_lt_u32 s{s_nx}, 64")
        A(f"s_cselect_b32 s{s_t1}, s{s_nx}, s{s_seg}")
        A(f"s_mul_i32 s{s_d}, s{s_t1}, {54*2048}")
        A(f"s_mul_i32 s{s_t0}, s5, {27*1024}")
        A(f"s_add_u32 s{s_d}, s{s_d}, s{s_t0}")
        A(f"s_add_u32 s{s_d}, s{s_d}, {WS_H:#x}")
        A(f"s_lshl_b32 s{s_t2}, s{s_t1}, 7")
        A(f"s_add_u32 s{s_t2}, s{s_t2}, {WS_G:#x}")
    def addr_o():
        A(f"s_lshl_b32 s{s_o}, s{s_seg}, 19")
        A(f"s_lshl_b32 s{s_t0}, s5, 17")
        A(f"s_add_u32 s{s_o}, s{s_o}, s{s_t0}")
        A(f"s_add_u32 s{s_o}, s{s_o}, {WS_VO + 8192:#x}")
        near(s_o)
    def issue(k):
        k %= 92
        if k == 0:
            addr_next()
            A(f"buffer_load_dword v{RG(0)}, v{gG}, {W}, s{s_t2} offen sc1")
        elif k <= 27:
            j = k - 1
            A(f"buffer_load_dwordx4 {v(RG(k),4)}, v{vA16}, {W}, s{s_d} offen offset:{(j%4)*1024} sc1")
            if j % 4 == 3: A(f"s_add_u32 s{s_d}, s{s_d}, 4096")
        else:
            j = k - 28
            A(f"buffer_load_dwordx4 {v(RG(k),4)}, v{vA16}, {W}, s{s_o} offen offset:{(j%4)*1024} sc1")
            if j % 4 == 3: A(f"s_add_u32 s{s_o}, s{s_o}, {4096 + (8192 if j % 8 == 7 else 0)}")
    def flags_ld():
        A(f"buffer_load_dword v{vF[0]}, off, {W}, s{s_flag} sc1")
        A(f"buffer_load_dword v{vF[1]}, off, {W}, s{s_flag} offset:128 sc1")
    def flags_ok():
        A(f"v_min_u32 v{vF[0]}, v{vF[0]}, v{vF[1]}")
        A(f"v_readfirstlane_b32 s{s_t0}, v{vF[0]}")
        A(f"s_cmp_gt_u32 s{s_t0}, s{s_seg}")
    def use(k):
        if k == 0: A(f"v_mov_b32 v{vG}, v{RG(0)}")
        elif k <= 27: A(f"v_mfma_f32_32x32x16_bf16 {v(ACB,16)}, {u(WR(64+k-1),4)}, {v(RG(k),4)}, {'0' if k == 1 else v(ACB,16)}")
        else: A(f"v_mfma_f32_32x32x16_bf16 {v(ACA,16)}, {u(WR(k-28),4)}, {v(RG(k),4)}, {'0' if k == 28 else v(ACA,16)}")
    A(f"s_mov_b32 s{s_seg}, s3")
    A(f"s_mov_b32 s{s_nx}, s3")
    flags_ld()
    for k in range(LA): issue(k)
    A(f"buffer_load_dword v14, off, {W}, s{s_flag} sc1")
    A.label("F_OP_LOOP")
    addr_o()
    KG = 28 - LA
    for k in range(KG):
        A(f"s_waitcnt vmcnt({LA})")
        use(k)
        issue(k + LA)
    flags_ok()
    A("s_cbranch_scc1 F_OP_FAST")
    for k in range(KG, 28):
        A(f"s_waitcnt vmcnt({27 - k + (1 if k < LA else 0)})")
        use(k)
    A.label("F_OP_POLL")
    flags_ld()
    A("s_waitcnt vmcnt(0)")
    flags_ok()
    A("s_cbranch_scc1 F_OP_GO")
    spin_fail("F_OP_POLL", opt.opsl)
    A.label("F_OP_GO")
    for k in range(28, 28 + LA): issue(k)
    A("s_branch F_OP_O")
    A.label("F_OP_FAST")
    for k in range(KG, 28):
        A(f"s_waitcnt vmcnt({LA if k < LA else LA - 1})")
        use(k)
        issue(k + LA)
    A.label("F_OP_O")
    for k in range(28, 92):
        d = LA - 1 + (2 if k + LA > 92 else 0)
        A(f"s_waitcnt vmcnt({d})")
        use(k)
        if k + LA == 92:
            A(f"s_add_u32 s{s_nx}, s{s_nx}, 6")
            flags_ld()
        issue(k + LA)
    A(f"v_sub_f32 v{vG1}, 1.0, v{vG}")
    for i in range(16): A(f"v_mul_f32 v{ACB+i}, v{ACB+i}, v{vG1}")
    for i in range(16): A(f"v_fmac_f32 v{ACB+i}, v{ACA+i}, v{vG}")
    for q in range(4): A(f"ds_write_b128 v{aRW}, {v(ACB+4*q,4)} offset:{q*1024}")
    A("s_waitcnt lgkmcnt(0)")
    A("s_barrier")
    for q in range(4): A(f"ds_read_b128 {v(ACA+4*q,4)}, v{aRR} offset:{q*4096}")
    A(f"v_xor_b32 v{aRW}, 0x4000, v{aRW}")
    A(f"v_xor_b32 v{aRR}, 0x4000, v{aRR}")
    A(f"s_mul_i32 s{s_t0}, s{s_seg}, {32*1280}")
    A("s_waitcnt lgkmcnt(0)")
    for i in range(4):
        A(f"v_add_f32 v{ACA+i}, v{ACA+i}, v{ACA+4+i}")
        A(f"v_add_f32 v{ACA+8+i}, v{ACA+8+i}, v{ACA+12+i}")
    for i in range(4): A(f"v_add_f32 v{ACA+i}, v{ACA+i}, v{ACA+8+i}")
    A(f"v_cvt_pk_bf16_f32 v14, v{ACA}, v{ACA+1}")
    A(f"v_cvt_pk_bf16_f32 v15, v{ACA+2}, v{ACA+3}")
    A(f"buffer_store_dwordx2 v[14:15], v{gOUT}, s[{SOUT}:{SOUT+3}], s{s_t0} offen{('', ' sc1', ' nt')[opt.outf]}")
    A(f"s_mov_b32 s{s_seg}, s{s_nx}")
    A(f"s_cmp_lt_u32 s{s_seg}, 64")
    A("s_cbranch_scc1 F_OP_LOOP")
    stamp(A, opt, 27, vt=(16, 17, 18))
    A("s_branch F_END")

    A.label("F_AT")
    QF, KF, VF, KM, VMm, MSK, SX, SM, PX, PM = 16, 48, 80, 112, 200, 152, 168, 184, 6, 144
    gKM, gVM, vMX, vMY, vSEL = 250, 251, 252, 253, 254
    KR = lambda k: (KF + 8 * k) if k < 4 else (216 + 8 * (k - 4))
    s_h, s_qkv, s_m, s_prog = 30, 31, 32, 33
    A(f"s_sub_u32 s{s_h}, s4, 20")
    A(f"s_lshl_b32 s{s_h}, s{s_h}, 2")
    A(f"s_add_u32 s{s_h}, s{s_h}, s5")
    A(f"s_lshl_b32 s{s_prog}, s{s_h}, 14")
    A(f"s_add_u32 s{s_prog}, s{s_prog}, {WS_X + 2048:#x}")
    A(f"v_and_b32 v{vT0}, 1, v{vL}")
    A(f"v_bfe_u32 v{vT1}, v{vL}, 1, 1")
    A(f"v_lshlrev_b32 v{vT0}, 20, v{vT0}")
    A(f"v_lshl_add_u32 v255, v{vT1}, 12, v{vT0}")
    A(f"s_and_b32 s{s_t0}, s{S_POL}, 1")
    A(f"s_lshl_b32 s{s_t0}, s{s_t0}, 13")
    A(f"s_add_u32 s{s_prog}, s{s_prog}, s{s_t0}")
    A(f"v_and_b32 v{vT0}, 31, v{vL}")
    A(f"v_lshrrev_b32 v{vT1}, 5, v{vL}")
    A(f"v_lshlrev_b32 v{vT2}, 4, v{vT0}")
    A(f"v_and_b32 v{gVM}, 15, v{vL}")
    A(f"v_lshlrev_b32 v{gVM}, 2, v{gVM}")
    A(f"v_lshl_add_u32 v{gVM}, v{vT1}, 7, v{gVM}")
    A(f"v_bfe_u32 v{gKM}, v{vL}, 4, 1")
    A(f"v_lshl_add_u32 v{gVM}, v{gKM}, 8, v{gVM}")
    A(f"v_lshrrev_b32 v{gKM}, 1, v{vT0}")
    A(f"v_lshlrev_b32 v{gKM}, 6, v{gKM}")
    A(f"v_lshl_add_u32 v{gKM}, v{vT1}, 5, v{gKM}")
    A(f"v_mov_b32 v{vSEL}, 0x05040100")
    A(f"v_mov_b32 v{vT2}, 0x07060302")
    A(f"v_and_b32 v{vMX}, 1, v{vL}")
    A(f"v_cmp_eq_u32 vcc, 1, v{vMX}")
    A(f"v_cndmask_b32 v{vSEL}, v{vSEL}, v{vT2}, vcc")
    A(f"v_mov_b32 v{vT2}, {OOB:#x}")
    A(f"v_cmp_gt_u32 vcc, 8, v{vT0}")
    A(f"v_cndmask_b32 v{gKM}, v{vT2}, v{gKM}, vcc")
    A(f"v_lshlrev_b32 v{vT1}, 2, v{vT1}")
    A(f"v_sub_u32 v{vT0}, v{vT0}, v{vT1}")
    A(f"v_mov_b32 v{vT1}, {fbits(-1e30):#x}")
    A(f"v_mov_b32 v{vT2}, 0")
    for R in range(16):
        A(f"v_cmp_gt_i32 vcc, {8*(R>>2)+(R&3)}, v{vT0}")
        A(f"v_cndmask_b32 v{MSK+R}, v{vT2}, v{vT1}, vcc")
    wait_bar("F_ATW")
    A(f"s_mov_b32 s{s_seg}, s3")
    A.label("F_AT_LOOP")
    A(f"s_lshl_b32 s{s_t0}, s{s_seg}, 5")
    A(f"s_add_u32 s{s_t0}, s{s_t0}, s{s_h}")
    A(f"s_lshl_b32 s{s_qkv}, s{s_t0}, 14")
    near(s_qkv)
    A(f"s_xor_b32 s34, s{s_qkv}, 8192")
    A(f"s_add_u32 s{s_m}, s{s_qkv}, {WS_MM + 4096:#x}")
    vm = VM(A)
    for reg, base, tag in ((KF, WS_KQ, 'k'), (QF, WS_KQ, 'q'), (VF, WS_VO, 'v')):
        for hf in range(2):
            A(f"s_add_u32 s{s_t0}, s{34 if tag == 'q' else s_qkv}, {base + hf*4096:#x}")
            for k in range(4):
                vm.issue(f"buffer_load_dwordx4 {v(reg+16*hf+4*k,4)}, v{vA16}, {W}, s{s_t0} offen offset:{k*1024} sc1", tag)
    vm.wait('q')
    for k in range(8):
        c = v(MSK, 16) if k == 0 else v(SX, 16)
        A(f"v_mfma_f32_32x32x16_bf16 {v(SX,16)}, {v(KF+4*k,4)}, {v(QF+4*k,4)}, {c}")
    A.label("F_AT_POLL")
    A("s_mov_b64 exec, 15")
    A(f"buffer_load_dword v{vT0}, v255, {W}, s{s_prog} offen sc1")
    A("s_mov_b64 exec, -1")
    A("s_waitcnt vmcnt(0)")
    for i in range(4): A(f"v_readlane_b32 s{36+i}, v{vT0}, {i}")
    A("s_max_u32 s36, s36, s37")
    A("s_max_u32 s38, s38, s39")
    A(f"s_min_u32 s{s_t0}, s36, s38")
    A(f"s_lshr_b32 s{s_t0}, s{s_t0}, 1")
    A(f"s_cmp_gt_u32 s{s_t0}, s{s_seg}")
    A("s_cbranch_scc1 F_AT_GO")
    spin_fail("F_AT_POLL", opt.atsl)
    A.label("F_AT_GO")
    vm = VM(A)
    for k in range(8):
        for j in range(2):
            vm.issue(f"buffer_load_dwordx4 {v(KR(k)+4*j,4)}, v{gKM}, {W}, s{s_m} offen offset:{k*256+j*16} sc1", k)
    A(f"s_add_u32 s{s_t0}, s{s_qkv}, {WS_MM:#x}")
    for et in range(4):
        for gm in range(2):
            for j in range(2):
                vm.issue(f"buffer_load_dword v{VMm+4*et+2*gm+j}, v{gVM}, {W}, s{s_t0} offen offset:{gm*2048 + et*512 + j*64} sc1", 'vm')
    A(f"v_max3_f32 v{vMX}, v{SX}, v{SX+1}, v{SX+2}")
    for i in range(3, 15, 2): A(f"v_max3_f32 v{vMX}, v{vMX}, v{SX+i}, v{SX+i+1}")
    A(f"v_max_f32 v{vMX}, v{vMX}, v{SX+15}")
    for k in range(8):
        vm.wait(k)
        for j in range(4): A(f"v_perm_b32 v{KM+4*k+j}, v{KR(k)+2*j+1}, v{KR(k)+2*j}, v{vSEL}")
        c = "0" if k == 0 else v(SM, 16)
        A(f"v_mfma_f32_32x32x16_bf16 {v(SM,16)}, {v(KM+4*k,4)}, {v(QF+4*k,4)}, {c}")
    A(f"v_max3_f32 v{vMX}, v{vMX}, v{SM}, v{SM+1}")
    A(f"v_max3_f32 v{vMX}, v{vMX}, v{SM+2}, v{SM+3}")
    A(f"v_mov_b32 v{vMY}, v{vMX}")
    A(f"v_permlane32_swap_b32 v{vMX}, v{vMY}")
    A(f"v_max_f32 v{vMX}, v{vMX}, v{vMY}")
    sc = [SX + i for i in range(16)] + [SM + i for i in range(4)]
    for r in sc: A(f"v_sub_f32 v{r}, v{r}, v{vMX}")
    for r in sc: A(f"v_exp_f32 v{r}, v{r}")
    for i in range(8): A(f"v_cvt_pk_bf16_f32 v{PX+i}, v{SX+2*i}, v{SX+2*i+1}")
    for i in range(4): A(f"v_cvt_pk_bf16_f32 v{PM+i}, v{SM+2*(i&1)}, v{SM+2*(i&1)+1}")
    vm.wait('vm')
    OT = lambda et: QF + 16 * et
    for et in range(4):
        A(f"v_mfma_f32_32x32x16_bf16 {v(OT(et),16)}, {v(VF+8*et,4)}, {v(PX,4)}, 0")
    A(f"v_add_f32 v{vMX}, v{sc[0]}, v{sc[1]}")
    for et in range(4):
        A(f"v_mfma_f32_32x32x16_bf16 {v(OT(et),16)}, {v(VF+8*et+4,4)}, {v(PX+4,4)}, {v(OT(et),16)}")
        for r in sc[2+4*et:6+4*et]: A(f"v_add_f32 v{vMX}, v{vMX}, v{r}")
    for et in range(4):
        A(f"v_mfma_f32_32x32x16_bf16 {v(OT(et),16)}, {v(VMm+4*et,4)}, {v(PM,4)}, {v(OT(et),16)}")
        if et == 0:
            for r in sc[18:20]: A(f"v_add_f32 v{vMX}, v{vMX}, v{r}")
            A(f"v_mov_b32 v{vMY}, v{vMX}")
        if et == 1:
            A(f"v_permlane32_swap_b32 v{vMX}, v{vMY}")
            A(f"v_add_f32 v{vMX}, v{vMX}, v{vMY}")
            A(f"v_rcp_f32 v{vMX}, v{vMX}")
    A(f"s_add_u32 s{s_t0}, s34, {WS_VO:#x}")
    for et in range(4):
        for i in range(16): A(f"v_mul_f32 v{OT(et)+i}, v{OT(et)+i}, v{vMX}")
        for i in range(8): A(f"v_cvt_pk_bf16_f32 v{KM+8*et+i}, v{OT(et)+2*i}, v{OT(et)+2*i+1}")
        if et == 2: A(f"s_add_u32 s{s_t0}, s{s_t0}, 4096")
        for ab in range(2):
            A(f"buffer_store_dwordx4 {v(KM+8*et+4*ab,4)}, v{vA16}, {W}, s{s_t0} offen offset:{(et&1)*2048+ab*1024} sc1")
    A("s_waitcnt vmcnt(0)")
    A("s_barrier")
    A("s_cmp_eq_u32 s5, 0")
    A("s_cbranch_scc0 F_AT_NF")
    A(f"s_add_u32 s{s_t0}, s{s_seg}, 1")
    A(f"v_mov_b32 v{vT0}, s{s_t0}")
    A("s_mov_b64 exec, 1")
    A(f"buffer_store_dword v{vT0}, off, {W}, s{s_flag} sc1")
    A("s_mov_b64 exec, -1")
    A.label("F_AT_NF")
    A(f"s_add_u32 s{s_seg}, s{s_seg}, 6")
    A(f"s_cmp_lt_u32 s{s_seg}, 64")
    A("s_cbranch_scc1 F_AT_LOOP")
    stamp(A, opt, 27, vt=(16, 17, 18))
    A("s_branch F_END")
    A.label("F_FAIL")
    A(f"v_mov_b32 v{vT0}, 0x2000")
    A("s_mov_b64 exec, 1")
    A(f"buffer_store_dword v{vT0}, off, {D}, 0 offset:{(DBG_ERR+1)*4} sc1")
    A.label("F_END")
```

```python
import sys, math, struct
from asmlib import *

KNAME = "gated_mix__memory_aug_recurrent_mem_tr__glu_gated_bilinear__prompt_kernel"
MB = 1 << 20
WS_KQ, WS_VO, WS_MM = 0, 32 * MB, 96 * MB
WS_H = 64 * MB
WS_G = 80 * MB
WS_PROG = 80 * MB + 0x10000
WS_KVF = 80 * MB + 0x30000
WS_OFLAG = 80 * MB + 0x20000
WS_P = 81 * MB
WS_ML = 82 * MB
WS_X = 84 * MB
WS_SIZE = 256 * MB
OOB = 0x80000000
SENT = 0x7F817F81
SUSP = 0x7F810000
CSCALE = math.log2(math.e) / math.sqrt(128.0)
def fbits(x): return struct.unpack('<I', struct.pack('<f', x))[0]
KA_X, KA_MEM0, KA_WQ, KA_WK, KA_WV, KA_WO, KA_WG, KA_WU, KA_WD, KA_GW, KA_OUT, KA_DBG, KA_WS = 0, 8, 16, 24, 32, 40, 64, 72, 80, 88, 96, 104, 112
DBG_CHAIN_CNT, DBG_XCC0, DBG_POL, DBG_WBAR, DBG_ERR, DBG_ROT, DBG_KV, DBG_TICKET = 0, 1, 3, 4, 5, 7, 8, 32

S_WS, S_DBG = 8, 12
LDS_BYTES = 163840
NKVB, KVSEG = 16, 4

def srd(A, d, lo, hi, nbytes):
    A(f"s_mov_b32 s{d}, s{lo}")
    A(f"s_and_b32 s{d+1}, s{hi}, 0xffff")
    A(f"s_mov_b32 s{d+2}, {nbytes:#x}")
    A(f"s_mov_b32 s{d+3}, 0x20000")

WS_TS = 90 * MB
def stamp(A, opt, idx, sidx=None, vt=(250, 251, 252), st=(96, 97, 98)):
    if opt.dbgts:
        mp = {20: 8, 1: 9, 3 if sidx is None else -1: 10, 24: 11, 26: 12, 27: 13}
        word = mp.get(idx) if sidx is None else None
        if sidx is not None and idx == 3: word = 14
        if word is None: return
        L = A.newlabel("ST")
        A("s_cmp_eq_u32 s5, 0")
        A(f"s_cbranch_scc0 {L}")
        if sidx is not None:
            A("s_cmp_gt_u32 s6, 1")
            A(f"s_cbranch_scc1 {L}")
        A(f"s_memrealtime s[{st[0]}:{st[1]}]")
        A(f"s_lshl_b32 s{st[2]}, s6, 2" if sidx is not None else f"s_mov_b32 s{st[2]}, 0")
        A("s_waitcnt lgkmcnt(0)")
        A(f"v_mov_b32 v{vt[0]}, s{st[0]}")
        A("s_mov_b64 exec, 1")
        A(f"buffer_atomic_umax v{vt[0]}, off, s[{S_DBG}:{S_DBG+3}], s{st[2]} offset:{word*4} sc1")
        A("s_mov_b64 exec, -1")
        A.label(L)
        return
    if not opt.stamps: return
    L = A.newlabel("ST")
    A("s_cmp_eq_u32 s5, 0")
    A(f"s_cbranch_scc0 {L}")
    A(f"s_memrealtime s[{st[0]}:{st[1]}]")
    A(f"s_memtime s[100:101]")
    A(f"s_lshl_b32 s{st[2]}, s2, 10")
    A(f"s_add_u32 s{st[2]}, s{st[2]}, {WS_TS + idx*8:#x}")
    if sidx is not None:
        A(f"s_lshl_b32 s99, s{sidx[0]}, {sidx[1]}")
        A(f"s_add_u32 s{st[2]}, s{st[2]}, s99")
    A("s_waitcnt lgkmcnt(0)")
    A(f"v_mov_b32 v{vt[0]}, s{st[0]}")
    A(f"v_mov_b32 v{vt[1]}, s100")
    A(f"v_mov_b32 v{vt[2]}, 0")
    A(f"buffer_store_dwordx2 v[{vt[0]}:{vt[1]}], v{vt[2]}, s[{S_WS}:{S_WS+3}], s{st[2]} offen")
    A("s_waitcnt vmcnt(0)")
    A.label(L)

S_POL = 60
S_C = 62
def verify_rot(A, opt, nm, vt, st):
    A(f"s_mov_b32 s{st}, {opt.spin}")
    A.label(f"{nm}_ROTL")
    A(f"buffer_load_dword v{vt}, off, s[{S_DBG}:{S_DBG+3}], 0 offset:{DBG_ROT*4} sc1")
    A("s_waitcnt vmcnt(0)")
    A(f"v_readfirstlane_b32 s{S_C+1}, v{vt}")
    A(f"s_cmp_lg_u32 s{S_C+1}, 0")
    A(f"s_cbranch_scc1 {nm}_ROTD")
    A(f"s_sub_u32 s{st}, s{st}, 1")
    A(f"s_cbranch_scc0 {nm}_ROTL")
    A("s_endpgm")
    A.label(f"{nm}_ROTD")
    A(f"s_cmp_eq_u32 s{S_C+1}, s{S_C}")
    A(f"s_mov_b32 s{S_C}, s{S_C+1}")
    A("s_cbranch_scc0 K_RESTART")
def get_pol(A, opt, nm, vt, st):
    A(f"s_cmp_lg_u32 s{S_POL}, 0")
    A(f"s_cbranch_scc1 {nm}_POLD")
    A(f"s_mov_b32 s{st}, {opt.spin}")
    A.label(f"{nm}_POLL")
    A(f"buffer_load_dword v{vt}, off, s[{S_DBG}:{S_DBG+3}], 0 offset:{DBG_POL*4} sc1")
    A(f"buffer_load_dword v{vt+1}, off, s[{S_DBG}:{S_DBG+3}], 0 offset:{DBG_CHAIN_CNT*4} sc1")
    A(f"buffer_load_dword v{vt+2}, off, s[{S_DBG}:{S_DBG+3}], 0 offset:{DBG_ROT*4} sc1")
    A("s_waitcnt vmcnt(0)")
    A(f"v_readfirstlane_b32 s{S_C+1}, v{vt+2}")
    A(f"s_cmp_eq_u32 s{S_C+1}, 0")
    A(f"s_cbranch_scc1 {nm}_POLN")
    A(f"s_cmp_eq_u32 s{S_C+1}, s{S_C}")
    A(f"s_mov_b32 s{S_C}, s{S_C+1}")
    A("s_cbranch_scc0 K_RESTART")
    A(f"v_readfirstlane_b32 s{S_POL}, v{vt}")
    A(f"v_readfirstlane_b32 s{S_POL+1}, v{vt+1}")
    A(f"s_cmp_ge_u32 s{S_POL+1}, {64 if opt.chain else 0}")
    A(f"s_cselect_b32 s{S_POL}, s{S_POL}, 0")
    A(f"s_cmp_lg_u32 s{S_POL}, 0")
    A(f"s_cbranch_scc1 {nm}_POLD")
    A.label(f"{nm}_POLN")
    A(f"s_sub_u32 s{st}, s{st}, 1")
    A(f"s_cbranch_scc0 {nm}_POLL")
    A("s_endpgm")
    A.label(f"{nm}_POLD")

class Opt:
    tlb = 0; dbgts = 0; steps = 0; stamps = 0; trace = 0; smask = 0; marks = ''; drop = ''; tstep = 40
    workers = True; chain = True; followers = True; gemm = True
    spin = 200000
    cpre = 1; gpre = 0; mmt = 0; mix = 0; snt = 0; stf = 0; ldf = 0; prio = 0; al8 = 0; pad0 = 0; ns2 = 5; eps = 0; nimm = 6; epw = 0; epq = 0; krot = 1; prio0 = 1; wvtop = 1; b0p = 1; lbar = 3; lwr = -1; uni = 0; uf = 8; solo = 0; wve = 0; nfill = 0; e0 = 5; ow64 = 1; kvall = 0; krot0 = 0; pol = -1; force_slow = 0
    lreg = 1; ereg = 1; echk = 2; lfv = 0; rpre = 0; lchk = 2; kxe = 1; rg = 6; mrpos = 0; rdly = 0; lwait = 0; lspec = 3; qb = 3; qw = 3; kw = 4; vearly = 0; fastonly = 0; nocnt = 0; erf = 0; lrf = 0; nwarm = 0; e1 = 1; l1 = 1; ne = 8; vfast = 1; vxg = -1; inl = 1; outf = 0; atsl = 2; opsl = 1; kvn = 0; vr3 = 44; pubg = '12,11,32,34'; qper = 4; ld1 = 10; lgap = 25; lw = 25; lw2 = 8; lnf = 2; rearly = 0
    ed1 = 8; egap = 6; ew = 30; enf = 2
    rlead = 6; kxlate = 4; sgap = 10; inv = 1; ow = 0; kvsame = 0; kmsame = 0; nokm = 0; vr_gap = 44; vr2 = 0; vper = 4; pk = 0; nk = 4; kslot = -1

def gen_gemm(A, opt):
    SX, SW = 16, 20
    s_rb, s_type, s_stride, s_h, s_out, s_sx, s_sw, s_wstep = 24, 25, 26, 27, 28, 29, 30, 31
    s_it, s_t0, s_t1 = 32, 33, 34
    P0, P1 = 36, 38
    s_m0x, s_m0w = 40, 41
    s_wsz, s_j, s_seg = 42, 43, 44
    vXA = [1, 2, 3, 4, 26, 27]
    vWA = [5, 6, 7, 8, 28, 29]
    vDX = [9, 10, 11, 12]
    vDW = [13, 14, 15, 16]
    vL, vT0, vT1, vT2, vOUT, vXB, vDB = 17, 18, 19, 20, 21, 22, 23
    XF = lambda sg, j: 64 + 32 * sg + 4 * j
    WF = lambda sg, i: 80 + 32 * sg + 4 * i
    ACC = lambda i, j: 16 * (4 * i + j)

    A("s_load_dwordx2 s[36:37], s[0:1], %d" % KA_X)
    A("s_waitcnt lgkmcnt(0)")
    srd(A, SX, 36, 37, 2048 * 1280)
    A(f"v_and_b32 v{vL}, 63, v0")
    A(f"v_and_b32 v{vT0}, 31, v{vL}")
    A(f"v_lshrrev_b32 v{vT1}, 5, v{vL}")
    A(f"v_bfe_u32 v{vT2}, v{vL}, 2, 2")
    A(f"v_xor_b32 v{vT1}, v{vT1}, v{vT2}")
    A(f"v_lshlrev_b32 v{vT1}, 4, v{vT1}")
    A(f"v_lshl_add_u32 v{vXB}, v{vT0}, 6, v{vT1}")
    A(f"v_lshrrev_b32 v{vT0}, 5, v{vL}")
    A(f"v_bfe_u32 v{vT1}, v{vL}, 2, 2")
    A(f"v_lshl_add_u32 v{vT0}, v{vT0}, 3, v{vT1}")
    A(f"v_lshlrev_b32 v{vT0}, 7, v{vT0}")
    A(f"v_bfe_u32 v{vT1}, v{vL}, 3, 1")
    A(f"v_lshl_add_u32 v{vT0}, v{vT1}, 6, v{vT0}")
    A(f"v_bfe_u32 v{vT1}, v{vL}, 4, 1")
    A(f"v_lshl_add_u32 v{vT0}, v{vT1}, 5, v{vT0}")
    A(f"v_and_b32 v{vT1}, 3, v{vL}")
    A(f"v_lshl_add_u32 v{vT0}, v{vT1}, 3, v{vT0}")
    A(f"s_lshr_b32 s{s_t0}, s5, 1")
    A(f"s_lshl_b32 s{s_t0}, s{s_t0}, 13")
    A(f"v_add_u32 v{vWA[0]}, s{s_t0}, v{vT0}")
    A(f"v_xor_b32 v{vWA[1]}, 64, v{vWA[0]}")
    A(f"v_add_u32 v{vWA[2]}, 0x10000, v{vWA[0]}")
    A(f"v_add_u32 v{vWA[3]}, 0x10000, v{vWA[1]}")
    A(f"v_add_u32 v{vWA[4]}, 0x20000, v{vWA[0]}")
    A(f"v_add_u32 v{vWA[5]}, 0x20000, v{vWA[1]}")
    A(f"v_lshrrev_b32 v{vT0}, 2, v{vL}")
    A(f"v_mul_u32_u24 v{vT0}, 1280, v{vT0}")
    A(f"v_and_b32 v{vT1}, 3, v{vL}")
    A(f"v_lshrrev_b32 v{vT2}, 4, v{vL}")
    A(f"v_xor_b32 v{vT1}, v{vT1}, v{vT2}")
    A(f"v_lshl_add_u32 v{vDX[0]}, v{vT1}, 4, v{vT0}")
    for n in range(1, 4):
        A(f"v_add_u32 v{vDX[n]}, {n*(16*1280-1024)}, v{vDX[0]}")
    A(f"s_lshl_b32 s{s_m0w}, s5, 12")
    A(f"s_add_u32 s{s_m0w}, s{s_m0w}, 16384")
    A(f"v_lshlrev_b32 v{vOUT}, 4, v{vL}")
    A("s_lshl_b32 s7, s3, 5")
    A("s_add_u32 s7, s7, s4")
    A("s_mov_b32 s6, 0")
    s_pn, s_pout, s_pflag, s_pw = 46, 47, 48, 49
    vFLG, vONEI, PK = 24, 25, 128
    A(f"s_mov_b32 s{s_pn}, 0")
    A(f"s_mov_b32 s{s_pflag}, 0")
    A(f"s_mov_b32 s{s_pout}, 0")
    A(f"v_mov_b32 v{vONEI}, 1")
    A(f"v_mov_b32 v{vFLG}, {OOB:#x}")
    def pub_flag(skip):
        A(f"s_cmp_eq_u32 s{s_pflag}, 0")
        A(f"s_cbranch_scc1 {skip}")
        A(f"buffer_store_dword v{vONEI}, v{vFLG}, s[{S_WS}:{S_WS+3}], s{s_pflag} offen sc1")
        A(f"s_mov_b32 s{s_pflag}, 0")
    if opt.gpre:
        A("s_mul_i32 s52, s7, 43691")
        A("s_lshr_b32 s52, s52, 18")
        A("s_mul_i32 s53, s52, 6")
        A("s_sub_u32 s53, s7, s53")
        A("s_sub_u32 s53, s53, 2")
        A("s_cbranch_scc1 G_ROUND")
        A(f"s_load_dwordx4 s[64:67], s[0:1], {KA_WQ}")
        A(f"s_load_dwordx4 s[68:71], s[0:1], {KA_WV}")
        A("s_lshl_b32 s52, s52, 2")
        A("s_add_u32 s52, s52, s53")
        A("s_lshl_b32 s52, s52, 2")
        A("s_add_u32 s52, s52, s5")
        A("s_lshl_b32 s52, s52, 11")
        A(f"v_add_u32 v{vT0}, s52, v{vOUT}")
        A("s_waitcnt lgkmcnt(0)")
        for i, p in enumerate((66, 68, 64, 70)): srd(A, 72 + 4 * i, p, p + 1, 640 * 8192)
        for n in range(5):
            A(f"s_mov_b32 s53, {n*MB}")
            for i in range(opt.gpre):
                for q in range(2):
                    A(f"buffer_load_dwordx4 v[148:151], v{vT0}, s[{72+4*i}:{75+4*i}], s53 offen offset:{q*1024}")

    A.label("G_ROUND")
    A(f"s_mov_b32 s{s_j}, 2")
    A("s_cmp_eq_u32 s6, 1")
    A("s_cbranch_scc1 G_DEC_R1")
    A("s_cmp_eq_u32 s6, 2")
    A("s_cbranch_scc1 G_DEC_R2")
    A(f"s_mov_b32 s{s_j}, 1")
    A("s_cmp_eq_u32 s6, 3")
    A("s_cbranch_scc1 G_DEC_R3")
    A(f"s_mul_i32 s{s_h}, s7, 43691")
    A(f"s_lshr_b32 s{s_h}, s{s_h}, 18")
    A(f"s_mul_i32 s{s_t0}, s{s_h}, 6")
    A(f"s_sub_u32 s{s_rb}, s7, s{s_t0}")
    A("s_branch G_DEC_KV")
    A.label("G_DEC_R1")
    if opt.mix:
        A(f"s_sub_u32 s{s_t0}, s7, 64")
        A("s_cbranch_scc0 G_DEC_Q")
        A(f"s_lshr_b32 s{s_h}, s7, 1")
        A(f"s_and_b32 s{s_rb}, s7, 1")
        A(f"s_lshl_b32 s{s_rb}, s{s_rb}, 1")
        A(f"s_add_u32 s{s_rb}, s{s_rb}, 6")
        A("s_branch G_DEC_KV")
        A.label("G_DEC_R2")
        A(f"s_sub_u32 s{s_t0}, s7, 96")
        A("s_cbranch_scc0 G_DEC_F4")
        A(f"s_mul_i32 s{s_h}, s7, 43691")
        A(f"s_lshr_b32 s{s_h}, s{s_h}, 17")
        A(f"s_mul_i32 s{s_t0}, s{s_h}, 3")
        A(f"s_sub_u32 s{s_rb}, s7, s{s_t0}")
        A(f"s_lshl_b32 s{s_rb}, s{s_rb}, 1")
        A(f"s_add_u32 s{s_rb}, s{s_rb}, 10")
    else:
        A(f"s_sub_u32 s{s_t0}, s7, 160")
        A("s_cbranch_scc0 G_DEC_Q")
        A(f"s_mul_i32 s{s_h}, s7, 52429")
        A(f"s_lshr_b32 s{s_h}, s{s_h}, 18")
        A(f"s_mul_i32 s{s_t0}, s{s_h}, 5")
        A(f"s_sub_u32 s{s_rb}, s7, s{s_t0}")
        A(f"s_lshl_b32 s{s_rb}, s{s_rb}, 1")
        A(f"s_add_u32 s{s_rb}, s{s_rb}, 6")
    A.label("G_DEC_KV")
    A(f"s_load_dwordx2 s[{P0}:{P0+1}], s[0:1], {KA_WK}")
    A(f"s_load_dwordx2 s[{P1}:{P1+1}], s[0:1], {KA_WV}")
    A("s_waitcnt lgkmcnt(0)")
    A("s_cmp_ge_u32 s5, 2")
    A(f"s_cselect_b32 s{P0}, s{P1}, s{P0}")
    A(f"s_cselect_b32 s{P0+1}, s{P1+1}, s{P0+1}")
    A(f"s_cselect_b32 s{s_type}, 1, 0")
    A(f"s_cselect_b32 s{s_out}, {WS_VO:#x}, {WS_KQ:#x}")
    A(f"s_lshl_b32 s{s_sw}, s{s_h}, 8")
    A(f"s_and_b32 s{s_t0}, s5, 1")
    A(f"s_lshl_b32 s{s_t0}, s{s_t0}, 7")
    A(f"s_add_u32 s{s_sw}, s{s_sw}, s{s_t0}")
    A(f"s_lshl_b32 s{s_t0}, s{s_h}, 14")
    A(f"s_add_u32 s{s_out}, s{s_out}, s{s_t0}")
    A("s_branch G_DEC_QKV")
    if not opt.mix:
        A.label("G_DEC_R2")
        A(f"s_sub_u32 s{s_t0}, s7, 96")
        A("s_cbranch_scc0 G_DEC_F4")
        A(f"s_add_u32 s{s_t0}, s7, 32")
    A.label("G_DEC_Q")
    A(f"s_and_b32 s{s_rb}, s{s_t0}, 7")
    A(f"s_lshl_b32 s{s_rb}, s{s_rb}, 1")
    A(f"s_lshr_b32 s{s_h}, s{s_t0}, 3")
    A(f"s_load_dwordx2 s[{P0}:{P0+1}], s[0:1], {KA_WQ}")
    A("s_waitcnt lgkmcnt(0)")
    A(f"s_mov_b32 s{s_type}, 2")
    A(f"s_lshl_b32 s{s_sw}, s{s_h}, 9")
    A(f"s_lshl_b32 s{s_t0}, s5, 7")
    A(f"s_add_u32 s{s_sw}, s{s_sw}, s{s_t0}")
    A(f"s_lshl_b32 s{s_t0}, s{s_h}, 1")
    A(f"s_lshr_b32 s{s_t1}, s5, 1")
    A(f"s_add_u32 s{s_t0}, s{s_t0}, s{s_t1}")
    A(f"s_lshl_b32 s{s_t0}, s{s_t0}, 14")
    A(f"s_add_u32 s{s_out}, s{s_t0}, {WS_KQ + 8192:#x}")
    A.label("G_DEC_QKV")
    A(f"s_mov_b32 s{s_stride}, 8192")
    A(f"s_mov_b32 s{s_wsz}, {640*8192}")
    A(f"s_mov_b32 s{s_it}, {32*16384}")
    A("s_branch G_DEC_DONE")
    A.label("G_DEC_R3")
    A(f"s_sub_u32 s{s_t0}, s4, 26")
    A("s_cbranch_scc1 G_END")
    A(f"s_mul_i32 s{s_t1}, s3, 6")
    A(f"s_add_u32 s{s_t0}, s{s_t0}, s{s_t1}")
    A(f"s_cmp_ge_u32 s{s_t0}, 32")
    A("s_cbranch_scc1 G_END")
    A(f"s_and_b32 s{s_rb}, s{s_t0}, 15")
    A(f"s_lshr_b32 s{s_h}, s{s_t0}, 4")
    A(f"s_add_u32 s{s_h}, s{s_h}, 12")
    A("s_branch G_DEC_FFN")
    A.label("G_DEC_F4")
    A(f"s_and_b32 s{s_rb}, s{s_t0}, 7")
    A(f"s_lshl_b32 s{s_rb}, s{s_rb}, 1")
    A(f"s_lshr_b32 s{s_h}, s{s_t0}, 3")
    A.label("G_DEC_FFN")
    A(f"s_load_dwordx2 s[{P0}:{P0+1}], s[0:1], {KA_WG}")
    A(f"s_load_dwordx2 s[{P1}:{P1+1}], s[0:1], {KA_WU}")
    A("s_waitcnt lgkmcnt(0)")
    A(f"s_bitcmp1_b32 s5, 0")
    A(f"s_cselect_b32 s{P0}, s{P1}, s{P0}")
    A(f"s_cselect_b32 s{P0+1}, s{P1+1}, s{P0+1}")
    A(f"s_mov_b32 s{s_type}, 3")
    A(f"s_lshl_b32 s{s_sw}, s{s_h}, 8")
    A(f"s_lshr_b32 s{s_t0}, s5, 1")
    A(f"s_lshl_b32 s{s_t1}, s{s_t0}, 7")
    A(f"s_add_u32 s{s_sw}, s{s_sw}, s{s_t1}")
    A(f"s_lshl_b32 s{s_t0}, s{s_t0}, 1")
    A(f"s_lshl_b32 s{s_t1}, s{s_h}, 2")
    A(f"s_add_u32 s{s_h}, s{s_t0}, s{s_t1}")
    A(f"s_lshl_b32 s{s_out}, s{s_h}, 11")
    A(f"s_add_u32 s{s_out}, s{s_out}, {WS_H:#x}")
    A(f"s_mov_b32 s{s_stride}, 3456")
    A(f"s_mov_b32 s{s_wsz}, {640*3456}")
    A(f"s_mov_b32 s{s_it}, {54*2048}")
    A.label("G_DEC_DONE")
    A(f"s_and_b32 s{s_t1}, s5, 1")
    A(f"s_lshl_b32 s{s_t1}, s{s_t1}, s{s_j}")
    A(f"s_lshl_b32 s{s_seg}, s{s_rb}, 2")
    A(f"s_add_u32 s{s_seg}, s{s_seg}, s{s_t1}")
    A(f"s_mul_i32 s{s_t0}, s{s_seg}, s{s_it}")
    A(f"s_add_u32 s{s_out}, s{s_out}, s{s_t0}")
    A(f"s_lshl_b32 s{s_t1}, s{s_t1}, 11")
    A(f"v_add_u32 v{vXA[0]}, s{s_t1}, v{vXB}")
    A(f"v_xor_b32 v{vXA[1]}, 32, v{vXA[0]}")
    A(f"v_add_u32 v{vXA[2]}, 0x10000, v{vXA[0]}")
    A(f"v_add_u32 v{vXA[3]}, 0x10000, v{vXA[1]}")
    A(f"v_add_u32 v{vXA[4]}, 0x20000, v{vXA[0]}")
    A(f"v_add_u32 v{vXA[5]}, 0x20000, v{vXA[1]}")
    A(f"s_lshl_b32 s{s_t0}, s5, s{s_j}")
    A(f"s_lshl_b32 s{s_m0x}, s{s_t0}, 10")
    A(f"s_mul_i32 s{s_t0}, s{s_t0}, {16*1280}")
    A(f"s_mul_i32 s{s_sx}, s{s_rb}, {128*1280}")
    A(f"s_add_u32 s{s_sx}, s{s_sx}, s{s_t0}")
    A(f"s_mov_b32 s{SW}, s{P0}")
    A(f"s_and_b32 s{SW+1}, s{P0+1}, 0xffff")
    A(f"s_mov_b32 s{SW+2}, s{s_wsz}")
    A(f"s_mov_b32 s{SW+3}, 0x20000")
    A(f"s_lshl_b32 s{s_wstep}, s{s_stride}, 5")
    A(f"v_lshrrev_b32 v{vT0}, 3, v{vL}")
    A(f"v_mul_lo_u32 v{vT0}, v{vT0}, s{s_stride}")
    A(f"v_bfe_u32 v{vT1}, v{vL}, 4, 1")
    A(f"v_lshlrev_b32 v{vT1}, 2, v{vT1}")
    A(f"v_and_b32 v{vT2}, 7, v{vL}")
    A(f"v_xor_b32 v{vT1}, v{vT1}, v{vT2}")
    A(f"v_lshl_add_u32 v{vDW[0]}, v{vT1}, 4, v{vT0}")
    A(f"s_lshl_b32 s{s_t0}, s{s_stride}, 3")
    A(f"s_sub_u32 s{s_t0}, s{s_t0}, 1024")
    for n in range(1, 4):
        A(f"v_add_u32 v{vDW[n]}, s{s_t0}, v{vDW[n-1]}")
    s_wrap = 45
    if opt.krot:
        A(f"s_mul_i32 s{s_t0}, s{s_rb}, 5")
        A(f"s_lshr_b32 s{s_t0}, s{s_t0}, 2")
        A(f"s_mul_i32 s{s_t1}, s{s_rb}, {opt.krot0}")
        A("s_cmp_eq_u32 s6, 0")
        A(f"s_cselect_b32 s{s_t0}, s{s_t1}, s{s_t0}")
        A(f"s_sub_u32 s{s_wrap}, 20, s{s_t0}")
        A(f"s_lshl_b32 s{s_t1}, s{s_t0}, 6")
        A(f"s_add_u32 s{s_sx}, s{s_sx}, s{s_t1}")
        A(f"s_mul_i32 s{s_t1}, s{s_t0}, s{s_wstep}")
        A(f"s_add_u32 s{s_sw}, s{s_sw}, s{s_t1}")
    stamp(A, opt, 0, (6, 5), vt=(30, 31, 32))
    A(f"s_cmp_eq_u32 s{s_j}, 2")
    A("s_cbranch_scc1 G4_START")

    def tile(J):
        G = f"G{J}"
        ND = J + 4
        NS = 4 if J == 4 else opt.ns2
        def dma_list(slot):
            L = [[f"s_add_u32 m0, s{s_m0x}, {slot*32768}"]]
            for n in range(J):
                L.append([f"buffer_load_dwordx4 v{vDX[n]}, s[{SX}:{SX+3}], s{s_sx} offen offset:{n*1024} lds"])
            L.append([f"s_add_u32 m0, s{s_m0w}, {slot*32768}", f"s_add_u32 s{s_sx}, s{s_sx}, 64"])
            for n in range(4):
                L.append([f"buffer_load_dwordx4 v{vDW[n]}, s[{SW}:{SW+3}], s{s_sw} offen offset:{n*1024} lds"])
            L.append([f"s_add_u32 s{s_sw}, s{s_sw}, s{s_wstep}"] + ([
                f"s_sub_u32 s{s_wrap}, s{s_wrap}, 1", f"s_cmp_eq_u32 s{s_wrap}, 0", f"s_cselect_b32 s{s_t0}, 1280, 0", f"s_cselect_b32 s{s_t1}, s{s_wsz}, 0",
                f"s_sub_u32 s{s_sx}, s{s_sx}, s{s_t0}", f"s_sub_u32 s{s_sw}, s{s_sw}, s{s_t1}"] if opt.krot else []))
            return L
        def read_list(slot, ks, sg):
            hi = slot >> 1; base = (slot & 1) * 32768
            L = []
            order = [('x', 0), ('w', 0)] + [('x', j) for j in range(1, J)] + [('w', 1), ('w', 2), ('w', 3)]
            for t, i in order:
                if t == 'x':
                    L.append(f"ds_read_b128 {v(XF(sg,i),4)}, v{vXA[2*hi+ks]} offset:{base + i*2048}")
                else:
                    for m in range(2):
                        L.append(f"ds_read_b64_tr_b16 {v(WF(sg,i)+2*m,2)}, v{vWA[2*hi+(i&1)]} offset:{base + 16384 + (i>>1)*4096 + ks*2048 + m*512}")
            return L
        def mfmas(sg, vtype, first):
            L = []
            for i in range(4):
                for j in range(J):
                    d = a_(ACC(i, j), 16)
                    c = "0" if first else d
                    if vtype: L.append(f"v_mfma_f32_32x32x16_bf16 {d}, {v(XF(sg,j),4)}, {v(WF(sg,i),4)}, {c}")
                    else:     L.append(f"v_mfma_f32_32x32x16_bf16 {d}, {v(WF(sg,i),4)}, {v(XF(sg,j),4)}, {c}")
            return L
        def interleave(ms, fill):
            n = len(ms); k = 0
            for g, m in enumerate(ms):
                A(m)
                per = -(-(len(fill) - k) // (n - g)) if len(fill) > n else (1 if k < len(fill) else 0)
                for _ in range(per):
                    for t in fill[k]: A(t)
                    k += 1
        A.label(f"{G}_START")
        for st in range(NS):
            for g in dma_list(st):
                for t in g: A(t)
        A(f"s_waitcnt vmcnt({(NS-1)*ND})")
        A("s_barrier")
        for t in read_list(0, 0, 0): A(t)
        A(f"s_cmp_eq_u32 s{s_type}, 1")
        A(f"s_cbranch_scc1 {G}_LOOP_V")
        def body(st_slot, vtype, first, dma, vm, last):
            A("s_waitcnt lgkmcnt(0)")
            rl = read_list(st_slot, 1, 1)
            per = 1 if J == 4 else 2
            fl = [rl[k:k+per] for k in range(0, len(rl), per)]
            def dst(ab, wv):
                L = A.newlabel("DS")
                return [f"s_cmp_eq_u32 s{s_pw}, {wv}", f"s_cbranch_scc0 {L}",
                        f"buffer_store_dwordx4 {v(PK+8*st_slot+4*ab,4)}, v{vOUT}, s[{S_WS}:{S_WS+3}], s{s_pout} offen offset:{ab*1024} sc1", f"{L}:"]
            if J == 4 and dma:
                while len(fl) < 16: fl.append([])
                fl[0] = fl[0] + [f"s_cmp_eq_u32 s{s_pn}, 0", f"s_cselect_b32 s{s_pw}, 9, s5"]
                for wv in range(4): fl[1 + 4 * wv] = fl[1 + 4 * wv] + dst(0, wv)
            interleave(mfmas(0, vtype, first), fl)
            if last:
                A("s_waitcnt lgkmcnt(0)")
                A("s_barrier")
                interleave(mfmas(1, vtype, False), [])
                return
            A(f"s_waitcnt vmcnt({vm}) lgkmcnt(0)")
            A("s_barrier")
            rl = read_list((st_slot + 1) % NS, 0, 0)
            per = 2 if J == 4 else 3
            fill = [rl[k:k+per] for k in range(0, len(rl), per)]
            if dma:
                dl = dma_list(st_slot)
                grp = [dl[0] + dl[1]] + dl[2:J+1] + [dl[J+1] + dl[J+2]] + dl[J+3:J+5] + [dl[J+5] + dl[J+6]]
                if J == 2: grp = [grp[0] + grp[1], grp[2], grp[3] + grp[4], grp[5]]
                fill += grp
                if J == 4:
                    while len(fill) < 16: fill.append([])
                    mv = [f"v_mov_b64 {v(PK+32*q+8*st_slot+2*r,2)}, {v(PK+32*(q+1)+8*st_slot+2*r,2)}" for q in range(3) for r in range(4)]
                    for wv in range(4): fill[4 * wv] = fill[4 * wv] + dst(1, wv)
                    for i_, x in enumerate(mv): fill[13 + i_ // 4] = fill[13 + i_ // 4] + [x]
                    fill[15] = fill[15] + [f"s_add_u32 s{s_pout}, s{s_pout}, {2048 if st_slot < 3 else 32*16384 - 6144}"]
            interleave(mfmas(1, vtype, False), fill)
        for vtype in (0, 1):
            nm = f"{G}_LOOP_" + ("V" if vtype else "K")
            A.label(nm)
            body(0, vtype, True, True, (NS - 2) * ND, False)
            A(f"s_mov_b32 s{s_it}, 0")
            A(f"s_branch {nm}_1")
            A.label(f"{nm}_0")
            body(0, vtype, False, True, (NS - 2) * ND, False)
            A.label(f"{nm}_1")
            for sl in range(1, NS): body(sl, vtype, False, True, (NS - 2) * ND, False)
            if J == 4:
                A(f"s_sub_u32 s{s_pn}, s{s_pn}, 1")
                A(f"s_cbranch_scc0 {nm}_2")
                A(f"s_mov_b32 s{s_pn}, 0")
                pub_flag(f"{nm}_2")
                A.label(f"{nm}_2")
            A(f"s_add_u32 s{s_it}, s{s_it}, 1")
            A(f"s_cmp_lt_u32 s{s_it}, {20 // NS - 1}")
            A(f"s_cbranch_scc1 {nm}_0")
            for sl in range(NS): body(sl, vtype, False, False, max(NS - 2 - sl, 0) * ND, sl == NS - 1)
            A("s_branch G_EPI")
    tile(2)
    tile(4)
    A.label("G_EPI")
    pub_flag("G_EPI1")
    A.label("G_EPI1")
    stamp(A, opt, 2, (6, 5), vt=(30, 31, 32))
    A(f"s_cmp_eq_u32 s{s_type}, 3")
    A("s_cbranch_scc1 G_EPI_FFN")
    get_pol(A, opt, "G", vT0, s_it)
    A(f"s_lshr_b32 s{s_t0}, s{s_seg}, 2")
    A(f"s_xor_b32 s{s_t0}, s{s_t0}, s{S_POL}")
    A(f"s_and_b32 s{s_t0}, s{s_t0}, 1")
    A(f"s_lshl_b32 s{s_t0}, s{s_t0}, 13")
    A(f"s_xor_b32 s{s_out}, s{s_out}, s{s_t0}")
    A(f"s_mov_b32 s{s_pout}, s{s_out}")
    A(f"s_lshl_b32 s{s_pn}, 1, s{s_j}")
    A(f"s_cmp_eq_u32 s{s_type}, 2")
    A("s_cbranch_scc1 G_EPI_Q")
    def conv(scale):
        if scale: A(f"s_mov_b32 s{s_t1}, {fbits(CSCALE):#x}")
        k = 0
        for j in range(4):
            if j == 2 and not scale:
                A(f"s_cmp_eq_u32 s{s_j}, 1")
                A("s_cbranch_scc1 G_EPI_CD")
            for i in range(4):
                for ab in range(2):
                    t = 64 + 8 * (k % 4)
                    for r in range(8): A(f"v_accvgpr_read_b32 v{t+r}, a{ACC(i,j)+8*ab+r}")
                    if scale:
                        for r in range(8): A(f"v_mul_f32 v{t+r}, s{s_t1}, v{t+r}")
                    for r in range(4): A(f"v_cvt_pk_bf16_f32 v{PK+4*k+r}, v{t+2*r}, v{t+2*r+1}")
                    k += 1
    if opt.mmt:
        A(f"s_and_b32 s{s_t0}, s{s_out}, {32*MB - 1:#x}")
        A(f"s_mul_i32 s{s_t1}, s{s_type}, 3072")
        A(f"s_add_u32 s{s_t0}, s{s_t0}, s{s_t1}")
        A(f"s_add_u32 s{s_t0}, s{s_t0}, {WS_MM:#x}")
        A(f"v_lshlrev_b32 v{vT0}, 6, v{vL}")
        for j in range(4):
            if j == 2:
                A(f"s_cmp_eq_u32 s{s_j}, 1")
                A("s_cbranch_scc1 G_MMT")
            if opt.mmt == 1: A(f"buffer_load_dword v{vDB}, v{vT0}, s[{S_WS}:{S_WS+3}], s{s_t0} offen nt")
            else:
                for q in range(3): A(f"buffer_store_dwordx4 v[64:67], v{vOUT}, s[{S_WS}:{S_WS+3}], s{s_t0} offen offset:{q*1024} sc1")
            A(f"s_add_u32 s{s_t0}, s{s_t0}, {32*16384}")
        A.label("G_MMT")
    A(f"s_lshl_b32 s{s_pflag}, s{s_h}, 5")
    A(f"s_add_u32 s{s_pflag}, s{s_pflag}, s{s_rb}")
    A(f"s_lshl_b32 s{s_pflag}, s{s_pflag}, 2")
    A(f"s_add_u32 s{s_pflag}, s{s_pflag}, {WS_KVF:#x}")
    A("s_cmp_eq_u32 s5, 0")
    A(f"s_cselect_b32 s{s_pflag}, s{s_pflag}, 0")
    A(f"v_mov_b32 v{vT1}, {OOB:#x}")
    A(f"v_lshlrev_b32 v{vT2}, 2, v{vL}")
    A(f"v_cmp_gt_u32 vcc, s{s_j}, v{vL}")
    A(f"v_cndmask_b32 v{vFLG}, v{vT1}, v{vT2}, vcc")
    conv(False)
    A("s_branch G_EPI_CD")
    A.label("G_EPI_Q")
    conv(True)
    A.label("G_EPI_CD")
    A("s_cmp_eq_u32 s6, 2")
    A("s_cbranch_scc1 G_EPI_NOW")
    A(f"s_lshl_b32 s{s_t0}, s6, 4")
    A(f"s_add_u32 s{s_t0}, s{s_t0}, s{s_rb}")
    A(f"s_cmp_ge_u32 s{s_t0}, {opt.nimm}")
    A("s_cbranch_scc1 G_NEXT")
    A.label("G_EPI_NOW")
    A(f"s_or_b32 vcc_lo, s{s_rb}, s6")
    A("s_mov_b32 vcc_hi, 0")
    for j in range(4):
        if j == 2:
            A(f"s_cmp_eq_u32 s{s_j}, 1")
            A("s_cbranch_scc1 G_EPI_ND")
        for i in range(4):
            for ab in range(2):
                A(f"buffer_store_dwordx4 {v(PK+32*j+8*i+4*ab,4)}, v{vOUT}, s[{S_WS}:{S_WS+3}], s{s_pout} offen offset:{ab*1024} sc1{' nt' if opt.snt else ''}")
                L = A.newlabel("EW")
                A(f"s_cbranch_vccz {L}")
                A(f"s_waitcnt vmcnt({opt.epq})")
                if opt.eps: A(f"s_sleep {opt.eps}")
                A.label(L)
            A(f"s_add_u32 s{s_pout}, s{s_pout}, {2048 if i < 3 else 32*16384 - 6144}")
    A.label("G_EPI_ND")
    A(f"s_mov_b32 s{s_pn}, 0")
    A("s_waitcnt vmcnt(0)")
    A("s_barrier")
    pub_flag("G_NEXT")
    A("s_branch G_NEXT")
    A.label("G_EPI_FFN")
    A(f"s_cmp_ge_u32 s{s_h}, 54")
    A("s_cbranch_scc1 G_NEXT")
    k = 0
    for j in range(4):
        if j == 2:
            A(f"s_cmp_eq_u32 s{s_j}, 1")
            A("s_cbranch_scc1 G_NEXT")
        for i in range(2):
            for ab in range(2):
                t = 64 + 20 * (k % 8); k += 1
                for r in range(8): A(f"v_accvgpr_read_b32 v{t+r}, a{ACC(i,j)+8*ab+r}")
                for r in range(8): A(f"v_accvgpr_read_b32 v{t+8+r}, a{ACC(i+2,j)+8*ab+r}")
                for r in range(8): A(f"v_mul_f32 v{t+r}, v{t+r}, v{t+8+r}")
                for r in range(4): A(f"v_cvt_pk_bf16_f32 v{t+16+r}, v{t+2*r}, v{t+2*r+1}")
                A(f"buffer_store_dwordx4 {v(t+16,4)}, v{vOUT}, s[{S_WS}:{S_WS+3}], s{s_out} offen offset:{i*2048+ab*1024} sc1")
                if opt.epw >= 0: A(f"s_waitcnt vmcnt({opt.epq})")
        A(f"s_add_u32 s{s_out}, s{s_out}, {54*2048}")
    A.label("G_NEXT")
    A("s_waitcnt vmcnt(0)")
    stamp(A, opt, 3, (6, 5), vt=(30, 31, 32))
    A("s_add_u32 s6, s6, 1")
    A("s_cmp_lt_u32 s6, 4")
    A("s_cbranch_scc1 G_ROUND")
    A.label("G_END")
    A("s_cmp_ge_u32 s7, 128")
    A("s_cbranch_scc1 G_GATE_END")
    A(f"s_load_dwordx2 s[{P0}:{P0+1}], s[0:1], {KA_GW}")
    A("s_waitcnt lgkmcnt(0)")
    srd(A, SW, P0, P0 + 1, 1280)
    A(f"v_lshrrev_b32 v{vT0}, 4, v0")
    A(f"s_lshl_b32 s{s_t0}, s7, 4")
    A(f"v_add_u32 v{vT0}, s{s_t0}, v{vT0}")
    A(f"v_and_b32 v{vT1}, 15, v0")
    A(f"v_lshlrev_b32 v{vT1}, 4, v{vT1}")
    A(f"v_mul_u32_u24 v{vT2}, 1280, v{vT0}")
    A(f"v_add_u32 v{vT2}, v{vT2}, v{vT1}")
    for c in range(5):
        A(f"buffer_load_dwordx4 {v(64+4*c,4)}, v{vT2}, s[{SX}:{SX+3}], 0 offen offset:{c*256}")
        A(f"buffer_load_dwordx4 {v(96+4*c,4)}, v{vT1}, s[{SW}:{SW+3}], 0 offen offset:{c*256}")
    A("v_mov_b32 v60, 0")
    A("v_mov_b32 v61, 0")
    A("s_waitcnt vmcnt(0)")
    for c in range(20):
        A(f"v_lshlrev_b32 v56, 16, v{64+c}")
        A(f"v_lshlrev_b32 v57, 16, v{96+c}")
        A(f"v_and_b32 v58, 0xffff0000, v{64+c}")
        A(f"v_and_b32 v59, 0xffff0000, v{96+c}")
        A(f"v_fmac_f32 v60, v56, v57")
        A(f"v_fmac_f32 v61, v58, v59")
    A("v_add_f32 v60, v60, v61")
    for ror in (8, 4, 2, 1):
        A(f"v_mov_b32_dpp v61, v60 row_ror:{ror} row_mask:0xf bank_mask:0xf")
        A("v_add_f32 v60, v60, v61")
    A(f"v_mul_f32 v60, {fbits(-math.log2(math.e)):#x}, v60")
    A("v_exp_f32 v60, v60")
    A("v_add_f32 v60, 1.0, v60")
    A("v_rcp_f32 v60, v60")
    A(f"v_lshlrev_b32 v{vT0}, 2, v{vT0}")
    A(f"v_mov_b32 v{vT2}, {OOB:#x}")
    A(f"v_cmp_eq_u32 vcc, 0, v{vT1}")
    A(f"v_cndmask_b32 v{vT0}, v{vT2}, v{vT0}, vcc")
    A(f"s_mov_b32 s{s_t0}, {WS_G:#x}")
    A(f"buffer_store_dword v60, v{vT0}, s[{S_WS}:{S_WS+3}], s{s_t0} offen sc1")
    A.label("G_GATE_END")

def generate(opt):
    A = Asm()
    A("s_cmp_ge_u32 s2, 256")
    A("s_cbranch_scc1 K_EXIT")
    A(f"s_load_dwordx2 s[36:37], s[0:1], {KA_WS}")
    A(f"s_load_dwordx2 s[38:39], s[0:1], {KA_DBG}")
    A("v_lshrrev_b32 v1, 6, v0")
    A("v_readfirstlane_b32 s5, v1")
    A("s_and_b32 s3, s2, 7")
    A("s_lshr_b32 s4, s2, 3")
    A("s_waitcnt lgkmcnt(0)")
    srd(A, S_WS, 36, 37, WS_SIZE)
    srd(A, S_DBG, 38, 39, 256)
    stamp(A, opt, 20)
    if opt.cpre:
        A("s_getpc_b64 s[40:41]")
        A.label("K_PC")
        A("s_lshl_b32 s6, s4, 2")
        A("s_add_u32 s6, s6, s5")
        A("s_lshl_b32 s6, s6, 10")
        A("s_cmp_lt_u32 s6, K_CODE_END - K_PC - 1024")
        A("s_cbranch_scc0 K_NOCP")
        A("v_and_b32 v1, 63, v0")
        A("v_lshlrev_b32 v1, 4, v1")
        A("v_add_u32 v1, s6, v1")
        A("global_load_dwordx4 v[148:151], v1, s[40:41]")
        A.label("K_NOCP")
    A("s_getreg_b32 s6, hwreg(HW_REG_XCC_ID, 0, 3)")
    A(f"s_sub_u32 s{S_C}, s6, s2")
    A(f"s_and_b32 s{S_C}, s{S_C}, 7")
    A(f"s_or_b32 s{S_C}, s{S_C}, 8")
    A("s_or_b32 s6, s2, s5")
    A("s_cmp_eq_u32 s6, 0")
    A("s_cbranch_scc0 K_ROLE")
    A(f"v_mov_b32 v1, s{S_C}")
    A("s_mov_b64 exec, 1")
    A(f"buffer_store_dword v1, off, s[{S_DBG}:{S_DBG+3}], 0 offset:{DBG_ROT*4} sc1")
    A("s_mov_b64 exec, -1")
    A("s_branch K_ROLE")
    A.label("K_RESTART")
    A("s_waitcnt vmcnt(0) lgkmcnt(0)")
    A("s_barrier")
    A("v_mbcnt_lo_u32_b32 v0, -1, 0")
    A("v_mbcnt_hi_u32_b32 v0, -1, v0")
    A("s_lshl_b32 s6, s5, 6")
    A("v_add_u32 v0, s6, v0")
    A.label("K_ROLE")
    A(f"s_add_u32 s3, s2, s{S_C}")
    A("s_and_b32 s3, s3, 7")
    A("s_cmp_lt_u32 s3, 2")
    A("s_cbranch_scc1 K_CHAIN")
    A("s_sub_u32 s3, s3, 2")
    A(f"s_mov_b32 s{S_POL}, {0 if opt.pol < 0 else 2 | opt.pol}")
    if opt.pol < 0:
        A("s_lshl_b32 s6, s3, 5")
        A("s_add_u32 s6, s6, s4")
        A("s_cmp_eq_u32 s6, 5")
        A("s_cbranch_scc0 K_NOPROBE")
        verify_rot(A, opt, "KP", 1, 64)
        A("s_cmp_eq_u32 s5, 0")
        A("s_cbranch_scc0 K_PROBED")
        A(f"s_mov_b32 s66, {WS_X + 127*16384:#x}")
        A("s_add_u32 s67, s66, 8192")
        A("s_mov_b32 s64, -1")
        A("s_mov_b32 s65, -1")
        A("s_mov_b64 exec, 1")
        A("s_mov_b32 s73, 4")
        A.label("K_PROBE")
        for pl in range(2):
            A("s_memtime s[68:69]")
            A("s_waitcnt lgkmcnt(0)")
            A(f"buffer_store_dword v0, off, s[{S_WS}:{S_WS+3}], s{66+pl} sc1")
            A("s_waitcnt vmcnt(0)")
            A("s_memtime s[70:71]")
            A("s_waitcnt lgkmcnt(0)")
            A("s_sub_u32 s72, s70, s68")
            A(f"s_min_u32 s{64+pl}, s{64+pl}, s72")
        A("s_sub_u32 s73, s73, 1")
        A("s_cbranch_scc0 K_PROBE")
        A("s_cmp_lt_u32 s65, s64")
        A("s_cselect_b32 s72, 3, 2")
        A("v_mov_b32 v1, s72")
        A(f"buffer_store_dword v1, off, s[{S_DBG}:{S_DBG+3}], 0 offset:{DBG_POL*4} sc1")
        A("s_mov_b64 exec, -1")
        A.label("K_PROBED")
        A("s_barrier")
        A.label("K_NOPROBE")
    if opt.gemm: gen_gemm(A, opt)
    if opt.followers:
        from gen_follow import gen_follow
        gen_follow(A, opt)
    A("s_waitcnt vmcnt(0)")
    A("s_endpgm")
    A.label("K_CHAIN")
    if opt.chain:
        from gen_chain import gen_chain
        gen_chain(A, opt)
    A.label("K_EXIT")
    A("s_endpgm")
    A.label("K_CODE_END")
    A.pad()
    if opt.al8:
        names = [x.text for x in A.ins]
        for P in ("CF0", "CF1"):
            if f"{P}_ENTRY:" not in names: continue
            names = [x.text for x in A.ins]
            a, b = names.index(f"{P}_ENTRY:"), names.index(f"{P}_PUB0:")
            A.ins[a:b] = align8(A.ins[a:b], opt.al8)
    hdr = open('gated_mix__memory_aug_recurrent_mem_tr__glu_gated_bilinear__prompt.s.ref').read().split('\n')
    head = [l for l in hdr if l.startswith(';') and '@launch' not in l]
    out = '\n'.join(head) + f"\n; @launch grid=(256,1,1) block=(256,1,1) lds={LDS_BYTES}\n"
    out += f""".amdgcn_target "amdgcn-amd-amdhsa--gfx950"
.text
.globl {KNAME}
.p2align 8
.type {KNAME},@function
{KNAME}:
""" + A.text() + f""".section .rodata,"a"
.p2align 6
.amdhsa_kernel {KNAME}
  .amdhsa_next_free_vgpr 512
  .amdhsa_next_free_sgpr 102
  .amdhsa_accum_offset 256
  .amdhsa_group_segment_fixed_size 0
  .amdhsa_kernarg_size 120
  .amdhsa_user_sgpr_count 2
  .amdhsa_user_sgpr_kernarg_segment_ptr 1
  .amdhsa_system_sgpr_workgroup_id_x 1
.end_amdhsa_kernel
"""
    return out

if __name__ == "__main__":
    opt = Opt()
    outp = sys.argv[1]
    for a in sys.argv[2:]:
        k, val = a.split('=', 1)
        setattr(opt, k, val if k in ('marks', 'drop', 'pubg') else int(val))
    open(outp, 'w').write(generate(opt))
```

```python
import re

def regs_of(tok):
    tok = tok.strip()
    neg = tok.lstrip('-')
    m = re.fullmatch(r'abs\((.*)\)', neg) or re.fullmatch(r'\|(.*)\|', neg)
    if m: neg = m.group(1)
    m = re.fullmatch(r'([vas])(\d+)', neg)
    if m: return [(m.group(1), int(m.group(2)))]
    m = re.fullmatch(r'([vas])\[(\d+):(\d+)\]', neg)
    if m: return [(m.group(1), i) for i in range(int(m.group(2)), int(m.group(3)) + 1)]
    if neg == 'vcc': return [('s', 106), ('s', 107)]
    if neg == 'vcc_lo': return [('s', 106)]
    if neg == 'vcc_hi': return [('s', 107)]
    if neg == 'exec': return [('s', 126), ('s', 127)]
    if neg == 'm0': return [('s', 124)]
    return []

TRANS = ('v_exp_f32', 'v_log_f32', 'v_rcp_f32', 'v_rsq_f32', 'v_sqrt_f32', 'v_sin_f32', 'v_cos_f32')

class Ins:
    __slots__ = ('text', 'op', 'kind', 'wr', 'rd', 'srcC', 'srcAB', 'passes', 'ws', 'dpp', 'stdata', 'lds_dma', 'label')
    def __init__(self, text):
        self.text = text
        self.label = False
        t = text.split(';')[0].strip()
        self.wr = set(); self.rd = set(); self.srcC = set(); self.srcAB = set(); self.stdata = set()
        self.passes = 0; self.ws = 1; self.dpp = False; self.lds_dma = False
        if t.endswith(':') or t.startswith('.') or t == '':
            self.op = ''; self.kind = 'label' if t.endswith(':') else 'none'; self.ws = 0
            return
        parts = t.split(None, 1)
        op = parts[0]; self.op = op
        rest = parts[1] if len(parts) > 1 else ''
        ops = [o.strip() for o in rest.split(',')] if rest else []
        mods = ''
        if ops:
            last = ops[-1].split(None, 1)
            ops[-1] = last[0] if last else ''
            mods = last[1] if len(last) > 1 else ''
        if 'quad_perm' in rest:
            head = rest[:rest.index('quad_perm')]
            ops = [o.strip() for o in head.strip().split(',')]
            mods = rest[rest.index('quad_perm'):]
        R = lambda i: set(regs_of(ops[i])) if i < len(ops) else set()
        if op.startswith('v_mfma') or op.startswith('v_smfmac'):
            self.kind = 'mfma'
            self.wr = R(0); self.srcAB = R(1) | R(2)
            if op.startswith('v_smfmac'):
                self.srcC = R(0); self.srcAB |= R(3)
            else:
                self.srcC = R(3)
            self.rd = self.srcAB | self.srcC
            self.passes = 8 if '32x32' in op else 4
        elif op.startswith('v_'):
            self.kind = 'valu'
            base = op.replace('_e32', '').replace('_e64', '').replace('_dpp', '')
            self.dpp = ('quad_perm' in mods or 'row_' in mods or op.endswith('_dpp'))
            if base.startswith('v_cmp'):
                self.wr = R(0); self.rd = R(1) | R(2)
                if base.startswith('v_cmpx'): self.wr |= set(regs_of('exec'))
            elif base.startswith('v_permlane') and 'swap' in base:
                self.wr = R(0) | R(1); self.rd = R(0) | R(1); self.kind = 'permlane'
            elif base in ('v_readfirstlane_b32', 'v_readlane_b32'):
                self.wr = R(0); self.rd = R(1) | R(2); self.kind = 'readlane'
            elif base in ('v_add_co_u32', 'v_sub_co_u32', 'v_addc_co_u32', 'v_subb_co_u32'):
                self.wr = R(0) | R(1); self.rd = set().union(*[R(i) for i in range(2, len(ops))])
            else:
                self.wr = R(0); self.rd = set().union(*[R(i) for i in range(1, len(ops))]) if len(ops) > 1 else set()
                if base.startswith('v_fmac') or base.startswith('v_pk_fmac') or self.dpp or base == 'v_writelane_b32': self.rd |= R(0)
                if base in TRANS: self.kind = 'trans'
            if op == 'v_nop': self.wr = set(); self.rd = set()
        elif op.startswith('ds_'):
            self.kind = 'ds'
            if op.startswith('ds_read') or op.startswith('ds_bpermute') or op.startswith('ds_swizzle') or op.startswith('ds_permute'):
                self.wr = R(0); self.rd = set().union(*[R(i) for i in range(1, len(ops))])
            else:
                self.rd = set().union(*[R(i) for i in range(len(ops))])
        elif op.startswith('buffer_') or op.startswith('global_'):
            self.kind = 'vmem'
            islds = (' lds' in (' ' + mods)) or '_lds_' in op
            if op.startswith('buffer_wbl2') or op.startswith('buffer_inv'):
                pass
            elif 'load' in op and not islds:
                self.wr = R(0); self.rd = set().union(*[R(i) for i in range(1, len(ops))])
            elif 'load' in op:
                self.lds_dma = True
                self.rd = set().union(*[R(i) for i in range(len(ops))]) | {('s', 124)}
            else:
                self.rd = set().union(*[R(i) for i in range(len(ops))])
                if 'atomic' in op and ('sc0' in mods):
                    self.wr = R(0)
                if op.endswith('x3') or op.endswith('x4'):
                    self.stdata = R(0) if op.startswith('buffer_') else R(1)
        elif op.startswith('s_'):
            self.kind = 'salu'
            if op == 's_nop':
                self.ws = int(ops[0], 0) + 1
            elif op.startswith('s_cmp') or op.startswith('s_cbranch') or op.startswith('s_branch') or op in ('s_barrier', 's_waitcnt', 's_endpgm', 's_sleep', 's_setprio', 's_bitcmp0_b32', 's_bitcmp1_b32'):
                self.rd = set().union(*[R(i) for i in range(len(ops))]) if ops else set()
            else:
                self.wr = R(0); self.rd = set().union(*[R(i) for i in range(1, len(ops))]) if len(ops) > 1 else set()
                if 'saveexec' in op: self.wr |= set(regs_of('exec'))
        else:
            raise ValueError('unknown instruction: ' + text)

VALU_KINDS = ('valu', 'trans', 'permlane', 'readlane')

def need(p, c):
    n = 0
    pv = p.kind in VALU_KINDS
    cv = c.kind in VALU_KINDS
    vw = {r for r in p.wr if r[0] in 'va'}
    sw = {r for r in p.wr if r[0] == 's'}
    if pv:
        if c.kind == 'mfma' and (vw & c.rd): n = max(n, 2)
        if c.kind == 'mfma' and (('s', 126) in sw): n = max(n, 4)
        if c.kind == 'permlane' and (vw & c.rd): n = max(n, 2)
        if c.kind == 'readlane' and (vw & c.rd): n = max(n, 1)
        if cv and c.dpp and (vw & c.rd): n = max(n, 2)
        if cv and c.dpp and (('s', 126) in sw): n = max(n, 5)
        if p.kind == 'trans' and cv and c.kind != 'trans' and (vw & c.rd): n = max(n, 1)
        if p.kind == 'trans' and c.kind == 'trans' and (vw & c.rd): n = max(n, 1)
        if sw:
            if c.kind == 'vmem' and (sw & c.rd): n = max(n, 5)
            if cv and (sw & c.rd): n = max(n, 4 if c.kind == 'readlane' else 2)
            if c.kind == 'salu' and (sw & c.rd): n = max(n, 1)
            if ('s', 126) in sw and c.kind in ('readlane', 'permlane'): n = max(n, 4)
    if p.kind == 'mfma':
        big = 12 if p.passes == 8 else 8
        ovl = 10 if p.passes == 8 else 6
        if c.kind == 'mfma':
            if p.wr & c.srcAB: n = max(n, big)
            if p.wr & (c.srcC | c.wr):
                same = (p.wr == c.srcC and p.op == c.op and c.wr == p.wr)
                if not same: n = max(n, ovl)
        elif cv or c.kind in ('ds', 'vmem'):
            if p.wr & (c.rd | c.wr): n = max(n, big)
            if cv and (p.srcC & c.wr): n = max(n, 7 if p.passes == 8 else 3)
    if p.kind == 'vmem' and p.stdata:
        if (p.stdata & c.wr): n = max(n, 2 if cv else 1)
    if p.kind == 'salu' and ('s', 124) in p.wr and c.kind == 'vmem' and c.lds_dma: n = max(n, 1)
    return n

class Asm:
    def __init__(self):
        self.ins = []
        self.uid = 0
    def __call__(self, text):
        for line in text.split('\n'):
            line = line.strip()
            if line == '' : continue
            if line.startswith(';'):
                self.ins.append(Ins(line.replace(';', ';', 1))); continue
            self.ins.append(Ins(line))
    def label(self, name): self.ins.append(Ins(name + ':'))
    def newlabel(self, p='L'):
        self.uid += 1
        return f'{p}_{self.uid}'
    def pad(self, conservative_labels=True):
        ins = self.ins
        labels = {}
        out = []
        changed = True
        it = 0
        while changed:
            it += 1
            changed = False
            labels = {x.text.split(';')[0].strip()[:-1]: i for i, x in enumerate(ins) if x.kind == 'label'}
            jumps = {}
            for i, x in enumerate(ins):
                if x.kind == 'salu' and (x.op.startswith('s_cbranch') or x.op == 's_branch'):
                    tgt = x.text.split(';')[0].split()[1]
                    jumps.setdefault(labels[tgt], []).append(i)
            def back(i, dist, c, depth):
                miss = 0
                j = i - 1
                while j >= 0 and dist < 20:
                    x = ins[j]
                    if x.kind == 'label':
                        if depth < 3:
                            for src in jumps.get(j, []):
                                miss = max(miss, back(src + 1, dist, c, depth + 1))
                    elif x.kind != 'none':
                        if j != i - 1 or True:
                            if x.op in ('s_branch', 's_endpgm') and not (depth > 0 and j == i - 1):
                                break
                        nn = need(x, c)
                        if nn > dist: miss = max(miss, nn - dist)
                        dist += x.ws
                    j -= 1
                return miss
            out = []
            i = 0
            new = []
            for i, c in enumerate(ins):
                if c.kind not in ('label', 'none'):
                    m = back(i, 0, c, 0)
                    if m > 0:
                        new.append((i, m))
            if new:
                changed = True
                res = []
                last = -100
                todo = dict()
                for i, m in new:
                    if i - last > 24:
                        todo[i] = m; last = i
                for i, c in enumerate(ins):
                    if i in todo:
                        m = todo[i]
                        while m > 0:
                            k = min(m, 16); res.append(Ins(f's_nop {k-1}')); m -= k
                    res.append(c)
                ins = res
            if it > 400: raise RuntimeError('pad did not converge')
        self.ins = ins
    def text(self):
        o = []
        for x in self.ins:
            o.append(x.text if x.kind == 'label' else '    ' + x.text)
        return '\n'.join(o) + '\n'

def v(a, n=1): return f'v{a}' if n == 1 else f'v[{a}:{a+n-1}]'
def a_(a, n=1): return f'a{a}' if n == 1 else f'a[{a}:{a+n-1}]'
def s(a, n=1): return f's{a}' if n == 1 else f's[{a}:{a+n-1}]'
def u(r, n=1):
    assert (r < 256) == (r + n - 1 < 256)
    return v(r, n) if r < 256 else a_(r - 256, n)

def resolve_waits(ins):
    out = []
    lds = []
    vm = []
    def wait_lds(k):
        nonlocal lds
        n = len(lds) - 1 - k
        out.append(Ins(f's_waitcnt lgkmcnt({min(n,15)})'))
        lds = lds[k + 1:] if n <= 15 else lds[len(lds) - 15:]
    for x in ins:
        t = x.text
        if t.startswith('; @WAITVM'):
            tag = t.split()[2]
            idx = [i for i, g in enumerate(vm) if g == tag]
            if idx:
                n = len(vm) - 1 - idx[-1]
                out.append(Ins(f's_waitcnt vmcnt({n})')); vm = vm[idx[-1] + 1:]
            continue
        if t.startswith('; @WAITLDS'):
            idx = [i for i, (d, w) in enumerate(lds) if w]
            if idx: wait_lds(idx[-1])
            continue
        if t.startswith('; @DRAINLDS'):
            out.append(Ins('s_waitcnt lgkmcnt(0)')); lds = []
            continue
        if x.kind not in ('label', 'none'):
            touched = x.rd | x.wr
            idx = [i for i, (d, w) in enumerate(lds) if d & touched]
            if idx: wait_lds(idx[-1])
            if x.op == 's_waitcnt':
                m = re.search(r'lgkmcnt\((\d+)\)', t)
                if m:
                    n = int(m.group(1)); lds = lds[len(lds) - n:] if n < len(lds) else lds
                    if n == 0: lds = []
                m = re.search(r'vmcnt\((\d+)\)', t)
                if m:
                    n = int(m.group(1)); vm = vm[len(vm) - n:] if 0 < n < len(vm) else ([] if n == 0 else vm)
            if x.kind == 'ds': lds.append((set(x.wr), not x.wr))
            if x.kind == 'vmem':
                m = re.search(r'@vm:(\w+)', t)
                vm.append(m.group(1) if m else '-')
        out.append(x)
    return out

import subprocess, tempfile, os
def sizes_of(ins):
    lines = []
    for x in ins:
        if x.kind in ('label', 'none'): continue
        t = x.text.split(';')[0].strip()
        if x.op.startswith('s_cbranch') or x.op == 's_branch': t = x.op + ' 0'
        lines.append(t)
    with tempfile.TemporaryDirectory() as d:
        open(d + '/a.s', 'w').write('\n'.join(lines) + '\n')
        subprocess.run(['clang', '-x', 'assembler', '-target', 'amdgcn-amd-amdhsa', '-mcpu=gfx950', '-c', d + '/a.s', '-o', d + '/a.o'], check=True)
        o = subprocess.run(['llvm-objdump', '-d', '--mcpu=gfx950', d + '/a.o'], capture_output=True, text=True).stdout
    sz = [4 * len(l.split('//')[1].split(':')[1].split()) for l in o.split('\n') if '//' in l]
    assert len(sz) == len(lines), (len(sz), len(lines))
    it = iter(sz)
    return [0 if x.kind in ('label', 'none') else next(it) for x in ins]

WIDEN = ('v_add_f32', 'v_mul_f32', 'v_mov_b32', 'v_mov_b64', 'v_exp_f32', 'v_rcp_f32', 'v_max_i32', 'v_and_b32', 'v_subrev_u32', 'v_cmp_ne_u32', 'v_cmp_le_u32', 'v_xor_b32')
def align8(ins, mode):
    sz = sizes_of(ins)
    out = []; off = 0; cand = None
    for x, n in zip(ins, sz):
        if n == 8 and off % 8 == 4:
            if cand is not None:
                y = out[cand]
                out[cand] = Ins(y.text.replace(y.op, y.op + '_e64', 1)); off += 4
            elif mode == 2:
                out.append(Ins('s_nop 0')); off += 4
        if n == 8: cand = None
        if n == 4 and x.op in WIDEN: cand = len(out)
        out.append(x); off += n
    return out

def make_units(ins):
    units = []
    i = 0
    while i < len(ins):
        x = ins[i]; grp = [x]
        t = x.text
        if t.startswith('; @WAITLDS') or t.startswith('; @DRAINLDS'):
            if i + 1 < len(ins) and ins[i + 1].op == 's_barrier': grp.append(ins[i + 1]); i += 1
        if x.op.startswith('s_cbranch') and i + 1 < len(ins) and ins[i + 1].kind == 'label':
            grp.append(ins[i + 1]); i += 1
        rd = set(); wr = set()
        for y in grp:
            rd |= y.rd; wr |= y.wr
            o = y.op
            if o.startswith('s_') and o not in ('s_nop', 's_barrier', 's_mov_b32', 's_mov_b64', 's_waitcnt', 's_memtime', 's_memrealtime') and not o.startswith('s_cbranch'): wr.add('scc')
            if o.startswith('s_cbranch_scc'): rd.add('scc')
            if o.startswith('s_cbranch_vcc'): rd |= {('s', 106), ('s', 107)}
            if y.kind == 'vmem' or y.text.startswith('; @WAITVM'): rd.add('vmq'); wr.add('vmq')
            if o == 's_barrier': rd.add('bar'); wr.add('bar')
            for m in re.finditer(r'@r:(\S+)', y.text):
                for tok in m.group(1).split(','): rd |= set(regs_of(tok)) or {tok}
            for m in re.finditer(r'@w:(\S+)', y.text):
                for tok in m.group(1).split(','): wr |= set(regs_of(tok)) or {tok}
        units.append((grp, rd, wr))
        i += 1
    return units
def unit_deps(units):
    n = len(units)
    pred = [set() for _ in range(n)]
    for j in range(n):
        for i in range(j):
            if (units[i][2] & (units[j][1] | units[j][2])) or (units[i][1] & units[j][2]): pred[j].add(i)
    return pred
```

```python
from asmlib import *
from gen import *

L_KX = 0
L_ML = 16384
L_MR = 16384 + 8192
L_X  = 30720
L_O  = 34816
L_RES = 40960
RES_STRIDE = 30720
XSL = 64 * 16384

class VM:
    def __init__(self, A): self.A = A; self.q = []
    def issue(self, text, tag): self.A(text); self.q.append(tag)
    def wait(self, tag, extra=""):
        last = max(i for i, t in enumerate(self.q) if t == tag)
        n = len(self.q) - 1 - last
        assert n <= 63
        self.A(f"s_waitcnt vmcnt({n})" + extra)
        self.q = self.q[last + 1:]
    def drain(self, extra=""):
        self.A("s_waitcnt vmcnt(0)" + extra); self.q = []

def gen_chain(A, opt):
    W = f"s[{S_WS}:{S_WS+3}]"
    D = f"s[{S_DBG}:{S_DBG+3}]"
    SW = 16
    s_step, s_t0, s_t1, s_t2, s_spin = 20, 21, 22, 23, 24
    s_xb = 25
    s_mlb, s_mrw, s_mrr = 26, 27, 28
    s_vxw, s_vxr = 29, 30
    s_pb = 31
    s_pw = 32
    s_isred = 33
    s_susp, s_sent, s_kv = 34, 35, 40
    P0 = 36
    s_al, s_ar, s_pcur, s_poth, s_vw, s_vr, s_vpo, s_mlo, s_mro, s_mlp, s_mrp = range(41, 52)
    s_res, s_kxm, s_csc, s_km, s_prog, s_hbit, s_mode = range(52, 59)
    s_valid = 60
    s_c0 = 62
    n = [1]
    def al(k=1, align=1):
        while n[0] % align: n[0] += 1
        r = n[0]; n[0] += k; return r
    vL = 0; vA16 = al()
    vH = al(2, 2)
    gEL = al(); vSPARE = al()
    vSEL = al(4, 2); vONE = al(4, 2); TG = al(4, 2); vSENT = TG
    vA8 = al()
    aRES = al(); aXW = al(); XW = al(2); aKX = al(); aOW = al(); aOR = al(); aMW = al(); aM4 = al()
    gRED = al(); gMO = al(); gKX = al(); gVX = al(); gPR = vL
    vM = al(); vM2 = al(); vIDX = al(); vA4 = al()
    base = al(0, 4)
    AL = [base + 4 * i for i in range(5)]; AR = [base + 20 + 4 * i for i in range(5)]
    ACC = base + 40
    LAND = base + 64
    SP = LAND + 48
    assert SP + 4 <= 152, LAND
    aV = [ACC, ACC + 4]; aQ = [ACC + 8, ACC + 12]; aK = [ACC + 16, ACC + 20]
    wl = [256 + 8 * i for i in range(32)] + [152 + 8 * i for i in range(13)]
    WQ = lambda T, t: wl[(T * 2 + t) * 2]
    WK = lambda T, t: wl[(T * 2 + t) * 2 + 1]
    WO1 = lambda t: wl[40 + t]
    T0, T1, T2, T3 = LAND, LAND + 1, LAND + 2, LAND + 3

    def bf(dst, src, off, wd): A(f"v_bfe_u32 v{dst}, v{src}, {off}, {wd}")
    def lin(dst, terms, const=None):
        first = True
        for (off, wd, sh) in terms:
            if first:
                bf(dst, vL, off, wd)
                if sh: A(f"v_lshlrev_b32 v{dst}, {sh}, v{dst}")
                first = False
            else:
                bf(T3, vL, off, wd)
                A(f"v_lshl_add_u32 v{dst}, v{T3}, {sh}, v{dst}")
        if const is not None: A(f"v_add_u32 v{dst}, {const}, v{dst}")

    stamp(A, opt, 0, vt=(T0, T1, T2))
    A(f"v_and_b32 v{vL}, 63, v0")
    A(f"v_lshlrev_b32 v{vA16}, 4, v{vL}")
    A(f"v_lshlrev_b32 v{vA8}, 3, v{vL}")
    A(f"v_lshlrev_b32 v{vA4}, 2, v{vL}")
    A(f"s_mul_i32 s{s_res}, s5, {RES_STRIDE}")
    A(f"s_add_u32 s{s_res}, s{s_res}, {L_RES}")
    A(f"s_mov_b32 s{s_xb}, {WS_X:#x}")
    vm = VM(A)
    HB = 81920
    dQ = [AL[0], AL[0] + 1]; dO = AL[0] + 2
    aQK = [AL[1], AL[1] + 1]; aWV = [AL[1] + 2, AL[1] + 3]; aT = [AL[2], AL[2] + 1]; aWO = [AL[3] + i for i in range(5)]
    lin(dQ[0], [(5, 1, 16), (4, 1, 13)])
    A(f"v_bfe_u32 v{T0}, v{vL}, 4, 2")
    A(f"v_lshlrev_b32 v{T0}, 1, v{T0}")
    A(f"v_and_b32 v{T1}, 15, v{vL}")
    A(f"v_xor_b32 v{T0}, v{T0}, v{T1}")
    A(f"v_lshl_add_u32 v{dQ[0]}, v{T0}, 4, v{dQ[0]}")
    A(f"v_xor_b32 v{dQ[1]}, 128, v{dQ[0]}")
    lin(T2, [(4, 1, 5), (5, 1, 4), (3, 1, 0)])
    A(f"v_mul_u32_u24 v{dO}, 1280, v{T2}")
    A(f"v_and_b32 v{T1}, 7, v{vL}")
    A(f"v_bfe_u32 v{T0}, v{vL}, 4, 2")
    A(f"v_lshlrev_b32 v{T0}, 1, v{T0}")
    A(f"v_xor_b32 v{T0}, v{T0}, v{T1}")
    A(f"v_lshl_add_u32 v{dO}, v{T0}, 4, v{dO}")
    SQ, SK, SV, SO = 64, 68, 72, 76
    A(f"s_load_dwordx4 s[80:83], s[0:1], {KA_WQ}")
    A(f"s_load_dwordx4 s[84:87], s[0:1], {KA_WV}")
    s_loc, s_rem, s_oa, s_lw = 89, 90, 91, 88
    A(f"s_lshr_b32 s{s_t0}, s5, 1")
    A(f"s_and_b32 s{s_t1}, s5, 1")
    A(f"s_lshl_b32 s{s_t2}, s{s_t0}, 4")
    A(f"s_add_u32 s{s_t2}, s{s_t2}, s{s_t1}")
    A(f"s_lshl_b32 s{s_t2}, s{s_t2}, 14")
    A(f"s_lshl_b32 s{s_rem}, s4, 8")
    A(f"s_add_u32 s{s_t2}, s{s_t2}, s{s_rem}")
    A(f"s_mul_i32 s{s_loc}, s3, {320*8192}")
    A(f"s_sub_u32 s{s_rem}, {320*8192}, s{s_loc}")
    A(f"s_add_u32 s{s_loc}, s{s_loc}, s{s_t2}")
    A(f"s_add_u32 s{s_rem}, s{s_rem}, s{s_t2}")
    A(f"s_lshl_b32 s{s_t0}, s{s_t0}, 2")
    A(f"s_add_u32 s{s_t0}, s{s_t0}, s{s_t1}")
    A(f"s_mul_i32 s{s_t0}, s{s_t0}, {2*1280}")
    A(f"s_mul_i32 s{s_oa}, s4, {128*1280}")
    A(f"s_add_u32 s{s_oa}, s{s_oa}, s{s_t0}")
    A(f"s_mul_i32 s{s_t0}, s3, 640")
    A(f"s_add_u32 s{s_oa}, s{s_oa}, s{s_t0}")
    A(f"s_lshl_b32 s{s_lw}, s5, 12")
    A("s_waitcnt lgkmcnt(0)")
    srd(A, SQ, 80, 81, 640 * 8192); srd(A, SK, 82, 83, 640 * 8192); srd(A, SV, 84, 85, 640 * 8192); srd(A, SO, 86, 87, 4096 * 1280)
    def dma_batch(kind, half, tag):
        if kind == 'o':
            A(f"s_lshr_b32 s{s_t1}, s{s_lw}, 1")
            for kap in range(2):
                for j in range(5):
                    for gh in range(2):
                        A(f"s_add_u32 m0, s{s_t1}, {half*HB + kap*40960 + j*8192 + gh*1024}")
                        A(f"s_add_u32 s{s_t0}, s{s_oa}, {(64*kap + 4*gh)*1280 + j*128}")
                        vm.issue(f"buffer_load_dwordx4 v{dO}, s[{SO}:{SO+3}], s{s_t0} offen lds", tag)
            return
        srdn, sb = kind
        for t in range(5):
            for i in range(4):
                A(f"s_add_u32 m0, s{s_lw}, {half*HB + t*16384 + i*1024}")
                A(f"s_add_u32 s{s_t0}, s{sb}, {(64*t + 16*(i>>1) + 4*(i&1))*8192}")
                vm.issue(f"buffer_load_dwordx4 v{dQ[i&1]}, s[{srdn}:{srdn+3}], s{s_t0} offen lds", tag)
    batches = [(SQ, s_loc), (SK, s_loc), (SQ, s_rem), (SK, s_rem), 'o', (SV, s_loc)]
    halves = [1, 0, 1, 0, 1, 0]
    dma_batch(batches[0], halves[0], 'b0')
    vm.issue(f"buffer_load_dword v{vM}, off, {D}, 0 offset:{DBG_ROT*4} sc1", 'b0')
    dma_batch(batches[1], halves[1], 'b1')
    A(f"s_lshl_b32 s{s_t0}, s5, 6")
    lin(aWV[0], [(2, 4, 8), (2, 3, 5), (0, 2, 3)])
    A(f"v_xor_b32 v{aWV[0]}, s{s_t0}, v{aWV[0]}")
    A(f"v_xor_b32 v{aWV[1]}, 32, v{aWV[0]}")
    lin(aQK[0], [(2, 4, 8), (2, 3, 5), (0, 1, 4), (1, 1, 3)])
    A(f"v_xor_b32 v{aQK[0]}, s{s_t0}, v{aQK[0]}")
    A(f"v_xor_b32 v{aQK[1]}, 32, v{aQK[0]}")
    lin(T2, [(2, 4, 7), (3, 2, 5), (0, 2, 3)])
    for t in range(5):
        A(f"s_mul_i32 s{s_t0}, s5, 5")
        A(f"s_add_u32 s{s_t0}, s{s_t0}, {t}")
        A(f"s_and_b32 s{s_t1}, s{s_t0}, 3")
        A(f"s_lshl_b32 s{s_t1}, s{s_t1}, 5")
        A(f"v_xor_b32 v{aWO[t]}, s{s_t1}, v{T2}")
        A(f"s_lshr_b32 s{s_t0}, s{s_t0}, 2")
        A(f"s_lshl_b32 s{s_t0}, s{s_t0}, 13")
        A(f"s_add_u32 s{s_t0}, s{s_t0}, {halves[4]*HB}")
        A(f"v_add_u32 v{aWO[t]}, s{s_t0}, v{aWO[t]}")

    A(f"s_mov_b32 s{s_sent}, {SENT:#x}")
    A(f"s_mov_b32 s{s_csc}, {fbits(CSCALE):#x}")
    A(f"s_mov_b32 s{s_valid}, 0x33333333")
    A(f"s_mov_b32 s{s_valid+1}, 0x33333333")
    for i in range(4):
        A(f"v_mov_b32 v{vONE+i}, 0x3f803f80")
        A(f"v_mov_b32 v{vSENT+i}, s{s_sent}")
    A(f"v_mov_b32 v{vH}, 0x3f803f80")
    A(f"v_mov_b32 v{vH+1}, 0")
    A(f"v_mov_b32 v{vIDX}, 0x4444")
    A(f"v_mov_b32 v{T0}, 0xeeee")
    A(f"v_and_b32 v{T1}, 2, v{vL}")
    A(f"v_cmp_ne_u32 vcc, 0, v{T1}")
    A(f"v_cndmask_b32 v{vIDX}, v{vIDX}, v{T0}, vcc")
    A(f"v_and_b32 v{T1}, 15, v{vL}")
    for t in range(4):
        A(f"v_mov_b32 v{vSEL+t}, 0")
        A(f"v_mov_b32 v{T0}, 0x3f80")
        A(f"v_cmp_eq_u32 vcc, {t}, v{T1}")
        A(f"v_cndmask_b32 v{vSEL+t}, v{vSEL+t}, v{T0}, vcc")
        A(f"v_mov_b32 v{T0}, 0x3f800000")
        A(f"v_cmp_eq_u32 vcc, {4+t}, v{T1}")
        A(f"v_cndmask_b32 v{vSEL+t}, v{vSEL+t}, v{T0}, vcc")
    A(f"s_lshl_b32 s{s_t0}, s5, 10")
    A(f"s_add_u32 s{s_t0}, s{s_t0}, {L_X}")
    lin(aXW, [(2, 1, 9), (3, 1, 7), (0, 2, 5)], f"s{s_t0}")
    A(f"v_bfe_u32 v{T0}, v{vL}, 2, 2")
    A(f"v_bfe_u32 v{T1}, v{vL}, 4, 2")
    A(f"v_xor_b32 v{T0}, v{T0}, v{T1}")
    A(f"v_lshl_add_u32 v{aXW}, v{T0}, 3, v{aXW}")
    A(f"v_add_u32 v{aRES}, s{s_res}, v{vA16}")
    A(f"v_xor_b32 v{aKX}, 8192, v{vA16}")
    if opt.kvn:
        A(f"s_lshl_b32 s{s_t0}, s5, 11")
        A(f"v_add_u32 v{aKX}, s{s_t0}, v{aKX}")
    A(f"s_lshr_b32 s{s_t0}, s5, 1")
    A(f"s_lshl_b32 s{s_t0}, s{s_t0}, 10")
    A(f"s_and_b32 s{s_t1}, s5, 1")
    A(f"s_lshl_b32 s{s_t1}, s{s_t1}, 7")
    A(f"s_add_u32 s{s_t0}, s{s_t0}, s{s_t1}")
    A(f"s_add_u32 s{s_t0}, s{s_t0}, {L_O}")
    lin(aOW, [(4, 2, 8), (2, 2, 5), (0, 1, 4), (1, 1, 11), (1, 1, 3)], f"s{s_t0}")
    lin(aOR, [(4, 2, 8), (2, 2, 5), (0, 1, 4), (1, 1, 7)], L_O)
    A(f"s_lshl_b32 s{s_t0}, s5, 11")
    lin(gKX, [(4, 2, 9), (3, 1, 8), (0, 3, 4)], f"s{s_t0}")
    lin(gVX, [(4, 2, 9), (0, 4, 4)], f"s{s_t0}")
    A(f"s_lshl_b32 s{s_t0}, s5, 10")
    A(f"v_add_u32 v{aMW}, s{s_t0}, v{vA16}")
    A(f"s_lshl_b32 s{s_t0}, s5, 8")
    A(f"s_add_u32 s{s_t0}, s{s_t0}, 4096")
    A(f"v_add_u32 v{aM4}, s{s_t0}, v{vA4}")
    s_src, s_dst, s_col, s_cst, s_csc2, s_row = 92, 93, 94, 95, 96, 97
    A(f"s_lshl_b32 s{s_t0}, s4, 1")
    A(f"s_add_u32 s{s_t0}, s{s_t0}, s5")
    A(f"s_add_u32 s{s_t1}, s4, 64")
    A("s_cmp_ge_u32 s5, 2")
    A(f"s_cselect_b32 s{s_t0}, s{s_t1}, s{s_t0}")
    A(f"s_cmp_lt_u32 s{s_t0}, 80")
    A(f"s_cselect_b32 s{s_isred}, 1, 0")
    A(f"s_cselect_b32 s{s_t0}, s{s_t0}, 0")
    A("s_cmp_eq_u32 s5, 3")
    A(f"s_cselect_b32 s{s_isred}, 0, s{s_isred}")
    A(f"s_lshl_b32 s{s_src}, s{s_t0}, 6")
    A(f"s_mov_b32 s{s_dst}, s{s_src}")
    A(f"s_and_b32 s{s_row}, s{s_t0}, 3")
    A(f"s_lshr_b32 s{s_col}, s{s_t0}, 2")
    A(f"s_lshl_b32 s{s_col}, s{s_col}, 4")
    A(f"s_mov_b32 s{s_cst}, 1")
    A(f"s_mov_b32 s{s_csc2}, 4")
    lin(gRED, [(4, 2, 11), (0, 4, 2)])
    lin(gEL, [(4, 2, 8), (0, 2, 6), (2, 2, 4)])
    A(f"s_lshl_b32 s48, s{s_src}, 5")
    lin(gMO, [(5, 1, 5), (2, 1, 4), (4, 1, 3), (1, 1, 2)], f"s{s_dst}")
    A(f"v_mov_b32 v{T0}, {OOB:#x}")
    A(f"v_and_b32 v{T1}, 9, v{vL}")
    A(f"v_cmp_eq_u32 vcc, 0, v{T1}")
    A(f"v_cndmask_b32 v{gMO}, v{T0}, v{gMO}, vcc")
    A(f"s_cmp_eq_u32 s{s_isred}, 0")
    A("s_cbranch_scc0 C_RED_K")
    A(f"v_mov_b32 v{gMO}, {OOB:#x}")
    A.label("C_RED_K")
    A(f"v_and_b32 v{T0}, 3, v{vL}")
    A(f"v_mul_lo_u32 v{T0}, v{T0}, s{s_cst}")
    A(f"v_lshrrev_b32 v{T1}, 4, v{vL}")
    A(f"v_mul_lo_u32 v{T1}, v{T1}, s{s_csc2}")
    A(f"v_add3_u32 v{T0}, v{T0}, v{T1}, s{s_col}")
    A(f"v_bfe_u32 v{T1}, v{vL}, 2, 1")
    A(f"s_lshl_b32 s{s_t0}, s{s_row}, 1")
    A(f"v_add_u32 v{T1}, s{s_t0}, v{T1}")
    A(f"v_mul_u32_u24 v{T1}, 640, v{T1}")
    A(f"s_mul_i32 s{s_t0}, s3, 320")
    A(f"v_add3_u32 v{T0}, v{T0}, v{T1}, s{s_t0}")
    A(f"v_lshlrev_b32 v{vM2}, 1, v{T0}")
    A(f"s_load_dwordx2 s[{P0}:{P0+1}], s[0:1], {KA_MEM0}")
    A("s_waitcnt lgkmcnt(0)")
    srd(A, SW, P0, P0 + 1, 8 * 1280)
    vm.issue(f"buffer_load_ushort v{vM2}, v{vM2}, s[{SW}:{SW+3}], 0 offen", 'mem0')
    A(f"s_lshl_b32 s{s_t0}, s3, 15")
    A(f"s_add_u32 s{s_mlb}, s{s_t0}, {WS_ML:#x}")
    A(f"s_lshl_b32 s{s_t0}, s3, 14")
    A(f"s_add_u32 s{s_mrw}, s{s_t0}, {32*16384}")
    A(f"s_xor_b32 s{s_mrr}, s{s_mrw}, 0x4000")
    A(f"s_lshl_b32 s{s_vxw}, s4, 14")
    A(f"s_lshl_b32 s{s_t0}, s3, 12")
    A(f"s_add_u32 s{s_vxw}, s{s_vxw}, s{s_t0}")
    A(f"s_lshl_b32 s{s_t0}, s5, 9")
    A(f"s_add_u32 s{s_vxw}, s{s_vxw}, s{s_t0}")
    A(f"s_xor_b32 s{s_vxr}, s{s_vxw}, 0x1000")
    for r in (s_mrw, s_mrr, s_vxw, s_vxr): A(f"s_add_u32 s{r}, s{r}, s{s_xb}")
    A(f"s_mul_i32 s{s_pb}, s3, {2*32*5120}")
    A(f"s_add_u32 s{s_pb}, s{s_pb}, {WS_P:#x}")
    A(f"s_mul_i32 s{s_pw}, s4, 5120")
    A(f"s_mul_i32 s{s_t0}, s5, 1280")
    A(f"s_add_u32 s{s_pw}, s{s_pw}, s{s_t0}")
    A(f"s_lshl_b32 s{s_kv}, s4, 14")
    A(f"s_lshl_b32 s34, s3, 2")
    A(f"s_add_u32 s34, s34, s5")
    A(f"s_lshl_b32 s34, s34, 9")
    A(f"s_add_u32 s34, s34, {WS_MM:#x}")
    A(f"s_xor_b32 s{s_t0}, s5, 3")
    A(f"v_or_b32 v{T1}, s{s_t0}, v{vL}")
    A(f"v_mov_b32 v{T0}, {OOB:#x}")
    A(f"v_cmp_eq_u32 vcc, 0, v{T1}")
    A(f"v_cndmask_b32 v{gPR}, v{T0}, v{vL}, vcc")
    A(f"s_sub_u32 s{s_prog}, s{s_mrw}, s{s_vxw}")
    A(f"s_add_u32 s{s_prog}, s{s_prog}, s{s_dst}")
    A(f"s_lshl_b32 s{s_hbit}, s4, 7")
    A(f"s_add_u32 s{s_hbit}, s{s_hbit}, {WS_KVF:#x}")
    def initial_stores():
        for sl in range(2):
            A(f"s_add_u32 s{s_t0}, s{s_pb}, s{s_pw}")
            if sl: A(f"s_add_u32 s{s_t0}, s{s_t0}, {32*5120}")
            vm.issue(f"buffer_store_dwordx4 {v(vSENT,4)}, v{vA16}, {W}, s{s_t0} offen sc1", 'poi')
            vm.issue(f"buffer_store_dword v{vSENT}, v{vA4}, {W}, s{s_t0} offen offset:1024 sc1", 'poi')
        for sl in range(2):
            for pol in range(2):
                A(f"s_add_u32 s{s_t0}, s{s_vxw}, {sl*XSL + pol*8192}")
                vm.issue(f"buffer_store_dwordx2 {v(vSENT,2)}, v{vA8}, {W}, s{s_t0} offen sc1", 'poi')
        for sl in range(2):
            A(f"s_add_u32 s{s_t0}, s{s_mlb}, {sl*8192}")
            vm.issue(f"buffer_store_dword v{vSENT}, v{gMO}, {W}, s{s_t0} offen sc1", 'poi')
            for pol in range(2):
                A(f"s_add_u32 s{s_t0}, s{s_mrw}, {sl*XSL + pol*8192}")
                vm.issue(f"buffer_store_dword v{vSENT}, v{gMO}, {W}, s{s_t0} offen sc1", 'poi')
        A(f"v_mov_b32 v{T0}, 0")
        for sl in range(2):
            for pol in range(2):
                A(f"s_add_u32 s{s_t0}, s{s_vxw}, {sl*XSL + pol*8192}")
                vm.issue(f"buffer_store_dword v{T0}, v{gPR}, {W}, s{s_t0} offen offset:512 sc1", 'poi')
        A(f"s_or_b32 s{s_t0}, s3, s5")
        A(f"s_cmp_eq_u32 s{s_t0}, 0")
        A(f"s_cselect_b32 s{s_t0}, 64, 0")
        A(f"v_mov_b32 v{T1}, {OOB:#x}")
        A(f"v_cmp_gt_u32 vcc, s{s_t0}, v{vA4}")
        A(f"v_cndmask_b32 v{T1}, v{T1}, v{vA4}, vcc")
        if opt.kvall: A(f"v_mov_b32 v{T0}, 1")
        vm.issue(f"buffer_store_dword v{T0}, v{T1}, {W}, s{s_hbit} offen sc1", 'poi')
        A(f"s_getreg_b32 s{s_t0}, hwreg(HW_REG_XCC_ID, 0, 4)")
        A(f"s_lshl_b32 s{s_t0}, 1, s{s_t0}")
        A(f"v_mov_b32 v{T1}, s{s_t0}")
        A(f"s_lshl_b32 s{s_t1}, s3, 2")
        vm.issue(f"buffer_atomic_or v{T1}, v{gPR}, {D}, s{s_t1} offen offset:{DBG_XCC0*4} sc1", 'poi')


    def panel_reads(ad, half, t, rot, dst):
        if rot:
            A(f"s_xor_b32 s{s_t0}, s5, {t}")
            A(f"s_lshl_b32 s{s_t0}, s{s_t0}, 14")
            A(f"s_add_u32 s{s_t0}, s{s_t0}, {half*HB}")
        else:
            A(f"s_mov_b32 s{s_t0}, {half*HB + t*16384}")
        for tau in range(2): A(f"v_add_u32 v{aT[tau]}, s{s_t0}, v{ad[tau]}")
        for tau in range(2):
            for m in range(4):
                A(f"ds_read_b64_tr_b16 {u(dst(tau)+2*m,2)}, v{aT[tau]} offset:{m*4096}")
    WO0T = AR[0]
    for bi in range(5):
        vm.wait(f'b{bi}')
        if bi == 0:
            A(f"v_readfirstlane_b32 s{s_t0}, v{vM}")
            A(f"s_cmp_eq_u32 s{s_t0}, s{S_C}")
            A("s_cbranch_scc1 C_ROTOK")
            verify_rot(A, opt, "C", vM, s_t0)
            A.label("C_ROTOK")
            initial_stores()
        A("s_barrier")
        if bi == 2:
            A(f"v_mov_b32 v{T0}, 1")
            vm.issue(f"buffer_atomic_add v{T0}, v{gPR}, {D}, 0 offen offset:{DBG_CHAIN_CNT*4} sc1", 'arr')
        if bi < 4:
            Wd = WQ if bi % 2 == 0 else WK
            for t in range(5):
                T = t + 5 * (bi // 2)
                panel_reads(aQK, halves[bi], t, bi < 2 and t < 4, lambda tau: Wd(T, tau))
        else:
            for kap in range(2):
                for t in range(5):
                    for m in range(4):
                        d = (WO1(t) if kap else WO0T + 8 * t) + 2 * m
                        A(f"ds_read_b64_tr_b16 {u(d,2)}, v{aWO[t]} offset:{kap*40960 + m*2048}")
        A("s_waitcnt lgkmcnt(0)")
        if bi + 2 < 6:
            A("s_barrier")
            dma_batch(batches[bi + 2], halves[bi + 2], f'b{bi+2}')
    A(f"buffer_load_dwordx4 {v(SP,4)}, off, {D}, 0 sc1")
    vm.drain()
    A("s_barrier")
    for t in (2, 3, 4): panel_reads(aWV, 0, t, False, lambda tau: LAND + 16 * (t - 2) + 8 * tau)
    A("s_waitcnt lgkmcnt(0)")
    A("s_barrier")
    def wv_put(t, src):
        if t < 4:
            A(f"s_xor_b32 s{s_t0}, s5, {t}")
            A(f"s_lshl_b32 s{s_t0}, s{s_t0}, 12")
        else: A(f"s_mov_b32 s{s_t0}, 16384")
        A(f"v_add_u32 v{aT[0]}, s{s_t0}, v{aRES}")
        for q in range(4): A(f"ds_write_b128 v{aT[0]}, {v(src+4*q,4)} offset:{q*1024}")
    for q in range(10): A(f"ds_write_b128 v{aRES}, {v(WO0T+4*q,4)} offset:{20480 + q*1024}")
    A("s_waitcnt lgkmcnt(0)")
    for t in (0, 1): panel_reads(aWV, 0, t, False, lambda tau: WO0T + 16 * t + 8 * tau)
    for t in (2, 3, 4): wv_put(t, LAND + 16 * (t - 2))
    A("s_waitcnt lgkmcnt(0)")
    for t in (0, 1): wv_put(t, WO0T + 16 * t)
    A("s_waitcnt lgkmcnt(0)")
    stamp(A, opt, 1, vt=(T0, T1, T2))

    def spin_fail(lbl):
        A(f"s_sub_u32 s{s_spin}, s{s_spin}, 1")
        A(f"s_cbranch_scc0 {lbl}")
        A("s_branch C_FAIL")
    s_rdy = 47
    def kv_ready():
        A(f"v_and_b32 v{vM2}, 63, v{vA4}")
        A(f"buffer_load_dword v{vM2}, v{vM2}, {W}, s{s_hbit} offen sc1")
        A("s_waitcnt vmcnt(0)")
        A(f"v_cmp_eq_u32 vcc, 0, v{vM2}")
        A(f"s_or_b32 s{s_rdy}, vcc_lo, {1 << NKVB:#x}")
        A(f"s_ff1_i32_b32 s{s_rdy}, s{s_rdy}")
        A(f"s_mul_i32 s{s_rdy}, s{s_rdy}, {KVSEG}")
        A(f"s_cmp_ge_u32 s{s_rdy}, 64")
        A(f"s_cselect_b32 s{s_rdy}, 255, s{s_rdy}")
    A(f"v_lshlrev_b32 v{vM}, 16, v{vM2}")
    A(f"s_mov_b32 s{s_spin}, {opt.spin}")
    A.label("C_TEAM")
    A(f"v_readfirstlane_b32 s{s_t0}, v{SP}")
    if opt.pol < 0:
        A(f"v_readfirstlane_b32 s{s_t1}, v{SP+3}")
        A(f"s_cmp_lg_u32 s{s_t1}, 0")
        A(f"s_cselect_b32 s{s_t0}, s{s_t0}, 0")
    A(f"s_cmp_ge_u32 s{s_t0}, 64")
    A("s_cbranch_scc1 C_TEAM_OK")
    A("s_sleep 8")
    A(f"buffer_load_dwordx4 {v(SP,4)}, off, {D}, 0 sc1")
    A("s_waitcnt vmcnt(0)")
    spin_fail("C_TEAM")
    A.label("C_TEAM_OK")
    A(f"s_mov_b32 s{s_rdy}, 0")
    A(f"v_readfirstlane_b32 s{s_t0}, v{SP+1}")
    A(f"v_readfirstlane_b32 s{s_t1}, v{SP+2}")
    A(f"v_readfirstlane_b32 s{s_t2}, v{SP+3}")
    A("s_cmp_eq_u32 s3, 0")
    A(f"s_cselect_b32 s{s_t0}, s{s_t0}, s{s_t1}")
    A(f"s_bcnt1_i32_b32 s{s_mode}, s{s_t0}")
    if opt.pol >= 0: A(f"s_mov_b32 s{s_t2}, {opt.pol}")
    A(f"s_and_b32 s{s_t2}, s{s_t2}, 1")
    A(f"s_lshl_b32 s{s_t2}, s{s_t2}, 13")
    for r in (s_mrw, s_mrr, s_vxw, s_vxr, s_kv): A(f"s_add_u32 s{r}, s{r}, s{s_t2}")
    A(f"s_add_u32 s59, s{s_kv}, s34")
    A(f"s_lshl_b32 s{s_kxm}, s5, 11")
    def kv_dma(s_src_, tmp):
        L = []
        for m in range(2):
            L.append([f"s_add_u32 m0, s{s_kxm}, {L_KX + m*1024 - m*128}",
                      f"buffer_load_dwordx4 v{gKX}, {W}, s{s_src_} offen offset:{m*128} sc1 lds"])
        return L
    stamp(A, opt, 2, vt=(T0, T1, T2))
    s_tag, s_tagn, s_dm4, s_dm1, s_lo, s_rng = 41, 42, 43, 44, 45, 46
    s_pcur, s_pc2, s_pst, s_vw, s_vr, s_mlo, s_mro, s_ar = range(64, 72)
    XO_ = {r: (r + 8 if r < 70 else r - 22) for r in range(64, 72)}
    s_cp = 50
    ST0 = 78
    s_w3 = 39
    A("s_cmp_eq_u32 s5, 3")
    A(f"s_cselect_b32 s{s_w3}, 0, {OOB:#x}")
    A(f"v_mov_b32 v{T1}, {OOB:#x}")
    A(f"v_lshlrev_b32 v{T0}, 5, v{vA4}")
    A(f"v_cmp_gt_u32 vcc, 16, v{vA4}")
    A(f"v_cndmask_b32 v{gPR}, v{T1}, v{T0}, vcc")
    A(f"s_cmp_eq_u32 s{s_isred}, 0")
    A(f"s_cselect_b32 s{s_prog}, {OOB:#x}, s{s_prog}")
    A(f"v_writelane_b32 v{gPR}, s{s_prog}, 4")
    A("s_cmp_eq_u32 s5, 3")
    A(f"s_cselect_b32 s{s_prog}, 0, {OOB:#x}")
    A(f"s_or_b32 s{s_prog}, s{s_prog}, 512")
    A(f"v_mov_b32 v{vSPARE}, v{T1}")
    A(f"v_writelane_b32 v{vSPARE}, s{s_prog}, 0")
    A(f"v_and_b32 v{T0}, 0x80, v{vA8}")
    A(f"v_lshrrev_b32 v{T0}, 3, v{T0}")
    A(f"v_xor_b32 v{vA8}, v{vA8}, v{T0}")
    A(f"s_mov_b32 s{s_step}, -1")
    A(f"s_mov_b32 s{s_tagn}, 0")
    A(f"s_mov_b32 s35, 1")
    A(f"s_mov_b32 s{s_cp}, s{s_csc}")
    A(f"s_mov_b32 s{s_cp+1}, s{s_csc}")
    A(f"s_add_u32 s{s_pcur}, s{s_pb}, s48")
    A(f"s_mul_i32 s{s_pst}, s5, {20*2048}")
    A(f"s_lshl_b32 s{s_t0}, s4, 6")
    A(f"s_add_u32 s{s_pst}, s{s_pst}, s{s_t0}")
    A(f"s_add_u32 s{s_pst}, s{s_pst}, s{s_pb}")
    A(f"s_mov_b32 s{s_vw}, s{s_vxw}")
    A(f"s_mov_b32 s{s_vr}, s{s_vxr}")
    A(f"s_mov_b32 s{s_mlo}, s{s_mlb}")
    A(f"s_mov_b32 s{s_mro}, s{s_mrw}")
    A(f"s_mov_b32 s{s_ar}, s{s_mrr}")
    for r, d in ((s_pcur, 32*5120), (s_pst, 32*5120), (s_vw, XSL), (s_vr, XSL), (s_mlo, 8192), (s_mro, XSL), (s_ar, XSL)):
        A(f"s_add_u32 s{XO_[r]}, s{r}, {d}")
        A(f"s_xor_b32 s{XO_[r]}, s{XO_[r]}, s{r}")
    for r in (s_pcur, s_pst, s_vw, s_vr, s_ar):
        A(f"s_xor_b32 s{r}, s{r}, s{XO_[r]}")
    A(f"s_lshl_b32 s{s_dm4}, s5, 10")
    A(f"s_lshl_b32 s{s_dm1}, s5, 8")
    A(f"s_add_u32 s{s_dm1}, s{s_dm1}, 4096")
    A(f"s_mov_b32 s{s_lo}, {(127-64) << 23:#x}")
    A(f"s_mov_b32 s{s_rng}, {128 << 23:#x}")
    if opt.stamps:
        for i in range(10): A(f"s_mov_b32 s{ST0+i}, 0")
        A(f"s_memtime s[90:91]")
        A("s_waitcnt lgkmcnt(0)")
        A(f"s_mov_b32 s{ST0+10}, s90")
    if opt.force_slow: A(f"s_mov_b32 s{s_mode}, 2")
    A("s_cmp_eq_u32 s3, 0")
    A("s_cbranch_scc1 C_GO0")
    A(f"s_cmp_eq_u32 s{s_mode}, 1")
    A("s_cbranch_scc1 CF1_ENTRY")
    A("s_branch CS1_ENTRY")
    A.label("C_GO0")
    A(f"s_cmp_eq_u32 s{s_mode}, 1")
    A("s_cbranch_scc0 CS0_ENTRY")

    def smf(acc, a, b): return f"v_smfmac_f32_16x16x64_bf16 {v(acc,4)}, {v(a,4)}, {u(b,8)}, v{vIDX}"
    tr_names = []
    def stampc(i):
        if opt.trace:
            mark(f"c{i}")
            if i == 5: trace_dump()
            return
        if not (opt.stamps and (opt.smask >> i) & 1): return
        A(f"s_memtime s[90:91]")
        A("s_waitcnt lgkmcnt(0)")
        A(f"s_sub_u32 s91, s90, s{ST0+10}")
        A(f"s_add_u32 s{ST0+i}, s{ST0+i}, s91")
        A(f"s_mov_b32 s{ST0+10}, s90")
    sel = opt.marks.split(',')
    def mark(name):
        if opt.trace and name in sel:
            k = sel.index(name)
            A(f"{'s_memrealtime' if opt.trace == 2 else 's_memtime'} s[{78+2*k}:{79+2*k}]")
    def trace_dump():
        L = A.newlabel("TD")
        A(f"s_cmp_eq_u32 s{s_step}, {opt.tstep}")
        A(f"s_cbranch_scc0 {L}")
        A("s_waitcnt lgkmcnt(0)")
        for k in range(10): A(f"v_mov_b32 v{LAND+k}, s{78+2*k}")
        A(f"s_lshl_b32 s{s_t0}, s2, 2")
        A(f"s_add_u32 s{s_t0}, s{s_t0}, s5")
        A(f"s_lshl_b32 s{s_t0}, s{s_t0}, 6")
        A(f"s_add_u32 s{s_t0}, s{s_t0}, {WS_TS + 2*MB:#x}")
        A("s_mov_b64 exec, 1")
        for k in range(3): A(f"buffer_store_dwordx4 {v(LAND+4*k,4)}, off, {W}, s{s_t0} offset:{16*k}")
        A("s_mov_b64 exec, -1")
        A.label(L)
    def weave(mf, fill, nm=None):
        for t in fill.get(-1, []): A(t)
        for i, m in enumerate(mf):
            A(m)
            if nm: mark(f"{nm}{i}")
            for t in fill.get(i, []): A(t)
    def tagchk(regs, tag):
        r = list(regs); L = []; t = []
        while len(r) >= 2:
            d = TG + len(t); t.append(d)
            L.append(f"v_bitop3_b32 v{d}, v{r[0]}, v{r[1]}, s{tag} bitop3:0x7e"); r = r[2:]
        if r: L.append(f"v_bitop3_b32 v{t[0]}, v{t[0]}, v{r[0]}, s{tag} bitop3:0xf6")
        if len(t) == 4:
            L.append(f"v_or3_b32 v{t[0]}, v{t[0]}, v{t[2]}, v{t[3]}")
        L.append(f"v_bitop3_b32 v{t[0]}, v{t[0]}, v{t[1]}, {0 if opt.solo else 1} bitop3:0xa8")
        L.append(f"v_cmp_ne_u32 vcc, 0, v{t[0]}")
        return L

    def loop(P, sc, gam):
        ld = lambda reg, va, so, off=0: f"buffer_load_dwordx4 {v(reg,4)}, v{va}, {W}, s{so} offen offset:{off} sc1"
        ld1 = lambda reg, va, so: f"buffer_load_dword v{reg}, v{va}, {W}, s{so} offen sc1"
        tog = lambda r: f"s_xor_b32 s{r}, s{r}, s{XO_[r]}"
        tagv = lambda L, t: [x + (f" ; @vm:{t}" if x.startswith('buffer') else "") for x in L]
        WVL = [LAND, LAND + 16, LAND + 32, AR[1], LAND]
        def wv_reads(t): return [f"ds_read_b128 {v(WVL[t]+4*q,4)}, v{aRES} offset:{t*4096 + q*1024}" for q in range(4)]
        s_al, s_vo, s_vxa, s_itag, s_vm = 36, 37, 38, 35, 59
        RQ, RQ4 = AR[0], SP
        r_ld = [ld(RQ, aMW, s_ar), ld1(RQ4, aM4, s_ar),
                f"s_add_u32 m0, s{s_dm4}, {L_MR}", f"buffer_load_dwordx4 v{aMW}, {W}, s{s_ar} offen sc1 lds",
                f"s_add_u32 m0, s{s_dm1}, {L_MR}", f"buffer_load_dword v{aM4}, {W}, s{s_ar} offen sc1 lds"]
        r_regs = [RQ + i for i in range(4)] + [RQ4]
        r_reads = [f"ds_read_b128 {v(AR[j],4)}, v{vA16} offset:{L_MR + j*1024}" for j in range(5)]
        late = []
        warm = f"v_max_i32 v{vM2}, v{vA16}, v{vA8}"
        def filler(lst, n):
            for i in range(n): A(lst.pop(0) if lst else warm)
        def cnt(k, inc):
            if opt.stamps and not opt.trace and not opt.nocnt: A(f"s_add_u32 s{ST0+k}, s{ST0+k}, {inc}")
        sv = lambda t: [smf(aV[0], AL[t], WVL[t]), smf(aV[1], AL[t], WVL[t] + 8)]
        sq = lambda R, t, T: [smf(aQ[0], R[t], WQ(T, 0)), smf(aQ[1], R[t], WQ(T, 1))]
        sk = lambda R, t, T: [smf(aK[0], R[t], WK(T, 0)), smf(aK[1], R[t], WK(T, 1))]
        mr_st = f"buffer_store_dword v{vM}, v{gMO}, {W}, s{s_mro} offen sc1"

        wvall = [x for t in range(4) for x in wv_reads(t)]
        T4 = vM
        l_regs = [AL[0] + i for i in range(4)] + [T4]
        lc = tagchk(l_regs, s_tag)
        s_tnn = 16
        pvv = [f"v_mov_b32 v{AL[0]+i}, s{s_itag}" for i in range(4)] + [f"v_mov_b64 {v(ACC+2*i,2)}, 0" for i in range(12)] + \
              [f"v_xor_b32 v{AL[j]}, {j << 10}, v{aMW}" for j in range(1, 4)] + [warm if opt.kvn else f"v_xor_b32 v{aKX}, 8192, v{aKX}"]
        sal = [f"s_max_i32 s{s_t2}, s{s_step}, 0", f"s_add_u32 s{s_step}, s{s_step}, 1", f"s_add_u32 s{s_t0}, s{s_step}, 1",
               f"s_bfe_u32 s{s_tnn}, s{s_t0}, 0x10001", f"s_mov_b32 s{s_vo}, s{s_vw}", tog(s_vw), tog(s_vr), tog(s_pst), tog(s_ar),
               f"s_add_u32 s{s_vxa}, s{s_kv}, {WS_VO:#x}", f"s_add_u32 s{s_km}, s{s_vm}, {4096 - 2048*gam}", f"s_add_u32 s{s_vm}, s{s_kv}, s34",
               f"s_add_u32 s{s_kv}, s{s_kv}, {0 if opt.kvsame else 32*16384}", f"s_and_b32 s{s_t1}, s{s_t0}, 3\ns_cselect_b32 s{s_t1}, 0, {0 if opt.kvsame else 8192}",
               f"s_xor_b32 s{s_kv}, s{s_kv}, s{s_t1}", (f"s_add_u32 s{s_vxa}, s{s_kv}, {WS_VO:#x}" if opt.kvn else f"s_xor_b32 s{s_kxm}, s{s_kxm}, 8192"), r_ld[2]]
        units = []
        for i in range(16): units.append("\n".join([wvall[i]] + pvv[i*20//16:(i+1)*20//16] + sal[i*len(sal)//16:(i+1)*len(sal)//16]))
        ne = max(opt.ne, 4)
        A(".p2align 6, , 63") if False else None
        A(f"s_branch {P}_ENTRY")
        A(".p2align 6")
        for i in range(opt.pad0): A("s_nop 0")
        A.label(f"{P}_ENTRY")
        A(f"s_cmp_eq_u32 s{s_isred}, 0")
        A(f"s_cbranch_scc0 {P}_PUB0")
        if opt.prio: A(f"s_setprio {opt.prio}")
        A.label(f"{P}_TOPN")
        for x in units[:ne]: A(x)
        filler([], opt.nwarm)
        A("s_barrier")
        A.label(f"{P}_TOP2")
        i0 = len(A.ins)
        mark('tp')
        if opt.steps:
            A("s_memrealtime s[90:91]")
            A("s_memtime s[92:93]")
            A(f"s_lshl_b32 s94, s{s_step}, 3")
            A("s_waitcnt lgkmcnt(0)")
            A(f"v_mov_b32 v{TG}, s90")
            A(f"v_mov_b32 v{TG+1}, s92")
            A(f"v_mov_b32 v{TG+2}, s94")
            A(f"ds_write_b64 v{TG+2}, {v(TG,2)} offset:22528")
        A(f"s_mov_b32 s{s_al}, s{s_mlo}")
        A(f"v_mov_b32 v{T4}, s{s_itag}")
        pv = [f"s_mov_b32 s{s_tag}, s{s_tagn}\ns_mov_b32 s{s_tagn}, s{s_tnn}\ns_xor_b32 s{s_itag}, s{s_tnn}, 1\ns_lshl1_add_u32 s{s_t2}, s{s_t2}, s{s_itag}\n" + warm,
              "\n".join([tog(s_mlo), tog(s_mro), tog(s_pcur), warm])] + units[ne:]
        lf = lambda L: [x.replace(" sc1", ("", " nt", " sc0")[opt.ldf] + " sc1" if opt.ldf != 1 else " nt") for x in L]
        l_ld = lf([ld(AL[0], aMW, s_al), ld1(T4, aM4, s_al)])
        if opt.l1:
            filler(pv, opt.ld1)
            for k in range(opt.lnf):
                if k: filler(pv, opt.lgap)
                for x in l_ld: A(x)
            filler(pv, max(opt.lw, len(pv)))
            A(f"s_cmp_ge_u32 s{s_t0}, s{s_rdy}")
            A(f"s_cbranch_scc1 {P}_KVW")
            A.label(f"{P}_KVB")
            mark('lb')
            A("; @DRAINLDS")
            A.label(f"{P}_LC")
            A(f"s_waitcnt vmcnt({2*(opt.lnf-1)})")
            for c in lc: A(c)
            A(f"ds_write_b128 v{aMW}, {v(AL[0],4)} offset:{L_ML}")
            A(f"s_cbranch_vccnz {P}_LS")
            def l_retry():
                A.label(f"{P}_LS")
                A("s_mov_b64 exec, vcc")
                for t in l_ld: A(t)
                A("s_mov_b64 exec, -1")
                cnt(8, 1)
                filler([], opt.lrf)
                spin_fail(f"{P}_LC")
            late.append(l_retry)
        else:
            filler(pv, opt.ld1)
            for k in range(opt.lnf - 1):
                for x in l_ld: A(x)
                filler(pv, opt.lgap)
            filler(pv, len(pv))
            A(f"s_cmp_ge_u32 s{s_t0}, s{s_rdy}")
            A(f"s_cbranch_scc1 {P}_KVW")
            A.label(f"{P}_KVB")
            A("; @DRAINLDS")
            mark('la')
            A.label(f"{P}_LS")
            for x in tagv(l_ld, 'l'): A(x)
            A("s_mov_b64 exec, -1")
            for k in range(opt.lchk):
                for c in lc: A(c)
                if k == 0:
                    cnt(8, 1)
                    A(f"s_sub_u32 s{s_spin}, s{s_spin}, 1")
                    A("s_cbranch_scc1 C_FAIL")
                filler([], opt.lfv)
                if k < opt.lchk - 1: A(f"s_cbranch_vccz {P}_LOK")
            A("s_mov_b64 exec, vcc")
            A(f"s_cbranch_vccnz {P}_LS")
            A("s_mov_b64 exec, -1")
            A.label(f"{P}_LOK")
            A(f"ds_write_b128 v{aMW}, {v(AL[0],4)} offset:{L_ML}")
        if opt.b0p: A("s_barrier")
        stampc(0)
        A("; @SB")
        an = lambda L, a: [x + ("" if ';' in x else " ;") + " " + a for x in L]
        lr = [f"ds_read_b128 {v(AL[j],4)}, v{AL[j]} offset:{L_ML}" for j in range(1, 4)] + [f"ds_read_b128 {v(AL[4],4)}, v{vA16} offset:{L_ML+4096}"]
        KX, VO, XU, VX = LAND, LAND + 32, LAND + 36, LAND + 40
        XQ = AL[0]; XK = AR[0]; PX = AL[4]; vPM = XU
        kxr = [f"ds_read_b128 {v(KX+8*uu+4*m,4)}, v{vA16 if opt.kvn else aKX} offset:{L_KX+uu*2048+m*1024}" for m in range(2) for uu in range(4)]
        xrd = lambda R: [f"ds_read_b64_tr_b16 {v(R+4*uu+2*m,2)}, v{(vA8, XU + 2)[m]} offset:{L_X + uu*1024 + m*512}" for uu in range(4) for m in range(2)]
        mf = sv(0) + sq(AL, 0, 0) + sk(AL, 0, 0) + sv(1) + sv(2) + sv(3) + sq(AL, 1, 1) + sv(4)
        for t in range(2, 5): mf += sq(AL, t, t)
        for t in range(1, 5): mf += sk(AL, t, t)
        for t in range(5): mf += sq(AR, t, 5 + t)
        for t in range(5): mf += sk(AR, t, 5 + t)
        N = 50
        rl = tagv(r_ld, 'r'); w4 = wv_reads(4)
        lr = an(lr, "@r:ML"); r_reads = an(r_reads, "@r:MR")
        dm = [x for gq_ in kv_dma(s_kv, None) for x in gq_]
        vxl = tagv([f"buffer_load_dwordx4 {v(VX+4*m,4)}, v{gVX}, {W}, s{s_vxa} offen offset:{m*256} sc1" for m in range(2)], 'vx')
        vdm = []
        for m in range(2):
            vdm += [f"s_add_u32 m0, s{s_kxm}, {8192 + m*1024 - m*256}", f"buffer_load_dwordx4 v{gVX}, {W}, s{s_vxa} offen offset:{m*256} sc1 lds"]
        if opt.kvn: vxl = [f"ds_read_b128 {v(VX+4*m,4)}, v{aKX} offset:{m*1024}" for m in range(2)]
        st1 = lambda r, va, so, off=0: f"buffer_store_dword v{r}, v{va}, {W}, s{so} offen offset:{off} sc1"
        add2 = lambda a: [f"v_add_f32 v{a+i}, v{a+i}, v{a+2+i}" for i in range(2)]
        vv = [add2(aV[t]) + [f"v_cvt_pk_bf16_f32 v{VO+2*t}, v{aV[t]}, v{aV[t]+1}", f"v_and_or_b32 v{VO+2*t}, v{VO+2*t}, -2, s{s_tag}"] for t in range(2)]
        rc = tagchk(r_regs, s_tag)
        lV = [f"buffer_load_dword v{VO+1+2*i}, v{vA4}, {W}, s{s_vr} offen offset:{256*i} sc1" for i in range(2)]
        w32 = f"ds_write_b32 v{aM4}, v{T4} offset:{L_ML} ; @w:MLw"
        F = {}
        mvi = f"v_mov_b32 v{SP+2}, s{s_t2}"
        if opt.b0p:
            F.update({0: [w32, rl[0]], 1: [rl[1]], 2: ["; @WAITLDS @r:MLw @w:ML", "s_barrier", lr[0]], 3: [lr[1], rl[3]], 4: [lr[2], rl[4]],
                      5: [lr[3]], 6: [w4[0], rl[5]]})
        else:
            F.update({0: [w32], 2: ["; @WAITLDS", "s_barrier", lr[0]], 3: [lr[1], rl[0]], 4: [lr[2], rl[1]],
                      5: [lr[3]], 6: [w4[0], rl[3]], 8: [rl[4]], 10: [rl[5]]})
        def put(g, L): F.setdefault(g, []).extend(L)
        put(7, [w4[1]]); put(8, [w4[2]]); put(9, [w4[3]]); put(8, [mvi]); put(11, [f"v_xor_b32 v{XU+2}, 8, v{vA8}"])
        put(13, ["; @DRAINLDS"])
        pubs = [st1(XW + gam, vA4, s_km, 256 * gam), st1(SP + 2, vSPARE, s_vo), st1(VO, vA4, s_vm), st1(VO + 2, vA4, s_vm, 256)]
        put(14, ["s_nop 1"]); put(15, [kxr[0], "s_nop 0"]); put(16, [kxr[1], "s_nop 0"])
        if opt.vfast:
            put(17, vv[0]); put(18, [st1(VO, vA4, s_vw)] + vv[1]); put(19, [st1(VO + 2, vA4, s_vw, 256)]); gs = 20
        else:
            put(17, vv[0][0:2]); put(18, vv[0][2:4]); put(19, [st1(VO, vA4, s_vw)] + vv[1][0:2]); put(20, vv[1][2:4])
            put(21, [st1(VO + 2, vA4, s_vw, 256)]); gs = 22
        if opt.kvn:
            put(gs, [kxr[2]]); put(gs + 1, [kxr[3]]); put(gs + 2, [vxl[0]]); put(gs + 3, [vxl[1]])
        elif opt.vxg >= 20:
            put(gs, [kxr[2]]); put(gs + 1, [kxr[3]])
            pubs = pubs + vxl
        elif opt.vxg < 0:
            put(gs, [kxr[2], vxl[0]]); put(gs + 1, [kxr[3], vxl[1]])
            if opt.kxlate == 5: put(gs - 1, [dm[0]]); put(26, [dm[1]])
        else:
            F[opt.vxg].insert(0, vxl[0]) if opt.vxg in F else put(opt.vxg, [vxl[0]])
            F[14] = [vxl[1], "s_nop 0"]
            put(gs, [kxr[2]]); put(gs + 1, [kxr[3]])
        pg = [int(x) for x in opt.pubg.split(',')] + ([opt.vxg, opt.vxg + 2] if opt.vxg >= 20 else [])
        pub_late = list(zip(pg, pubs))
        g = 30 - opt.rlead
        put(g, [f"; @WAITVM r @w:{v(RQ,4)},v{RQ4},{v(AL[0],4)},v{T4}"] + rc[0:2]); put(g + 1, rc[2:5])
        gb_ = g + 3
        put(gb_, [f"s_cbranch_vccnz {P}_RS ; @w:{v(RQ,4)},v{RQ4},{v(TG,4)},m0,vcc,scc,MRw,vmq", f"{P}_ROK:", "s_barrier", r_reads[0]])
        for j in range(1, 5): put(gb_ + j, [r_reads[j]])
        for j in range(4): put(gb_ + 5 + j, [kxr[4 + j]])
        g = gb_ + 9
        if opt.inv:
            put(g, [st1(SP + 2, gPR, s_vo)])
        for i, x in enumerate(tagv(lV, 'v0')): put(max(opt.vr_gap, g + 1) + i, [x])
        for g_, x in pub_late:
            L = F.setdefault(g_, []); k = len(L)
            while k > 0 and L[k-1].startswith('v_'): k -= 1
            L.insert(k, x)
        if opt.kvn:
            for i, x in enumerate(tagv(lV, 'v1')): put(opt.vr3 + i, [x])
        def r_retry():
            A.label(f"{P}_RS")
            cnt(9, 1)
            A("s_mov_b64 exec, vcc")
            for t in r_ld: A(t)
            A("s_mov_b64 exec, -1")
            A("s_waitcnt vmcnt(0)")
            for c in rc: A(c)
            A(f"s_cbranch_vccz {P}_ROK")
            spin_fail(f"{P}_RS")
        late.append(r_retry)
        qd = XU if opt.uni else XW
        mul2 = lambda a: [f"v_mul_f32 v{a+i}, s{s_csc}, v{a+i}" for i in range(2)]
        qq = add2(aQ[0]) + mul2(aQ[0]) + add2(aQ[1]) + mul2(aQ[1]) + [f"v_cvt_pk_bf16_f32 v{qd+t}, v{aQ[t]}, v{aQ[t]+1}" for t in range(2)]
        qwr = f"ds_write2_b32 v{aXW}, v{qd}, v{qd+1} offset0:0 offset1:64 ; @w:XQw"
        for g_ in (38, 39, 40):
            if len(F.get(g_, [])) < 2: put(g_, ["s_nop 1"])
        if opt.uni:
            for i, x in enumerate(qq): put(41 + (i * 7) // 10, [x])
            put(48, [qwr])
        else:
            per = opt.qper
            for i, x in enumerate(qq): put(41 + i // per, [x])
            gw = 41 + (len(qq) - 1) // per
            put(gw, [qwr])
            gb = min(gw + opt.qw, 48)
            xq = an(xrd(XQ), "@r:XQ")
            put(gb, ["; @WAITLDS @r:XQw @w:XQ", "s_barrier"] + xq[0:1])
            k = 1
            for g_ in range(gb + 1, 49): put(g_, xq[k:k+2]); k += 2
            put(49, xq[k:])
        weave(mf, F, 'l')
        stampc(2)
        S0, S1, SM, LL, O0, O1 = ACC + 8, ACC + 12, ACC + 16, ACC + 20, ACC, ACC + 4
        if opt.pk: kk = [f"v_pk_add_f32 {v(aK[t],2)}, {v(aK[t],2)}, {v(aK[t]+2,2)}" for t in range(2)]
        else: kk = [f"v_add_f32 v{aK[i>>1]+(i&1)}, v{aK[i>>1]+(i&1)}, v{aK[i>>1]+2+(i&1)}" for i in range(4)]
        kk += [f"v_cvt_pk_bf16_f32 v{XW+t}, v{aK[t]}, v{aK[t]+1}" for t in range(2)]
        mf = []
        for m, Sx in ((0, S0), (1, S1)):
            for uu in range(4):
                mf.append(f"v_mfma_f32_16x16x32_bf16 {v(Sx,4)}, {v(KX+8*uu+4*m,4)}, {v(XQ+4*uu,4)}, {'0' if uu == 0 else v(Sx,4)}")
        xk = an(xrd(XK), "@r:XK")
        E = [SP, SP + 1, SP + 2, SP + 3]
        vchk = [f"v_bitop3_b32 v{TG}, v{VO+1}, v{VO+3}, s{s_tag} bitop3:0x7e", f"v_and_b32 v{TG}, {0 if opt.solo else 1}, v{TG}", f"v_cmp_ne_u32 vcc, 0, v{TG}"]
        wor = [f"ds_read_b128 {v((LAND+4*q) if q < 8 else (AR[0]+4*(q-8)),4)}, v{aRES} offset:{20480 + q*1024}" for q in range(10)]
        WO0 = lambda t: LAND + 8 * t if t < 4 else AR[0]
        if opt.uni:
            for t in range(2):
                for x in kk[(1 if opt.pk else 2)*t:(1 if opt.pk else 2)*(t+1)]: A(x)
                A(f"v_cvt_pk_bf16_f32 v{XW+t}, v{aK[t]}, v{aK[t]+1}")
            A(f"ds_write2_b32 v{aXW}, v{XW}, v{XW+1} offset0:1 offset1:65")
            for x in tagv(lV, 'v1'): A(x)
            A(f"s_cmp_eq_u32 s{s_step}, 63")
            filler([], opt.uf)
            A("; @WAITLDS")
            A("s_barrier")
            for x in xrd(XQ): A(x)
            A(f"s_cbranch_scc1 C_LAST{gam}")
            mf += [f"v_mfma_f32_16x16x32_bf16 {v(SM,4)}, {v(XQ+4*uu,4)}, {v(XQ+4*uu,4)}, {'0' if uu == 0 else v(SM,4)}" for uu in range(4)]
            fill = {5: ["s_nop 3"], 6: [f"v_exp_f32 v{E[0]}, v{S0}"], 7: [f"v_exp_f32 v{E[1]}, v{S0+1}"], 8: [f"v_exp_f32 v{E[2]}, v{S0+2}"],
                    9: [f"v_exp_f32 v{E[3]}, v{S0+3}", f"v_cvt_pk_bf16_f32 v{PX}, v{E[0]}, v{E[1]}"],
                    10: [f"v_cvt_pk_bf16_f32 v{PX+1}, v{E[2]}, v{E[3]}", f"v_exp_f32 v{E[0]}, v{S1}"],
                    11: [f"v_exp_f32 v{E[i]}, v{S1+i}" for i in range(1, 4)]}
            weave(mf, fill, 's')
        else:
            ks = opt.kslot
            fill = {}
            fill.setdefault(ks, []).extend(kk + [f"ds_write2_b32 v{aXW}, v{XW}, v{XW+1} offset0:1 offset1:65 ; @w:XKw"])
            v1 = tagv(lV, 'v1')
            if opt.kvn:
                al = dm + vdm
                fill.setdefault(-1, []).append(al[0])
                for i in range(3): fill.setdefault(i, []).extend(al[1+2*i:3+2*i])
                fill.setdefault(3, []).append(al[7])
            else:
                fill.setdefault(opt.vr2, []).extend(v1[0:1]); fill.setdefault(opt.vr2 + 1, []).extend(v1[1:2])
            if opt.kxlate == 3:
                fill[opt.vr2 + 1].append(dm[0]); fill.setdefault(opt.vr2 + 2, []).extend(dm[1:3]); fill.setdefault(opt.vr2 + 3, []).append(dm[3])
            kb = min(ks + opt.kw, 7)
            fill.setdefault(kb - 1, []).extend([f"s_cmp_eq_u32 s{s_step}, 63"])
            fill.setdefault(kb, []).extend(["; @WAITLDS @r:XKw @w:XK", "s_barrier"] + xk[0:2] + [f"s_cbranch_scc1 C_LAST{gam} ; @r:{v(XW,2)} @w:vmq,bar"])
            ex0 = [f"v_exp_f32 v{E[i]}, v{S0+i}" for i in range(4)]
            for i in range(2, 8, 2): fill.setdefault(min(kb + i // 2, 7), []).extend(xk[i:i+2])
            for g_ in range(opt.e0, 8): fill.setdefault(g_, []).append(ex0.pop(0))
            weave(mf, fill, 's')
            stampc(3)
            for x in ex0: A(x)
            A(f"v_cvt_pk_bf16_f32 v{PX}, v{E[0]}, v{E[1]}")
            A(f"v_cvt_pk_bf16_f32 v{PX+1}, v{E[2]}, v{E[3]}")
            mf = [f"v_mfma_f32_16x16x32_bf16 {v(SM,4)}, {v(XK+4*uu,4)}, {v(XQ+4*uu,4)}, {'0' if uu == 0 else v(SM,4)}" for uu in range(4)]
            fill = {i: [f"v_exp_f32 v{E[i]}, v{S1+i}"] for i in range(4)}
            if opt.vearly:
                fill[-1] = ["; @WAITVM v0"] + vchk + [dm[0]]
                fill[1] = [f"s_cbranch_vccnz {P}_RV", f"{P}_BV:"] + fill[1]
                fill[2] = [dm[1], dm[2]] + fill[2]
                fill[3] = [dm[3]] + fill[3]
            if opt.kxlate == 4:
                fill[-1] = [dm[0]]; fill[0].insert(0, dm[1]); fill[1].insert(0, dm[2]); fill[2].insert(0, dm[3])
            weave(mf, fill, 'm')
        pvx = [f"v_mfma_f32_16x16x32_bf16 {v(LL,4)}, {v(vONE,4)}, {v(PX,4)}, 0",
               f"v_mfma_f32_16x16x32_bf16 {v(O0,4)}, {v(VX,4)}, {v(PX,4)}, 0",
               f"v_mfma_f32_16x16x32_bf16 {v(O1,4)}, {v(VX+4,4)}, {v(PX,4)}, 0"]
        pvm = [f"v_mfma_f32_16x16x16_bf16 {v(LL,4)}, {v(vH,2)}, {v(vPM,2)}, {v(LL,4)}",
               f"v_mfma_f32_16x16x16_bf16 {v(O0,4)}, {v(VO,2)}, {v(vPM,2)}, {v(O0,4)}",
               f"v_mfma_f32_16x16x16_bf16 {v(O1,4)}, {v(VO+2,2)}, {v(vPM,2)}, {v(O1,4)}"]
        A(f"v_cvt_pk_bf16_f32 v{PX+2}, v{E[0]}, v{E[1]}")
        A(f"v_cvt_pk_bf16_f32 v{PX+3}, v{E[2]}, v{E[3]}")
        if not opt.vearly:
            A(f"; @WAITVM v0 @w:{v(VX,8)},VV")
            A(vchk[0] + " ; @r:VV"); A(vchk[1])
        else: A(wor[0]); A(wor[1])
        A(pvx[0])
        if not opt.vearly: A(vchk[2])
        A(f"v_exp_f32 v{E[0]}, v{SM+2}")
        A(pvx[1])
        A(f"v_exp_f32 v{E[1]}, v{SM+3}")
        A(pvx[2])
        A(f"v_cvt_pk_bf16_f32 v{vPM}, v{E[0]}, v{E[1]}")
        A(f"v_cvt_pk_bf16_f32 v{vPM+1}, v{E[0]}, v{E[1]}")
        A(pvm[0])
        if not opt.vearly:
            A(f"s_cbranch_vccnz {P}_RV ; @w:{v(VO,4)},v{TG},v{vM2},vcc,scc,vmq")
            A.label(f"{P}_BV")
        mark('bv')
        A(pvm[1])
        A(wor[3 if opt.vearly else 0])
        if opt.kxlate in (1, 2): A(dm[0])
        if opt.kxlate == 5: A(dm[2])
        A(pvm[2])
        A(wor[4 if opt.vearly else 1])
        if opt.kxlate == 1: A(dm[1]); A(dm[2])
        if opt.kxlate == 5: A(dm[3])
        mark('pv')
        CA = AL[0]
        zr = [f"v_mov_b64 {v(CA+2*i,2)}, 0" for i in range(10)]
        A(wor[2])
        if opt.kxlate == 1: A(dm[3])
        A(f"v_rcp_f32 v{vM}, v{LL}")
        A(f"v_subrev_u32 v{vM2}, s{s_lo}, v{LL}")
        A(f"v_cmp_le_u32 vcc, s{s_rng}, v{vM2}")
        OW = AR[2]
        def onorm():
            for tau in range(2):
                for i in range(4): A(f"v_mul_f32 v{E[i]}, v{O0+4*tau+i}, v{vM}")
                for i in range(2): A(f"v_cvt_pk_bf16_f32 v{OW+2*tau+i}, v{E[2*i]}, v{E[2*i+1]}")
                if opt.ow64 and tau == 0: A(f"ds_write_b64 v{aOW}, {v(OW,2)} ; @w:Ow")
        onorm()
        A(f"s_and_b64 vcc, vcc, {0 if opt.solo else f's[{s_valid}:{s_valid+1}]'}")
        A(f"s_cbranch_scc1 {P}_FB")
        A.label(f"{P}_BF")
        mark('bf')
        if opt.ow64:
            A(f"ds_write_b64 v{aOW}, {v(OW+2,2)} offset:8 ; @w:Ow")
        else:
            A(f"ds_write_b128 v{aOW}, {v(OW,4)}")
        if opt.kxlate == 2: A(dm[1]); A(dm[2])
        for x in zr[:5]: A(x)
        if opt.kxlate == 2: A(dm[3])
        for x in zr[5:]: A(x)
        A("s_barrier")
        stampc(4)
        OA = ACC + 8
        A(f"ds_read_b128 {v(OA+4,4)}, v{aOR} offset:1024 ; @r:O")
        A(f"ds_read_b128 {v(OA,4)}, v{aOR} ; @r:O")
        for x in (wor[5:6] if opt.vearly else wor[3:6]): A(x)
        filler([], opt.ow)
        PO = AR[2]
        mf = []
        for t in range(5): mf += [smf(CA + 4 * t, OA + 4, WO1(t)), smf(CA + 4 * t, OA, WO0(t))]
        def cepi(t):
            c = CA + 4 * t
            if opt.pk: L = [f"v_pk_add_f32 {v(c,2)}, {v(c,2)}, {v(c+2,2)}"]
            else: L = [f"v_add_f32 v{c}, v{c}, v{c+2}", f"v_add_f32 v{c+1}, v{c+1}, v{c+3}"]
            return L + [f"v_cvt_pk_bf16_f32 v{PO+t}, v{c}, v{c+1}", f"v_and_or_b32 v{PO+t}, v{PO+t}, -2, s{s_tag}",
                        f"buffer_store_dword v{PO+t}, v{gRED}, {W}, s{(s_pst, 17, 18, 19, s_pc2)[t]} offen{sc}"]
        fill = {i: [wor[6 + i], f"s_add_u32 s{(17, 18, 19, s_pc2)[i]}, s{s_pst}, {(i+1)*8192}"] for i in range(4)}
        for t in range(3):
            e = cepi(t)
            fill.setdefault(4 + 2 * t, []).extend(e[:2]); fill.setdefault(5 + 2 * t, []).extend(e[2:-1])
            fill.setdefault(min(6 + 2 * t, 9), []).insert(0 if t < 2 else 99, e[-1])
        weave(mf, fill, 'o')
        for t in (3, 4):
            for x in cepi(t): A(x)
        A("; @SE")
        stampc(5)
        A("; @WAITVM v1")
        A(f"s_cmp_eq_u32 s{s_isred}, 0")
        A(f"s_cbranch_scc1 {P}_TOPN")
        RD = AL[4]
        RS = [AR[0], SP]
        eld = lf([ld(RS[0], gEL if opt.inl else vA16, s_pcur, 0), ld(RS[1], gEL if opt.inl else vA16, s_pcur, 1024)])
        e_regs = [RS[0] + i for i in range(4)] + [RS[1] + i for i in range(4)]
        ec = tagchk(e_regs, s_tag)
        if opt.e1:
            un = list(units[:ne])
            filler(un, opt.ed1)
            for k in range(opt.enf):
                if k: filler(un, opt.egap)
                for t in eld: A(t)
            filler(un, max(opt.ew, len(un)))
            mark('eb')
            A.label(f"{P}_EC")
            A(f"s_waitcnt vmcnt({2*(opt.enf-1)})")
            for c in ec[:4]: A(c)
            A(f"v_mfma_f32_16x16x32_bf16 {v(RD,4)}, {v(RS[0],4)}, {v(vSEL,4)}, 0")
            A(f"v_mfma_f32_16x16x32_bf16 {v(RD,4)}, {v(RS[1],4)}, {v(vSEL,4)}, {v(RD,4)}")
            for c in ec[4:]: A(c)
            def e_retry():
                A.label(f"{P}_ES")
                A("s_mov_b64 exec, vcc")
                for t in eld: A(t)
                A("s_mov_b64 exec, -1")
                cnt(8, 0x10000)
                filler([], opt.erf)
                spin_fail(f"{P}_EC")
            late.append(e_retry)
        else:
            A(f"s_xor_b32 s{s_t1}, s{s_tag}, 1")
            for r in e_regs: A(f"v_mov_b32 v{r}, s{s_t1}")
            un = list(units[:ne])
            filler(un, opt.ed1)
            for k in range(opt.enf - 1):
                for t in eld: A(t)
                filler(un, opt.egap)
            filler(un, len(un))
            mark('ea')
            A.label(f"{P}_ES")
            for t in eld: A(t)
            A("s_mov_b64 exec, -1")
            for k in range(opt.echk):
                for c in ec[:4]: A(c)
                A(f"v_mfma_f32_16x16x32_bf16 {v(RD,4)}, {v(RS[0],4)}, {v(vSEL,4)}, 0")
                A(f"v_mfma_f32_16x16x32_bf16 {v(RD,4)}, {v(RS[1],4)}, {v(vSEL,4)}, {v(RD,4)}")
                for c in ec[4:]: A(c)
                if k == 0:
                    cnt(8, 0x10000)
                    A(f"s_sub_u32 s{s_spin}, s{s_spin}, 1")
                    A("s_cbranch_scc1 C_FAIL")
                if k < opt.echk - 1: A(f"s_cbranch_vccz {P}_EOK")
            A("s_mov_b64 exec, vcc")
            A(f"s_cbranch_vccnz {P}_ES")
            A("s_mov_b64 exec, -1")
            A.label(f"{P}_EOK")
        stampc(6)
        if not opt.inl:
            A(f"v_permlane32_swap_b32 v{RD}, v{RD+2}")
            A(f"v_permlane32_swap_b32 v{RD+1}, v{RD+3}")
        A(f"v_add_f32 v{RD}, v{RD}, v{RD+2}")
        A(f"v_add_f32 v{RD+1}, v{RD+1}, v{RD+3}")
        if not opt.inl: A(f"v_permlane16_swap_b32 v{RD}, v{RD+1}")
        if opt.e1: A(f"s_cbranch_vccnz {P}_ES")
        A(f"v_add_f32 v{vM}, v{RD}, v{RD+1}")
        A.label(f"{P}_PUB")
        A(f"v_mov_b32_dpp v{vM2}, v{vM} quad_perm:[1,1,3,3] row_mask:0xf bank_mask:0xf")
        A(f"v_cvt_pk_bf16_f32 v{vM}, v{vM}, v{vM2}")
        A(f"v_and_or_b32 v{vM}, v{vM}, -2, s{s_tagn}")
        A(f"buffer_store_dword v{vM}, v{gMO}, {W}, s{s_mlo} offen{sc}")
        if opt.mrpos < 0: A(mr_st)
        stampc(7)
        A("s_barrier")
        if opt.mrpos == 0: A(mr_st)
        A(f"s_branch {P}_TOP2")
        tx = [x.text for x in A.ins]
        sb = len(tx) - 1 - tx[::-1].index("; @SB"); se = len(tx) - 1 - tx[::-1].index("; @SE")
        un_ = make_units(A.ins[sb + 1:se])
        opt.units = un_
        if opt.perm:
            assert sorted(opt.perm) == list(range(len(un_)))
            pos = {u_: k for k, u_ in enumerate(opt.perm)}
            for j, ps in enumerate(unit_deps(un_)):
                for i in ps: assert pos[i] < pos[j], (i, j)
            A.ins[sb + 1:se] = [y for u_ in opt.perm for y in un_[u_][0]]
        if opt.drop:
            import re as _re
            A.ins[i0:] = [x for x in A.ins[i0:] if not _re.search(opt.drop.replace('~', ' '), x.text)]
        A.ins[i0:] = resolve_waits(A.ins[i0:])
        A.label(f"{P}_PUB0")
        for x in units[:ne]: A(x)
        A(f"s_branch {P}_PUB")
        for f in late: f()
        A.label(f"{P}_KVW")
        A.label(f"{P}_KVL")
        kv_ready()
        A(f"s_cmp_lt_u32 s{s_t0}, s{s_rdy}")
        A(f"s_cbranch_scc1 {P}_KVD")
        A("s_sleep 1")
        spin_fail(f"{P}_KVL")
        A.label(f"{P}_KVD")
        A(f"s_cmp_eq_u32 s{s_step}, 0")
        A(f"s_cbranch_scc0 {P}_KVB")
        if opt.kvn:
            A(f"s_sub_u32 s{s_kv}, s{s_kv}, {32*16384}")
            A(f"s_sub_u32 s{s_vxa}, s{s_vxa}, {32*16384}")
            for t in dm + vdm: A(t)
            A(f"s_add_u32 s{s_kv}, s{s_kv}, {32*16384}")
            A(f"s_add_u32 s{s_vxa}, s{s_vxa}, {32*16384}")
        else:
            A(f"s_sub_u32 s{s_t1}, s{s_vxa}, {WS_VO:#x}")
            A(f"s_xor_b32 s{s_kxm}, s{s_kxm}, 8192")
            for g_ in kv_dma(s_t1, None):
                for t in g_: A(t)
            A(f"s_xor_b32 s{s_kxm}, s{s_kxm}, 8192")
        A(r_ld[2])
        A("s_waitcnt vmcnt(0)")
        A(f"s_branch {P}_KVB")
        A.label(f"{P}_RV")
        A("s_mov_b64 exec, vcc")
        for x in lV: A(x)
        A("s_mov_b64 exec, -1")
        cnt(9, 0x10000)
        for k in range(2):
            for c in vchk: A(c)
            filler([], 2)
            A(f"s_cbranch_vccz {P}_BV")
        spin_fail(f"{P}_RV")
        A.label(f"{P}_FB")
        sc10 = [S0, S0 + 1, S0 + 2, S0 + 3, S1, S1 + 1, S1 + 2, S1 + 3, SM + 2, SM + 3]
        A(f"v_max3_f32 v{vM}, v{sc10[0]}, v{sc10[1]}, v{sc10[2]}")
        for i in range(3, 9, 2): A(f"v_max3_f32 v{vM}, v{vM}, v{sc10[i]}, v{sc10[i+1]}")
        A(f"v_max_f32 v{vM}, v{vM}, v{sc10[9]}")
        A(f"v_mov_b32 v{vM2}, v{vM}")
        A(f"v_permlane32_swap_b32 v{vM}, v{vM2}")
        A(f"v_max_f32 v{vM}, v{vM}, v{vM2}")
        A(f"v_mov_b32 v{vM2}, v{vM}")
        A(f"v_permlane16_swap_b32 v{vM}, v{vM2}")
        A(f"v_max_f32 v{vM}, v{vM}, v{vM2}")
        for r in sc10: A(f"v_sub_f32 v{r}, v{r}, v{vM}")
        for r in sc10: A(f"v_exp_f32 v{r}, v{r}")
        for i in range(4): A(f"v_cvt_pk_bf16_f32 v{PX+i}, v{sc10[2*i]}, v{sc10[2*i+1]}")
        A(f"v_cvt_pk_bf16_f32 v{vPM}, v{SM+2}, v{SM+3}")
        A(f"v_cvt_pk_bf16_f32 v{vPM+1}, v{SM+2}, v{SM+3}")
        for x in pvx + pvm: A(x)
        A(f"v_rcp_f32 v{vM}, v{LL}")
        onorm()
        A(f"s_branch {P}_BF")

    for gam in range(2):
        loop(f"CF{gam}", ("", " sc0", " nt", " sc0 nt")[opt.stf], gam)
        if opt.fastonly:
            A.label(f"CS{gam}_ENTRY"); A("s_endpgm")
        else: loop(f"CS{gam}", " sc1", gam)
    A.label("C_LAST0")
    A(f"s_add_u32 s{s_km}, s59, 4096")
    A(f"buffer_store_dword v{XW}, v{vA4}, {W}, s{s_km} offen sc1")
    A("s_branch C_LAST")
    A.label("C_LAST1")
    A(f"s_add_u32 s{s_km}, s59, 2048")
    A(f"buffer_store_dword v{XW+1}, v{vA4}, {W}, s{s_km} offen offset:256 sc1")
    A.label("C_LAST")
    A("s_waitcnt vmcnt(0)")
    A("s_barrier")
    A(f"s_or_b32 s{s_t0}, s35, 128")
    A(f"v_mov_b32 v{vM}, s{s_t0}")
    A(f"buffer_store_dword v{vM}, v{vSPARE}, {W}, s37 offen sc1")
    A.label("C_DONE")
    if opt.steps:
        A(f"v_lshlrev_b32 v{T2}, 1, v{vA4}")
        A(f"ds_read_b64 {v(T0,2)}, v{T2} offset:22528")
        A("s_lshl_b32 s90, s2, 9")
        A(f"s_add_u32 s90, s90, {WS_TS + 3*MB:#x}")
        A("s_waitcnt lgkmcnt(0)")
        A(f"buffer_store_dwordx2 {v(T0,2)}, v{T2}, {W}, s90 offen")
        A("s_waitcnt vmcnt(0)")
    stamp(A, opt, 3, vt=(T0, T1, T2))
    if opt.stamps:
        for k in range(12): A(f"v_mov_b32 v{LAND+k}, s{ST0+k}")
        A(f"s_lshl_b32 s90, s2, 2")
        A(f"s_add_u32 s90, s90, s5")
        A(f"s_lshl_b32 s90, s90, 6")
        A(f"s_add_u32 s90, s90, {WS_TS + MB:#x}")
        A("s_mov_b64 exec, 1")
        for k in range(3): A(f"buffer_store_dwordx4 {v(LAND+4*k,4)}, off, {W}, s90 offset:{16*k}")
    A("s_waitcnt vmcnt(0)")
    A("s_endpgm")
    A.label("C_FAIL")
    A(f"v_mov_b32 v{vM}, s{s_step}")
    A(f"v_add_u32 v{vM}, 0x1000, v{vM}")
    A("s_mov_b64 exec, 1")
    A(f"buffer_store_dword v{vM}, off, {D}, 0 offset:{DBG_ERR*4} sc1")
    A("s_waitcnt vmcnt(0)")
    A("s_endpgm")
```

```python
import sys, math, struct
from asmlib import *

KNAME = "gated_mix__memory_aug_recurrent_mem_tr__glu_gated_bilinear__prompt_kernel"
MB = 1 << 20
WS_KQ, WS_VO, WS_MM = 0, 32 * MB, 96 * MB
WS_H = 64 * MB
WS_G = 80 * MB
WS_PROG = 80 * MB + 0x10000
WS_KVF = 80 * MB + 0x30000
WS_OFLAG = 80 * MB + 0x20000
WS_P = 81 * MB
WS_ML = 82 * MB
WS_X = 84 * MB
WS_SIZE = 256 * MB
OOB = 0x80000000
SENT = 0x7F817F81
SUSP = 0x7F810000
CSCALE = math.log2(math.e) / math.sqrt(128.0)
def fbits(x): return struct.unpack('<I', struct.pack('<f', x))[0]
KA_X, KA_MEM0, KA_WQ, KA_WK, KA_WV, KA_WO, KA_WG, KA_WU, KA_WD, KA_GW, KA_OUT, KA_DBG, KA_WS = 0, 8, 16, 24, 32, 40, 64, 72, 80, 88, 96, 104, 112
DBG_CHAIN_CNT, DBG_XCC0, DBG_POL, DBG_WBAR, DBG_ERR, DBG_ROT, DBG_KV, DBG_TICKET = 0, 1, 3, 4, 5, 7, 8, 32

S_WS, S_DBG = 8, 12
LDS_BYTES = 163840
NKVB, KVSEG = 16, 4

def srd(A, d, lo, hi, nbytes):
    A(f"s_mov_b32 s{d}, s{lo}")
    A(f"s_and_b32 s{d+1}, s{hi}, 0xffff")
    A(f"s_mov_b32 s{d+2}, {nbytes:#x}")
    A(f"s_mov_b32 s{d+3}, 0x20000")

WS_TS = 90 * MB
def stamp(A, opt, idx, sidx=None, vt=(250, 251, 252), st=(96, 97, 98)):
    if opt.dbgts:
        mp = {20: 8, 1: 9, 3 if sidx is None else -1: 10, 24: 11, 26: 12, 27: 13}
        word = mp.get(idx) if sidx is None else None
        if sidx is not None and idx == 3: word = 14
        if word is None: return
        L = A.newlabel("ST")
        A("s_cmp_eq_u32 s5, 0")
        A(f"s_cbranch_scc0 {L}")
        if sidx is not None:
            A("s_cmp_gt_u32 s6, 1")
            A(f"s_cbranch_scc1 {L}")
        A(f"s_memrealtime s[{st[0]}:{st[1]}]")
        A(f"s_lshl_b32 s{st[2]}, s6, 2" if sidx is not None else f"s_mov_b32 s{st[2]}, 0")
        A("s_waitcnt lgkmcnt(0)")
        A(f"v_mov_b32 v{vt[0]}, s{st[0]}")
        A("s_mov_b64 exec, 1")
        A(f"buffer_atomic_umax v{vt[0]}, off, s[{S_DBG}:{S_DBG+3}], s{st[2]} offset:{word*4} sc1")
        A("s_mov_b64 exec, -1")
        A.label(L)
        return
    if not opt.stamps: return
    L = A.newlabel("ST")
    A("s_cmp_eq_u32 s5, 0")
    A(f"s_cbranch_scc0 {L}")
    A(f"s_memrealtime s[{st[0]}:{st[1]}]")
    A(f"s_memtime s[100:101]")
    A(f"s_lshl_b32 s{st[2]}, s2, 10")
    A(f"s_add_u32 s{st[2]}, s{st[2]}, {WS_TS + idx*8:#x}")
    if sidx is not None:
        A(f"s_lshl_b32 s99, s{sidx[0]}, {sidx[1]}")
        A(f"s_add_u32 s{st[2]}, s{st[2]}, s99")
    A("s_waitcnt lgkmcnt(0)")
    A(f"v_mov_b32 v{vt[0]}, s{st[0]}")
    A(f"v_mov_b32 v{vt[1]}, s100")
    A(f"v_mov_b32 v{vt[2]}, 0")
    A(f"buffer_store_dwordx2 v[{vt[0]}:{vt[1]}], v{vt[2]}, s[{S_WS}:{S_WS+3}], s{st[2]} offen")
    A("s_waitcnt vmcnt(0)")
    A.label(L)

S_POL = 60
S_C = 62
def verify_rot(A, opt, nm, vt, st):
    A(f"s_mov_b32 s{st}, {opt.spin}")
    A.label(f"{nm}_ROTL")
    A(f"buffer_load_dword v{vt}, off, s[{S_DBG}:{S_DBG+3}], 0 offset:{DBG_ROT*4} sc1")
    A("s_waitcnt vmcnt(0)")
    A(f"v_readfirstlane_b32 s{S_C+1}, v{vt}")
    A(f"s_cmp_lg_u32 s{S_C+1}, 0")
    A(f"s_cbranch_scc1 {nm}_ROTD")
    A(f"s_sub_u32 s{st}, s{st}, 1")
    A(f"s_cbranch_scc0 {nm}_ROTL")
    A("s_endpgm")
    A.label(f"{nm}_ROTD")
    A(f"s_cmp_eq_u32 s{S_C+1}, s{S_C}")
    A(f"s_mov_b32 s{S_C}, s{S_C+1}")
    A("s_cbranch_scc0 K_RESTART")
def get_pol(A, opt, nm, vt, st):
    A(f"s_cmp_lg_u32 s{S_POL}, 0")
    A(f"s_cbranch_scc1 {nm}_POLD")
    A(f"s_mov_b32 s{st}, {opt.spin}")
    A.label(f"{nm}_POLL")
    A(f"buffer_load_dword v{vt}, off, s[{S_DBG}:{S_DBG+3}], 0 offset:{DBG_POL*4} sc1")
    A(f"buffer_load_dword v{vt+1}, off, s[{S_DBG}:{S_DBG+3}], 0 offset:{DBG_CHAIN_CNT*4} sc1")
    A(f"buffer_load_dword v{vt+2}, off, s[{S_DBG}:{S_DBG+3}], 0 offset:{DBG_ROT*4} sc1")
    A("s_waitcnt vmcnt(0)")
    A(f"v_readfirstlane_b32 s{S_C+1}, v{vt+2}")
    A(f"s_cmp_eq_u32 s{S_C+1}, 0")
    A(f"s_cbranch_scc1 {nm}_POLN")
    A(f"s_cmp_eq_u32 s{S_C+1}, s{S_C}")
    A(f"s_mov_b32 s{S_C}, s{S_C+1}")
    A("s_cbranch_scc0 K_RESTART")
    A(f"v_readfirstlane_b32 s{S_POL}, v{vt}")
    A(f"v_readfirstlane_b32 s{S_POL+1}, v{vt+1}")
    A(f"s_cmp_ge_u32 s{S_POL+1}, {64 if opt.chain else 0}")
    A(f"s_cselect_b32 s{S_POL}, s{S_POL}, 0")
    A(f"s_cmp_lg_u32 s{S_POL}, 0")
    A(f"s_cbranch_scc1 {nm}_POLD")
    A.label(f"{nm}_POLN")
    A(f"s_sub_u32 s{st}, s{st}, 1")
    A(f"s_cbranch_scc0 {nm}_POLL")
    A("s_endpgm")
    A.label(f"{nm}_POLD")

class Opt:
    tlb = 0; dbgts = 0; steps = 0; stamps = 0; trace = 0; smask = 0; marks = ''; drop = ''; tstep = 40
    workers = True; chain = True; followers = True; gemm = True
    spin = 200000
    cpre = 1; gpre = 0; mmt = 0; mix = 0; snt = 0; stf = 0; ldf = 0; prio = 0; al8 = 0; pad0 = 0; ns2 = 5; eps = 0; nimm = 6; epw = 0; epq = 0; krot = 1; prio0 = 1; wvtop = 1; b0p = 1; lbar = 3; lwr = -1; uni = 0; uf = 8; solo = 0; wve = 0; nfill = 0; e0 = 5; ow64 = 1; kvall = 0; krot0 = 0; pol = -1; force_slow = 0
    lreg = 1; ereg = 1; echk = 2; lfv = 0; rpre = 0; lchk = 2; kxe = 1; rg = 6; mrpos = 0; rdly = 0; lwait = 0; lspec = 3; qb = 3; qw = 3; kw = 4; vearly = 0; fastonly = 0; nocnt = 0; erf = 0; lrf = 0; nwarm = 0; e1 = 1; l1 = 1; ne = 8; vfast = 1; vxg = -1; inl = 1; useperm = 0; perm = None; outf = 0; atsl = 2; opsl = 1; kvn = 0; vr3 = 44; pubg = '12,11,32,34'; qper = 4; ld1 = 10; lgap = 25; lw = 25; lw2 = 8; lnf = 2; rearly = 0
    ed1 = 8; egap = 6; ew = 30; enf = 2
    rlead = 6; kxlate = 4; sgap = 10; inv = 1; ow = 0; kvsame = 0; kmsame = 0; nokm = 0; vr_gap = 44; vr2 = 0; vper = 4; pk = 0; nk = 4; kslot = -1

def gen_gemm(A, opt):
    SX, SW = 16, 20
    s_rb, s_type, s_stride, s_h, s_out, s_sx, s_sw, s_wstep = 24, 25, 26, 27, 28, 29, 30, 31
    s_it, s_t0, s_t1 = 32, 33, 34
    P0, P1 = 36, 38
    s_m0x, s_m0w = 40, 41
    s_wsz, s_j, s_seg = 42, 43, 44
    vXA = [1, 2, 3, 4, 26, 27]
    vWA = [5, 6, 7, 8, 28, 29]
    vDX = [9, 10, 11, 12]
    vDW = [13, 14, 15, 16]
    vL, vT0, vT1, vT2, vOUT, vXB, vDB = 17, 18, 19, 20, 21, 22, 23
    XF = lambda sg, j: 64 + 32 * sg + 4 * j
    WF = lambda sg, i: 80 + 32 * sg + 4 * i
    ACC = lambda i, j: 16 * (4 * i + j)

    A("s_load_dwordx2 s[36:37], s[0:1], %d" % KA_X)
    A("s_waitcnt lgkmcnt(0)")
    srd(A, SX, 36, 37, 2048 * 1280)
    A(f"v_and_b32 v{vL}, 63, v0")
    A(f"v_and_b32 v{vT0}, 31, v{vL}")
    A(f"v_lshrrev_b32 v{vT1}, 5, v{vL}")
    A(f"v_bfe_u32 v{vT2}, v{vL}, 2, 2")
    A(f"v_xor_b32 v{vT1}, v{vT1}, v{vT2}")
    A(f"v_lshlrev_b32 v{vT1}, 4, v{vT1}")
    A(f"v_lshl_add_u32 v{vXB}, v{vT0}, 6, v{vT1}")
    A(f"v_lshrrev_b32 v{vT0}, 5, v{vL}")
    A(f"v_bfe_u32 v{vT1}, v{vL}, 2, 2")
    A(f"v_lshl_add_u32 v{vT0}, v{vT0}, 3, v{vT1}")
    A(f"v_lshlrev_b32 v{vT0}, 7, v{vT0}")
    A(f"v_bfe_u32 v{vT1}, v{vL}, 3, 1")
    A(f"v_lshl_add_u32 v{vT0}, v{vT1}, 6, v{vT0}")
    A(f"v_bfe_u32 v{vT1}, v{vL}, 4, 1")
    A(f"v_lshl_add_u32 v{vT0}, v{vT1}, 5, v{vT0}")
    A(f"v_and_b32 v{vT1}, 3, v{vL}")
    A(f"v_lshl_add_u32 v{vT0}, v{vT1}, 3, v{vT0}")
    A(f"s_lshr_b32 s{s_t0}, s5, 1")
    A(f"s_lshl_b32 s{s_t0}, s{s_t0}, 13")
    A(f"v_add_u32 v{vWA[0]}, s{s_t0}, v{vT0}")
    A(f"v_xor_b32 v{vWA[1]}, 64, v{vWA[0]}")
    A(f"v_add_u32 v{vWA[2]}, 0x10000, v{vWA[0]}")
    A(f"v_add_u32 v{vWA[3]}, 0x10000, v{vWA[1]}")
    A(f"v_add_u32 v{vWA[4]}, 0x20000, v{vWA[0]}")
    A(f"v_add_u32 v{vWA[5]}, 0x20000, v{vWA[1]}")
    A(f"v_lshrrev_b32 v{vT0}, 2, v{vL}")
    A(f"v_mul_u32_u24 v{vT0}, 1280, v{vT0}")
    A(f"v_and_b32 v{vT1}, 3, v{vL}")
    A(f"v_lshrrev_b32 v{vT2}, 4, v{vL}")
    A(f"v_xor_b32 v{vT1}, v{vT1}, v{vT2}")
    A(f"v_lshl_add_u32 v{vDX[0]}, v{vT1}, 4, v{vT0}")
    for n in range(1, 4):
        A(f"v_add_u32 v{vDX[n]}, {n*(16*1280-1024)}, v{vDX[0]}")
    A(f"s_lshl_b32 s{s_m0w}, s5, 12")
    A(f"s_add_u32 s{s_m0w}, s{s_m0w}, 16384")
    A(f"v_lshlrev_b32 v{vOUT}, 4, v{vL}")
    A("s_lshl_b32 s7, s3, 5")
    A("s_add_u32 s7, s7, s4")
    A("s_mov_b32 s6, 0")
    s_pn, s_pout, s_pflag, s_pw = 46, 47, 48, 49
    vFLG, vONEI, PK = 24, 25, 128
    A(f"s_mov_b32 s{s_pn}, 0")
    A(f"s_mov_b32 s{s_pflag}, 0")
    A(f"s_mov_b32 s{s_pout}, 0")
    A(f"v_mov_b32 v{vONEI}, 1")
    A(f"v_mov_b32 v{vFLG}, {OOB:#x}")
    def pub_flag(skip):
        A(f"s_cmp_eq_u32 s{s_pflag}, 0")
        A(f"s_cbranch_scc1 {skip}")
        A(f"buffer_store_dword v{vONEI}, v{vFLG}, s[{S_WS}:{S_WS+3}], s{s_pflag} offen sc1")
        A(f"s_mov_b32 s{s_pflag}, 0")
    if opt.gpre:
        A("s_mul_i32 s52, s7, 43691")
        A("s_lshr_b32 s52, s52, 18")
        A("s_mul_i32 s53, s52, 6")
        A("s_sub_u32 s53, s7, s53")
        A("s_sub_u32 s53, s53, 2")
        A("s_cbranch_scc1 G_ROUND")
        A(f"s_load_dwordx4 s[64:67], s[0:1], {KA_WQ}")
        A(f"s_load_dwordx4 s[68:71], s[0:1], {KA_WV}")
        A("s_lshl_b32 s52, s52, 2")
        A("s_add_u32 s52, s52, s53")
        A("s_lshl_b32 s52, s52, 2")
        A("s_add_u32 s52, s52, s5")
        A("s_lshl_b32 s52, s52, 11")
        A(f"v_add_u32 v{vT0}, s52, v{vOUT}")
        A("s_waitcnt lgkmcnt(0)")
        for i, p in enumerate((66, 68, 64, 70)): srd(A, 72 + 4 * i, p, p + 1, 640 * 8192)
        for n in range(5):
            A(f"s_mov_b32 s53, {n*MB}")
            for i in range(opt.gpre):
                for q in range(2):
                    A(f"buffer_load_dwordx4 v[148:151], v{vT0}, s[{72+4*i}:{75+4*i}], s53 offen offset:{q*1024}")

    A.label("G_ROUND")
    A(f"s_mov_b32 s{s_j}, 2")
    A("s_cmp_eq_u32 s6, 1")
    A("s_cbranch_scc1 G_DEC_R1")
    A("s_cmp_eq_u32 s6, 2")
    A("s_cbranch_scc1 G_DEC_R2")
    A(f"s_mov_b32 s{s_j}, 1")
    A("s_cmp_eq_u32 s6, 3")
    A("s_cbranch_scc1 G_DEC_R3")
    A(f"s_mul_i32 s{s_h}, s7, 43691")
    A(f"s_lshr_b32 s{s_h}, s{s_h}, 18")
    A(f"s_mul_i32 s{s_t0}, s{s_h}, 6")
    A(f"s_sub_u32 s{s_rb}, s7, s{s_t0}")
    A("s_branch G_DEC_KV")
    A.label("G_DEC_R1")
    if opt.mix:
        A(f"s_sub_u32 s{s_t0}, s7, 64")
        A("s_cbranch_scc0 G_DEC_Q")
        A(f"s_lshr_b32 s{s_h}, s7, 1")
        A(f"s_and_b32 s{s_rb}, s7, 1")
        A(f"s_lshl_b32 s{s_rb}, s{s_rb}, 1")
        A(f"s_add_u32 s{s_rb}, s{s_rb}, 6")
        A("s_branch G_DEC_KV")
        A.label("G_DEC_R2")
        A(f"s_sub_u32 s{s_t0}, s7, 96")
        A("s_cbranch_scc0 G_DEC_F4")
        A(f"s_mul_i32 s{s_h}, s7, 43691")
        A(f"s_lshr_b32 s{s_h}, s{s_h}, 17")
        A(f"s_mul_i32 s{s_t0}, s{s_h}, 3")
        A(f"s_sub_u32 s{s_rb}, s7, s{s_t0}")
        A(f"s_lshl_b32 s{s_rb}, s{s_rb}, 1")
        A(f"s_add_u32 s{s_rb}, s{s_rb}, 10")
    else:
        A(f"s_sub_u32 s{s_t0}, s7, 160")
        A("s_cbranch_scc0 G_DEC_Q")
        A(f"s_mul_i32 s{s_h}, s7, 52429")
        A(f"s_lshr_b32 s{s_h}, s{s_h}, 18")
        A(f"s_mul_i32 s{s_t0}, s{s_h}, 5")
        A(f"s_sub_u32 s{s_rb}, s7, s{s_t0}")
        A(f"s_lshl_b32 s{s_rb}, s{s_rb}, 1")
        A(f"s_add_u32 s{s_rb}, s{s_rb}, 6")
    A.label("G_DEC_KV")
    A(f"s_load_dwordx2 s[{P0}:{P0+1}], s[0:1], {KA_WK}")
    A(f"s_load_dwordx2 s[{P1}:{P1+1}], s[0:1], {KA_WV}")
    A("s_waitcnt lgkmcnt(0)")
    A("s_cmp_ge_u32 s5, 2")
    A(f"s_cselect_b32 s{P0}, s{P1}, s{P0}")
    A(f"s_cselect_b32 s{P0+1}, s{P1+1}, s{P0+1}")
    A(f"s_cselect_b32 s{s_type}, 1, 0")
    A(f"s_cselect_b32 s{s_out}, {WS_VO:#x}, {WS_KQ:#x}")
    A(f"s_lshl_b32 s{s_sw}, s{s_h}, 8")
    A(f"s_and_b32 s{s_t0}, s5, 1")
    A(f"s_lshl_b32 s{s_t0}, s{s_t0}, 7")
    A(f"s_add_u32 s{s_sw}, s{s_sw}, s{s_t0}")
    A(f"s_lshl_b32 s{s_t0}, s{s_h}, 14")
    A(f"s_add_u32 s{s_out}, s{s_out}, s{s_t0}")
    A("s_branch G_DEC_QKV")
    if not opt.mix:
        A.label("G_DEC_R2")
        A(f"s_sub_u32 s{s_t0}, s7, 96")
        A("s_cbranch_scc0 G_DEC_F4")
        A(f"s_add_u32 s{s_t0}, s7, 32")
    A.label("G_DEC_Q")
    A(f"s_and_b32 s{s_rb}, s{s_t0}, 7")
    A(f"s_lshl_b32 s{s_rb}, s{s_rb}, 1")
    A(f"s_lshr_b32 s{s_h}, s{s_t0}, 3")
    A(f"s_load_dwordx2 s[{P0}:{P0+1}], s[0:1], {KA_WQ}")
    A("s_waitcnt lgkmcnt(0)")
    A(f"s_mov_b32 s{s_type}, 2")
    A(f"s_lshl_b32 s{s_sw}, s{s_h}, 9")
    A(f"s_lshl_b32 s{s_t0}, s5, 7")
    A(f"s_add_u32 s{s_sw}, s{s_sw}, s{s_t0}")
    A(f"s_lshl_b32 s{s_t0}, s{s_h}, 1")
    A(f"s_lshr_b32 s{s_t1}, s5, 1")
    A(f"s_add_u32 s{s_t0}, s{s_t0}, s{s_t1}")
    A(f"s_lshl_b32 s{s_t0}, s{s_t0}, 14")
    A(f"s_add_u32 s{s_out}, s{s_t0}, {WS_KQ + 8192:#x}")
    A.label("G_DEC_QKV")
    A(f"s_mov_b32 s{s_stride}, 8192")
    A(f"s_mov_b32 s{s_wsz}, {640*8192}")
    A(f"s_mov_b32 s{s_it}, {32*16384}")
    A("s_branch G_DEC_DONE")
    A.label("G_DEC_R3")
    A(f"s_sub_u32 s{s_t0}, s4, 26")
    A("s_cbranch_scc1 G_END")
    A(f"s_mul_i32 s{s_t1}, s3, 6")
    A(f"s_add_u32 s{s_t0}, s{s_t0}, s{s_t1}")
    A(f"s_cmp_ge_u32 s{s_t0}, 32")
    A("s_cbranch_scc1 G_END")
    A(f"s_and_b32 s{s_rb}, s{s_t0}, 15")
    A(f"s_lshr_b32 s{s_h}, s{s_t0}, 4")
    A(f"s_add_u32 s{s_h}, s{s_h}, 12")
    A("s_branch G_DEC_FFN")
    A.label("G_DEC_F4")
    A(f"s_and_b32 s{s_rb}, s{s_t0}, 7")
    A(f"s_lshl_b32 s{s_rb}, s{s_rb}, 1")
    A(f"s_lshr_b32 s{s_h}, s{s_t0}, 3")
    A.label("G_DEC_FFN")
    A(f"s_load_dwordx2 s[{P0}:{P0+1}], s[0:1], {KA_WG}")
    A(f"s_load_dwordx2 s[{P1}:{P1+1}], s[0:1], {KA_WU}")
    A("s_waitcnt lgkmcnt(0)")
    A(f"s_bitcmp1_b32 s5, 0")
    A(f"s_cselect_b32 s{P0}, s{P1}, s{P0}")
    A(f"s_cselect_b32 s{P0+1}, s{P1+1}, s{P0+1}")
    A(f"s_mov_b32 s{s_type}, 3")
    A(f"s_lshl_b32 s{s_sw}, s{s_h}, 8")
    A(f"s_lshr_b32 s{s_t0}, s5, 1")
    A(f"s_lshl_b32 s{s_t1}, s{s_t0}, 7")
    A(f"s_add_u32 s{s_sw}, s{s_sw}, s{s_t1}")
    A(f"s_lshl_b32 s{s_t0}, s{s_t0}, 1")
    A(f"s_lshl_b32 s{s_t1}, s{s_h}, 2")
    A(f"s_add_u32 s{s_h}, s{s_t0}, s{s_t1}")
    A(f"s_lshl_b32 s{s_out}, s{s_h}, 11")
    A(f"s_add_u32 s{s_out}, s{s_out}, {WS_H:#x}")
    A(f"s_mov_b32 s{s_stride}, 3456")
    A(f"s_mov_b32 s{s_wsz}, {640*3456}")
    A(f"s_mov_b32 s{s_it}, {54*2048}")
    A.label("G_DEC_DONE")
    A(f"s_and_b32 s{s_t1}, s5, 1")
    A(f"s_lshl_b32 s{s_t1}, s{s_t1}, s{s_j}")
    A(f"s_lshl_b32 s{s_seg}, s{s_rb}, 2")
    A(f"s_add_u32 s{s_seg}, s{s_seg}, s{s_t1}")
    A(f"s_mul_i32 s{s_t0}, s{s_seg}, s{s_it}")
    A(f"s_add_u32 s{s_out}, s{s_out}, s{s_t0}")
    A(f"s_lshl_b32 s{s_t1}, s{s_t1}, 11")
    A(f"v_add_u32 v{vXA[0]}, s{s_t1}, v{vXB}")
    A(f"v_xor_b32 v{vXA[1]}, 32, v{vXA[0]}")
    A(f"v_add_u32 v{vXA[2]}, 0x10000, v{vXA[0]}")
    A(f"v_add_u32 v{vXA[3]}, 0x10000, v{vXA[1]}")
    A(f"v_add_u32 v{vXA[4]}, 0x20000, v{vXA[0]}")
    A(f"v_add_u32 v{vXA[5]}, 0x20000, v{vXA[1]}")
    A(f"s_lshl_b32 s{s_t0}, s5, s{s_j}")
    A(f"s_lshl_b32 s{s_m0x}, s{s_t0}, 10")
    A(f"s_mul_i32 s{s_t0}, s{s_t0}, {16*1280}")
    A(f"s_mul_i32 s{s_sx}, s{s_rb}, {128*1280}")
    A(f"s_add_u32 s{s_sx}, s{s_sx}, s{s_t0}")
    A(f"s_mov_b32 s{SW}, s{P0}")
    A(f"s_and_b32 s{SW+1}, s{P0+1}, 0xffff")
    A(f"s_mov_b32 s{SW+2}, s{s_wsz}")
    A(f"s_mov_b32 s{SW+3}, 0x20000")
    A(f"s_lshl_b32 s{s_wstep}, s{s_stride}, 5")
    A(f"v_lshrrev_b32 v{vT0}, 3, v{vL}")
    A(f"v_mul_lo_u32 v{vT0}, v{vT0}, s{s_stride}")
    A(f"v_bfe_u32 v{vT1}, v{vL}, 4, 1")
    A(f"v_lshlrev_b32 v{vT1}, 2, v{vT1}")
    A(f"v_and_b32 v{vT2}, 7, v{vL}")
    A(f"v_xor_b32 v{vT1}, v{vT1}, v{vT2}")
    A(f"v_lshl_add_u32 v{vDW[0]}, v{vT1}, 4, v{vT0}")
    A(f"s_lshl_b32 s{s_t0}, s{s_stride}, 3")
    A(f"s_sub_u32 s{s_t0}, s{s_t0}, 1024")
    for n in range(1, 4):
        A(f"v_add_u32 v{vDW[n]}, s{s_t0}, v{vDW[n-1]}")
    s_wrap = 45
    if opt.krot:
        A(f"s_mul_i32 s{s_t0}, s{s_rb}, 5")
        A(f"s_lshr_b32 s{s_t0}, s{s_t0}, 2")
        A(f"s_mul_i32 s{s_t1}, s{s_rb}, {opt.krot0}")
        A("s_cmp_eq_u32 s6, 0")
        A(f"s_cselect_b32 s{s_t0}, s{s_t1}, s{s_t0}")
        A(f"s_sub_u32 s{s_wrap}, 20, s{s_t0}")
        A(f"s_lshl_b32 s{s_t1}, s{s_t0}, 6")
        A(f"s_add_u32 s{s_sx}, s{s_sx}, s{s_t1}")
        A(f"s_mul_i32 s{s_t1}, s{s_t0}, s{s_wstep}")
        A(f"s_add_u32 s{s_sw}, s{s_sw}, s{s_t1}")
    stamp(A, opt, 0, (6, 5), vt=(30, 31, 32))
    A(f"s_cmp_eq_u32 s{s_j}, 2")
    A("s_cbranch_scc1 G4_START")

    def tile(J):
        G = f"G{J}"
        ND = J + 4
        NS = 4 if J == 4 else opt.ns2
        def dma_list(slot):
            L = [[f"s_add_u32 m0, s{s_m0x}, {slot*32768}"]]
            for n in range(J):
                L.append([f"buffer_load_dwordx4 v{vDX[n]}, s[{SX}:{SX+3}], s{s_sx} offen offset:{n*1024} lds"])
            L.append([f"s_add_u32 m0, s{s_m0w}, {slot*32768}", f"s_add_u32 s{s_sx}, s{s_sx}, 64"])
            for n in range(4):
                L.append([f"buffer_load_dwordx4 v{vDW[n]}, s[{SW}:{SW+3}], s{s_sw} offen offset:{n*1024} lds"])
            L.append([f"s_add_u32 s{s_sw}, s{s_sw}, s{s_wstep}"] + ([
                f"s_sub_u32 s{s_wrap}, s{s_wrap}, 1", f"s_cmp_eq_u32 s{s_wrap}, 0", f"s_cselect_b32 s{s_t0}, 1280, 0", f"s_cselect_b32 s{s_t1}, s{s_wsz}, 0",
                f"s_sub_u32 s{s_sx}, s{s_sx}, s{s_t0}", f"s_sub_u32 s{s_sw}, s{s_sw}, s{s_t1}"] if opt.krot else []))
            return L
        def read_list(slot, ks, sg):
            hi = slot >> 1; base = (slot & 1) * 32768
            L = []
            order = [('x', 0), ('w', 0)] + [('x', j) for j in range(1, J)] + [('w', 1), ('w', 2), ('w', 3)]
            for t, i in order:
                if t == 'x':
                    L.append(f"ds_read_b128 {v(XF(sg,i),4)}, v{vXA[2*hi+ks]} offset:{base + i*2048}")
                else:
                    for m in range(2):
                        L.append(f"ds_read_b64_tr_b16 {v(WF(sg,i)+2*m,2)}, v{vWA[2*hi+(i&1)]} offset:{base + 16384 + (i>>1)*4096 + ks*2048 + m*512}")
            return L
        def mfmas(sg, vtype, first):
            L = []
            for i in range(4):
                for j in range(J):
                    d = a_(ACC(i, j), 16)
                    c = "0" if first else d
                    if vtype: L.append(f"v_mfma_f32_32x32x16_bf16 {d}, {v(XF(sg,j),4)}, {v(WF(sg,i),4)}, {c}")
                    else:     L.append(f"v_mfma_f32_32x32x16_bf16 {d}, {v(WF(sg,i),4)}, {v(XF(sg,j),4)}, {c}")
            return L
        def interleave(ms, fill):
            n = len(ms); k = 0
            for g, m in enumerate(ms):
                A(m)
                per = -(-(len(fill) - k) // (n - g)) if len(fill) > n else (1 if k < len(fill) else 0)
                for _ in range(per):
                    for t in fill[k]: A(t)
                    k += 1
        A.label(f"{G}_START")
        for st in range(NS):
            for g in dma_list(st):
                for t in g: A(t)
        A(f"s_waitcnt vmcnt({(NS-1)*ND})")
        A("s_barrier")
        for t in read_list(0, 0, 0): A(t)
        A(f"s_cmp_eq_u32 s{s_type}, 1")
        A(f"s_cbranch_scc1 {G}_LOOP_V")
        def body(st_slot, vtype, first, dma, vm, last):
            A("s_waitcnt lgkmcnt(0)")
            rl = read_list(st_slot, 1, 1)
            per = 1 if J == 4 else 2
            fl = [rl[k:k+per] for k in range(0, len(rl), per)]
            def dst(ab, wv):
                L = A.newlabel("DS")
                return [f"s_cmp_eq_u32 s{s_pw}, {wv}", f"s_cbranch_scc0 {L}",
                        f"buffer_store_dwordx4 {v(PK+8*st_slot+4*ab,4)}, v{vOUT}, s[{S_WS}:{S_WS+3}], s{s_pout} offen offset:{ab*1024} sc1", f"{L}:"]
            if J == 4 and dma:
                while len(fl) < 16: fl.append([])
                fl[0] = fl[0] + [f"s_cmp_eq_u32 s{s_pn}, 0", f"s_cselect_b32 s{s_pw}, 9, s5"]
                for wv in range(4): fl[1 + 4 * wv] = fl[1 + 4 * wv] + dst(0, wv)
            interleave(mfmas(0, vtype, first), fl)
            if last:
                A("s_waitcnt lgkmcnt(0)")
                A("s_barrier")
                interleave(mfmas(1, vtype, False), [])
                return
            A(f"s_waitcnt vmcnt({vm}) lgkmcnt(0)")
            A("s_barrier")
            rl = read_list((st_slot + 1) % NS, 0, 0)
            per = 2 if J == 4 else 3
            fill = [rl[k:k+per] for k in range(0, len(rl), per)]
            if dma:
                dl = dma_list(st_slot)
                grp = [dl[0] + dl[1]] + dl[2:J+1] + [dl[J+1] + dl[J+2]] + dl[J+3:J+5] + [dl[J+5] + dl[J+6]]
                if J == 2: grp = [grp[0] + grp[1], grp[2], grp[3] + grp[4], grp[5]]
                fill += grp
                if J == 4:
                    while len(fill) < 16: fill.append([])
                    mv = [f"v_mov_b64 {v(PK+32*q+8*st_slot+2*r,2)}, {v(PK+32*(q+1)+8*st_slot+2*r,2)}" for q in range(3) for r in range(4)]
                    for wv in range(4): fill[4 * wv] = fill[4 * wv] + dst(1, wv)
                    for i_, x in enumerate(mv): fill[13 + i_ // 4] = fill[13 + i_ // 4] + [x]
                    fill[15] = fill[15] + [f"s_add_u32 s{s_pout}, s{s_pout}, {2048 if st_slot < 3 else 32*16384 - 6144}"]
            interleave(mfmas(1, vtype, False), fill)
        for vtype in (0, 1):
            nm = f"{G}_LOOP_" + ("V" if vtype else "K")
            A.label(nm)
            body(0, vtype, True, True, (NS - 2) * ND, False)
            A(f"s_mov_b32 s{s_it}, 0")
            A(f"s_branch {nm}_1")
            A.label(f"{nm}_0")
            body(0, vtype, False, True, (NS - 2) * ND, False)
            A.label(f"{nm}_1")
            for sl in range(1, NS): body(sl, vtype, False, True, (NS - 2) * ND, False)
            if J == 4:
                A(f"s_sub_u32 s{s_pn}, s{s_pn}, 1")
                A(f"s_cbranch_scc0 {nm}_2")
                A(f"s_mov_b32 s{s_pn}, 0")
                pub_flag(f"{nm}_2")
                A.label(f"{nm}_2")
            A(f"s_add_u32 s{s_it}, s{s_it}, 1")
            A(f"s_cmp_lt_u32 s{s_it}, {20 // NS - 1}")
            A(f"s_cbranch_scc1 {nm}_0")
            for sl in range(NS): body(sl, vtype, False, False, max(NS - 2 - sl, 0) * ND, sl == NS - 1)
            A("s_branch G_EPI")
    tile(2)
    tile(4)
    A.label("G_EPI")
    pub_flag("G_EPI1")
    A.label("G_EPI1")
    stamp(A, opt, 2, (6, 5), vt=(30, 31, 32))
    A(f"s_cmp_eq_u32 s{s_type}, 3")
    A("s_cbranch_scc1 G_EPI_FFN")
    get_pol(A, opt, "G", vT0, s_it)
    A(f"s_lshr_b32 s{s_t0}, s{s_seg}, 2")
    A(f"s_xor_b32 s{s_t0}, s{s_t0}, s{S_POL}")
    A(f"s_and_b32 s{s_t0}, s{s_t0}, 1")
    A(f"s_lshl_b32 s{s_t0}, s{s_t0}, 13")
    A(f"s_xor_b32 s{s_out}, s{s_out}, s{s_t0}")
    A(f"s_mov_b32 s{s_pout}, s{s_out}")
    A(f"s_lshl_b32 s{s_pn}, 1, s{s_j}")
    A(f"s_cmp_eq_u32 s{s_type}, 2")
    A("s_cbranch_scc1 G_EPI_Q")
    def conv(scale):
        if scale: A(f"s_mov_b32 s{s_t1}, {fbits(CSCALE):#x}")
        k = 0
        for j in range(4):
            if j == 2 and not scale:
                A(f"s_cmp_eq_u32 s{s_j}, 1")
                A("s_cbranch_scc1 G_EPI_CD")
            for i in range(4):
                for ab in range(2):
                    t = 64 + 8 * (k % 4)
                    for r in range(8): A(f"v_accvgpr_read_b32 v{t+r}, a{ACC(i,j)+8*ab+r}")
                    if scale:
                        for r in range(8): A(f"v_mul_f32 v{t+r}, s{s_t1}, v{t+r}")
                    for r in range(4): A(f"v_cvt_pk_bf16_f32 v{PK+4*k+r}, v{t+2*r}, v{t+2*r+1}")
                    k += 1
    if opt.mmt:
        A(f"s_and_b32 s{s_t0}, s{s_out}, {32*MB - 1:#x}")
        A(f"s_mul_i32 s{s_t1}, s{s_type}, 3072")
        A(f"s_add_u32 s{s_t0}, s{s_t0}, s{s_t1}")
        A(f"s_add_u32 s{s_t0}, s{s_t0}, {WS_MM:#x}")
        A(f"v_lshlrev_b32 v{vT0}, 6, v{vL}")
        for j in range(4):
            if j == 2:
                A(f"s_cmp_eq_u32 s{s_j}, 1")
                A("s_cbranch_scc1 G_MMT")
            if opt.mmt == 1: A(f"buffer_load_dword v{vDB}, v{vT0}, s[{S_WS}:{S_WS+3}], s{s_t0} offen nt")
            else:
                for q in range(3): A(f"buffer_store_dwordx4 v[64:67], v{vOUT}, s[{S_WS}:{S_WS+3}], s{s_t0} offen offset:{q*1024} sc1")
            A(f"s_add_u32 s{s_t0}, s{s_t0}, {32*16384}")
        A.label("G_MMT")
    A(f"s_lshl_b32 s{s_pflag}, s{s_h}, 5")
    A(f"s_add_u32 s{s_pflag}, s{s_pflag}, s{s_rb}")
    A(f"s_lshl_b32 s{s_pflag}, s{s_pflag}, 2")
    A(f"s_add_u32 s{s_pflag}, s{s_pflag}, {WS_KVF:#x}")
    A("s_cmp_eq_u32 s5, 0")
    A(f"s_cselect_b32 s{s_pflag}, s{s_pflag}, 0")
    A(f"v_mov_b32 v{vT1}, {OOB:#x}")
    A(f"v_lshlrev_b32 v{vT2}, 2, v{vL}")
    A(f"v_cmp_gt_u32 vcc, s{s_j}, v{vL}")
    A(f"v_cndmask_b32 v{vFLG}, v{vT1}, v{vT2}, vcc")
    conv(False)
    A("s_branch G_EPI_CD")
    A.label("G_EPI_Q")
    conv(True)
    A.label("G_EPI_CD")
    A("s_cmp_eq_u32 s6, 2")
    A("s_cbranch_scc1 G_EPI_NOW")
    A(f"s_lshl_b32 s{s_t0}, s6, 4")
    A(f"s_add_u32 s{s_t0}, s{s_t0}, s{s_rb}")
    A(f"s_cmp_ge_u32 s{s_t0}, {opt.nimm}")
    A("s_cbranch_scc1 G_NEXT")
    A.label("G_EPI_NOW")
    A(f"s_or_b32 vcc_lo, s{s_rb}, s6")
    A("s_mov_b32 vcc_hi, 0")
    for j in range(4):
        if j == 2:
            A(f"s_cmp_eq_u32 s{s_j}, 1")
            A("s_cbranch_scc1 G_EPI_ND")
        for i in range(4):
            for ab in range(2):
                A(f"buffer_store_dwordx4 {v(PK+32*j+8*i+4*ab,4)}, v{vOUT}, s[{S_WS}:{S_WS+3}], s{s_pout} offen offset:{ab*1024} sc1{' nt' if opt.snt else ''}")
                L = A.newlabel("EW")
                A(f"s_cbranch_vccz {L}")
                A(f"s_waitcnt vmcnt({opt.epq})")
                if opt.eps: A(f"s_sleep {opt.eps}")
                A.label(L)
            A(f"s_add_u32 s{s_pout}, s{s_pout}, {2048 if i < 3 else 32*16384 - 6144}")
    A.label("G_EPI_ND")
    A(f"s_mov_b32 s{s_pn}, 0")
    A("s_waitcnt vmcnt(0)")
    A("s_barrier")
    pub_flag("G_NEXT")
    A("s_branch G_NEXT")
    A.label("G_EPI_FFN")
    A(f"s_cmp_ge_u32 s{s_h}, 54")
    A("s_cbranch_scc1 G_NEXT")
    k = 0
    for j in range(4):
        if j == 2:
            A(f"s_cmp_eq_u32 s{s_j}, 1")
            A("s_cbranch_scc1 G_NEXT")
        for i in range(2):
            for ab in range(2):
                t = 64 + 20 * (k % 8); k += 1
                for r in range(8): A(f"v_accvgpr_read_b32 v{t+r}, a{ACC(i,j)+8*ab+r}")
                for r in range(8): A(f"v_accvgpr_read_b32 v{t+8+r}, a{ACC(i+2,j)+8*ab+r}")
                for r in range(8): A(f"v_mul_f32 v{t+r}, v{t+r}, v{t+8+r}")
                for r in range(4): A(f"v_cvt_pk_bf16_f32 v{t+16+r}, v{t+2*r}, v{t+2*r+1}")
                A(f"buffer_store_dwordx4 {v(t+16,4)}, v{vOUT}, s[{S_WS}:{S_WS+3}], s{s_out} offen offset:{i*2048+ab*1024} sc1")
                if opt.epw >= 0: A(f"s_waitcnt vmcnt({opt.epq})")
        A(f"s_add_u32 s{s_out}, s{s_out}, {54*2048}")
    A.label("G_NEXT")
    A("s_waitcnt vmcnt(0)")
    stamp(A, opt, 3, (6, 5), vt=(30, 31, 32))
    A("s_add_u32 s6, s6, 1")
    A("s_cmp_lt_u32 s6, 4")
    A("s_cbranch_scc1 G_ROUND")
    A.label("G_END")
    A("s_cmp_ge_u32 s7, 128")
    A("s_cbranch_scc1 G_GATE_END")
    A(f"s_load_dwordx2 s[{P0}:{P0+1}], s[0:1], {KA_GW}")
    A("s_waitcnt lgkmcnt(0)")
    srd(A, SW, P0, P0 + 1, 1280)
    A(f"v_lshrrev_b32 v{vT0}, 4, v0")
    A(f"s_lshl_b32 s{s_t0}, s7, 4")
    A(f"v_add_u32 v{vT0}, s{s_t0}, v{vT0}")
    A(f"v_and_b32 v{vT1}, 15, v0")
    A(f"v_lshlrev_b32 v{vT1}, 4, v{vT1}")
    A(f"v_mul_u32_u24 v{vT2}, 1280, v{vT0}")
    A(f"v_add_u32 v{vT2}, v{vT2}, v{vT1}")
    for c in range(5):
        A(f"buffer_load_dwordx4 {v(64+4*c,4)}, v{vT2}, s[{SX}:{SX+3}], 0 offen offset:{c*256}")
        A(f"buffer_load_dwordx4 {v(96+4*c,4)}, v{vT1}, s[{SW}:{SW+3}], 0 offen offset:{c*256}")
    A("v_mov_b32 v60, 0")
    A("v_mov_b32 v61, 0")
    A("s_waitcnt vmcnt(0)")
    for c in range(20):
        A(f"v_lshlrev_b32 v56, 16, v{64+c}")
        A(f"v_lshlrev_b32 v57, 16, v{96+c}")
        A(f"v_and_b32 v58, 0xffff0000, v{64+c}")
        A(f"v_and_b32 v59, 0xffff0000, v{96+c}")
        A(f"v_fmac_f32 v60, v56, v57")
        A(f"v_fmac_f32 v61, v58, v59")
    A("v_add_f32 v60, v60, v61")
    for ror in (8, 4, 2, 1):
        A(f"v_mov_b32_dpp v61, v60 row_ror:{ror} row_mask:0xf bank_mask:0xf")
        A("v_add_f32 v60, v60, v61")
    A(f"v_mul_f32 v60, {fbits(-math.log2(math.e)):#x}, v60")
    A("v_exp_f32 v60, v60")
    A("v_add_f32 v60, 1.0, v60")
    A("v_rcp_f32 v60, v60")
    A(f"v_lshlrev_b32 v{vT0}, 2, v{vT0}")
    A(f"v_mov_b32 v{vT2}, {OOB:#x}")
    A(f"v_cmp_eq_u32 vcc, 0, v{vT1}")
    A(f"v_cndmask_b32 v{vT0}, v{vT2}, v{vT0}, vcc")
    A(f"s_mov_b32 s{s_t0}, {WS_G:#x}")
    A(f"buffer_store_dword v60, v{vT0}, s[{S_WS}:{S_WS+3}], s{s_t0} offen sc1")
    A.label("G_GATE_END")

def generate(opt):
    A = Asm()
    A("s_cmp_ge_u32 s2, 256")
    A("s_cbranch_scc1 K_EXIT")
    A(f"s_load_dwordx2 s[36:37], s[0:1], {KA_WS}")
    A(f"s_load_dwordx2 s[38:39], s[0:1], {KA_DBG}")
    A("v_lshrrev_b32 v1, 6, v0")
    A("v_readfirstlane_b32 s5, v1")
    A("s_and_b32 s3, s2, 7")
    A("s_lshr_b32 s4, s2, 3")
    A("s_waitcnt lgkmcnt(0)")
    srd(A, S_WS, 36, 37, WS_SIZE)
    srd(A, S_DBG, 38, 39, 256)
    stamp(A, opt, 20)
    if opt.cpre:
        A("s_getpc_b64 s[40:41]")
        A.label("K_PC")
        A("s_lshl_b32 s6, s4, 2")
        A("s_add_u32 s6, s6, s5")
        A("s_lshl_b32 s6, s6, 10")
        A("s_cmp_lt_u32 s6, K_CODE_END - K_PC - 1024")
        A("s_cbranch_scc0 K_NOCP")
        A("v_and_b32 v1, 63, v0")
        A("v_lshlrev_b32 v1, 4, v1")
        A("v_add_u32 v1, s6, v1")
        A("global_load_dwordx4 v[148:151], v1, s[40:41]")
        A.label("K_NOCP")
    A("s_getreg_b32 s6, hwreg(HW_REG_XCC_ID, 0, 3)")
    A(f"s_sub_u32 s{S_C}, s6, s2")
    A(f"s_and_b32 s{S_C}, s{S_C}, 7")
    A(f"s_or_b32 s{S_C}, s{S_C}, 8")
    A("s_or_b32 s6, s2, s5")
    A("s_cmp_eq_u32 s6, 0")
    A("s_cbranch_scc0 K_ROLE")
    A(f"v_mov_b32 v1, s{S_C}")
    A("s_mov_b64 exec, 1")
    A(f"buffer_store_dword v1, off, s[{S_DBG}:{S_DBG+3}], 0 offset:{DBG_ROT*4} sc1")
    A("s_mov_b64 exec, -1")
    A("s_branch K_ROLE")
    A.label("K_RESTART")
    A("s_waitcnt vmcnt(0) lgkmcnt(0)")
    A("s_barrier")
    A("v_mbcnt_lo_u32_b32 v0, -1, 0")
    A("v_mbcnt_hi_u32_b32 v0, -1, v0")
    A("s_lshl_b32 s6, s5, 6")
    A("v_add_u32 v0, s6, v0")
    A.label("K_ROLE")
    A(f"s_add_u32 s3, s2, s{S_C}")
    A("s_and_b32 s3, s3, 7")
    A("s_cmp_lt_u32 s3, 2")
    A("s_cbranch_scc1 K_CHAIN")
    A("s_sub_u32 s3, s3, 2")
    A(f"s_mov_b32 s{S_POL}, {0 if opt.pol < 0 else 2 | opt.pol}")
    if opt.pol < 0:
        A("s_lshl_b32 s6, s3, 5")
        A("s_add_u32 s6, s6, s4")
        A("s_cmp_eq_u32 s6, 5")
        A("s_cbranch_scc0 K_NOPROBE")
        verify_rot(A, opt, "KP", 1, 64)
        A("s_cmp_eq_u32 s5, 0")
        A("s_cbranch_scc0 K_PROBED")
        A(f"s_mov_b32 s66, {WS_X + 127*16384:#x}")
        A("s_add_u32 s67, s66, 8192")
        A("s_mov_b32 s64, -1")
        A("s_mov_b32 s65, -1")
        A("s_mov_b64 exec, 1")
        A("s_mov_b32 s73, 4")
        A.label("K_PROBE")
        for pl in range(2):
            A("s_memtime s[68:69]")
            A("s_waitcnt lgkmcnt(0)")
            A(f"buffer_store_dword v0, off, s[{S_WS}:{S_WS+3}], s{66+pl} sc1")
            A("s_waitcnt vmcnt(0)")
            A("s_memtime s[70:71]")
            A("s_waitcnt lgkmcnt(0)")
            A("s_sub_u32 s72, s70, s68")
            A(f"s_min_u32 s{64+pl}, s{64+pl}, s72")
        A("s_sub_u32 s73, s73, 1")
        A("s_cbranch_scc0 K_PROBE")
        A("s_cmp_lt_u32 s65, s64")
        A("s_cselect_b32 s72, 3, 2")
        A("v_mov_b32 v1, s72")
        A(f"buffer_store_dword v1, off, s[{S_DBG}:{S_DBG+3}], 0 offset:{DBG_POL*4} sc1")
        A("s_mov_b64 exec, -1")
        A.label("K_PROBED")
        A("s_barrier")
        A.label("K_NOPROBE")
    if opt.gemm: gen_gemm(A, opt)
    if opt.followers:
        from gen_follow import gen_follow
        gen_follow(A, opt)
    A("s_waitcnt vmcnt(0)")
    A("s_endpgm")
    A.label("K_CHAIN")
    if opt.chain:
        from gen_chain import gen_chain
        gen_chain(A, opt)
    A.label("K_EXIT")
    A("s_endpgm")
    A.label("K_CODE_END")
    A.pad()
    if opt.al8:
        names = [x.text for x in A.ins]
        for P in ("CF0", "CF1"):
            if f"{P}_ENTRY:" not in names: continue
            names = [x.text for x in A.ins]
            a, b = names.index(f"{P}_ENTRY:"), names.index(f"{P}_PUB0:")
            A.ins[a:b] = align8(A.ins[a:b], opt.al8)
    hdr = open('gated_mix__memory_aug_recurrent_mem_tr__glu_gated_bilinear__prompt.s.ref').read().split('\n')
    head = [l for l in hdr if l.startswith(';') and '@launch' not in l]
    out = '\n'.join(head) + f"\n; @launch grid=(256,1,1) block=(256,1,1) lds={LDS_BYTES}\n"
    out += f""".amdgcn_target "amdgcn-amd-amdhsa--gfx950"
.text
.globl {KNAME}
.p2align 8
.type {KNAME},@function
{KNAME}:
""" + A.text() + f""".section .rodata,"a"
.p2align 6
.amdhsa_kernel {KNAME}
  .amdhsa_next_free_vgpr 512
  .amdhsa_next_free_sgpr 102
  .amdhsa_accum_offset 256
  .amdhsa_group_segment_fixed_size 0
  .amdhsa_kernarg_size 120
  .amdhsa_user_sgpr_count 2
  .amdhsa_user_sgpr_kernarg_segment_ptr 1
  .amdhsa_system_sgpr_workgroup_id_x 1
.end_amdhsa_kernel
"""
    return out

if __name__ == "__main__":
    opt = Opt()
    outp = sys.argv[1]
    for a in sys.argv[2:]:
        k, val = a.split('=', 1)
        setattr(opt, k, val if k in ('marks', 'drop', 'pubg') else int(val))
    if opt.useperm:
        import json
        opt.perm = json.load(open('perm.json'))
    open(outp, 'w').write(generate(opt))
```
